```python
import torch

def _softmax(x, axis=-1):
    return torch.softmax(x, dim=axis)
def _gelu(x):
    return torch.nn.functional.gelu(x, approximate="tanh")
def _silu(x):
    return torch.nn.functional.silu(x)
def _sigmoid(x):
    return torch.sigmoid(x)
def _layernorm(x, axis=-1, eps=1e-5):
    m = x.mean(dim=axis, keepdim=True)
    v = x.var(dim=axis, keepdim=True, unbiased=False)
    return (x - m) / torch.sqrt(v + eps)
def _scatter_add(tgt, idx, src, axis=0):
    return tgt.clone().index_add_(axis, idx, src)
def _segment_sum(src, seg, n):
    out = torch.zeros((n,) + src.shape[1:], dtype=src.dtype)
    return out.index_add_(0, seg, src)
def _pad(x, pw):
    flat = tuple(v for pair in reversed(pw) for v in pair)
    return torch.nn.functional.pad(x, flat)

kernel_name = 'gated_mix__sliding_block_cached__dense_activation_relu__decode'

def setup_inputs():

    _w = (lambda a: (lambda t: t.to(torch.bfloat16) if t.is_floating_point() else t)(torch.as_tensor(a)))
    def _A_setup():
        B, Sq, D = 2, 1, 448
        Hq, Hkv, Sk, Dh = 16, 8, 4096, 256
        assert Hq % Hkv == 0, (Hq, Hkv)
        return {
            "x": _w((lambda *s: torch.randn(*s, dtype=torch.bfloat16) * 0.05)(B, Sq, D)),
            "k_cache": _w((lambda *s: torch.randn(*s, dtype=torch.bfloat16) * 6.4)(B, Hkv, Sk, Dh)),
            "v_cache": _w((lambda *s: torch.randn(*s, dtype=torch.bfloat16) * 0.4)(B, Hkv, Sk, Dh)),
            "wq": _w((lambda *s: torch.randn(*s, dtype=torch.bfloat16) * 6.4)(D, Hq * Dh) * (D ** -0.5)),
            "wo": _w((lambda *s: torch.randn(*s, dtype=torch.bfloat16) * 0.4)(Hq * Dh, D) * ((Hq * Dh) ** -0.5)),
        }
    _A_in = _A_setup()

    def _B_setup():
        B, S, D, Dff = 2, 1, 448, 1792
        return {
            "x": _w((lambda *s: torch.randn(*s, dtype=torch.bfloat16) * 0.05)(B, S, D)),
            "w1": _w((lambda *s: torch.randn(*s, dtype=torch.bfloat16) * 0.05)(D, Dff)),
            "w2": _w((lambda *s: torch.randn(*s, dtype=torch.bfloat16) * 0.05)(Dff, D)),
        }
    _B_in = _B_setup()

    return {
        "A_x": _A_in["x"],
        "A_k_cache": _A_in["k_cache"],
        "A_v_cache": _A_in["v_cache"],
        "A_wq": _A_in["wq"],
        "A_wo": _A_in["wo"],
        "B_x": _B_in["x"],
        "B_w1": _B_in["w1"],
        "B_w2": _B_in["w2"],
        "gate_w": _w((lambda *s: torch.randn(*s, dtype=torch.bfloat16) * 0.05)(448) * 16.0),
    }

def reference(A_x, A_k_cache, A_v_cache, A_wq, A_wo, B_x, B_w1, B_w2, gate_w):
    def _A_ref(x, k_cache, v_cache, wq, wo):
        B, Sq, D = x.shape
        Hq, Dh = 16, 256
        Hkv, Sk = k_cache.shape[1], k_cache.shape[2]
        W = min(4096, max(256, Sk // 4))
        rep = Hq // Hkv
        q = (lambda x, *d: x.permute(*d))((x @ wq).reshape(B, Sq, Hq, Dh), 0, 2, 1, 3)
        k = (lambda x, n, axis: torch.repeat_interleave(x, n, dim=axis))(k_cache[:, :, Sk - W:, :], rep, axis=1)
        v = (lambda x, n, axis: torch.repeat_interleave(x, n, dim=axis))(v_cache[:, :, Sk - W:, :], rep, axis=1)
        scores = torch.einsum("bhqd,bhkd->bhqk", q, k) * (Dh ** -0.5)
        p = _softmax(scores, axis=-1)
        o = torch.einsum("bhqk,bhkd->bhqd", p, v)
        return (lambda x, *d: x.permute(*d))(o, 0, 2, 1, 3).reshape(B, Sq, Hq * Dh) @ wo

    def _B_ref(x, w1, w2):
        h = torch.einsum("bsd,df->bsf", x, w1)
        zero = torch.zeros_like(h)
        h = torch.maximum(h, zero)
        return torch.einsum("bsf,fd->bsd", h, w2)

    x = A_x
    g = _sigmoid((x * gate_w).sum(-1, keepdims=True))
    a = _A_ref(x, A_k_cache, A_v_cache, A_wq, A_wo)
    b = _B_ref(x, B_w1, B_w2)
    return g * a + (1 - g) * b
```

```python
NAME = "gated_mix__sliding_block_cached__dense_activation_relu__decode"

class Asm:
    def __init__(self):
        self.lines = []
        self.nlab = 0
    def __call__(self, s=""):
        for l in s.split("\n"):
            self.lines.append(l)
    def label(self, base="L"):
        self.nlab += 1
        return f"{base}_{self.nlab}"
    def text(self):
        return "\n".join(self.lines) + "\n"

def header(grid, block, lds, comment=""):
    return f"""; @launch grid=({grid},1,1) block=({block},1,1) lds={lds}
{comment}
.amdgcn_target "amdgcn-amd-amdhsa--gfx950"
.text
.globl {NAME}_kernel
.p2align 8
.type {NAME}_kernel,@function
{NAME}_kernel:
"""

def footer(vgpr=256, sgpr=102, accum=None, name=None):
    name = name or (NAME + "_kernel")
    accum = accum or ((min(vgpr, 256) + 3) // 4 * 4)
    return f""".section .rodata,"a"
.p2align 6
.amdhsa_kernel {name}
  .amdhsa_next_free_vgpr {vgpr}
  .amdhsa_next_free_sgpr {sgpr}
  .amdhsa_accum_offset {accum}
  .amdhsa_group_segment_fixed_size 0
  .amdhsa_kernarg_size 96
  .amdhsa_user_sgpr_count 2
  .amdhsa_user_sgpr_kernarg_segment_ptr 1
  .amdhsa_system_sgpr_workgroup_id_x 1
.end_amdhsa_kernel
"""

KA = dict(x=0, k=8, v=16, wq=24, wo=32, bx=40, w1=48, w2=56, gw=64, out=72, dbg=80, ws=88)
SZ = dict(x=2*448*2, k=2*8*4096*256*2, v=2*8*4096*256*2, wq=448*4096*2, wo=4096*448*2, bx=2*448*2,
          w1=448*1792*2, w2=1792*448*2, gw=448*2, out=896*2, dbg=256, ws=268435456)
```

```python
import sys
from asmlib import *

OPT = dict(ststride=16, statsfirst=0, ackstamp=0, odelay=0, sflag='sc1', sleep=0, stamp=0, order='F1', spin=200000, prefetch=1, nt=1, qwait=4)
for a_ in sys.argv[2:]:
    k, v = a_.split('=')
    OPT[k] = int(v) if v.lstrip('-').isdigit() else v
STAMP = OPT['stamp']
STS = OPT['ststride']; STSH = STS.bit_length() - 1

WS_E = 0
WS_QP = 0x1000
WS_HP = 0x11000
WS_ST = 0x20000
WS_OP = 0x40000
WS_AP = 0x140000
WS_TS = 0x200000

KBUF = 0
VBUF = 32768
RA = 65536
RB = 94208
XB = 108544
QB = 110592
OV = 111744
HV = 111872
GT = 111936
LDS_BYTES = 112128

C_LOG2E_16 = 0x3DB8AA3B
NT = " nt" if OPT['nt'] else ""

a = Asm()
nstamp = [0]
def stamp(k):
    if STAMP:
        a(f"  s_memrealtime s[{64+2*k}:{65+2*k}]")

def srd(dst, ptr, size):
    a(f"  s_mov_b32 s{dst}, s{ptr}")
    a(f"  s_mov_b32 s{dst+1}, s{ptr+1}")
    a(f"  s_mov_b32 s{dst+2}, {size}")
    a(f"  s_mov_b32 s{dst+3}, 0x20000")

def dma(voff, srdreg, soff, nt=True):
    a(f"  buffer_load_dwordx4 {voff}, s[{srdreg}:{srdreg+3}], {soff} offen{NT if nt else ''} lds")

def tagit(dst, src):
    a(f"  v_bfi_b32 {dst}, s32, vTAU, {src}".replace("vTAU", VTAU))

VTAU = "v4"
VL = "v5"

def check_regs(acc, regs, first):
    for r in regs:
        a(f"  v_xor_b32 v{r}, s31, v{r}")
    regs = list(regs)
    if first:
        if len(regs) >= 3:
            a(f"  v_or3_b32 {acc}, v{regs[0]}, v{regs[1]}, v{regs[2]}"); regs = regs[3:]
        else:
            a(f"  v_or_b32 {acc}, v{regs[0]}, v{regs[1]}"); regs = regs[2:]
    while len(regs) >= 2:
        a(f"  v_or3_b32 {acc}, {acc}, v{regs[0]}, v{regs[1]}"); regs = regs[2:]
    if regs:
        a(f"  v_or_b32 {acc}, {acc}, v{regs[0]}")

def check4(acc, r0, first):
    check_regs(acc, range(r0, r0+4), first)

def check2(acc, r0, first):
    check_regs(acc, [r0, r0+2], first)

def poll_end(acc, lab_retry, lab_ok, cnt="s33"):
    a(f"  v_and_b32 {acc}, 0xff, {acc}")
    a(f"  v_cmp_ne_u32 vcc, 0, {acc}")
    a(f"  s_add_u32 {cnt}, {cnt}, 1")
    a(f"  s_cmp_gt_u32 {cnt}, {OPT['spin']}")
    a(f"  s_cbranch_scc1 {lab_ok}")
    if OPT['sleep']:
        a(f"  s_cbranch_vccz {lab_ok}")
        a(f"  s_sleep {OPT['sleep']}")
        a(f"  s_branch {lab_retry}")
    else:
        a(f"  s_cbranch_vccnz {lab_retry}")
    a(f"{lab_ok}:")

def dump_stamps():
    if not STAMP:
        return
    a("  s_waitcnt lgkmcnt(0)")
    a("  s_mul_i32 s33, s2, 5")
    a("  s_add_u32 s33, s33, s30")
    a("  s_lshl_b32 s33, s33, 6")
    a(f"  s_add_u32 s33, s33, {WS_TS}")
    a("  v_mov_b32 v8, s33")
    a("  s_mov_b64 exec, 1")
    for q in range(4):
        for r in range(4):
            a(f"  v_mov_b32 v{12+r}, s{64+2*(4*q+r)}")
        a(f"  global_store_dwordx4 v8, v[12:15], s[26:27] offset:{16*q}")
        a("  s_nop 1")

a(header(256, 320, LDS_BYTES))
if STAMP:
    for k in range(16):
        a(f"  s_mov_b32 s{64+2*k}, 0")
stamp(0)
a("  s_getpc_b64 s[34:35]")
a("L_pc:")
a("  s_cmp_ge_u32 s2, 256")
a("  s_cbranch_scc1 L_end")
a("  s_load_dwordx16 s[4:19], s[0:1], 0")
a("  s_load_dwordx8 s[20:27], s[0:1], 64")
if OPT['prefetch']:
    a("  v_lshlrev_b32 v1, 5, v0")
    a("  v_min_u32 v1, L_code_end - L_pc - 4, v1")
    a("  global_load_dword v3, v1, s[34:35]")
else:
    a("  v_lshlrev_b32 v1, 2, v0")
    a("  global_load_dword v3, v1, s[34:35]")
a(f"""  v_lshrrev_b32 v2, 6, v0
  v_and_b32 {VL}, 63, v0
  s_and_b32 s28, s2, 7             ; g
  v_readfirstlane_b32 s30, v2
  s_lshr_b32 s29, s2, 3            ; j
  s_mov_b32 s32, 0xff
  v_lshrrev_b32 v8, 3, {VL}
  v_bfe_u32 v9, {VL}, 4, 2         ; (row>>1)&3
  v_and_b32 v10, 7, {VL}
  v_lshlrev_b32 v11, 1, v9
  v_xor_b32 v11, v11, v10
  v_lshlrev_b32 v11, 4, v11        ; *16 bytes
  v_xor_b32 v12, v9, v10
  v_lshlrev_b32 v12, 4, v12
  v_lshrrev_b32 v13, 4, {VL}       ; g4
  v_bfe_u32 v14, {VL}, 2, 2        ; r4
  v_lshl_add_u32 v15, v13, 2, v14  ; row = 4*g4+r4
  v_bfe_u32 v16, v15, 1, 2         ; f
  v_and_b32 v17, 3, {VL}           ; c
  v_lshlrev_b32 v15, 7, v15
  v_lshl_add_u32 v15, v17, 3, v15  ; row*128 + c*8
  s_waitcnt lgkmcnt(0)
  s_load_dword s31, s[26:27], {WS_E}
""")
stamp(1)
a("  s_cmp_eq_u32 s30, 0")
a("  s_cbranch_scc1 L_aux")

def tau_setup():
    a("  s_and_b32 s31, s31, 0xff")
    a("  s_mul_i32 s31, s31, 5")
    a("  s_add_u32 s31, s31, 59")
    a("  s_and_b32 s31, s31, 0xff")
    a(f"  v_mov_b32 {VTAU}, s31")

a("L_att:")
a(f"""  s_sub_u32 s36, s30, 1            ; v
  s_and_b32 s37, s36, 1            ; kh
  s_lshr_b32 s38, s36, 1           ; dh
  s_and_b32 s39, s29, 1            ; b
  s_lshr_b32 s40, s29, 1           ; s (0..15)
  s_lshl_b32 s41, s39, 3
  s_add_u32 s41, s41, s28          ; b*8+g
  s_lshl_b32 s41, s41, 21          ; *4096*512
  s_lshl_b32 s42, s40, 15          ; s*64*512
  s_add_u32 s41, s41, s42
  s_lshl_b32 s42, s37, 14          ; kh*32*512
  s_add_u32 s41, s41, s42
  s_lshl_b32 s42, s38, 8           ; dh*256
  s_add_u32 s41, s41, s42
  s_add_u32 s41, s41, {3072*512}
  s_lshl_b32 s43, s38, 14          ; 2*dh*8192
  s_lshl_b32 s42, s37, 12          ; kh*32*128
  s_add_u32 s43, s43, s42
  v_lshlrev_b32 v18, 9, v8         ; row*512
  v_add_u32 v19, v18, v12
  v_xor_b32 v20, 64, v19
  v_add_u32 v21, v18, v11          ; V voffset
""")
srd(44, 6, SZ['k'])
srd(48, 8, SZ['v'])
if OPT['order'] == 'F1':
    a("  s_barrier")
for c2 in range(2):
    for jj in range(4):
        a(f"  s_add_u32 m0, s43, {KBUF + c2*8192 + jj*1024}")
        a(f"  s_add_u32 s42, s41, {c2*128 + jj*4096}")
        dma("v20" if jj & 1 else "v19", 44, "s42")
for c2 in range(2):
    for jj in range(4):
        a(f"  s_add_u32 m0, s43, {VBUF + c2*8192 + jj*1024}")
        a(f"  s_add_u32 s42, s41, {c2*128 + jj*4096}")
        dma("v21", 48, "s42")
stamp(2)
a("  s_waitcnt lgkmcnt(0)")
tau_setup()
a(f"""  ; K operand address: tile key = l&15 : key*128 + ((g4) ^ ((key>>1)&7))*16
  v_and_b32 v22, 15, {VL}
  v_bfe_u32 v23, {VL}, 1, 3
  v_xor_b32 v23, v23, v13
  v_lshlrev_b32 v23, 4, v23
  v_lshl_add_u32 v22, v22, 7, v23
  s_lshl_b32 s42, s37, 12
  v_add_u32 v22, s42, v22          ; + kh*32*128
  v_xor_b32 v23, 64, v22
  s_add_u32 s42, s43, {VBUF}
""")
for nb in range(4):
    a(f"  v_xor_b32 v{24+nb}, {nb}, v16")
    a(f"  v_lshl_add_u32 v{24+nb}, v{24+nb}, 5, v15")
    a(f"  v_add_u32 v{24+nb}, s42, v{24+nb}")
a(f"""  ; q operand address: QB + (l&1)*576 + g4*16
  v_and_b32 v28, 1, {VL}
  v_mul_u32_u24 v28, 576, v28
  v_lshl_add_u32 v28, v13, 4, v28
  v_add_u32 v28, {QB}, v28
  s_waitcnt vmcnt(8)
""")
stamp(3)
a("  s_barrier")
for tt in range(2):
    for t in range(8):
        r = 64 + (tt*8 + t)*4
        a(f"  ds_read_b128 v[{r}:{r+3}], v{23 if t & 1 else 22} offset:{KBUF + (t>>1)*8192 + tt*2048}")
a(f"""  s_cmp_ge_u32 s36, 2
  s_cbranch_scc1 L_att_noq
  s_lshl_b32 s42, s28, 13
  s_lshl_b32 s45, s39, 11
  s_add_u32 s42, s42, s45
  s_lshl_b32 s45, s36, 10
  s_add_u32 s42, s42, s45
  s_add_u32 s42, s42, {WS_QP}
  v_lshlrev_b32 v29, 4, {VL}
  v_add_u32 v29, s42, v29
  v_add_u32 v30, 4096, v29
  s_mov_b32 s33, 0
  s_waitcnt vmcnt({OPT['qwait']})
""")
stamp(4)
a(f"""L_qpoll:
  global_load_dwordx4 v[32:35], v29, s[26:27] sc1
  global_load_dwordx4 v[36:39], v30, s[26:27] sc1
  s_waitcnt vmcnt(0)
""")
check4("v40", 32, True)
check4("v40", 36, False)
poll_end("v40", "L_qpoll", "L_qok")
stamp(5)
if STAMP: a("  s_mov_b32 s90, s33")
a(f"""  v_add_f32 v32, v32, v36
  v_add_f32 v33, v33, v37
  v_add_f32 v34, v34, v38
  v_add_f32 v35, v35, v39
  v_cvt_pk_bf16_f32 v32, v32, v33
  v_cvt_pk_bf16_f32 v33, v34, v35
  s_mul_i32 s42, s36, 576
  s_add_u32 s42, s42, {QB}
  v_lshlrev_b32 v29, 3, {VL}
  v_add_u32 v29, s42, v29
  ds_write_b64 v29, v[32:33]
L_att_noq:
  s_waitcnt vmcnt(0)
""")
for nbk in range(8):
    r = 160 + 4*nbk
    off = (nbk >> 2)*8192
    a(f"  ds_read_b64_tr_b16 v[{r}:{r+1}], v{24 + (nbk & 3)} offset:{off}")
    a(f"  ds_read_b64_tr_b16 v[{r+2}:{r+3}], v{24 + (nbk & 3)} offset:{off + 2048}")
a("  s_waitcnt lgkmcnt(0)")
a("  s_barrier")
stamp(6)
for t in range(8):
    a(f"  ds_read_b128 v[{128+4*t}:{131+4*t}], v28 offset:{64*t}")
for r in range(32, 40):
    a(f"  v_mov_b32 v{r}, 0")
a("  s_waitcnt lgkmcnt(0)")
for t in range(8):
    for tt in range(2):
        kr = 64 + (tt*8 + t)*4
        a(f"  v_mfma_f32_16x16x32_bf16 v[{32+4*tt}:{35+4*tt}], v[{kr}:{kr+3}], v[{128+4*t}:{131+4*t}], v[{32+4*tt}:{35+4*tt}]")
a("  s_nop 7")
a(f"""  v_max3_f32 v44, v32, v33, v34
  v_max3_f32 v44, v44, v35, v36
  v_max3_f32 v44, v44, v37, v38
  v_max_f32 v44, v44, v39
  v_mov_b32 v45, v44
  s_nop 1
  v_permlane16_swap_b32 v44, v45
  v_max_f32 v44, v44, v45
  v_mov_b32 v45, v44
  s_nop 1
  v_permlane32_swap_b32 v44, v45
  v_max_f32 v44, v44, v45
  s_mov_b32 s42, {C_LOG2E_16:#x}
  v_mul_f32 v44, s42, v44
""")
a("  v_and_b32 v44, 0xffffff00, v44")
for r in range(8):
    a(f"  v_fma_f32 v{32+r}, v{32+r}, s42, -v44")
for r in range(8):
    a(f"  v_exp_f32 v{32+r}, v{32+r}")
a("  s_nop 0")
for r in range(4):
    a(f"  v_cvt_pk_bf16_f32 v{40+r}, v{32+2*r}, v{33+2*r}")
a("  v_mov_b32 v46, 0x3f803f80")
for r in range(46+1, 50):
    a(f"  v_mov_b32 v{r}, v46")
a("  s_nop 1")
for nbk in range(8):
    a(f"  v_mfma_f32_16x16x32_bf16 v[{192+4*nbk}:{195+4*nbk}], v[40:43], v[{160+4*nbk}:{163+4*nbk}], 0")
a("  v_mfma_f32_16x16x32_bf16 v[224:227], v[40:43], v[46:49], 0")
a(f"""  s_lshl_b32 s42, s28, 1
  s_add_u32 s42, s42, s39
  s_lshl_b32 s42, s42, 5
  s_lshl_b32 s45, s40, 1
  s_add_u32 s42, s42, s45
  s_add_u32 s42, s42, s37
  s_lshl_b32 s45, s42, 11
  s_lshl_b32 s46, s38, 10
  s_add_u32 s45, s45, s46
  s_add_u32 s45, s45, {WS_OP}
  v_lshlrev_b32 v29, 3, {VL}
  v_add_u32 v29, s45, v29
  s_lshl_b32 s46, s42, {STSH}
  s_add_u32 s46, s46, {WS_ST}
  v_mov_b32 v30, s46
  s_mov_b64 exec, 0xffff
  s_nop 0
""")
for nbk in range(8):
    r = 192 + 4*nbk
    tagit(f"v{r}", f"v{r}")
    a(f"  global_store_dwordx2 v29, v[{r}:{r+1}], s[26:27] offset:{128*nbk} sc1")
a(f"""  s_cmp_lg_u32 s38, 0
  s_cbranch_scc1 L_nostats
  v_or_b32 v52, s31, v44
  s_nop 1
  v_mov_b32_dpp v54, v52 quad_perm:[1,0,3,2] row_mask:0xf bank_mask:0xf
""")
tagit("v53", "v224")
tagit("v55", "v225")
a(f"""  s_mov_b64 exec, 1
  global_store_dwordx4 v30, v[52:55], s[26:27] sc1
L_nostats:
  s_mov_b64 exec, -1
""")
stamp(7)
if OPT['ackstamp']:
    a("  s_waitcnt vmcnt(0)")
    stamp(11)
a("  s_cmp_lt_u32 s29, 16")
a("  s_cbranch_scc1 L_wstage")
a("  s_barrier                        ; barrier C")
dump_stamps()
a("  s_endpgm")

a("L_wstage:")
a(f"""  v_xor_b32 v24, s36, v16
  v_lshl_add_u32 v24, v24, 5, v15
  v_add_u32 v25, {RB}, v24
  v_add_u32 v24, {RA}, v24
""")
for cb in range(7):
    a(f"  ds_read_b64_tr_b16 v[{64+4*cb}:{65+4*cb}], v24 offset:{cb*4096}")
    a(f"  ds_read_b64_tr_b16 v[{66+4*cb}:{67+4*cb}], v24 offset:{cb*4096+2048}")
for cb in range(7):
    a(f"  ds_read_b64_tr_b16 v[{92+2*cb}:{93+2*cb}], v25 offset:{cb*2048}")
a(f"""  ; h operand: HV + (l&1)*32 + g4*8
  v_and_b32 v26, 1, {VL}
  v_lshlrev_b32 v27, 5, v26
  v_lshl_add_u32 v27, v13, 3, v27
  v_add_u32 v27, {HV}, v27
  ds_read_b64 v[106:107], v27
  v_lshlrev_b32 v28, 6, v26
  v_lshl_add_u32 v28, v13, 3, v28
  v_add_u32 v28, {OV}, v28
  s_lshl_b32 s42, s38, 2
  s_add_u32 s42, s42, {GT}
  v_mov_b32 v29, s42
  ds_read_b32 v50, v29
  s_lshl_b32 s42, s28, 1
  s_add_u32 s42, s42, s38
  s_lshl_b32 s45, s42, 16
  s_lshl_b32 s46, s29, 7
  s_add_u32 s45, s45, s46
  s_lshl_b32 s46, s37, 6
  s_add_u32 s45, s45, s46
  s_add_u32 s45, s45, {WS_OP}
  v_lshrrev_b32 v29, 2, {VL}       ; s16
  v_lshlrev_b32 v30, 11, v29
  v_and_b32 v31, 3, {VL}
  v_lshl_add_u32 v30, v31, 4, v30
  v_add_u32 v30, s45, v30
  v_add_u32 v31, 32768, v30        ; s16+16
  s_lshl_b32 s42, s42, {5+STSH}
  s_add_u32 s42, s42, {WS_ST}
  v_lshl_add_u32 v29, v29, {STSH}, s42
  s_waitcnt lgkmcnt(0)
""")
for cb in range(7):
    a(f"  v_mfma_f32_16x16x16_bf16 v[{110+4*cb}:{113+4*cb}], v[106:107], v[{92+2*cb}:{93+2*cb}], 0")
a("  s_mov_b32 s33, 0")
if OPT['odelay']:
    a("  s_memrealtime s[58:59]\n  s_waitcnt lgkmcnt(0)\n  s_mov_b32 s60, s58\nL_od:\n  s_memrealtime s[58:59]\n  s_waitcnt lgkmcnt(0)\n  s_sub_u32 s61, s58, s60")
    a(f"  s_cmp_lt_u32 s61, {OPT['odelay']}\n  s_cbranch_scc1 L_od")
stamp(8)
if OPT['statsfirst']:
    a(f"""L_spoll:
  global_load_dwordx4 v[40:43], v29, s[26:27] sc1
  global_load_dwordx4 v[44:47], v29, s[26:27] offset:{16*STS} sc1
  s_waitcnt vmcnt(0)
""")
    check4("v48", 40, True)
    check4("v48", 44, False)
    poll_end("v48", "L_spoll", "L_sok")
    if STAMP: a("  s_mov_b32 s92, s33")
    stamp(11)
    a(f"""L_opoll:
  global_load_dwordx4 v[32:35], v30, s[26:27] sc1
  global_load_dwordx4 v[36:39], v31, s[26:27] sc1
  s_waitcnt vmcnt(0)
""")
    check2("v48", 32, True)
    check2("v48", 36, False)
else:
    a(f"""L_opoll:
  global_load_dwordx4 v[32:35], v30, s[26:27] sc1
  global_load_dwordx4 v[36:39], v31, s[26:27] sc1
  global_load_dwordx4 v[40:43], v29, s[26:27] sc1
  global_load_dwordx4 v[44:47], v29, s[26:27] offset:{16*STS} sc1
  s_waitcnt vmcnt(0)
""")
    check2("v48", 32, True)
    check2("v48", 36, False)
    check4("v48", 40, False)
    check4("v48", 44, False)
poll_end("v48", "L_opoll", "L_ook")
stamp(9)
if STAMP: a("  s_mov_b32 s88, s33")
a(f"""  v_max_f32 v52, v40, v44          ; m0
  v_max_f32 v53, v42, v46          ; m1
  s_nop 1
  v_permlane16_swap_b32 v52, v53
  v_max_f32 v52, v52, v53          ; rows: h0(01) h1(01) h0(23) h1(23)
  v_mov_b32 v53, v52
  s_nop 1
  v_permlane32_swap_b32 v52, v53
  v_max_f32 v52, v52, v53
  s_nop 1
  v_max_f32_dpp v52, v52, v52 row_shr:4 row_mask:0xf bank_mask:0xf
  s_nop 1
  v_max_f32_dpp v52, v52, v52 row_shr:8 row_mask:0xf bank_mask:0xf
  s_nop 1
  v_readlane_b32 s42, v52, 15
  v_readlane_b32 s45, v52, 31
  s_nop 1
  v_subrev_f32 v40, s42, v40
  v_subrev_f32 v44, s42, v44
  v_subrev_f32 v42, s45, v42
  v_subrev_f32 v46, s45, v46
  v_exp_f32 v40, v40
  v_exp_f32 v44, v44
  v_exp_f32 v42, v42
  v_exp_f32 v46, v46
  s_nop 0
  v_mul_f32 v32, v32, v40
  v_mul_f32 v33, v33, v42
  v_mul_f32 v34, v34, v40
  v_mul_f32 v35, v35, v42
  v_fmac_f32 v32, v36, v44
  v_fmac_f32 v33, v37, v46
  v_fmac_f32 v34, v38, v44
  v_fmac_f32 v35, v39, v46
  v_mul_f32 v52, v41, v40          ; den h0
  v_mul_f32 v53, v43, v42          ; den h1
  v_fmac_f32 v52, v45, v44
  v_fmac_f32 v53, v47, v46
  s_nop 1
  v_permlane16_swap_b32 v32, v33
  v_permlane16_swap_b32 v34, v35
  v_permlane16_swap_b32 v52, v53
  v_add_f32 v32, v32, v33
  v_add_f32 v34, v34, v35
  v_add_f32 v52, v52, v53
  v_mov_b32 v53, v52
  s_nop 1
  v_permlane32_swap_b32 v32, v34
  v_permlane32_swap_b32 v52, v53
  v_add_f32 v32, v32, v34
  v_add_f32 v52, v52, v53          ; rows h0 h1 h0 h1
  s_nop 1
  v_add_f32_dpp v32, v32, v32 row_shr:4 row_mask:0xf bank_mask:0xf
  v_add_f32_dpp v52, v52, v52 row_shr:4 row_mask:0xf bank_mask:0xf
  s_nop 1
  v_add_f32_dpp v32, v32, v32 row_shr:8 row_mask:0xf bank_mask:0xf
  v_add_f32_dpp v52, v52, v52 row_shr:8 row_mask:0xf bank_mask:0xf
  s_nop 1
  v_rcp_f32 v52, v52
  s_nop 0
  v_mul_f32 v32, v32, v52
  v_mul_f32 v32, v32, v50          ; * gate
  v_cvt_pk_bf16_f32 v32, v32, v32
  ; OV + b'*64 + h*32 + d*2
  v_and_b32 v33, 3, {VL}
  v_lshlrev_b32 v33, 2, v33        ; c4*4 bytes
  v_and_b32 v34, 1, v13
  v_lshl_add_u32 v33, v34, 5, v33
  v_lshrrev_b32 v34, 1, v13
  v_lshl_add_u32 v33, v34, 1, v33
  s_lshl_b32 s42, s38, 6
  s_lshl_b32 s45, s37, 4
  s_add_u32 s42, s42, s45
  s_add_u32 s42, s42, {OV}
  v_add_u32 v33, s42, v33
  s_mov_b32 s56, 0xf000f000
  s_mov_b32 s57, 0xf000f000
  s_mov_b64 exec, s[56:57]
  ds_write_b16 v33, v32
  s_mov_b64 exec, -1
  s_waitcnt lgkmcnt(0)
  s_barrier                        ; barrier D
  ds_read2_b64 v[40:43], v28 offset0:0 offset1:4
  s_lshl_b32 s42, s28, 4
  s_add_u32 s42, s42, s29
  s_lshl_b32 s42, s42, 12
  s_lshl_b32 s45, s36, 7
  s_add_u32 s42, s42, s45
  s_add_u32 s42, s42, {WS_AP}
  v_lshlrev_b32 v29, 3, {VL}
  v_add_u32 v29, s42, v29
  s_waitcnt lgkmcnt(0)
""")
for cb in range(7):
    a(f"  v_mfma_f32_16x16x32_bf16 v[{110+4*cb}:{113+4*cb}], v[40:43], v[{64+4*cb}:{67+4*cb}], v[{110+4*cb}:{113+4*cb}]")
a("  s_mov_b64 exec, 0xffff")
a("  s_nop 4")
for cb in range(7):
    r = 110 + 4*cb
    tagit(f"v{r}", f"v{r}")
    a(f"  global_store_dwordx2 v29, v[{r}:{r+1}], s[26:27] offset:{512*cb} sc1")
stamp(10)
a("  s_mov_b64 exec, -1")
dump_stamps()
a("  s_endpgm")

a("L_aux:")
a("  s_setprio 3")
a("  s_cmp_lt_u32 s29, 16")
a("  s_cbranch_scc1 L_aux_w")
a(f"""  s_sub_u32 s36, s29, 16           ; p
  s_and_b32 s37, s36, 7            ; cb
  s_lshr_b32 s38, s36, 3           ; kh
  s_lshl_b32 s39, s28, 4
  s_add_u32 s39, s39, s36          ; u1 = g*16+p
  s_lshr_b32 s40, s39, 2           ; cbh
  s_and_b32 s41, s39, 3            ; kp
""")
srd(44, 10, SZ['wq'])
srd(48, 16, SZ['w1'])
srd(52, 4, SZ['x'])
a(f"""  ; x -> LDS (2 pieces, tail out of range -> zeros)
  v_lshlrev_b32 v18, 4, {VL}
  v_add_u32 v21, 1024, v18
  s_mov_b32 m0, {XB}
  s_nop 0
  buffer_load_dwordx4 v18, s[52:55], 0 offen lds
  s_mov_b32 m0, {XB+1024}
  s_nop 0
  buffer_load_dwordx4 v21, s[52:55], 0 offen lds
  v_lshl_add_u32 v19, v8, 13, v11
  s_mul_i32 s42, s38, {224*8192}
  s_lshl_b32 s43, s28, 10
  s_add_u32 s42, s42, s43
  s_lshl_b32 s43, s37, 7
  s_add_u32 s42, s42, s43
  s_mov_b32 m0, {RA}
  s_mov_b32 s43, 0
L_wq_loop:
""")
dma("v19", 44, "s42")
a(f"""  s_add_u32 s42, s42, {8*8192}
  s_add_u32 m0, m0, 1024
  s_add_u32 s43, s43, 1
  s_cmp_lt_u32 s43, 28
  s_cbranch_scc1 L_wq_loop
  v_mul_u32_u24 v20, 3584, v8
  v_add_u32 v20, v20, v11
  s_mul_i32 s42, s41, {112*3584}
  s_min_u32 s43, s40, 27
  s_lshl_b32 s43, s43, 7
  s_add_u32 s42, s42, s43
  s_cmp_lt_u32 s39, 112
  s_cselect_b32 s43, 0, 0x40000000
  v_add_u32 v20, s43, v20
  s_mov_b32 m0, {RB}
  s_mov_b32 s43, 0
L_w1_loop:
""")
dma("v20", 48, "s42")
a(f"""  s_add_u32 s42, s42, {8*3584}
  s_add_u32 m0, m0, 1024
  s_add_u32 s43, s43, 1
  s_cmp_lt_u32 s43, 14
  s_cbranch_scc1 L_w1_loop
""")
if OPT['order'] == 'F1':
    a("  s_barrier                        ; barrier 0")
stamp(2)
a("  s_waitcnt lgkmcnt(0)")
tau_setup()
for nb in range(4):
    a(f"  v_xor_b32 v{24+nb}, {nb}, v16")
    a(f"  v_lshl_add_u32 v{24+nb}, v{24+nb}, 5, v15")
    a(f"  v_add_u32 v{24+nb}, {RA}, v{24+nb}")
a(f"""  v_and_b32 v28, 1, {VL}
  v_mul_u32_u24 v28, 896, v28
  v_lshl_add_u32 v28, v13, 3, v28
  v_add_u32 v28, {XB}, v28         ; XB + b*896 + g4*8
  s_mul_i32 s42, s38, 448
  v_add_u32 v29, s42, v28
  s_mul_i32 s42, s41, 224
  v_add_u32 v30, s42, v28
""")
for r in range(32, 48):
    a(f"  v_mov_b32 v{r}, 0")
for st in range(7):
    a(f"  s_waitcnt vmcnt({38 - 4*st})")
    a(f"  ds_read2_b64 v[48:51], v29 offset0:{8*st} offset1:{8*st+4}")
    for nb in range(4):
        a(f"  ds_read_b64_tr_b16 v[{52+4*nb}:{53+4*nb}], v{24+nb} offset:{st*4096}")
        a(f"  ds_read_b64_tr_b16 v[{54+4*nb}:{55+4*nb}], v{24+nb} offset:{st*4096+2048}")
    a("  s_waitcnt lgkmcnt(0)")
    for nb in range(4):
        a(f"  v_mfma_f32_16x16x32_bf16 v[{32+4*nb}:{35+4*nb}], v[48:51], v[{52+4*nb}:{55+4*nb}], v[{32+4*nb}:{35+4*nb}]")
stamp(3)
def merge4(base):
    a("  s_nop 7")
    for r in range(2):
        a(f"  v_permlane16_swap_b32 v{base+r}, v{base+4+r}")
        a(f"  v_permlane16_swap_b32 v{base+8+r}, v{base+12+r}")
    a("  s_nop 1")
    for r in range(2):
        a(f"  v_permlane32_swap_b32 v{base+r}, v{base+8+r}")
    a("  s_nop 1")
merge4(32)
tagit("v32", "v32")
tagit("v33", "v33")
a(f"""  ; QP + ((g*2+kh)*2)*2048 + cb*256 + l*4 ; batch 1 at +2048
  s_lshl_b32 s42, s28, 13
  s_lshl_b32 s43, s38, 12
  s_add_u32 s42, s42, s43
  s_lshl_b32 s43, s37, 8
  s_add_u32 s42, s42, s43
  s_add_u32 s42, s42, {WS_QP}
  v_lshlrev_b32 v31, 2, {VL}
  v_add_u32 v31, s42, v31
  global_store_dword v31, v32, s[26:27] sc1
  global_store_dword v31, v33, s[26:27] offset:2048 sc1
""")
stamp(4)
for nb in range(4):
    a(f"  v_add_u32 v{24+nb}, {RB-RA}, v{24+nb}")
for r in range(32, 48):
    a(f"  v_mov_b32 v{r}, 0")
a("  s_waitcnt vmcnt(2)")
for st in range(3):
    a(f"  ds_read2_b64 v[48:51], v30 offset0:{8*st} offset1:{8*st+4}")
    for nb in range(4):
        a(f"  ds_read_b64_tr_b16 v[{52+4*nb}:{53+4*nb}], v{24+nb} offset:{st*4096}")
        a(f"  ds_read_b64_tr_b16 v[{54+4*nb}:{55+4*nb}], v{24+nb} offset:{st*4096+2048}")
    a("  s_waitcnt lgkmcnt(0)")
    for nb in range(4):
        a(f"  v_mfma_f32_16x16x32_bf16 v[{32+4*nb}:{35+4*nb}], v[48:51], v[{52+4*nb}:{55+4*nb}], v[{32+4*nb}:{35+4*nb}]")
a(f"  ds_read_b64 v[48:49], v30 offset:{3*64}")
for nb in range(4):
    a(f"  ds_read_b64_tr_b16 v[{52+4*nb}:{53+4*nb}], v{24+nb} offset:{3*4096}")
a("  s_waitcnt lgkmcnt(0)")
for nb in range(4):
    a(f"  v_mfma_f32_16x16x16_bf16 v[{32+4*nb}:{35+4*nb}], v[48:49], v[{52+4*nb}:{53+4*nb}], v[{32+4*nb}:{35+4*nb}]")
merge4(32)
tagit("v32", "v32")
tagit("v33", "v33")
a(f"""  ; HP + (kp*2)*7168 + cbh*256 + l*4 ; batch 1 at +7168
  s_cmp_ge_u32 s39, 112
  s_cbranch_scc1 L_nohpub
  s_mul_i32 s42, s41, {2*7168}
  s_lshl_b32 s43, s40, 8
  s_add_u32 s42, s42, s43
  s_add_u32 s42, s42, {WS_HP}
  v_lshlrev_b32 v31, 2, {VL}
  v_add_u32 v31, s42, v31
  v_add_u32 v30, 7168, v31
  global_store_dword v31, v32, s[26:27] sc1
  global_store_dword v30, v33, s[26:27] sc1
L_nohpub:
""")
stamp(5)
a(f"""  s_cmp_lt_u32 s36, 7
  s_cbranch_scc1 L_final
""")
dump_stamps()
a("  s_endpgm")
a(f"""L_final:
  s_lshl_b32 s37, s36, 3
  s_add_u32 s37, s37, s28          ; c
  v_lshrrev_b32 v29, 2, {VL}       ; u16
  v_lshlrev_b32 v30, 12, v29
  v_and_b32 v31, 3, {VL}
  v_lshl_add_u32 v30, v31, 4, v30
  s_lshl_b32 s42, s37, 6
  s_add_u32 s42, s42, {WS_AP}
  v_add_u32 v30, s42, v30
  s_barrier                        ; barrier A
  s_barrier                        ; barrier B
  s_barrier                        ; barrier C
  s_mov_b32 s33, 0
""")
stamp(8)
a("L_fpoll:")
for k in range(8):
    a(f"  v_add_u32 v28, {k*65536}, v30")
    a(f"  global_load_dwordx4 v[{32+4*k}:{35+4*k}], v28, s[26:27] sc1")
a("  s_waitcnt vmcnt(0)")
check_regs("v64", [32+4*k+q for k in range(8) for q in (0, 2)], True)
poll_end("v64", "L_fpoll", "L_fok")
stamp(9)
if STAMP: a("  s_mov_b32 s88, s33")
for k in range(1, 8):
    for r in range(4):
        a(f"  v_add_f32 v{32+r}, v{32+r}, v{32+4*k+r}")
a(f"""  s_nop 1
  v_permlane16_swap_b32 v32, v33
  v_permlane16_swap_b32 v34, v35
  v_add_f32 v32, v32, v33
  v_add_f32 v34, v34, v35
  s_nop 1
  v_permlane32_swap_b32 v32, v34
  v_add_f32 v32, v32, v34
  s_nop 1
  v_add_f32_dpp v32, v32, v32 row_shr:4 row_mask:0xf bank_mask:0xf
  s_nop 1
  v_add_f32_dpp v32, v32, v32 row_shr:8 row_mask:0xf bank_mask:0xf
  s_nop 1
  v_cvt_pk_bf16_f32 v32, v32, v32
  ; out + b*896 + (8c + 2*c4 + (r>>1))*2
  v_and_b32 v33, 1, v13
  v_mul_u32_u24 v33, 896, v33
  v_lshl_add_u32 v33, v31, 2, v33
  v_lshrrev_b32 v34, 1, v13
  v_lshl_add_u32 v33, v34, 1, v33
  s_lshl_b32 s42, s37, 4
  v_add_u32 v33, s42, v33
  s_mov_b32 s56, 0xf000f000
  s_mov_b32 s57, 0xf000f000
  s_mov_b64 exec, s[56:57]
  global_store_short v33, v32, s[22:23] sc1
  s_cmp_lg_u32 s37, 0
  s_cbranch_scc1 L_noE
  s_mov_b64 exec, 1
  v_mov_b32 v34, {WS_E}
  global_store_dword v34, {VTAU}, s[26:27] sc1
L_noE:
  s_mov_b64 exec, -1
""")
stamp(10)
dump_stamps()
a("  s_endpgm")

a("L_aux_w:")
a(f"""  s_lshl_b32 s39, s28, 4
  s_add_u32 s39, s39, s29          ; u = g*16 + j
""")
srd(44, 12, SZ['wo'])
srd(48, 18, SZ['w2'])
a(f"""  v_mul_u32_u24 v19, 896, v8
  v_add_u32 v19, v19, v11
  v_lshlrev_b32 v18, 4, {VL}
  s_mov_b32 s56, -1
  s_mov_b32 s57, 0x00ffffff
  s_mov_b64 exec, s[56:57]
  global_load_dwordx4 v[32:35], v18, s[4:5]
  global_load_dwordx4 v[36:39], v18, s[4:5] offset:896
  global_load_dwordx4 v[40:43], v18, s[20:21]
  s_mov_b64 exec, -1
  s_lshl_b32 s40, s28, 9
  s_lshl_b32 s41, s29, 4
  s_add_u32 s40, s40, s41
  s_mul_i32 s40, s40, 896
""")
a("  s_mov_b32 s43, 0")
a(f"  s_mov_b32 s41, {RA}")
a("L_wo_loop:")
for q in range(4):
    h, half = q >> 1, q & 1
    a(f"  s_add_u32 m0, s41, {q*1024}")
    a(f"  s_add_u32 s42, s40, {h*256*896 + half*8*896}")
    dma("v19", 44, "s42")
a(f"""  s_add_u32 s40, s40, 128
  s_add_u32 s41, s41, 4096
  s_add_u32 s43, s43, 1
  s_cmp_lt_u32 s43, 7
  s_cbranch_scc1 L_wo_loop
  s_min_u32 s40, s39, 111
  s_mul_i32 s40, s40, {16*896}
  s_cmp_lt_u32 s39, 112
  s_cselect_b32 s41, 0, 0x40000000
  v_add_u32 v20, s41, v19
  s_mov_b32 s41, {RB}
  s_mov_b32 s43, 0
L_w2_loop:
""")
for q in range(2):
    a(f"  s_add_u32 m0, s41, {q*1024}")
    a(f"  s_add_u32 s42, s40, {q*8*896}")
    dma("v20", 48, "s42")
a(f"""  s_add_u32 s40, s40, 128
  s_add_u32 s41, s41, 2048
  s_add_u32 s43, s43, 1
  s_cmp_lt_u32 s43, 7
  s_cbranch_scc1 L_w2_loop
""")
if OPT['order'] == 'F1':
    a("  s_barrier                        ; barrier 0")
stamp(2)
a("  s_waitcnt lgkmcnt(0)")
tau_setup()
a("  s_waitcnt vmcnt(42)")
a("  v_mov_b32 v44, 0")
a("  v_mov_b32 v45, 0")
for r in range(4):
    a(f"  v_lshlrev_b32 v46, 16, v{40+r}")
    a(f"  v_and_b32 v47, 0xffff0000, v{40+r}")
    for b in range(2):
        a(f"  v_lshlrev_b32 v48, 16, v{32+4*b+r}")
        a(f"  v_and_b32 v49, 0xffff0000, v{32+4*b+r}")
        a(f"  v_mul_f32 v48, v48, v46")
        a(f"  v_mul_f32 v49, v49, v47")
        a(f"  v_cvt_pk_bf16_f32 v48, v48, v49")
        a(f"  v_lshlrev_b32 v49, 16, v48")
        a(f"  v_and_b32 v48, 0xffff0000, v48")
        a(f"  v_add_f32 v{44+b}, v{44+b}, v49")
        a(f"  v_add_f32 v{44+b}, v{44+b}, v48")
a(f"""  ; lanes 56..63 hold garbage products -> zero them
  v_cmp_gt_u32 vcc, 56, {VL}
  s_nop 1
  v_cndmask_b32 v44, 0, v44, vcc
  v_cndmask_b32 v45, 0, v45, vcc
  s_nop 1
""")
for sh in (1, 2, 4, 8):
    a(f"  v_add_f32_dpp v44, v44, v44 row_shr:{sh} row_mask:0xf bank_mask:0xf")
    a(f"  v_add_f32_dpp v45, v45, v45 row_shr:{sh} row_mask:0xf bank_mask:0xf")
    a("  s_nop 1")
a(f"""  v_add_f32_dpp v44, v44, v44 row_bcast:15 row_mask:0xa bank_mask:0xf
  v_add_f32_dpp v45, v45, v45 row_bcast:15 row_mask:0xa bank_mask:0xf
  s_nop 1
  v_add_f32_dpp v44, v44, v44 row_bcast:31 row_mask:0xc bank_mask:0xf
  v_add_f32_dpp v45, v45, v45 row_bcast:31 row_mask:0xc bank_mask:0xf
  s_nop 1
  v_readlane_b32 s42, v44, 63
  v_readlane_b32 s43, v45, 63
  s_nop 1
  v_and_b32 v46, 1, {VL}
  v_cmp_eq_u32 vcc, 0, v46
  v_mov_b32 v47, s43
  v_mov_b32 v48, s42
  v_cndmask_b32 v47, v47, v48, vcc
  v_mul_f32 v47, 0xbfb8aa3b, v47   ; -log2e * z
  v_exp_f32 v47, v47
  s_nop 0
  v_add_f32 v47, 1.0, v47
  v_rcp_f32 v47, v47               ; g[b = lane&1]
  s_nop 0
  v_sub_f32 v48, 1.0, v47          ; 1-g
  v_lshlrev_b32 v46, 2, v46
  v_add_u32 v46, {GT}, v46
  s_mov_b64 exec, 3
  ds_write_b32 v46, v47
  s_mov_b64 exec, -1
  s_waitcnt lgkmcnt(0)
""")
stamp(3)
a("  s_barrier                        ; barrier A")
a(f"""  v_bfe_u32 v29, {VL}, 3, 2        ; kp
  v_bfe_u32 v30, {VL}, 2, 1        ; b
  v_lshl_add_u32 v29, v29, 1, v30
  v_mul_u32_u24 v29, 7168, v29
  v_and_b32 v31, 3, {VL}
  v_lshl_add_u32 v29, v31, 4, v29
  s_lshl_b32 s42, s39, 6
  s_add_u32 s42, s42, {WS_HP}
  v_add_u32 v29, s42, v29
  v_mov_b32 v32, 0
  v_mov_b32 v33, 0
  v_mov_b32 v34, 0
  v_mov_b32 v35, 0
  s_cmp_ge_u32 s39, 112
  s_cbranch_scc1 L_hdone
  s_mov_b32 s56, -1
  s_mov_b32 s57, 0
  s_mov_b64 exec, s[56:57]
  s_mov_b32 s33, 0
L_hpoll:
  global_load_dwordx4 v[32:35], v29, s[26:27] sc1
  s_waitcnt vmcnt(0)
""")
check4("v40", 32, True)
poll_end("v40", "L_hpoll", "L_hok")
a(f"""  s_mov_b64 exec, -1
  s_nop 4
""")
for r in range(4):
    a(f"  v_add_f32_dpp v{32+r}, v{32+r}, v{32+r} row_ror:8 row_mask:0xf bank_mask:0xf")
for r in range(4):
    a(f"  v_mov_b32 v{36+r}, v{32+r}")
a("  s_nop 1")
for r in range(4):
    a(f"  v_permlane16_swap_b32 v{32+r}, v{36+r}")
for r in range(4):
    a(f"  v_add_f32 v{32+r}, v{32+r}, v{36+r}")
a(f"""L_hdone:
  s_waitcnt vmcnt(0)
  v_readlane_b32 s42, v48, 0
  v_readlane_b32 s43, v48, 1
  v_cmp_eq_u32 vcc, 0, v30
  v_mov_b32 v36, s43
  v_mov_b32 v37, s42
  v_cndmask_b32 v36, v36, v37, vcc
""")
for r in range(4):
    a(f"  v_max_f32 v{32+r}, 0, v{32+r}")
    a(f"  v_mul_f32 v{32+r}, v{32+r}, v36")
a(f"""  v_cvt_pk_bf16_f32 v32, v32, v33
  v_cvt_pk_bf16_f32 v33, v34, v35
  v_lshlrev_b32 v34, 5, v30
  v_lshl_add_u32 v34, v31, 3, v34
  v_add_u32 v34, {HV}, v34
  s_mov_b64 exec, 0xff
  ds_write_b64 v34, v[32:33]
  s_mov_b64 exec, -1
  s_waitcnt lgkmcnt(0)
""")
stamp(5)
a("  s_barrier                        ; barrier B")
dump_stamps()
a("L_end:")
a("  s_endpgm")
a("L_code_end:")
a(footer(vgpr=232, sgpr=100))
open(sys.argv[1], "w").write(a.text())
```

```python
import sys
from asmlib import *

OPT = dict(dbgts=0, prefetch=1, stamp=0, spin=400000, nt=1, qwait=4, sleep=0, wlate=1, fsleep=0)
for a_ in sys.argv[2:]:
    k, v = a_.split('=')
    OPT[k] = int(v) if v.lstrip('-').isdigit() else v
STAMP = OPT['stamp']

WS_E = 0
WS_QP = 0x1000
WS_HP = 0x21000
WS_OP = 0x40000
WS_AP = 0x140000
WS_TS = 0x200000

KBUF = 0
VBUF = 32768
RA = 65536
RB = 94208
XB = 108544
QB = 110592
OV = 111744
HV = 111872
GT = 111936
LDS_BYTES = 112128

C_LOG2E_16 = 0x3DB8AA3B
NT = " nt" if OPT['nt'] else ""
VTAU = "v4"
VL = "v5"

a = Asm()
def stamp(k):
    if STAMP:
        a(f"  s_memrealtime s[{64+2*k}:{65+2*k}]")
def rec(k, sreg):
    if STAMP:
        a(f"  s_mov_b32 s{64+2*k}, {sreg}")

def srd(dst, ptr, size):
    a(f"  s_mov_b32 s{dst}, s{ptr}")
    a(f"  s_mov_b32 s{dst+1}, s{ptr+1}")
    a(f"  s_mov_b32 s{dst+2}, {size}")
    a(f"  s_mov_b32 s{dst+3}, 0x20000")

def dma(voff, srdreg, soff):
    a(f"  buffer_load_dwordx4 {voff}, s[{srdreg}:{srdreg+3}], {soff} offen{NT} lds")

def tagit(dst, src):
    a(f"  v_bfi_b32 {dst}, s32, {VTAU}, {src}")

def check_regs(acc, regs, first=True):
    regs = list(regs)
    for r in regs:
        a(f"  v_xor_b32 v{r}, s31, v{r}")
    if first:
        if len(regs) >= 3:
            a(f"  v_or3_b32 {acc}, v{regs[0]}, v{regs[1]}, v{regs[2]}"); regs = regs[3:]
        else:
            a(f"  v_or_b32 {acc}, v{regs[0]}, v{regs[1]}"); regs = regs[2:]
    while len(regs) >= 2:
        a(f"  v_or3_b32 {acc}, {acc}, v{regs[0]}, v{regs[1]}"); regs = regs[2:]
    if regs:
        a(f"  v_or_b32 {acc}, {acc}, v{regs[0]}")

def poll_end(acc, lab_retry, lab_ok, cnt="s33", sleep=None):
    sleep = OPT['sleep'] if sleep is None else sleep
    a(f"  v_and_b32 {acc}, 0xff, {acc}")
    a(f"  v_cmp_ne_u32 vcc, 0, {acc}")
    a(f"  s_add_u32 {cnt}, {cnt}, 1")
    a(f"  s_cmp_gt_u32 {cnt}, {OPT['spin']}")
    a(f"  s_cbranch_scc1 {lab_ok}")
    if sleep:
        a(f"  s_cbranch_vccz {lab_ok}")
        a(f"  s_sleep {sleep}")
        a(f"  s_branch {lab_retry}")
    else:
        a(f"  s_cbranch_vccnz {lab_retry}")
    a(f"{lab_ok}:")

def dump_stamps():
    if not STAMP or OPT['dbgts']:
        return
    a("  s_waitcnt lgkmcnt(0)")
    a("  s_mul_i32 s33, s2, 5")
    a("  s_add_u32 s33, s33, s30")
    a("  s_lshl_b32 s33, s33, 6")
    a(f"  s_add_u32 s33, s33, {WS_TS}")
    a("  v_mov_b32 v8, s33")
    a("  s_mov_b64 exec, 1")
    for q in range(4):
        for r in range(4):
            a(f"  v_mov_b32 v{12+r}, s{64+2*(4*q+r)}")
        a(f"  global_store_dwordx4 v8, v[12:15], s[26:27] offset:{16*q}")
        a("  s_nop 1")

def tau_setup():
    a("  s_and_b32 s31, s31, 0xff")
    a("  s_mul_i32 s31, s31, 5")
    a("  s_add_u32 s31, s31, 59")
    a("  s_and_b32 s31, s31, 0xff")
    a(f"  v_mov_b32 {VTAU}, s31")

a(header(256, 320, LDS_BYTES))
if STAMP:
    for k in range(16):
        a(f"  s_mov_b32 s{64+2*k}, 0")
stamp(0)
a(f"""  s_getpc_b64 s[34:35]
L_pc:
  s_cmp_ge_u32 s2, 256
  s_cbranch_scc1 L_end
  s_load_dwordx16 s[4:19], s[0:1], 0
  s_load_dwordx8 s[20:27], s[0:1], 64
  v_lshlrev_b32 v1, {5 if OPT['prefetch'] else 0}, v0
  v_min_u32 v1, {"L_code_end - L_pc - 4" if OPT['prefetch'] else 0}, v1
  global_load_dword v3, v1, s[34:35]
  v_lshrrev_b32 v2, 6, v0
  v_and_b32 {VL}, 63, v0
  s_and_b32 s28, s2, 7             ; g
  v_readfirstlane_b32 s30, v2
  s_lshr_b32 s29, s2, 3            ; j
  s_mov_b32 s32, 0xff
  v_lshrrev_b32 v8, 3, {VL}
  v_bfe_u32 v9, {VL}, 4, 2         ; (row>>1)&3
  v_and_b32 v10, 7, {VL}
  v_lshlrev_b32 v11, 1, v9
  v_xor_b32 v11, v11, v10
  v_lshlrev_b32 v11, 4, v11        ; *16 bytes
  v_lshrrev_b32 v13, 4, {VL}       ; g4
  s_cmp_eq_u32 s30, 0
  s_cbranch_scc1 L_aux
""")

def tr_lane_setup():
    a(f"""  v_bfe_u32 v14, {VL}, 2, 2        ; r4
  v_lshl_add_u32 v15, v13, 2, v14  ; row = 4*g4+r4
  v_bfe_u32 v16, v15, 1, 2         ; f
  v_and_b32 v17, 3, {VL}           ; c
  v_lshlrev_b32 v15, 7, v15
  v_lshl_add_u32 v15, v17, 3, v15  ; row*128 + c*8""")

a(f"""L_att:
  v_xor_b32 v12, v9, v10
  v_lshlrev_b32 v12, 4, v12
  s_sub_u32 s36, s30, 1            ; v
  s_and_b32 s37, s36, 1            ; kh
  s_lshr_b32 s38, s36, 1           ; dh
  s_and_b32 s39, s29, 1            ; b
  s_lshr_b32 s40, s29, 1           ; s (0..15)
  s_lshl_b32 s41, s39, 3
  s_add_u32 s41, s41, s28          ; b*8+g
  s_lshl_b32 s41, s41, 21          ; *4096*512
  s_lshl_b32 s42, s40, 15          ; s*64*512
  s_add_u32 s41, s41, s42
  s_lshl_b32 s42, s37, 14          ; kh*32*512
  s_add_u32 s41, s41, s42
  s_lshl_b32 s42, s38, 8           ; dh*256
  s_add_u32 s41, s41, s42
  s_add_u32 s41, s41, {3072*512}
  s_lshl_b32 s43, s38, 14
  s_lshl_b32 s42, s37, 12
  s_add_u32 s43, s43, s42
  v_lshlrev_b32 v18, 9, v8         ; row*512
  v_add_u32 v19, v18, v12
  v_xor_b32 v20, 64, v19
  v_add_u32 v21, v18, v11          ; V voffset
  s_waitcnt lgkmcnt(0)
  s_load_dword s31, s[26:27], {WS_E}
""")
stamp(1)
srd(44, 6, SZ['k'])
srd(48, 8, SZ['v'])
a("  s_barrier")
for c2 in range(2):
    for jj in range(4):
        a(f"  s_add_u32 m0, s43, {KBUF + c2*8192 + jj*1024}")
        a(f"  s_add_u32 s42, s41, {c2*128 + jj*4096}")
        dma("v20" if jj & 1 else "v19", 44, "s42")
for c2 in range(2):
    for jj in range(4):
        a(f"  s_add_u32 m0, s43, {VBUF + c2*8192 + jj*1024}")
        a(f"  s_add_u32 s42, s41, {c2*128 + jj*4096}")
        dma("v21", 48, "s42")
stamp(2)
tr_lane_setup()
a(f"""  ; K operand address: key*128 + (g4 ^ ((key>>1)&7))*16 + kh*4096
  v_and_b32 v22, 15, {VL}
  v_bfe_u32 v23, {VL}, 1, 3
  v_xor_b32 v23, v23, v13
  v_lshlrev_b32 v23, 4, v23
  v_lshl_add_u32 v22, v22, 7, v23
  s_lshl_b32 s42, s37, 12
  v_add_u32 v22, s42, v22
  v_xor_b32 v23, 64, v22
  s_add_u32 s42, s43, {VBUF}
""")
for nb in range(4):
    a(f"  v_xor_b32 v{24+nb}, {nb}, v16")
    a(f"  v_lshl_add_u32 v{24+nb}, v{24+nb}, 5, v15")
    a(f"  v_add_u32 v{24+nb}, s42, v{24+nb}")
a(f"""  ; q operand address: QB + (l&1)*576 + g4*16
  v_and_b32 v28, 1, {VL}
  v_mul_u32_u24 v28, 576, v28
  v_lshl_add_u32 v28, v13, 4, v28
  v_add_u32 v28, {QB}, v28
  s_lshl_b32 s42, s28, 14
  s_lshl_b32 s45, s39, 11
  s_add_u32 s42, s42, s45
  s_lshl_b32 s45, s37, 10
  s_add_u32 s42, s42, s45
  s_lshl_b32 s45, s38, 9
  s_add_u32 s42, s42, s45
  s_add_u32 s42, s42, {WS_QP}
  v_lshrrev_b32 v29, 5, {VL}       ; kpl
  v_and_b32 v30, 31, {VL}          ; c
  v_lshlrev_b32 v31, 12, v29
  v_lshl_add_u32 v31, v30, 4, v31
  v_add_u32 v51, s42, v31
  v_add_u32 v52, 8192, v51
  s_mul_i32 s42, s37, 576
  s_lshl_b32 s45, s38, 8
  s_add_u32 s42, s42, s45
  s_add_u32 s42, s42, {QB}
  v_lshlrev_b32 v30, 3, v30
  v_lshl_add_u32 v30, v29, 2, v30
  v_add_u32 v53, s42, v30
  s_lshl_b32 s42, s28, 1
  s_add_u32 s42, s42, s39
  s_lshl_b32 s42, s42, 5
  s_lshl_b32 s45, s40, 1
  s_add_u32 s42, s42, s45
  s_add_u32 s42, s42, s37
  s_lshl_b32 s42, s42, 11
  s_lshl_b32 s45, s38, 10
  s_add_u32 s42, s42, s45
  s_add_u32 s42, s42, {WS_OP}
  v_lshlrev_b32 v54, 3, {VL}
  v_add_u32 v54, s42, v54
  v_mov_b32 v46, 0x3f803f80
  v_mov_b32 v47, 0x3f803f80
  v_mov_b32 v48, 0x3f803f80
  v_mov_b32 v49, 0x3f803f80
  v_and_b32 v55, 1, {VL}
  v_cmp_eq_u32 s[58:59], 1, v55
  s_waitcnt lgkmcnt(0)
""")
tau_setup()
a("  s_waitcnt vmcnt(8)")
stamp(3)
a("  s_barrier")
for tt in range(2):
    for t in range(8):
        r = 64 + (tt*8 + t)*4
        a(f"  ds_read_b128 v[{r}:{r+3}], v{23 if t & 1 else 22} offset:{KBUF + (t>>1)*8192 + tt*2048}")
a(f"  s_mov_b32 s33, 0")
a(f"  s_waitcnt vmcnt({OPT['qwait']})")
stamp(4)
a(f"""L_qpoll:
  global_load_dwordx4 v[32:35], v51, s[26:27] sc1
  global_load_dwordx4 v[36:39], v52, s[26:27] sc1
  s_waitcnt vmcnt(0)
""")
check_regs("v40", range(32, 40))
poll_end("v40", "L_qpoll", "L_qok")
stamp(5)
rec(13, "s33")
for nbk in range(8):
    r = 160 + 4*nbk
    off = (nbk >> 2)*8192
    a(f"  ds_read_b64_tr_b16 v[{r}:{r+1}], v{24 + (nbk & 3)} offset:{off}")
    a(f"  ds_read_b64_tr_b16 v[{r+2}:{r+3}], v{24 + (nbk & 3)} offset:{off + 2048}")
a(f"""  v_add_f32 v32, v32, v36
  v_add_f32 v33, v33, v37
  v_add_f32 v34, v34, v38
  v_add_f32 v35, v35, v39
  s_nop 1
  v_permlane32_swap_b32 v32, v34
  v_permlane32_swap_b32 v33, v35
  v_add_f32 v32, v32, v34
  v_add_f32 v33, v33, v35
  v_cvt_pk_bf16_f32 v32, v32, v33
  ds_write_b32 v53, v32
  s_waitcnt lgkmcnt(0)
  s_barrier
""")
stamp(6)
for t in range(8):
    a(f"  ds_read_b128 v[{128+4*t}:{131+4*t}], v28 offset:{64*t}")
a(f"  s_mov_b32 s42, {C_LOG2E_16:#x}")
for t in range(8):
    a(f"  s_waitcnt lgkmcnt({7-t})")
    for tt in range(2):
        kr = 64 + (tt*8 + t)*4
        c = "0" if t == 0 else f"v[{32+4*tt}:{35+4*tt}]"
        a(f"  v_mfma_f32_16x16x32_bf16 v[{32+4*tt}:{35+4*tt}], v[{kr}:{kr+3}], v[{128+4*t}:{131+4*t}], {c}")
a(f"""  s_nop 6
  v_max3_f32 v44, v32, v33, v34
  v_max3_f32 v45, v36, v37, v38
  v_max3_f32 v44, v44, v35, v39
  v_max_f32 v44, v44, v45
  v_mov_b32 v45, v44
  s_nop 1
  v_permlane16_swap_b32 v44, v45
  v_max_f32 v44, v44, v45
  v_mov_b32 v45, v44
  s_nop 1
  v_permlane32_swap_b32 v44, v45
  v_max_f32 v44, v44, v45
  v_mul_f32 v44, s42, v44
""")
for r in range(8):
    a(f"  v_fma_f32 v{32+r}, v{32+r}, s42, -v44")
for r in range(8):
    a(f"  v_exp_f32 v{32+r}, v{32+r}")
a("  s_nop 0")
for r in range(4):
    a(f"  v_cvt_pk_bf16_f32 v{40+r}, v{32+2*r}, v{33+2*r}")
a("  s_nop 1")
a("  v_mfma_f32_16x16x32_bf16 v[224:227], v[40:43], v[46:49], 0")
for nbk in range(8):
    a(f"  v_mfma_f32_16x16x32_bf16 v[{192+4*nbk}:{195+4*nbk}], v[40:43], v[{160+4*nbk}:{163+4*nbk}], 0")
a(f"""  v_cndmask_b32 v45, v224, v225, s[58:59]
  v_rcp_f32 v56, v224
  v_rcp_f32 v57, v225
  v_log_f32 v45, v45
  s_nop 0
  v_add_f32 v45, v45, v44
""")
tagit("v59", "v45")
a("  v_mov_b32 v61, v59")
for q in range(2):
    for h in range(2):
        for k in range(4):
            a(f"  v_mul_f32_dpp v{32+2*q+h}, v{192+4*(4*q+k)+h}, v{56+h} quad_perm:[0,1,2,3] row_mask:{1<<k:#x} bank_mask:0xf")
    a(f"  v_cvt_pk_bf16_f32 v{58+2*q}, v{32+2*q}, v{33+2*q}")
    a(f"  global_store_dwordx2 v54, v[{58+2*q}:{59+2*q}], s[26:27] offset:{512*q} sc1")
stamp(7)
a("  s_barrier")
a("  s_cmp_lt_u32 s29, 16")
a("  s_cbranch_scc1 L_wstage")
dump_stamps()
a("  s_endpgm")

a("L_wstage:")
a(f"""  ; gather addresses: OP + ((g*2+b')*32 + s16)*2048 + j*128 + (4*half + c4)*16 ; b' = v>>1, half = v&1
  s_lshl_b32 s42, s28, 1
  s_add_u32 s42, s42, s38
  s_lshl_b32 s45, s42, 16
  s_lshl_b32 s46, s29, 7
  s_add_u32 s45, s45, s46
  s_lshl_b32 s46, s37, 6
  s_add_u32 s45, s45, s46
  s_add_u32 s45, s45, {WS_OP}
  v_lshrrev_b32 v29, 2, {VL}       ; s16
  v_lshlrev_b32 v30, 11, v29
  v_and_b32 v31, 3, {VL}
  v_lshl_add_u32 v30, v31, 4, v30
  v_add_u32 v30, s45, v30
  v_add_u32 v31, 32768, v30        ; s16+16
  s_mov_b32 s33, 0
""")
stamp(8)
a(f"""L_opoll:
  global_load_dwordx4 v[32:35], v30, s[26:27] sc1
  global_load_dwordx4 v[36:39], v31, s[26:27] sc1
""")
a(f"""  v_xor_b32 v24, s36, v16
  v_lshl_add_u32 v24, v24, 5, v15
  v_add_u32 v25, {RB}, v24
  v_add_u32 v24, {RA}, v24
  v_and_b32 v26, 1, {VL}
  v_lshlrev_b32 v27, 5, v26
  v_lshl_add_u32 v27, v13, 3, v27
  v_add_u32 v27, {HV}, v27
  v_lshlrev_b32 v28, 6, v26
  v_lshl_add_u32 v28, v13, 3, v28
  v_add_u32 v28, {OV}, v28
  s_waitcnt vmcnt(0)
""")
check_regs("v48", [33, 35, 37, 39])
poll_end("v48", "L_opoll", "L_ook")
stamp(9)
rec(12, "s33")
a("  s_barrier")
stamp(11)
for cb in range(7):
    a(f"  ds_read_b64_tr_b16 v[{64+4*cb}:{65+4*cb}], v24 offset:{cb*4096}")
    a(f"  ds_read_b64_tr_b16 v[{66+4*cb}:{67+4*cb}], v24 offset:{cb*4096+2048}")
for cb in range(7):
    a(f"  ds_read_b64_tr_b16 v[{92+2*cb}:{93+2*cb}], v25 offset:{cb*2048}")
a(f"""  ds_read_b64 v[106:107], v27
  s_lshl_b32 s42, s38, 2
  s_add_u32 s42, s42, {GT}
  v_mov_b32 v29, s42
  ds_read_b32 v50, v29
  v_max_f32 v52, v33, v37
  v_max_f32 v53, v35, v39
  v_lshlrev_b32 v40, 16, v32       ; A: d0h0
  v_and_b32 v41, 0xffff0000, v32   ;    d0h1
  v_permlane16_swap_b32 v52, v53
  v_lshlrev_b32 v42, 16, v34       ;    d1h0
  v_and_b32 v43, 0xffff0000, v34   ;    d1h1
  v_max_f32 v52, v52, v53          ; rows: h0(01) h1(01) h0(23) h1(23)
  v_mov_b32 v53, v52
  v_lshlrev_b32 v44, 16, v36       ; B
  v_and_b32 v45, 0xffff0000, v36
  v_permlane32_swap_b32 v52, v53
  v_max_f32 v52, v52, v53
  v_lshlrev_b32 v46, 16, v38
  v_and_b32 v47, 0xffff0000, v38
  v_max_f32_dpp v52, v52, v52 row_shr:4 row_mask:0xf bank_mask:0xf
  s_nop 1
  v_max_f32_dpp v52, v52, v52 row_shr:8 row_mask:0xf bank_mask:0xf
  s_nop 0
  v_readlane_b32 s42, v52, 15
  v_readlane_b32 s45, v52, 31
  s_nop 1
  v_subrev_f32 v33, s42, v33
  v_subrev_f32 v37, s42, v37
  v_subrev_f32 v35, s45, v35
  v_subrev_f32 v39, s45, v39
  v_exp_f32 v33, v33               ; w A h0
  v_exp_f32 v37, v37               ; w B h0
  v_exp_f32 v35, v35               ; w A h1
  v_exp_f32 v39, v39               ; w B h1
  s_nop 0
  v_mul_f32 v40, v40, v33
  v_mul_f32 v41, v41, v35
  v_mul_f32 v42, v42, v33
  v_mul_f32 v43, v43, v35
  v_fmac_f32 v40, v44, v37
  v_fmac_f32 v41, v45, v39
  v_fmac_f32 v42, v46, v37
  v_fmac_f32 v43, v47, v39
  v_add_f32 v52, v33, v37          ; den h0
  v_add_f32 v53, v35, v39          ; den h1
  s_nop 0
  v_permlane16_swap_b32 v40, v41
  v_permlane16_swap_b32 v42, v43
  v_permlane16_swap_b32 v52, v53
  v_add_f32 v40, v40, v41
  v_add_f32 v42, v42, v43
  v_add_f32 v52, v52, v53
  v_mov_b32 v53, v52
  s_nop 1
  v_permlane32_swap_b32 v40, v42
  v_permlane32_swap_b32 v52, v53
  v_add_f32 v40, v40, v42
  v_add_f32 v52, v52, v53          ; rows h0 h1 h0 h1
  s_nop 0
  v_add_f32_dpp v40, v40, v40 row_shr:4 row_mask:0xf bank_mask:0xf
  v_add_f32_dpp v52, v52, v52 row_shr:4 row_mask:0xf bank_mask:0xf
  s_nop 0
  v_add_f32_dpp v40, v40, v40 row_shr:8 row_mask:0xf bank_mask:0xf
  v_add_f32_dpp v52, v52, v52 row_shr:8 row_mask:0xf bank_mask:0xf
  s_nop 0
  v_rcp_f32 v52, v52
  s_waitcnt lgkmcnt(0)
  v_mul_f32 v40, v40, v50          ; * gate
  v_mul_f32 v40, v40, v52
  v_cvt_pk_bf16_f32 v40, v40, v40
  v_and_b32 v33, 3, {VL}
  v_lshlrev_b32 v33, 2, v33
  v_and_b32 v34, 1, v13
  v_lshl_add_u32 v33, v34, 5, v33
  v_lshrrev_b32 v34, 1, v13
  v_lshl_add_u32 v33, v34, 1, v33
  s_lshl_b32 s42, s38, 6
  s_lshl_b32 s45, s37, 4
  s_add_u32 s42, s42, s45
  s_add_u32 s42, s42, {OV}
  v_add_u32 v33, s42, v33
  s_mov_b32 s56, 0xf000f000
  s_mov_b32 s57, 0xf000f000
  s_mov_b64 exec, s[56:57]
  ds_write_b16 v33, v40
  s_mov_b64 exec, -1
""")
for cb in range(7):
    a(f"  v_mfma_f32_16x16x16_bf16 v[{110+4*cb}:{113+4*cb}], v[106:107], v[{92+2*cb}:{93+2*cb}], 0")
a(f"""  ; publish address: AP + u*4096 + (16*v + l)*8 ; u = g*16 + j
  s_lshl_b32 s42, s28, 4
  s_add_u32 s42, s42, s29
  s_lshl_b32 s42, s42, 12
  s_lshl_b32 s45, s36, 7
  s_add_u32 s42, s42, s45
  s_add_u32 s42, s42, {WS_AP}
  v_lshlrev_b32 v29, 3, {VL}
  v_add_u32 v29, s42, v29
  s_waitcnt lgkmcnt(0)
  s_barrier
  ds_read2_b64 v[40:43], v28 offset0:0 offset1:4
  s_waitcnt lgkmcnt(0)
""")
for cb in range(7):
    a(f"  v_mfma_f32_16x16x32_bf16 v[{110+4*cb}:{113+4*cb}], v[40:43], v[{64+4*cb}:{67+4*cb}], v[{110+4*cb}:{113+4*cb}]")
a("  s_mov_b64 exec, 0xffff")
a("  s_nop 0")
for cb in range(7):
    r = 110 + 4*cb
    if cb == 6:
        a("  s_nop 1")
    tagit(f"v{r}", f"v{r}")
    a(f"  global_store_dwordx2 v29, v[{r}:{r+1}], s[26:27] offset:{512*cb} sc1")
stamp(10)
a("  s_mov_b64 exec, -1")
dump_stamps()
a("  s_endpgm")

def proj_unit(ldsbase, xaddr, waits):
    for st in range(4):
        if waits is not None:
            a(f"  s_waitcnt vmcnt({waits[st]})")
        if st < 3:
            a(f"  ds_read2_b64 v[48:51], {xaddr} offset0:{8*st} offset1:{8*st+4}")
        else:
            a(f"  ds_read_b64 v[48:49], {xaddr} offset:{3*64}")
        for nb in range(4):
            a(f"  ds_read_b64_tr_b16 v[{52+4*nb}:{53+4*nb}], v{24+nb} offset:{ldsbase + st*4096}")
            if st < 3:
                a(f"  ds_read_b64_tr_b16 v[{54+4*nb}:{55+4*nb}], v{24+nb} offset:{ldsbase + st*4096+2048}")
        a("  s_waitcnt lgkmcnt(0)")
        for nb in range(4):
            c = "0" if st == 0 else f"v[{32+4*nb}:{35+4*nb}]"
            if st < 3:
                a(f"  v_mfma_f32_16x16x32_bf16 v[{32+4*nb}:{35+4*nb}], v[48:51], v[{52+4*nb}:{55+4*nb}], {c}")
            else:
                a(f"  v_mfma_f32_16x16x16_bf16 v[{32+4*nb}:{35+4*nb}], v[48:49], v[{52+4*nb}:{53+4*nb}], {c}")
    a("  s_nop 7")
    for r in range(2):
        a(f"  v_permlane16_swap_b32 v{32+r}, v{36+r}")
        a(f"  v_permlane16_swap_b32 v{40+r}, v{44+r}")
    a("  s_nop 1")
    for r in range(2):
        a(f"  v_permlane32_swap_b32 v{32+r}, v{40+r}")
    a("  s_nop 1")
    tagit("v32", "v32")
    tagit("v33", "v33")

a(f"""L_aux:
  s_setprio 3
  s_and_b32 s37, s29, 7            ; cb
  s_lshr_b32 s38, s29, 3           ; kp
  v_lshlrev_b32 v18, 4, {VL}
  v_add_u32 v21, 1024, v18
  v_lshl_add_u32 v19, v8, 13, v11
  s_mul_i32 s42, s38, {112*8192}
  s_lshl_b32 s43, s28, 10
  s_add_u32 s42, s42, s43
  s_lshl_b32 s43, s37, 7
  s_add_u32 s42, s42, s43
  s_waitcnt lgkmcnt(0)
  s_load_dword s31, s[26:27], {WS_E}
""")
stamp(1)
srd(44, 10, SZ['wq'])
srd(52, 4, SZ['x'])
a(f"""  s_mov_b32 m0, {XB}
  s_mov_b32 s43, 0
  buffer_load_dwordx4 v18, s[52:55], 0 offen lds
  s_mov_b32 m0, {XB+1024}
  s_nop 0
  buffer_load_dwordx4 v21, s[52:55], 0 offen lds
  s_mov_b32 m0, {RA}
L_wq_loop:
""")
dma("v19", 44, "s42")
a(f"""  s_add_u32 s42, s42, {8*8192}
  s_add_u32 m0, m0, 1024
  s_add_u32 s43, s43, 1
  s_cmp_lt_u32 s43, 14
  s_cbranch_scc1 L_wq_loop
  s_barrier                        ; barrier 0
""")
stamp(2)
a("  s_cmp_lt_u32 s29, 16")
a("  s_cbranch_scc1 L_aux_w0")
a(f"""  s_sub_u32 s36, s29, 16           ; p
  s_lshl_b32 s39, s28, 4
  s_add_u32 s39, s39, s36          ; u1
  s_lshr_b32 s40, s39, 2           ; cbh
  s_and_b32 s41, s39, 3            ; kph
""")
srd(48, 16, SZ['w1'])
a(f"""  v_mul_u32_u24 v20, 3584, v8
  v_add_u32 v20, v20, v11
  s_mul_i32 s42, s41, {112*3584}
  s_min_u32 s43, s40, 27
  s_lshl_b32 s43, s43, 7
  s_add_u32 s42, s42, s43
  s_cmp_lt_u32 s39, 112
  s_cselect_b32 s43, 0, 0x40000000
  v_add_u32 v20, s43, v20
  s_mov_b32 m0, {RB}
  s_mov_b32 s43, 0
L_w1_loop:
""")
dma("v20", 48, "s42")
a(f"""  s_add_u32 s42, s42, {8*3584}
  s_add_u32 m0, m0, 1024
  s_add_u32 s43, s43, 1
  s_cmp_lt_u32 s43, 14
  s_cbranch_scc1 L_w1_loop
  s_mov_b32 s60, 14
  s_branch L_aux_q
L_aux_w0:
  s_mov_b32 s56, -1
  s_mov_b32 s57, 0x00ffffff
  s_mov_b64 exec, s[56:57]
  global_load_dwordx4 v[70:73], v18, s[4:5]
  global_load_dwordx4 v[74:77], v18, s[4:5] offset:896
  global_load_dwordx4 v[78:81], v18, s[20:21]
  s_mov_b64 exec, -1
  s_mov_b32 s60, 3
L_aux_q:
""")
tr_lane_setup()
for nb in range(4):
    a(f"  v_xor_b32 v{24+nb}, {nb}, v16")
    a(f"  v_lshl_add_u32 v{24+nb}, v{24+nb}, 5, v15")
    a(f"  v_add_u32 v{24+nb}, {RA}, v{24+nb}")
a(f"""  v_and_b32 v28, 1, {VL}
  v_mul_u32_u24 v28, 896, v28
  v_lshl_add_u32 v28, v13, 3, v28
  v_add_u32 v28, {XB}, v28         ; XB + b*896 + g4*8
  s_mul_i32 s42, s38, 224
  v_add_u32 v29, s42, v28
  s_lshl_b32 s42, s28, 14
  s_lshl_b32 s43, s38, 12
  s_add_u32 s42, s42, s43
  s_lshl_b32 s43, s37, 8
  s_add_u32 s42, s42, s43
  s_add_u32 s42, s42, {WS_QP}
  v_lshlrev_b32 v31, 2, {VL}
  v_add_u32 v31, s42, v31
  s_waitcnt lgkmcnt(0)
""")
tau_setup()
a("  s_cmp_eq_u32 s60, 3")
a("  s_cbranch_scc1 L_qproj_w")
proj_unit(0, "v29", [14 + 10, 14 + 6, 14 + 2, 14])
a("  s_branch L_qproj_done")
a("L_qproj_w:")
proj_unit(0, "v29", [3 + 10, 3 + 6, 3 + 2, 3])
a("L_qproj_done:")
stamp(3)
a(f"""  global_store_dword v31, v32, s[26:27] sc1
  global_store_dword v31, v33, s[26:27] offset:2048 sc1
""")
stamp(4)
a("  s_cmp_lt_u32 s29, 16")
a("  s_cbranch_scc1 L_aux_w")
a(f"""  s_mul_i32 s42, s41, 224
  v_add_u32 v30, s42, v28
  s_waitcnt vmcnt(2)
""")
proj_unit(RB - RA, "v30", None)
a(f"""  ; HP + kph*2*7168 + cbh*256 + l*4 ; batch 1 at +7168
  s_cmp_ge_u32 s39, 112
  s_cbranch_scc1 L_nohpub
  s_mul_i32 s42, s41, {2*7168}
  s_lshl_b32 s43, s40, 8
  s_add_u32 s42, s42, s43
  s_add_u32 s42, s42, {WS_HP}
  v_lshlrev_b32 v31, 2, {VL}
  v_add_u32 v31, s42, v31
  v_add_u32 v30, 7168, v31
  global_store_dword v31, v32, s[26:27] sc1
  global_store_dword v30, v33, s[26:27] sc1
L_nohpub:
""")
stamp(5)
a(f"""  s_cmp_lt_u32 s36, 7
  s_cbranch_scc1 L_final
""")
dump_stamps()
a("  s_endpgm")
a(f"""L_final:
  s_lshl_b32 s37, s36, 3
  s_add_u32 s37, s37, s28          ; c
  v_lshrrev_b32 v29, 2, {VL}       ; u16
  v_lshlrev_b32 v30, 12, v29
  v_and_b32 v31, 3, {VL}
  v_lshl_add_u32 v30, v31, 4, v30
  s_lshl_b32 s42, s37, 6
  s_add_u32 s42, s42, {WS_AP}
  v_add_u32 v30, s42, v30
""")
for k in range(8):
    a(f"  v_add_u32 v{16+k}, {k*65536}, v30")
a(f"""  ; out + b*896 + (8c + 2*c4 + (r>>1))*2
  v_and_b32 v28, 1, v13
  v_mul_u32_u24 v28, 896, v28
  v_lshl_add_u32 v28, v31, 2, v28
  v_lshrrev_b32 v29, 1, v13
  v_lshl_add_u32 v28, v29, 1, v28
  s_lshl_b32 s42, s37, 4
  v_add_u32 v28, s42, v28
  s_barrier                        ; barrier A
  s_barrier                        ; barrier B
  s_barrier                        ; barrier C
  s_mov_b32 s33, 0
  s_mov_b32 s61, 0
""")
stamp(8)
a("L_fpoll:")
for k in range(8):
    a(f"  s_bitcmp1_b32 s61, {k}")
    a(f"  s_cbranch_scc1 L_fskip{k}")
    a(f"  global_load_dwordx4 v[{32+4*k}:{35+4*k}], v{16+k}, s[26:27] sc1")
    a(f"L_fskip{k}:")
a("  s_waitcnt vmcnt(0)")
for k in range(8):
    a(f"  s_bitcmp1_b32 s61, {k}")
    a(f"  s_cbranch_scc1 L_fchk{k}")
    a(f"  v_xor_b32 v{32+4*k}, s31, v{32+4*k}")
    a(f"  v_xor_b32 v{34+4*k}, s31, v{34+4*k}")
    a(f"  v_or_b32 v64, v{32+4*k}, v{34+4*k}")
    a(f"  v_and_b32 v64, 0xff, v64")
    a(f"  v_cmp_ne_u32 vcc, 0, v64")
    a(f"  s_cbranch_vccnz L_fchk{k}")
    a(f"  s_bitset1_b32 s61, {k}")
    a(f"L_fchk{k}:")
a(f"""  s_add_u32 s33, s33, 1
  s_cmp_gt_u32 s33, {OPT['spin']}
  s_cbranch_scc1 L_fok
  s_cmp_eq_u32 s61, 0xff
""")
if OPT['fsleep']:
    a(f"  s_cbranch_scc1 L_fok\n  s_sleep {OPT['fsleep']}\n  s_branch L_fpoll")
else:
    a("  s_cbranch_scc0 L_fpoll")
a("L_fok:")
stamp(9)
rec(12, "s33")
for k in (1, 3, 5, 7):
    for r in range(4):
        a(f"  v_add_f32 v{32+4*(k-1)+r}, v{32+4*(k-1)+r}, v{32+4*k+r}")
for k in (2, 6):
    for r in range(4):
        a(f"  v_add_f32 v{32+4*(k-2)+r}, v{32+4*(k-2)+r}, v{32+4*k+r}")
for r in range(4):
    a(f"  v_add_f32 v{32+r}, v{32+r}, v{48+r}")
a(f"""  s_nop 1
  v_permlane16_swap_b32 v32, v33
  v_permlane16_swap_b32 v34, v35
  v_add_f32 v32, v32, v33
  v_add_f32 v34, v34, v35
  s_nop 1
  v_permlane32_swap_b32 v32, v34
  v_add_f32 v32, v32, v34
  s_nop 1
  v_add_f32_dpp v32, v32, v32 row_shr:4 row_mask:0xf bank_mask:0xf
  s_nop 1
  v_add_f32_dpp v32, v32, v32 row_shr:8 row_mask:0xf bank_mask:0xf
  s_nop 0
  v_cvt_pk_bf16_f32 v32, v32, v32
  s_mov_b32 s56, 0xf000f000
  s_mov_b32 s57, 0xf000f000
  s_mov_b64 exec, s[56:57]
  global_store_short v28, v32, s[22:23] sc1
  s_cmp_lg_u32 s37, 0
  s_cbranch_scc1 L_noE
  s_mov_b64 exec, 1
  v_mov_b32 v34, {WS_E}
  global_store_dword v34, {VTAU}, s[26:27] sc1
L_noE:
  s_mov_b64 exec, -1
""")
stamp(10)
if OPT['dbgts']:
    a("  s_waitcnt lgkmcnt(0)")
    a("  s_cmp_lg_u32 s37, 0")
    a("  s_cbranch_scc1 L_nodbg")
    a("  s_mov_b64 exec, 1")
    a("  v_mov_b32 v8, 0")
    for q in range(4):
        for r in range(4):
            k = 4*q + r
            a(f"  s_sub_u32 s33, s{64+2*k}, s64")
            a(f"  v_mov_b32 v{12+r}, s33")
        a(f"  global_store_dwordx4 v8, v[12:15], s[24:25] offset:{16*q}")
        a("  s_nop 1")
    a("L_nodbg:")
else:
    dump_stamps()
a("  s_endpgm")

a("L_aux_w:")
a("  s_waitcnt vmcnt(2)")
a("  v_mov_b32 v44, 0")
a("  v_mov_b32 v45, 0")
for r in range(4):
    a(f"  v_lshlrev_b32 v46, 16, v{78+r}")
    a(f"  v_and_b32 v47, 0xffff0000, v{78+r}")
    for b in range(2):
        a(f"  v_lshlrev_b32 v48, 16, v{70+4*b+r}")
        a(f"  v_and_b32 v49, 0xffff0000, v{70+4*b+r}")
        a(f"  v_mul_f32 v48, v48, v46")
        a(f"  v_mul_f32 v49, v49, v47")
        a(f"  v_cvt_pk_bf16_f32 v48, v48, v49")
        a(f"  v_lshlrev_b32 v49, 16, v48")
        a(f"  v_and_b32 v48, 0xffff0000, v48")
        a(f"  v_add_f32 v{44+b}, v{44+b}, v49")
        a(f"  v_add_f32 v{44+b}, v{44+b}, v48")
a(f"""  v_cmp_gt_u32 vcc, 56, {VL}
  s_nop 1
  v_cndmask_b32 v44, 0, v44, vcc
  v_cndmask_b32 v45, 0, v45, vcc
  s_nop 1
""")
for sh in (1, 2, 4, 8):
    a(f"  v_add_f32_dpp v44, v44, v44 row_shr:{sh} row_mask:0xf bank_mask:0xf")
    a(f"  v_add_f32_dpp v45, v45, v45 row_shr:{sh} row_mask:0xf bank_mask:0xf")
    a("  s_nop 0")
a(f"""  v_add_f32_dpp v44, v44, v44 row_bcast:15 row_mask:0xa bank_mask:0xf
  v_add_f32_dpp v45, v45, v45 row_bcast:15 row_mask:0xa bank_mask:0xf
  s_nop 0
  v_add_f32_dpp v44, v44, v44 row_bcast:31 row_mask:0xc bank_mask:0xf
  v_add_f32_dpp v45, v45, v45 row_bcast:31 row_mask:0xc bank_mask:0xf
  s_nop 0
  v_readlane_b32 s42, v44, 63
  v_readlane_b32 s43, v45, 63
  s_nop 1
  v_and_b32 v46, 1, {VL}
  v_cmp_eq_u32 vcc, 0, v46
  v_mov_b32 v47, s43
  v_mov_b32 v48, s42
  v_cndmask_b32 v47, v47, v48, vcc
  v_mul_f32 v47, 0xbfb8aa3b, v47   ; -log2e * z
  v_exp_f32 v47, v47
  s_nop 0
  v_add_f32 v47, 1.0, v47
  v_rcp_f32 v47, v47               ; g[b = lane&1]
  s_nop 0
  v_sub_f32 v82, 1.0, v47          ; 1-g
  v_lshlrev_b32 v46, 2, v46
  v_add_u32 v46, {GT}, v46
  s_mov_b64 exec, 3
  ds_write_b32 v46, v47
  s_mov_b64 exec, -1
  s_lshl_b32 s39, s28, 4
  s_add_u32 s39, s39, s29          ; u = g*16 + j
""")
srd(44, 12, SZ['wo'])
srd(48, 18, SZ['w2'])
a(f"""  v_mul_u32_u24 v19, 896, v8
  v_add_u32 v19, v19, v11
  s_lshl_b32 s40, s28, 9
  s_lshl_b32 s41, s29, 4
  s_add_u32 s40, s40, s41
  s_mul_i32 s40, s40, 896
  s_min_u32 s61, s39, 111
  s_mul_i32 s61, s61, {16*896}
  s_cmp_lt_u32 s39, 112
  s_cselect_b32 s41, 0, 0x40000000
  v_add_u32 v20, s41, v19
  v_bfe_u32 v29, {VL}, 3, 2
  v_bfe_u32 v30, {VL}, 2, 1
  v_lshl_add_u32 v29, v29, 1, v30
  v_mul_u32_u24 v29, 7168, v29
  v_and_b32 v31, 3, {VL}
  v_lshl_add_u32 v29, v31, 4, v29
  s_lshl_b32 s42, s39, 6
  s_add_u32 s42, s42, {WS_HP}
  v_add_u32 v29, s42, v29
  v_readlane_b32 s42, v82, 0
  v_readlane_b32 s43, v82, 1
  v_cmp_eq_u32 vcc, 0, v30
  v_mov_b32 v36, s43
  v_mov_b32 v37, s42
  v_cndmask_b32 v83, v36, v37, vcc
  v_lshlrev_b32 v84, 5, v30
  v_lshl_add_u32 v84, v31, 3, v84
  v_add_u32 v84, {HV}, v84          ; HV + b*32 + q4*8
  s_waitcnt lgkmcnt(0)
""")
stamp(5)
def wo_loads():
    a("  s_mov_b32 s43, 0")
    a(f"  s_mov_b32 s41, {RA}")
    a("L_wo_loop:")
    for q in range(4):
        h, half = q >> 1, q & 1
        a(f"  s_add_u32 m0, s41, {q*1024}")
        a(f"  s_add_u32 s42, s40, {h*256*896 + half*8*896}")
        dma("v19", 44, "s42")
    a(f"""  s_add_u32 s40, s40, 128
  s_add_u32 s41, s41, 4096
  s_add_u32 s43, s43, 1
  s_cmp_lt_u32 s43, 7
  s_cbranch_scc1 L_wo_loop
  s_mov_b32 s41, {RB}
  s_mov_b32 s43, 0
L_w2_loop:""")
    for q in range(2):
        a(f"  s_add_u32 m0, s41, {q*1024}")
        a(f"  s_add_u32 s42, s61, {q*8*896}")
        dma("v20", 48, "s42")
    a(f"""  s_add_u32 s61, s61, 128
  s_add_u32 s41, s41, 2048
  s_add_u32 s43, s43, 1
  s_cmp_lt_u32 s43, 7
  s_cbranch_scc1 L_w2_loop""")
if not OPT['wlate']:
    wo_loads()
a("  s_barrier                        ; barrier A")
a("  s_barrier                        ; barrier B")
a("  s_barrier                        ; barrier C")
if OPT['wlate']:
    wo_loads()
stamp(6)
a(f"""  v_mov_b32 v32, 0
  v_mov_b32 v33, 0
  v_mov_b32 v34, 0
  v_mov_b32 v35, 0
  s_cmp_ge_u32 s39, 112
  s_cbranch_scc1 L_hdone
  s_mov_b32 s56, -1
  s_mov_b32 s57, 0
  s_mov_b64 exec, s[56:57]
  s_mov_b32 s33, 0
L_hpoll:
  global_load_dwordx4 v[32:35], v29, s[26:27] sc1
  s_waitcnt vmcnt(0)
""")
check_regs("v40", range(32, 36))
poll_end("v40", "L_hpoll", "L_hok")
a("  s_mov_b64 exec, -1")
a("  s_nop 1")
for r in range(4):
    a(f"  v_add_f32_dpp v{32+r}, v{32+r}, v{32+r} row_ror:8 row_mask:0xf bank_mask:0xf")
for r in range(4):
    a(f"  v_mov_b32 v{36+r}, v{32+r}")
a("  s_nop 1")
for r in range(4):
    a(f"  v_permlane16_swap_b32 v{32+r}, v{36+r}")
for r in range(4):
    a(f"  v_add_f32 v{32+r}, v{32+r}, v{36+r}")
a("L_hdone:")
for r in range(4):
    a(f"  v_max_f32 v{32+r}, 0, v{32+r}")
    a(f"  v_mul_f32 v{32+r}, v{32+r}, v83")
a(f"""  v_cvt_pk_bf16_f32 v32, v32, v33
  v_cvt_pk_bf16_f32 v33, v34, v35
  s_mov_b64 exec, 0xff
  ds_write_b64 v84, v[32:33]
  s_mov_b64 exec, -1
  s_waitcnt vmcnt(0) lgkmcnt(0)
""")
stamp(7)
a("  s_barrier                        ; barrier D1")
dump_stamps()
a("L_end:")
a("  s_endpgm")
a("L_code_end:")
a(footer(vgpr=232, sgpr=100))
open(sys.argv[1], "w").write(a.text())
```

```python
import sys
from asmlib import *

OPT = dict(deadline=0, dbgts=0, prefetch=1, stamp=0, spin=400000, nt=1, qwait=4, sleep=0, wlate=1, fsleep=0)
for a_ in sys.argv[2:]:
    k, v = a_.split('=')
    OPT[k] = int(v) if v.lstrip('-').isdigit() else v
STAMP = OPT['stamp']

WS_E = 0
WS_QP = 0x1000
WS_HP = 0x21000
WS_OP = 0x40000
WS_AP = 0x140000
WS_TS = 0x200000

KBUF = 0
VBUF = 32768
RA = 65536
RB = 94208
XB = 108544
QB = 110592
OV = 111744
HV = 111872
GT = 111936
LDS_BYTES = 112128

C_LOG2E_16 = 0x3DB8AA3B
NT = " nt" if OPT['nt'] else ""
VTAU = "v4"
VL = "v5"

a = Asm()
def stamp(k):
    if STAMP:
        a(f"  s_memrealtime s[{64+2*k}:{65+2*k}]")
def rec(k, sreg):
    if STAMP:
        a(f"  s_mov_b32 s{64+2*k}, {sreg}")

def srd(dst, ptr, size):
    a(f"  s_mov_b32 s{dst}, s{ptr}")
    a(f"  s_mov_b32 s{dst+1}, s{ptr+1}")
    a(f"  s_mov_b32 s{dst+2}, {size}")
    a(f"  s_mov_b32 s{dst+3}, 0x20000")

def dma(voff, srdreg, soff):
    a(f"  buffer_load_dwordx4 {voff}, s[{srdreg}:{srdreg+3}], {soff} offen{NT} lds")

def tagit(dst, src):
    a(f"  v_bfi_b32 {dst}, s32, {VTAU}, {src}")

def check_regs(acc, regs, first=True):
    regs = list(regs)
    for r in regs:
        a(f"  v_xor_b32 v{r}, s31, v{r}")
    if first:
        if len(regs) >= 3:
            a(f"  v_or3_b32 {acc}, v{regs[0]}, v{regs[1]}, v{regs[2]}"); regs = regs[3:]
        else:
            a(f"  v_or_b32 {acc}, v{regs[0]}, v{regs[1]}"); regs = regs[2:]
    while len(regs) >= 2:
        a(f"  v_or3_b32 {acc}, {acc}, v{regs[0]}, v{regs[1]}"); regs = regs[2:]
    if regs:
        a(f"  v_or_b32 {acc}, {acc}, v{regs[0]}")

def poll_end(acc, lab_retry, lab_ok, cnt="s33", sleep=None):
    sleep = OPT['sleep'] if sleep is None else sleep
    a(f"  v_and_b32 {acc}, 0xff, {acc}")
    a(f"  v_cmp_ne_u32 vcc, 0, {acc}")
    a(f"  s_add_u32 {cnt}, {cnt}, 1")
    a(f"  s_cmp_gt_u32 {cnt}, {OPT['spin']}")
    a(f"  s_cbranch_scc1 {lab_ok}")
    if sleep:
        a(f"  s_cbranch_vccz {lab_ok}")
        a(f"  s_sleep {sleep}")
        a(f"  s_branch {lab_retry}")
    else:
        a(f"  s_cbranch_vccnz {lab_retry}")
    a(f"{lab_ok}:")

def dump_stamps():
    if not STAMP or OPT['dbgts']:
        return
    a("  s_waitcnt lgkmcnt(0)")
    a("  s_mul_i32 s33, s2, 5")
    a("  s_add_u32 s33, s33, s30")
    a("  s_lshl_b32 s33, s33, 6")
    a(f"  s_add_u32 s33, s33, {WS_TS}")
    a("  v_mov_b32 v8, s33")
    a("  s_mov_b64 exec, 1")
    for q in range(4):
        for r in range(4):
            a(f"  v_mov_b32 v{12+r}, s{64+2*(4*q+r)}")
        a(f"  global_store_dwordx4 v8, v[12:15], s[26:27] offset:{16*q}")
        a("  s_nop 1")

def tau_setup():
    a("  s_and_b32 s31, s31, 0xff")
    a("  s_mul_i32 s31, s31, 5")
    a("  s_add_u32 s31, s31, 59")
    a("  s_and_b32 s31, s31, 0xff")
    a(f"  v_mov_b32 {VTAU}, s31")

a(header(256, 320, LDS_BYTES))
if STAMP:
    for k in range(16):
        a(f"  s_mov_b32 s{64+2*k}, 0")
stamp(0)
if OPT['deadline']:
    a("  s_memrealtime s[62:63]")
a(f"""  s_getpc_b64 s[34:35]
L_pc:
  s_cmp_ge_u32 s2, 256
  s_cbranch_scc1 L_end
  s_load_dwordx16 s[4:19], s[0:1], 0
  s_load_dwordx8 s[20:27], s[0:1], 64
  v_lshlrev_b32 v1, {5 if OPT['prefetch'] else 0}, v0
  v_min_u32 v1, {"L_code_end - L_pc - 4" if OPT['prefetch'] else 0}, v1
  global_load_dword v3, v1, s[34:35]
  v_lshrrev_b32 v2, 6, v0
  v_and_b32 {VL}, 63, v0
  s_and_b32 s28, s2, 7             ; g
  v_readfirstlane_b32 s30, v2
  s_lshr_b32 s29, s2, 3            ; j
  s_mov_b32 s32, 0xff
  v_lshrrev_b32 v8, 3, {VL}
  v_bfe_u32 v9, {VL}, 4, 2         ; (row>>1)&3
  v_and_b32 v10, 7, {VL}
  v_lshlrev_b32 v11, 1, v9
  v_xor_b32 v11, v11, v10
  v_lshlrev_b32 v11, 4, v11        ; *16 bytes
  v_lshrrev_b32 v13, 4, {VL}       ; g4
  s_cmp_eq_u32 s30, 0
  s_cbranch_scc1 L_aux
""")

def tr_lane_setup():
    a(f"""  v_bfe_u32 v14, {VL}, 2, 2        ; r4
  v_lshl_add_u32 v15, v13, 2, v14  ; row = 4*g4+r4
  v_bfe_u32 v16, v15, 1, 2         ; f
  v_and_b32 v17, 3, {VL}           ; c
  v_lshlrev_b32 v15, 7, v15
  v_lshl_add_u32 v15, v17, 3, v15  ; row*128 + c*8""")

a(f"""L_att:
  v_xor_b32 v12, v9, v10
  v_lshlrev_b32 v12, 4, v12
  s_sub_u32 s36, s30, 1            ; v
  s_and_b32 s37, s36, 1            ; kh
  s_lshr_b32 s38, s36, 1           ; dh
  s_and_b32 s39, s29, 1            ; b
  s_lshr_b32 s40, s29, 1           ; s (0..15)
  s_lshl_b32 s41, s39, 3
  s_add_u32 s41, s41, s28          ; b*8+g
  s_lshl_b32 s41, s41, 21          ; *4096*512
  s_lshl_b32 s42, s40, 15          ; s*64*512
  s_add_u32 s41, s41, s42
  s_lshl_b32 s42, s37, 14          ; kh*32*512
  s_add_u32 s41, s41, s42
  s_lshl_b32 s42, s38, 8           ; dh*256
  s_add_u32 s41, s41, s42
  s_add_u32 s41, s41, {3072*512}
  s_lshl_b32 s43, s38, 14
  s_lshl_b32 s42, s37, 12
  s_add_u32 s43, s43, s42
  v_lshlrev_b32 v18, 9, v8         ; row*512
  v_add_u32 v19, v18, v12
  v_xor_b32 v20, 64, v19
  v_add_u32 v21, v18, v11          ; V voffset
  s_waitcnt lgkmcnt(0)
  s_load_dword s31, s[26:27], {WS_E}
""")
stamp(1)
srd(44, 6, SZ['k'])
srd(48, 8, SZ['v'])
a("  s_barrier")
for c2 in range(2):
    for jj in range(4):
        a(f"  s_add_u32 m0, s43, {KBUF + c2*8192 + jj*1024}")
        a(f"  s_add_u32 s42, s41, {c2*128 + jj*4096}")
        dma("v20" if jj & 1 else "v19", 44, "s42")
for c2 in range(2):
    for jj in range(4):
        a(f"  s_add_u32 m0, s43, {VBUF + c2*8192 + jj*1024}")
        a(f"  s_add_u32 s42, s41, {c2*128 + jj*4096}")
        dma("v21", 48, "s42")
stamp(2)
tr_lane_setup()
a(f"""  ; K operand address: key*128 + (g4 ^ ((key>>1)&7))*16 + kh*4096
  v_and_b32 v22, 15, {VL}
  v_bfe_u32 v23, {VL}, 1, 3
  v_xor_b32 v23, v23, v13
  v_lshlrev_b32 v23, 4, v23
  v_lshl_add_u32 v22, v22, 7, v23
  s_lshl_b32 s42, s37, 12
  v_add_u32 v22, s42, v22
  v_xor_b32 v23, 64, v22
  s_add_u32 s42, s43, {VBUF}
""")
for nb in range(4):
    a(f"  v_xor_b32 v{24+nb}, {nb}, v16")
    a(f"  v_lshl_add_u32 v{24+nb}, v{24+nb}, 5, v15")
    a(f"  v_add_u32 v{24+nb}, s42, v{24+nb}")
a(f"""  ; q operand address: QB + (l&1)*576 + g4*16
  v_and_b32 v28, 1, {VL}
  v_mul_u32_u24 v28, 576, v28
  v_lshl_add_u32 v28, v13, 4, v28
  v_add_u32 v28, {QB}, v28
  s_lshl_b32 s42, s28, 14
  s_lshl_b32 s45, s39, 11
  s_add_u32 s42, s42, s45
  s_lshl_b32 s45, s37, 10
  s_add_u32 s42, s42, s45
  s_lshl_b32 s45, s38, 9
  s_add_u32 s42, s42, s45
  s_add_u32 s42, s42, {WS_QP}
  v_lshrrev_b32 v29, 5, {VL}       ; kpl
  v_and_b32 v30, 31, {VL}          ; c
  v_lshlrev_b32 v31, 12, v29
  v_lshl_add_u32 v31, v30, 4, v31
  v_add_u32 v51, s42, v31
  v_add_u32 v52, 8192, v51
  s_mul_i32 s42, s37, 576
  s_lshl_b32 s45, s38, 8
  s_add_u32 s42, s42, s45
  s_add_u32 s42, s42, {QB}
  v_lshlrev_b32 v30, 3, v30
  v_lshl_add_u32 v30, v29, 2, v30
  v_add_u32 v53, s42, v30
  s_lshl_b32 s42, s28, 1
  s_add_u32 s42, s42, s39
  s_lshl_b32 s42, s42, 5
  s_lshl_b32 s45, s40, 1
  s_add_u32 s42, s42, s45
  s_add_u32 s42, s42, s37
  s_lshl_b32 s42, s42, 11
  s_lshl_b32 s45, s38, 10
  s_add_u32 s42, s42, s45
  s_add_u32 s42, s42, {WS_OP}
  v_lshlrev_b32 v54, 3, {VL}
  v_add_u32 v54, s42, v54
  v_mov_b32 v46, 0x3f803f80
  v_mov_b32 v47, 0x3f803f80
  v_mov_b32 v48, 0x3f803f80
  v_mov_b32 v49, 0x3f803f80
  v_and_b32 v55, 1, {VL}
  v_cmp_eq_u32 s[58:59], 1, v55
  s_waitcnt lgkmcnt(0)
""")
tau_setup()
a("  s_waitcnt vmcnt(8)")
stamp(3)
a("  s_barrier")
for tt in range(2):
    for t in range(8):
        r = 64 + (tt*8 + t)*4
        a(f"  ds_read_b128 v[{r}:{r+3}], v{23 if t & 1 else 22} offset:{KBUF + (t>>1)*8192 + tt*2048}")
a(f"  s_mov_b32 s33, 0")
a(f"  s_waitcnt vmcnt({OPT['qwait']})")
stamp(4)
a(f"""L_qpoll:
  global_load_dwordx4 v[32:35], v51, s[26:27] sc1
  global_load_dwordx4 v[36:39], v52, s[26:27] sc1
  s_waitcnt vmcnt(0)
""")
check_regs("v40", range(32, 40))
poll_end("v40", "L_qpoll", "L_qok")
stamp(5)
rec(13, "s33")
for nbk in range(8):
    r = 160 + 4*nbk
    off = (nbk >> 2)*8192
    a(f"  ds_read_b64_tr_b16 v[{r}:{r+1}], v{24 + (nbk & 3)} offset:{off}")
    a(f"  ds_read_b64_tr_b16 v[{r+2}:{r+3}], v{24 + (nbk & 3)} offset:{off + 2048}")
a(f"""  v_add_f32 v32, v32, v36
  v_add_f32 v33, v33, v37
  v_add_f32 v34, v34, v38
  v_add_f32 v35, v35, v39
  s_nop 1
  v_permlane32_swap_b32 v32, v34
  v_permlane32_swap_b32 v33, v35
  v_add_f32 v32, v32, v34
  v_add_f32 v33, v33, v35
  v_cvt_pk_bf16_f32 v32, v32, v33
  ds_write_b32 v53, v32
  s_waitcnt lgkmcnt(0)
  s_barrier
""")
stamp(6)
for t in range(8):
    a(f"  ds_read_b128 v[{128+4*t}:{131+4*t}], v28 offset:{64*t}")
a(f"  s_mov_b32 s42, {C_LOG2E_16:#x}")
for t in range(8):
    a(f"  s_waitcnt lgkmcnt({7-t})")
    for tt in range(2):
        kr = 64 + (tt*8 + t)*4
        c = "0" if t == 0 else f"v[{32+4*tt}:{35+4*tt}]"
        a(f"  v_mfma_f32_16x16x32_bf16 v[{32+4*tt}:{35+4*tt}], v[{kr}:{kr+3}], v[{128+4*t}:{131+4*t}], {c}")
a(f"""  s_nop 6
  v_max3_f32 v44, v32, v33, v34
  v_max3_f32 v45, v36, v37, v38
  v_max3_f32 v44, v44, v35, v39
  v_max_f32 v44, v44, v45
  v_mov_b32 v45, v44
  s_nop 1
  v_permlane16_swap_b32 v44, v45
  v_max_f32 v44, v44, v45
  v_mov_b32 v45, v44
  s_nop 1
  v_permlane32_swap_b32 v44, v45
  v_max_f32 v44, v44, v45
  v_mul_f32 v44, s42, v44
""")
for r in range(8):
    a(f"  v_fma_f32 v{32+r}, v{32+r}, s42, -v44")
for r in range(8):
    a(f"  v_exp_f32 v{32+r}, v{32+r}")
a("  s_nop 0")
for r in range(4):
    a(f"  v_cvt_pk_bf16_f32 v{40+r}, v{32+2*r}, v{33+2*r}")
a("  s_nop 1")
a("  v_mfma_f32_16x16x32_bf16 v[224:227], v[40:43], v[46:49], 0")
for nbk in range(8):
    a(f"  v_mfma_f32_16x16x32_bf16 v[{192+4*nbk}:{195+4*nbk}], v[40:43], v[{160+4*nbk}:{163+4*nbk}], 0")
a(f"""  v_cndmask_b32 v45, v224, v225, s[58:59]
  v_rcp_f32 v56, v224
  v_rcp_f32 v57, v225
  v_log_f32 v45, v45
  s_nop 0
  v_add_f32 v45, v45, v44
""")
tagit("v59", "v45")
a("  v_mov_b32 v61, v59")
for q in range(2):
    for h in range(2):
        for k in range(4):
            a(f"  v_mul_f32_dpp v{32+2*q+h}, v{192+4*(4*q+k)+h}, v{56+h} quad_perm:[0,1,2,3] row_mask:{1<<k:#x} bank_mask:0xf")
    a(f"  v_cvt_pk_bf16_f32 v{58+2*q}, v{32+2*q}, v{33+2*q}")
    a(f"  global_store_dwordx2 v54, v[{58+2*q}:{59+2*q}], s[26:27] offset:{512*q} sc1")
stamp(7)
a("  s_barrier")
a("  s_cmp_lt_u32 s29, 16")
a("  s_cbranch_scc1 L_wstage")
dump_stamps()
a("  s_endpgm")

a("L_wstage:")
a(f"""  ; gather addresses: OP + ((g*2+b')*32 + s16)*2048 + j*128 + (4*half + c4)*16 ; b' = v>>1, half = v&1
  s_lshl_b32 s42, s28, 1
  s_add_u32 s42, s42, s38
  s_lshl_b32 s45, s42, 16
  s_lshl_b32 s46, s29, 7
  s_add_u32 s45, s45, s46
  s_lshl_b32 s46, s37, 6
  s_add_u32 s45, s45, s46
  s_add_u32 s45, s45, {WS_OP}
  v_lshrrev_b32 v29, 2, {VL}       ; s16
  v_lshlrev_b32 v30, 11, v29
  v_and_b32 v31, 3, {VL}
  v_lshl_add_u32 v30, v31, 4, v30
  v_add_u32 v30, s45, v30
  v_add_u32 v31, 32768, v30        ; s16+16
  s_mov_b32 s33, 0
""")
stamp(8)
a(f"""L_opoll:
  global_load_dwordx4 v[32:35], v30, s[26:27] sc1
  global_load_dwordx4 v[36:39], v31, s[26:27] sc1
""")
a(f"""  v_xor_b32 v24, s36, v16
  v_lshl_add_u32 v24, v24, 5, v15
  v_add_u32 v25, {RB}, v24
  v_add_u32 v24, {RA}, v24
  v_and_b32 v26, 1, {VL}
  v_lshlrev_b32 v27, 5, v26
  v_lshl_add_u32 v27, v13, 3, v27
  v_add_u32 v27, {HV}, v27
  v_lshlrev_b32 v28, 6, v26
  v_lshl_add_u32 v28, v13, 3, v28
  v_add_u32 v28, {OV}, v28
  s_waitcnt vmcnt(0)
""")
check_regs("v48", [33, 35, 37, 39])
poll_end("v48", "L_opoll", "L_ook")
stamp(9)
rec(12, "s33")
a("  s_barrier")
stamp(11)
for cb in range(7):
    a(f"  ds_read_b64_tr_b16 v[{64+4*cb}:{65+4*cb}], v24 offset:{cb*4096}")
    a(f"  ds_read_b64_tr_b16 v[{66+4*cb}:{67+4*cb}], v24 offset:{cb*4096+2048}")
for cb in range(7):
    a(f"  ds_read_b64_tr_b16 v[{92+2*cb}:{93+2*cb}], v25 offset:{cb*2048}")
a(f"""  ds_read_b64 v[106:107], v27
  s_lshl_b32 s42, s38, 2
  s_add_u32 s42, s42, {GT}
  v_mov_b32 v29, s42
  ds_read_b32 v50, v29
  v_max_f32 v52, v33, v37
  v_max_f32 v53, v35, v39
  v_lshlrev_b32 v40, 16, v32       ; A: d0h0
  v_and_b32 v41, 0xffff0000, v32   ;    d0h1
  v_permlane16_swap_b32 v52, v53
  v_lshlrev_b32 v42, 16, v34       ;    d1h0
  v_and_b32 v43, 0xffff0000, v34   ;    d1h1
  v_max_f32 v52, v52, v53          ; rows: h0(01) h1(01) h0(23) h1(23)
  v_mov_b32 v53, v52
  v_lshlrev_b32 v44, 16, v36       ; B
  v_and_b32 v45, 0xffff0000, v36
  v_permlane32_swap_b32 v52, v53
  v_max_f32 v52, v52, v53
  v_lshlrev_b32 v46, 16, v38
  v_and_b32 v47, 0xffff0000, v38
  v_max_f32_dpp v52, v52, v52 row_shr:4 row_mask:0xf bank_mask:0xf
  s_nop 1
  v_max_f32_dpp v52, v52, v52 row_shr:8 row_mask:0xf bank_mask:0xf
  s_nop 0
  v_readlane_b32 s42, v52, 15
  v_readlane_b32 s45, v52, 31
  s_nop 1
  v_subrev_f32 v33, s42, v33
  v_subrev_f32 v37, s42, v37
  v_subrev_f32 v35, s45, v35
  v_subrev_f32 v39, s45, v39
  v_exp_f32 v33, v33               ; w A h0
  v_exp_f32 v37, v37               ; w B h0
  v_exp_f32 v35, v35               ; w A h1
  v_exp_f32 v39, v39               ; w B h1
  s_nop 0
  v_mul_f32 v40, v40, v33
  v_mul_f32 v41, v41, v35
  v_mul_f32 v42, v42, v33
  v_mul_f32 v43, v43, v35
  v_fmac_f32 v40, v44, v37
  v_fmac_f32 v41, v45, v39
  v_fmac_f32 v42, v46, v37
  v_fmac_f32 v43, v47, v39
  v_add_f32 v52, v33, v37          ; den h0
  v_add_f32 v53, v35, v39          ; den h1
  s_nop 0
  v_permlane16_swap_b32 v40, v41
  v_permlane16_swap_b32 v42, v43
  v_permlane16_swap_b32 v52, v53
  v_add_f32 v40, v40, v41
  v_add_f32 v42, v42, v43
  v_add_f32 v52, v52, v53
  v_mov_b32 v53, v52
  s_nop 1
  v_permlane32_swap_b32 v40, v42
  v_permlane32_swap_b32 v52, v53
  v_add_f32 v40, v40, v42
  v_add_f32 v52, v52, v53          ; rows h0 h1 h0 h1
  s_nop 0
  v_add_f32_dpp v40, v40, v40 row_shr:4 row_mask:0xf bank_mask:0xf
  v_add_f32_dpp v52, v52, v52 row_shr:4 row_mask:0xf bank_mask:0xf
  s_nop 0
  v_add_f32_dpp v40, v40, v40 row_shr:8 row_mask:0xf bank_mask:0xf
  v_add_f32_dpp v52, v52, v52 row_shr:8 row_mask:0xf bank_mask:0xf
  s_nop 0
  v_rcp_f32 v52, v52
  s_waitcnt lgkmcnt(0)
  v_mul_f32 v40, v40, v50          ; * gate
  v_mul_f32 v40, v40, v52
  v_cvt_pk_bf16_f32 v40, v40, v40
  v_and_b32 v33, 3, {VL}
  v_lshlrev_b32 v33, 2, v33
  v_and_b32 v34, 1, v13
  v_lshl_add_u32 v33, v34, 5, v33
  v_lshrrev_b32 v34, 1, v13
  v_lshl_add_u32 v33, v34, 1, v33
  s_lshl_b32 s42, s38, 6
  s_lshl_b32 s45, s37, 4
  s_add_u32 s42, s42, s45
  s_add_u32 s42, s42, {OV}
  v_add_u32 v33, s42, v33
  s_mov_b32 s56, 0xf000f000
  s_mov_b32 s57, 0xf000f000
  s_mov_b64 exec, s[56:57]
  ds_write_b16 v33, v40
  s_mov_b64 exec, -1
""")
for cb in range(7):
    a(f"  v_mfma_f32_16x16x16_bf16 v[{110+4*cb}:{113+4*cb}], v[106:107], v[{92+2*cb}:{93+2*cb}], 0")
a(f"""  ; publish address: AP + u*4096 + (16*v + l)*8 ; u = g*16 + j
  s_lshl_b32 s42, s28, 4
  s_add_u32 s42, s42, s29
  s_lshl_b32 s42, s42, 12
  s_lshl_b32 s45, s36, 7
  s_add_u32 s42, s42, s45
  s_add_u32 s42, s42, {WS_AP}
  v_lshlrev_b32 v29, 3, {VL}
  v_add_u32 v29, s42, v29
  s_waitcnt lgkmcnt(0)
  s_barrier
  ds_read2_b64 v[40:43], v28 offset0:0 offset1:4
  s_waitcnt lgkmcnt(0)
""")
for cb in range(7):
    a(f"  v_mfma_f32_16x16x32_bf16 v[{110+4*cb}:{113+4*cb}], v[40:43], v[{64+4*cb}:{67+4*cb}], v[{110+4*cb}:{113+4*cb}]")
a("  s_mov_b64 exec, 0xffff")
a("  s_nop 0")
for cb in range(7):
    r = 110 + 4*cb
    if cb == 6:
        a("  s_nop 1")
    tagit(f"v{r}", f"v{r}")
    a(f"  global_store_dwordx2 v29, v[{r}:{r+1}], s[26:27] offset:{512*cb} sc1")
stamp(10)
a("  s_mov_b64 exec, -1")
dump_stamps()
a("  s_endpgm")

def proj_unit(ldsbase, xaddr, waits):
    for st in range(4):
        if waits is not None:
            a(f"  s_waitcnt vmcnt({waits[st]})")
        if st < 3:
            a(f"  ds_read2_b64 v[48:51], {xaddr} offset0:{8*st} offset1:{8*st+4}")
        else:
            a(f"  ds_read_b64 v[48:49], {xaddr} offset:{3*64}")
        for nb in range(4):
            a(f"  ds_read_b64_tr_b16 v[{52+4*nb}:{53+4*nb}], v{24+nb} offset:{ldsbase + st*4096}")
            if st < 3:
                a(f"  ds_read_b64_tr_b16 v[{54+4*nb}:{55+4*nb}], v{24+nb} offset:{ldsbase + st*4096+2048}")
        a("  s_waitcnt lgkmcnt(0)")
        for nb in range(4):
            c = "0" if st == 0 else f"v[{32+4*nb}:{35+4*nb}]"
            if st < 3:
                a(f"  v_mfma_f32_16x16x32_bf16 v[{32+4*nb}:{35+4*nb}], v[48:51], v[{52+4*nb}:{55+4*nb}], {c}")
            else:
                a(f"  v_mfma_f32_16x16x16_bf16 v[{32+4*nb}:{35+4*nb}], v[48:49], v[{52+4*nb}:{53+4*nb}], {c}")
    a("  s_nop 7")
    for r in range(2):
        a(f"  v_permlane16_swap_b32 v{32+r}, v{36+r}")
        a(f"  v_permlane16_swap_b32 v{40+r}, v{44+r}")
    a("  s_nop 1")
    for r in range(2):
        a(f"  v_permlane32_swap_b32 v{32+r}, v{40+r}")
    a("  s_nop 1")
    tagit("v32", "v32")
    tagit("v33", "v33")

a(f"""L_aux:
  s_setprio 3
  s_and_b32 s37, s29, 7            ; cb
  s_lshr_b32 s38, s29, 3           ; kp
  v_lshlrev_b32 v18, 4, {VL}
  v_add_u32 v21, 1024, v18
  v_lshl_add_u32 v19, v8, 13, v11
  s_mul_i32 s42, s38, {112*8192}
  s_lshl_b32 s43, s28, 10
  s_add_u32 s42, s42, s43
  s_lshl_b32 s43, s37, 7
  s_add_u32 s42, s42, s43
  s_waitcnt lgkmcnt(0)
  s_load_dword s31, s[26:27], {WS_E}
""")
stamp(1)
srd(44, 10, SZ['wq'])
srd(52, 4, SZ['x'])
a(f"""  s_mov_b32 m0, {XB}
  s_mov_b32 s43, 0
  buffer_load_dwordx4 v18, s[52:55], 0 offen lds
  s_mov_b32 m0, {XB+1024}
  s_nop 0
  buffer_load_dwordx4 v21, s[52:55], 0 offen lds
  s_mov_b32 m0, {RA}
L_wq_loop:
""")
dma("v19", 44, "s42")
a(f"""  s_add_u32 s42, s42, {8*8192}
  s_add_u32 m0, m0, 1024
  s_add_u32 s43, s43, 1
  s_cmp_lt_u32 s43, 14
  s_cbranch_scc1 L_wq_loop
  s_barrier                        ; barrier 0
""")
stamp(2)
a("  s_cmp_lt_u32 s29, 16")
a("  s_cbranch_scc1 L_aux_w0")
a(f"""  s_sub_u32 s36, s29, 16           ; p
  s_lshl_b32 s39, s28, 4
  s_add_u32 s39, s39, s36          ; u1
  s_lshr_b32 s40, s39, 2           ; cbh
  s_and_b32 s41, s39, 3            ; kph
""")
srd(48, 16, SZ['w1'])
a(f"""  v_mul_u32_u24 v20, 3584, v8
  v_add_u32 v20, v20, v11
  s_mul_i32 s42, s41, {112*3584}
  s_min_u32 s43, s40, 27
  s_lshl_b32 s43, s43, 7
  s_add_u32 s42, s42, s43
  s_cmp_lt_u32 s39, 112
  s_cselect_b32 s43, 0, 0x40000000
  v_add_u32 v20, s43, v20
  s_mov_b32 m0, {RB}
  s_mov_b32 s43, 0
L_w1_loop:
""")
dma("v20", 48, "s42")
a(f"""  s_add_u32 s42, s42, {8*3584}
  s_add_u32 m0, m0, 1024
  s_add_u32 s43, s43, 1
  s_cmp_lt_u32 s43, 14
  s_cbranch_scc1 L_w1_loop
  s_mov_b32 s60, 14
  s_branch L_aux_q
L_aux_w0:
  s_mov_b32 s56, -1
  s_mov_b32 s57, 0x00ffffff
  s_mov_b64 exec, s[56:57]
  global_load_dwordx4 v[70:73], v18, s[4:5]
  global_load_dwordx4 v[74:77], v18, s[4:5] offset:896
  global_load_dwordx4 v[78:81], v18, s[20:21]
  s_mov_b64 exec, -1
  s_mov_b32 s60, 3
L_aux_q:
""")
tr_lane_setup()
for nb in range(4):
    a(f"  v_xor_b32 v{24+nb}, {nb}, v16")
    a(f"  v_lshl_add_u32 v{24+nb}, v{24+nb}, 5, v15")
    a(f"  v_add_u32 v{24+nb}, {RA}, v{24+nb}")
a(f"""  v_and_b32 v28, 1, {VL}
  v_mul_u32_u24 v28, 896, v28
  v_lshl_add_u32 v28, v13, 3, v28
  v_add_u32 v28, {XB}, v28         ; XB + b*896 + g4*8
  s_mul_i32 s42, s38, 224
  v_add_u32 v29, s42, v28
  s_lshl_b32 s42, s28, 14
  s_lshl_b32 s43, s38, 12
  s_add_u32 s42, s42, s43
  s_lshl_b32 s43, s37, 8
  s_add_u32 s42, s42, s43
  s_add_u32 s42, s42, {WS_QP}
  v_lshlrev_b32 v31, 2, {VL}
  v_add_u32 v31, s42, v31
  s_waitcnt lgkmcnt(0)
""")
tau_setup()
a("  s_cmp_eq_u32 s60, 3")
a("  s_cbranch_scc1 L_qproj_w")
proj_unit(0, "v29", [14 + 10, 14 + 6, 14 + 2, 14])
a("  s_branch L_qproj_done")
a("L_qproj_w:")
proj_unit(0, "v29", [3 + 10, 3 + 6, 3 + 2, 3])
a("L_qproj_done:")
stamp(3)
a(f"""  global_store_dword v31, v32, s[26:27] sc1
  global_store_dword v31, v33, s[26:27] offset:2048 sc1
""")
stamp(4)
a("  s_cmp_lt_u32 s29, 16")
a("  s_cbranch_scc1 L_aux_w")
a(f"""  s_mul_i32 s42, s41, 224
  v_add_u32 v30, s42, v28
  s_waitcnt vmcnt(2)
""")
proj_unit(RB - RA, "v30", None)
a(f"""  ; HP + kph*2*7168 + cbh*256 + l*4 ; batch 1 at +7168
  s_cmp_ge_u32 s39, 112
  s_cbranch_scc1 L_nohpub
  s_mul_i32 s42, s41, {2*7168}
  s_lshl_b32 s43, s40, 8
  s_add_u32 s42, s42, s43
  s_add_u32 s42, s42, {WS_HP}
  v_lshlrev_b32 v31, 2, {VL}
  v_add_u32 v31, s42, v31
  v_add_u32 v30, 7168, v31
  global_store_dword v31, v32, s[26:27] sc1
  global_store_dword v30, v33, s[26:27] sc1
L_nohpub:
""")
stamp(5)
a(f"""  s_cmp_lt_u32 s36, 7
  s_cbranch_scc1 L_final
""")
dump_stamps()
a("  s_endpgm")
a(f"""L_final:
  s_lshl_b32 s37, s36, 3
  s_add_u32 s37, s37, s28          ; c
  v_lshrrev_b32 v29, 2, {VL}       ; u16
  v_lshlrev_b32 v30, 12, v29
  v_and_b32 v31, 3, {VL}
  v_lshl_add_u32 v30, v31, 4, v30
  s_lshl_b32 s42, s37, 6
  s_add_u32 s42, s42, {WS_AP}
  v_add_u32 v30, s42, v30
""")
for k in range(8):
    a(f"  v_add_u32 v{16+k}, {k*65536}, v30")
a(f"""  ; out + b*896 + (8c + 2*c4 + (r>>1))*2
  v_and_b32 v28, 1, v13
  v_mul_u32_u24 v28, 896, v28
  v_lshl_add_u32 v28, v31, 2, v28
  v_lshrrev_b32 v29, 1, v13
  v_lshl_add_u32 v28, v29, 1, v28
  s_lshl_b32 s42, s37, 4
  v_add_u32 v28, s42, v28
  s_barrier                        ; barrier A
  s_barrier                        ; barrier B
  s_barrier                        ; barrier C
  s_mov_b32 s33, 0
  s_mov_b32 s61, 0
""")
stamp(8)
a("L_fpoll:")
for k in range(8):
    a(f"  s_bitcmp1_b32 s61, {k}")
    a(f"  s_cbranch_scc1 L_fskip{k}")
    a(f"  global_load_dwordx4 v[{32+4*k}:{35+4*k}], v{16+k}, s[26:27] sc1")
    a(f"L_fskip{k}:")
a("  s_waitcnt vmcnt(0)")
for k in range(8):
    a(f"  s_bitcmp1_b32 s61, {k}")
    a(f"  s_cbranch_scc1 L_fchk{k}")
    a(f"  v_xor_b32 v{32+4*k}, s31, v{32+4*k}")
    a(f"  v_xor_b32 v{34+4*k}, s31, v{34+4*k}")
    a(f"  v_or_b32 v64, v{32+4*k}, v{34+4*k}")
    a(f"  v_and_b32 v64, 0xff, v64")
    a(f"  v_cmp_ne_u32 vcc, 0, v64")
    a(f"  s_cbranch_vccnz L_fchk{k}")
    a(f"  s_bitset1_b32 s61, {k}")
    a(f"L_fchk{k}:")
a(f"""  s_add_u32 s33, s33, 1
  s_cmp_gt_u32 s33, {OPT['spin']}
  s_cbranch_scc1 L_fok
  s_cmp_eq_u32 s61, 0xff
""")
if OPT['fsleep']:
    a(f"  s_cbranch_scc1 L_fok\n  s_sleep {OPT['fsleep']}\n  s_branch L_fpoll")
else:
    a("  s_cbranch_scc0 L_fpoll")
a("L_fok:")
stamp(9)
rec(12, "s33")
for k in (1, 3, 5, 7):
    for r in range(4):
        a(f"  v_add_f32 v{32+4*(k-1)+r}, v{32+4*(k-1)+r}, v{32+4*k+r}")
for k in (2, 6):
    for r in range(4):
        a(f"  v_add_f32 v{32+4*(k-2)+r}, v{32+4*(k-2)+r}, v{32+4*k+r}")
for r in range(4):
    a(f"  v_add_f32 v{32+r}, v{32+r}, v{48+r}")
a(f"""  s_nop 1
  v_permlane16_swap_b32 v32, v33
  v_permlane16_swap_b32 v34, v35
  v_add_f32 v32, v32, v33
  v_add_f32 v34, v34, v35
  s_nop 1
  v_permlane32_swap_b32 v32, v34
  v_add_f32 v32, v32, v34
  s_nop 1
  v_add_f32_dpp v32, v32, v32 row_shr:4 row_mask:0xf bank_mask:0xf
  s_nop 1
  v_add_f32_dpp v32, v32, v32 row_shr:8 row_mask:0xf bank_mask:0xf
  s_nop 0
  v_cvt_pk_bf16_f32 v32, v32, v32
  s_mov_b32 s56, 0xf000f000
  s_mov_b32 s57, 0xf000f000
  s_mov_b64 exec, s[56:57]
  global_store_short v28, v32, s[22:23] sc1
  s_cmp_lg_u32 s37, 0
  s_cbranch_scc1 L_noE
  s_mov_b64 exec, 1
  v_mov_b32 v34, {WS_E}
  global_store_dword v34, {VTAU}, s[26:27] sc1
L_noE:
  s_mov_b64 exec, -1
""")
if OPT['deadline']:
    a(f"""L_dl:
  s_memrealtime s[56:57]
  s_waitcnt lgkmcnt(0)
  s_sub_u32 s33, s56, s62
  s_cmp_lt_u32 s33, {OPT['deadline']}
  s_cbranch_scc1 L_dl""")
stamp(10)
if OPT['dbgts']:
    a("  s_waitcnt lgkmcnt(0)")
    a("  s_cmp_lg_u32 s37, 0")
    a("  s_cbranch_scc1 L_nodbg")
    a("  s_mov_b64 exec, 1")
    a("  v_mov_b32 v8, 0")
    for q in range(4):
        for r in range(4):
            k = 4*q + r
            a(f"  s_sub_u32 s33, s{64+2*k}, s64")
            a(f"  v_mov_b32 v{12+r}, s33")
        a(f"  global_store_dwordx4 v8, v[12:15], s[24:25] offset:{16*q}")
        a("  s_nop 1")
    a("L_nodbg:")
else:
    dump_stamps()
a("  s_endpgm")

a("L_aux_w:")
a("  s_waitcnt vmcnt(2)")
a("  v_mov_b32 v44, 0")
a("  v_mov_b32 v45, 0")
for r in range(4):
    a(f"  v_lshlrev_b32 v46, 16, v{78+r}")
    a(f"  v_and_b32 v47, 0xffff0000, v{78+r}")
    for b in range(2):
        a(f"  v_lshlrev_b32 v48, 16, v{70+4*b+r}")
        a(f"  v_and_b32 v49, 0xffff0000, v{70+4*b+r}")
        a(f"  v_mul_f32 v48, v48, v46")
        a(f"  v_mul_f32 v49, v49, v47")
        a(f"  v_cvt_pk_bf16_f32 v48, v48, v49")
        a(f"  v_lshlrev_b32 v49, 16, v48")
        a(f"  v_and_b32 v48, 0xffff0000, v48")
        a(f"  v_add_f32 v{44+b}, v{44+b}, v49")
        a(f"  v_add_f32 v{44+b}, v{44+b}, v48")
a(f"""  v_cmp_gt_u32 vcc, 56, {VL}
  s_nop 1
  v_cndmask_b32 v44, 0, v44, vcc
  v_cndmask_b32 v45, 0, v45, vcc
  s_nop 1
""")
for sh in (1, 2, 4, 8):
    a(f"  v_add_f32_dpp v44, v44, v44 row_shr:{sh} row_mask:0xf bank_mask:0xf")
    a(f"  v_add_f32_dpp v45, v45, v45 row_shr:{sh} row_mask:0xf bank_mask:0xf")
    a("  s_nop 0")
a(f"""  v_add_f32_dpp v44, v44, v44 row_bcast:15 row_mask:0xa bank_mask:0xf
  v_add_f32_dpp v45, v45, v45 row_bcast:15 row_mask:0xa bank_mask:0xf
  s_nop 0
  v_add_f32_dpp v44, v44, v44 row_bcast:31 row_mask:0xc bank_mask:0xf
  v_add_f32_dpp v45, v45, v45 row_bcast:31 row_mask:0xc bank_mask:0xf
  s_nop 0
  v_readlane_b32 s42, v44, 63
  v_readlane_b32 s43, v45, 63
  s_nop 1
  v_and_b32 v46, 1, {VL}
  v_cmp_eq_u32 vcc, 0, v46
  v_mov_b32 v47, s43
  v_mov_b32 v48, s42
  v_cndmask_b32 v47, v47, v48, vcc
  v_mul_f32 v47, 0xbfb8aa3b, v47   ; -log2e * z
  v_exp_f32 v47, v47
  s_nop 0
  v_add_f32 v47, 1.0, v47
  v_rcp_f32 v47, v47               ; g[b = lane&1]
  s_nop 0
  v_sub_f32 v82, 1.0, v47          ; 1-g
  v_lshlrev_b32 v46, 2, v46
  v_add_u32 v46, {GT}, v46
  s_mov_b64 exec, 3
  ds_write_b32 v46, v47
  s_mov_b64 exec, -1
  s_lshl_b32 s39, s28, 4
  s_add_u32 s39, s39, s29          ; u = g*16 + j
""")
srd(44, 12, SZ['wo'])
srd(48, 18, SZ['w2'])
a(f"""  v_mul_u32_u24 v19, 896, v8
  v_add_u32 v19, v19, v11
  s_lshl_b32 s40, s28, 9
  s_lshl_b32 s41, s29, 4
  s_add_u32 s40, s40, s41
  s_mul_i32 s40, s40, 896
  s_min_u32 s61, s39, 111
  s_mul_i32 s61, s61, {16*896}
  s_cmp_lt_u32 s39, 112
  s_cselect_b32 s41, 0, 0x40000000
  v_add_u32 v20, s41, v19
  v_bfe_u32 v29, {VL}, 3, 2
  v_bfe_u32 v30, {VL}, 2, 1
  v_lshl_add_u32 v29, v29, 1, v30
  v_mul_u32_u24 v29, 7168, v29
  v_and_b32 v31, 3, {VL}
  v_lshl_add_u32 v29, v31, 4, v29
  s_lshl_b32 s42, s39, 6
  s_add_u32 s42, s42, {WS_HP}
  v_add_u32 v29, s42, v29
  v_readlane_b32 s42, v82, 0
  v_readlane_b32 s43, v82, 1
  v_cmp_eq_u32 vcc, 0, v30
  v_mov_b32 v36, s43
  v_mov_b32 v37, s42
  v_cndmask_b32 v83, v36, v37, vcc
  v_lshlrev_b32 v84, 5, v30
  v_lshl_add_u32 v84, v31, 3, v84
  v_add_u32 v84, {HV}, v84          ; HV + b*32 + q4*8
  s_waitcnt lgkmcnt(0)
""")
stamp(5)
def wo_loads():
    a("  s_mov_b32 s43, 0")
    a(f"  s_mov_b32 s41, {RA}")
    a("L_wo_loop:")
    for q in range(4):
        h, half = q >> 1, q & 1
        a(f"  s_add_u32 m0, s41, {q*1024}")
        a(f"  s_add_u32 s42, s40, {h*256*896 + half*8*896}")
        dma("v19", 44, "s42")
    a(f"""  s_add_u32 s40, s40, 128
  s_add_u32 s41, s41, 4096
  s_add_u32 s43, s43, 1
  s_cmp_lt_u32 s43, 7
  s_cbranch_scc1 L_wo_loop
  s_mov_b32 s41, {RB}
  s_mov_b32 s43, 0
L_w2_loop:""")
    for q in range(2):
        a(f"  s_add_u32 m0, s41, {q*1024}")
        a(f"  s_add_u32 s42, s61, {q*8*896}")
        dma("v20", 48, "s42")
    a(f"""  s_add_u32 s61, s61, 128
  s_add_u32 s41, s41, 2048
  s_add_u32 s43, s43, 1
  s_cmp_lt_u32 s43, 7
  s_cbranch_scc1 L_w2_loop""")
if not OPT['wlate']:
    wo_loads()
a("  s_barrier                        ; barrier A")
a("  s_barrier                        ; barrier B")
a("  s_barrier                        ; barrier C")
if OPT['wlate']:
    wo_loads()
stamp(6)
a(f"""  v_mov_b32 v32, 0
  v_mov_b32 v33, 0
  v_mov_b32 v34, 0
  v_mov_b32 v35, 0
  s_cmp_ge_u32 s39, 112
  s_cbranch_scc1 L_hdone
  s_mov_b32 s56, -1
  s_mov_b32 s57, 0
  s_mov_b64 exec, s[56:57]
  s_mov_b32 s33, 0
L_hpoll:
  global_load_dwordx4 v[32:35], v29, s[26:27] sc1
  s_waitcnt vmcnt(0)
""")
check_regs("v40", range(32, 36))
poll_end("v40", "L_hpoll", "L_hok")
a("  s_mov_b64 exec, -1")
a("  s_nop 1")
for r in range(4):
    a(f"  v_add_f32_dpp v{32+r}, v{32+r}, v{32+r} row_ror:8 row_mask:0xf bank_mask:0xf")
for r in range(4):
    a(f"  v_mov_b32 v{36+r}, v{32+r}")
a("  s_nop 1")
for r in range(4):
    a(f"  v_permlane16_swap_b32 v{32+r}, v{36+r}")
for r in range(4):
    a(f"  v_add_f32 v{32+r}, v{32+r}, v{36+r}")
a("L_hdone:")
for r in range(4):
    a(f"  v_max_f32 v{32+r}, 0, v{32+r}")
    a(f"  v_mul_f32 v{32+r}, v{32+r}, v83")
a(f"""  v_cvt_pk_bf16_f32 v32, v32, v33
  v_cvt_pk_bf16_f32 v33, v34, v35
  s_mov_b64 exec, 0xff
  ds_write_b64 v84, v[32:33]
  s_mov_b64 exec, -1
  s_waitcnt vmcnt(0) lgkmcnt(0)
""")
stamp(7)
a("  s_barrier                        ; barrier D1")
dump_stamps()
a("L_end:")
a("  s_endpgm")
a("L_code_end:")
a(footer(vgpr=232, sgpr=100))
open(sys.argv[1], "w").write(a.text())
```

```python
import sys
from asmlib import *

OPT = dict(stamp=0, spin=400000, nt=1, qwait=3, sleep=0, fsleep=0, fast=1, tlb=0, prefetch=1,
           ops=2176, aps=3712, deadline=0, dbgts=0, wpos='q')
for a_ in sys.argv[2:]:
    k, v = a_.split('=')
    assert k in OPT, k
    OPT[k] = int(v) if v.lstrip('-').isdigit() else v
STAMP = OPT['stamp']
OPS = OPT['ops']; APS = OPT['aps']

WS_E = 0
WS_XID = 0x400
WS_QP = 0x1000
WS_HP = 0x21000
WS_OP = 0x40000
WS_AP = 0x180000
WS_TS = 0x300000
assert WS_HP + 7*2*7168 <= WS_OP and WS_OP + 512*OPS <= WS_AP and WS_AP + 128*APS <= WS_TS

KBUF = 0
VBUF = 32768
RA = 65536
RB = 94208
RC = 108544
XB = 116736
QB = 118784
OV = 119936
HV = 120064
GT = 120128
LDS_BYTES = 120320

C_LOG2E_16 = 0x3DB8AA3B
NT = " nt" if OPT['nt'] else ""
VTAU = "v4"
VL = "v5"

a = Asm()
def stamp(k):
    if STAMP:
        a(f"  s_memrealtime s[{64+2*k}:{65+2*k}]")
def rec(k, sreg):
    if STAMP:
        a(f"  s_mov_b32 s{64+2*k}, {sreg}")

def srd(dst, ptr, size):
    a(f"  s_mov_b32 s{dst}, s{ptr}")
    a(f"  s_mov_b32 s{dst+1}, s{ptr+1}")
    a(f"  s_mov_b32 s{dst+2}, {size}")
    a(f"  s_mov_b32 s{dst+3}, 0x20000")

def dma(voff, srdreg, soff):
    a(f"  buffer_load_dwordx4 {voff}, s[{srdreg}:{srdreg+3}], {soff} offen{NT} lds")

def tagit(dst, src):
    a(f"  v_bfi_b32 {dst}, s32, {VTAU}, {src}")

def check_regs(acc, regs, first=True):
    regs = list(regs)
    for r in regs:
        a(f"  v_xor_b32 v{r}, s31, v{r}")
    if first:
        if len(regs) >= 3:
            a(f"  v_or3_b32 {acc}, v{regs[0]}, v{regs[1]}, v{regs[2]}"); regs = regs[3:]
        else:
            a(f"  v_or_b32 {acc}, v{regs[0]}, v{regs[1]}"); regs = regs[2:]
    while len(regs) >= 2:
        a(f"  v_or3_b32 {acc}, {acc}, v{regs[0]}, v{regs[1]}"); regs = regs[2:]
    if regs:
        a(f"  v_or_b32 {acc}, {acc}, v{regs[0]}")

def poll_end(acc, lab_retry, lab_ok, cnt="s33", sleep=None, masked=False):
    sleep = OPT['sleep'] if sleep is None else sleep
    if not masked:
        a(f"  v_and_b32 {acc}, 0xff, {acc}")
    a(f"  v_cmp_ne_u32 vcc, 0, {acc}")
    a(f"  s_add_u32 {cnt}, {cnt}, 1")
    a(f"  s_cmp_gt_u32 {cnt}, {OPT['spin']}")
    a(f"  s_cbranch_scc1 {lab_ok}")
    if sleep:
        a(f"  s_cbranch_vccz {lab_ok}")
        a(f"  s_sleep {sleep}")
        a(f"  s_branch {lab_retry}")
    else:
        a(f"  s_cbranch_vccnz {lab_retry}")
    a(f"{lab_ok}:")

def dump_stamps():
    if not STAMP or OPT['dbgts']:
        return
    a("  s_waitcnt lgkmcnt(0)")
    a("  s_mul_i32 s33, s2, 5")
    a("  s_add_u32 s33, s33, s30")
    a("  s_lshl_b32 s33, s33, 6")
    a(f"  s_add_u32 s33, s33, {WS_TS}")
    a("  v_mov_b32 v8, s33")
    a("  s_mov_b64 exec, 1")
    for q in range(4):
        for r in range(4):
            a(f"  v_mov_b32 v{12+r}, s{64+2*(4*q+r)}")
        a(f"  global_store_dwordx4 v8, v[12:15], s[26:27] offset:{16*q}")
        a("  s_nop 1")

def tau_setup():
    a("  s_and_b32 s31, s31, 0xff")
    a("  s_mul_i32 s31, s31, 5")
    a("  s_add_u32 s31, s31, 59")
    a("  s_and_b32 s31, s31, 0xff")
    a(f"  v_mov_b32 {VTAU}, s31")

def xid_value(dst):
    a(f"  s_getreg_b32 {dst}, hwreg(HW_REG_XCC_ID, 0, 4)")
    a(f"  s_lshl_b32 {dst}, {dst}, 24")
    a(f"  s_mul_i32 s33, s31, 0x010101")
    a(f"  s_or_b32 {dst}, {dst}, s33")

def tr_lane_setup():
    a(f"""  v_bfe_u32 v14, {VL}, 2, 2        ; r4
  v_lshl_add_u32 v15, v13, 2, v14  ; row = 4*g4+r4
  v_bfe_u32 v16, v15, 1, 2         ; f
  v_and_b32 v17, 3, {VL}           ; c
  v_lshlrev_b32 v15, 7, v15
  v_lshl_add_u32 v15, v17, 3, v15  ; row*128 + c*8""")

def h_unit_index(dst):
    a(f"""  s_lshl_b32 {dst}, s28, 4
  s_add_u32 {dst}, {dst}, s29
  s_sub_u32 {dst}, {dst}, 16       ; P: g*16 + p
  s_lshl_b32 s33, s29, 3
  s_add_u32 s33, s33, s28
  s_add_u32 s33, s33, 128          ; W: 128 + i*8 + g
  s_cmp_lt_u32 s29, 16
  s_cselect_b32 {dst}, s33, {dst}""")

a(header(256, 320, LDS_BYTES))
if STAMP:
    for k in range(16):
        a(f"  s_mov_b32 s{64+2*k}, 0")
stamp(0)
if OPT['deadline']:
    a("  s_memrealtime s[96:97]")
a(f"""  s_getpc_b64 s[34:35]
L_pc:
  s_cmp_ge_u32 s2, 256
  s_cbranch_scc1 L_end
  s_load_dwordx16 s[4:19], s[0:1], 0
  s_load_dwordx8 s[20:27], s[0:1], 64
  v_lshlrev_b32 v1, {5 if OPT['prefetch'] else 0}, v0
  v_min_u32 v1, {"L_code_end - L_pc - 4" if OPT['prefetch'] else 0}, v1
  global_load_dword v3, v1, s[34:35]
  v_lshrrev_b32 v2, 6, v0
  v_and_b32 {VL}, 63, v0
  s_and_b32 s28, s2, 7             ; g
  v_readfirstlane_b32 s30, v2
  s_lshr_b32 s29, s2, 3            ; j
  s_mov_b32 s32, 0xff
  v_lshrrev_b32 v13, 4, {VL}       ; g4
  s_cmp_lg_u32 s30, 0
  s_cbranch_scc1 L_att
  ; ---- aux wave, first part: x -> LDS, gate inputs
  v_lshlrev_b32 v18, 4, {VL}
  v_add_u32 v21, 1024, v18
  s_waitcnt lgkmcnt(0)
  s_load_dword s31, s[26:27], {WS_E}
""")
stamp(1)
srd(52, 4, SZ['x'])
a(f"""  s_mov_b32 m0, {XB}
  s_cmp_ge_u32 s29, 16
  buffer_load_dwordx4 v18, s[52:55], 0 offen lds
  s_mov_b32 m0, {XB+1024}
  s_nop 0
  buffer_load_dwordx4 v21, s[52:55], 0 offen lds
  s_cbranch_scc1 L_aux
  s_mov_b32 s56, -1
  s_mov_b32 s57, 0x00ffffff
  s_mov_b64 exec, s[56:57]
  global_load_dwordx4 v[70:73], v18, s[4:5]
  global_load_dwordx4 v[74:77], v18, s[4:5] offset:896
  global_load_dwordx4 v[78:81], v18, s[20:21]
  s_mov_b64 exec, -1
  s_branch L_aux
""")

a(f"""L_att:
  v_lshrrev_b32 v8, 3, {VL}
  v_bfe_u32 v9, {VL}, 4, 2         ; (row>>1)&3
  v_and_b32 v10, 7, {VL}
  v_lshlrev_b32 v11, 1, v9
  v_xor_b32 v11, v11, v10
  v_lshlrev_b32 v11, 4, v11        ; *16 bytes
  s_sub_u32 s36, s30, 1            ; v
  s_and_b32 s37, s36, 1            ; kh
  s_lshr_b32 s38, s36, 1           ; dh
  v_lshl_add_u32 v18, v8, 13, v11
  s_lshr_b32 s42, s29, 3
  s_mul_i32 s42, s42, {112*8192}
  s_lshl_b32 s43, s28, 10
  s_add_u32 s42, s42, s43
  s_and_b32 s43, s29, 7
  s_lshl_b32 s43, s43, 7
  s_add_u32 s42, s42, s43
  s_lshl_b32 s43, s36, 16          ; v*8*8192
  s_add_u32 s42, s42, s43
  s_lshl_b32 s43, s36, 10
  s_add_u32 s43, s43, {RA}
  s_waitcnt lgkmcnt(0)
  s_load_dword s31, s[26:27], {WS_E}
""")
stamp(1)
srd(52, 10, SZ['wq'])
for k in range(4):
    if k == 3:
        a("  s_cmp_ge_u32 s36, 2")
        a("  s_cbranch_scc1 L_wq_done")
    a(f"  s_add_u32 m0, s43, {k*4096}")
    a(f"  s_add_u32 s45, s42, {k*4*8*8192}")
    dma("v18", 52, "s45")
a("L_wq_done:")
h_unit_index("s45")
a(f"""  s_mul_i32 s46, s45, 9363
  s_lshr_b32 s46, s46, 16          ; cbh = u1/7
  s_mul_i32 s47, s46, 7
  s_sub_u32 s47, s45, s47          ; kp = u1%7
  s_min_u32 s46, s46, 27
  s_lshl_b32 s46, s46, 7
  s_mul_i32 s47, s47, {64*3584}
  s_add_u32 s46, s46, s47
  s_mul_i32 s47, s36, {8*3584}
  s_add_u32 s46, s46, s47
  s_cmp_lt_u32 s45, 196
  s_cselect_b32 s45, 0, 0x40000000
  v_mul_u32_u24 v18, 3584, v8
  v_add3_u32 v18, v18, v11, s45
  s_lshl_b32 s47, s36, 10
  s_add_u32 s47, s47, {RC}
""")
srd(52, 16, SZ['w1'])
for k in range(2):
    a(f"  s_add_u32 m0, s47, {k*4096}")
    a(f"  s_add_u32 s45, s46, {k*4*8*3584}")
    dma("v18", 52, "s45")
a(f"""  v_xor_b32 v12, v9, v10
  v_lshlrev_b32 v12, 4, v12
  s_and_b32 s39, s29, 1            ; b
  s_lshr_b32 s40, s29, 1           ; s (0..15)
  s_lshl_b32 s41, s39, 3
  s_add_u32 s41, s41, s28          ; b*8+g
  s_lshl_b32 s41, s41, 21          ; *4096*512
  s_lshl_b32 s42, s40, 15          ; s*64*512
  s_add_u32 s41, s41, s42
  s_lshl_b32 s42, s37, 14          ; kh*32*512
  s_add_u32 s41, s41, s42
  s_lshl_b32 s42, s38, 8           ; dh*256
  s_add_u32 s41, s41, s42
  s_add_u32 s41, s41, {3072*512}
  s_lshl_b32 s43, s38, 14
  s_lshl_b32 s42, s37, 12
  s_add_u32 s43, s43, s42
  v_lshlrev_b32 v18, 9, v8         ; row*512
  v_add_u32 v19, v18, v12
  v_xor_b32 v20, 64, v19
  v_add_u32 v21, v18, v11          ; V voffset
""")
srd(44, 6, SZ['k'])
srd(48, 8, SZ['v'])
for c2 in range(2):
    for jj in range(4):
        a(f"  s_add_u32 m0, s43, {KBUF + c2*8192 + jj*1024}")
        a(f"  s_add_u32 s42, s41, {c2*128 + jj*4096}")
        dma("v20" if jj & 1 else "v19", 44, "s42")
tr_lane_setup()
a(f"""  ; q projection tile nb = v : addresses
  v_xor_b32 v24, s36, v16
  v_lshl_add_u32 v24, v24, 5, v15
  v_add_u32 v24, {RA}, v24
  v_and_b32 v25, 1, {VL}
  v_mul_u32_u24 v25, 896, v25
  v_lshl_add_u32 v25, v13, 3, v25
  s_lshr_b32 s42, s29, 3           ; kp
  s_mul_i32 s45, s42, 224
  s_add_u32 s45, s45, {XB}
  v_add_u32 v25, s45, v25
  s_lshl_b32 s45, s28, 14
  s_lshl_b32 s42, s42, 12
  s_add_u32 s45, s45, s42
  s_and_b32 s42, s29, 7
  s_lshl_b32 s42, s42, 8
  s_add_u32 s45, s45, s42
  s_lshl_b32 s42, s36, 6
  s_add_u32 s45, s45, s42
  s_add_u32 s45, s45, {WS_QP}
  v_lshlrev_b32 v26, 2, {VL}
  v_add_u32 v26, s45, v26
""")
a("  s_waitcnt lgkmcnt(0)")
tau_setup()
a("  s_waitcnt vmcnt(10)")
a("  s_barrier")
for st in range(3):
    a(f"  ds_read2_b64 v[{32+4*st}:{35+4*st}], v25 offset0:{8*st} offset1:{8*st+4}")
    a(f"  ds_read_b64_tr_b16 v[{48+4*st}:{49+4*st}], v24 offset:{st*4096}")
    a(f"  ds_read_b64_tr_b16 v[{50+4*st}:{51+4*st}], v24 offset:{st*4096+2048}")
a(f"  ds_read_b64 v[44:45], v25 offset:192")
a(f"  ds_read_b64_tr_b16 v[60:61], v24 offset:{3*4096}")
for st in range(3):
    a(f"  s_waitcnt lgkmcnt({8 - 3*st})")
    c = "0" if st == 0 else "v[64:67]"
    a(f"  v_mfma_f32_16x16x32_bf16 v[64:67], v[{32+4*st}:{35+4*st}], v[{48+4*st}:{51+4*st}], {c}")
a("  s_waitcnt lgkmcnt(0)")
a("  v_mfma_f32_16x16x16_bf16 v[68:71], v[44:45], v[60:61], 0")
a("  s_mov_b64 exec, 0xffff")
a("  s_nop 6")
a("  v_add_f32 v64, v64, v68")
a("  v_add_f32 v65, v65, v69")
tagit("v64", "v64")
tagit("v65", "v65")
a(f"""  global_store_dword v26, v64, s[26:27] sc1
  global_store_dword v26, v65, s[26:27] offset:2048 sc1
  s_mov_b64 exec, -1
""")
stamp(14)
a("  s_waitcnt vmcnt(10)")
a("  s_barrier")
for c2 in range(2):
    for jj in range(4):
        a(f"  s_add_u32 m0, s43, {VBUF + c2*8192 + jj*1024}")
        a(f"  s_add_u32 s42, s41, {c2*128 + jj*4096}")
        dma("v21", 48, "s42")
stamp(2)
a(f"""  ; K operand address: key*128 + (g4 ^ ((key>>1)&7))*16 + kh*4096
  v_and_b32 v22, 15, {VL}
  v_bfe_u32 v23, {VL}, 1, 3
  v_xor_b32 v23, v23, v13
  v_lshlrev_b32 v23, 4, v23
  v_lshl_add_u32 v22, v22, 7, v23
  s_lshl_b32 s42, s37, 12
  v_add_u32 v22, s42, v22
  v_xor_b32 v23, 64, v22
  s_add_u32 s42, s43, {VBUF}
""")
for nb in range(4):
    a(f"  v_xor_b32 v{24+nb}, {nb}, v16")
    a(f"  v_lshl_add_u32 v{24+nb}, v{24+nb}, 5, v15")
    a(f"  v_add_u32 v{24+nb}, s42, v{24+nb}")
a(f"""  ; q operand address: QB + (l&1)*576 + g4*16
  v_and_b32 v28, 1, {VL}
  v_mul_u32_u24 v28, 576, v28
  v_lshl_add_u32 v28, v13, 4, v28
  v_add_u32 v28, {QB}, v28
  s_lshl_b32 s42, s28, 14
  s_lshl_b32 s45, s39, 11
  s_add_u32 s42, s42, s45
  s_lshl_b32 s45, s37, 10
  s_add_u32 s42, s42, s45
  s_lshl_b32 s45, s38, 9
  s_add_u32 s42, s42, s45
  s_add_u32 s42, s42, {WS_QP}
  v_lshrrev_b32 v29, 5, {VL}       ; kpl
  v_and_b32 v30, 31, {VL}          ; c
  v_lshlrev_b32 v31, 12, v29
  v_lshl_add_u32 v31, v30, 4, v31
  v_add_u32 v51, s42, v31
  v_add_u32 v52, 8192, v51
  s_lshl_b32 s42, s28, 7
  s_add_u32 s42, s42, {WS_XID}
  v_lshl_add_u32 v50, v30, 2, s42
  s_mul_i32 s42, s37, 576
  s_lshl_b32 s45, s38, 8
  s_add_u32 s42, s42, s45
  s_add_u32 s42, s42, {QB}
  v_lshlrev_b32 v30, 3, v30
  v_lshl_add_u32 v30, v29, 2, v30
  v_add_u32 v53, s42, v30
  s_lshl_b32 s42, s28, 1
  s_add_u32 s42, s42, s39
  s_lshl_b32 s42, s42, 5
  s_lshl_b32 s45, s40, 1
  s_add_u32 s42, s42, s45
  s_add_u32 s42, s42, s37
  s_mul_i32 s42, s42, {OPS}
  s_lshl_b32 s45, s38, 10
  s_add_u32 s42, s42, s45
  s_add_u32 s42, s42, {WS_OP}
  v_lshlrev_b32 v54, 3, {VL}
  v_add_u32 v54, s42, v54
  v_mov_b32 v46, 0x3f803f80
  v_mov_b32 v47, 0x3f803f80
  v_mov_b32 v48, 0x3f803f80
  v_mov_b32 v49, 0x3f803f80
  v_and_b32 v55, 1, {VL}
  v_cmp_eq_u32 s[58:59], 1, v55
""")
xid_value("s34")
a("  s_mov_b32 s35, 0xffffff")
a("  s_waitcnt vmcnt(8)")
stamp(3)
a("  s_barrier")
for tt in range(2):
    for t in range(8):
        r = 64 + (tt*8 + t)*4
        a(f"  ds_read_b128 v[{r}:{r+3}], v{23 if t & 1 else 22} offset:{KBUF + (t>>1)*8192 + tt*2048}")

def w_weight_setup():
    srd(44, 12, SZ['wo'])
    srd(52, 18, SZ['w2'])
    a(f"""  s_lshl_b32 s42, s28, 9
  s_lshl_b32 s61, s29, 4
  s_add_u32 s42, s42, s61          ; g*512 + 16j
  s_lshl_b32 s61, s38, 8
  s_add_u32 s42, s42, s61          ; + h*256
  s_lshl_b32 s61, s37, 3
  s_add_u32 s42, s42, s61          ; + half*8
  s_mul_i32 s61, s42, 896
  s_lshl_b32 s60, s36, 10
  s_add_u32 s60, s60, {RA}
  v_mul_u32_u24 v19, 896, v8
  v_add_u32 v19, v19, v11
  s_lshl_b32 s33, s28, 4
  s_add_u32 s33, s33, s29          ; u
  s_min_u32 s42, s33, 111
  s_lshl_b32 s42, s42, 4
  s_lshl_b32 s62, s37, 3
  s_add_u32 s42, s42, s62          ; 16u + q*8   (q = v&1)
  s_mul_i32 s42, s42, 896
  s_lshl_b32 s62, s38, 7
  s_add_u32 s62, s42, s62          ; + (v>>1)*128
  s_cmp_lt_u32 s33, 112
  s_cselect_b32 s33, 0, 0x40000000
  v_add_u32 v20, s33, v19
  s_lshl_b32 s63, s38, 11
  s_lshl_b32 s33, s37, 10
  s_add_u32 s63, s63, s33
  s_add_u32 s63, s63, {RB}         ; RB + (v>>1)*2048 + q*1024""")

def w_weight_loads(tagname):
    for cb in range(7):
        a(f"  s_add_u32 m0, s60, {cb*4096}")
        a(f"  s_add_u32 s33, s61, {cb*128}")
        dma("v19", 44, "s33")
    for k in range(4):
        if k == 3:
            a("  s_cmp_lg_u32 s38, 0")
            a(f"  s_cbranch_scc1 L_w2_done{tagname}")
        a(f"  s_add_u32 m0, s63, {k*4096}")
        a(f"  s_add_u32 s33, s62, {k*256}")
        dma("v20", 52, "s33")
    a(f"L_w2_done{tagname}:")

def q_loads():
    a("  global_load_dwordx4 v[32:35], v51, s[26:27] sc1")
    a("  global_load_dwordx4 v[36:39], v52, s[26:27] sc1")
    a("  global_load_dword v41, v50, s[26:27] sc1")

a("  s_cmp_lt_u32 s29, 16")
a("  s_cbranch_scc0 L_q_p")
w_weight_setup()
if OPT['wpos'] == 'first':
    pass
if OPT['wpos'] == 'q':
    a(f"  s_waitcnt vmcnt({OPT['qwait']})")
    stamp(4)
    q_loads()
    w_weight_loads("a")
    a("  s_mov_b32 s33, 0")
    a("  s_waitcnt vmcnt(10)")
    a("  s_branch L_qchk")
a(f"""L_q_p:
  s_mov_b32 s33, 0
  s_waitcnt vmcnt({OPT['qwait']})
""")
stamp(4)
a("L_qpoll:")
q_loads()
a("  s_waitcnt vmcnt(0)")
a("L_qchk:")
check_regs("v40", range(32, 40))
a("  v_xor_b32 v41, s34, v41")
a("  v_and_b32 v40, 0xff, v40")
a("  v_and_or_b32 v40, v41, s35, v40")
poll_end("v40", "L_qpoll", "L_qok", masked=True)
stamp(5)
rec(13, "s33")
if OPT['wpos'] == 'mid':
    a("  s_cmp_lt_u32 s29, 16")
    a("  s_cbranch_scc0 L_nomid")
    w_weight_loads("m")
    a("L_nomid:")
for nbk in range(8):
    r = 160 + 4*nbk
    off = (nbk >> 2)*8192
    a(f"  ds_read_b64_tr_b16 v[{r}:{r+1}], v{24 + (nbk & 3)} offset:{off}")
    a(f"  ds_read_b64_tr_b16 v[{r+2}:{r+3}], v{24 + (nbk & 3)} offset:{off + 2048}")
a(f"""  v_add_f32 v32, v32, v36
  v_add_f32 v33, v33, v37
  v_add_f32 v34, v34, v38
  v_add_f32 v35, v35, v39
  v_cmp_ne_u32 vcc, 0, v41
  s_nop 0
  v_permlane32_swap_b32 v32, v34
  v_permlane32_swap_b32 v33, v35
  v_add_f32 v32, v32, v34
  v_add_f32 v33, v33, v35
  v_cvt_pk_bf16_f32 v32, v32, v33
  ds_write_b32 v53, v32
  s_cmp_eq_u64 vcc, 0
  s_cselect_b32 s35, {1 if OPT['fast'] else 0}, 0
  s_waitcnt lgkmcnt(0)
  s_barrier
""")
stamp(6)
for t in range(8):
    a(f"  ds_read_b128 v[{128+4*t}:{131+4*t}], v28 offset:{64*t}")
a(f"  s_mov_b32 s42, {C_LOG2E_16:#x}")
for t in range(8):
    a(f"  s_waitcnt lgkmcnt({7-t})")
    for tt in range(2):
        kr = 64 + (tt*8 + t)*4
        c = "0" if t == 0 else f"v[{32+4*tt}:{35+4*tt}]"
        a(f"  v_mfma_f32_16x16x32_bf16 v[{32+4*tt}:{35+4*tt}], v[{kr}:{kr+3}], v[{128+4*t}:{131+4*t}], {c}")
a(f"""  s_nop 6
  v_max3_f32 v44, v32, v33, v34
  v_max3_f32 v45, v36, v37, v38
  v_max3_f32 v44, v44, v35, v39
  v_max_f32 v44, v44, v45
  v_mov_b32 v45, v44
  s_nop 1
  v_permlane16_swap_b32 v44, v45
  v_max_f32 v44, v44, v45
  v_mov_b32 v45, v44
  s_nop 1
  v_permlane32_swap_b32 v44, v45
  v_max_f32 v44, v44, v45
  v_mul_f32 v44, s42, v44
""")
for r in range(8):
    a(f"  v_fma_f32 v{32+r}, v{32+r}, s42, -v44")
for r in range(8):
    a(f"  v_exp_f32 v{32+r}, v{32+r}")
a("  s_nop 0")
for r in range(4):
    a(f"  v_cvt_pk_bf16_f32 v{40+r}, v{32+2*r}, v{33+2*r}")
a("  s_nop 1")
a("  v_mfma_f32_16x16x32_bf16 v[224:227], v[40:43], v[46:49], 0")
for nbk in range(8):
    a(f"  v_mfma_f32_16x16x32_bf16 v[{192+4*nbk}:{195+4*nbk}], v[40:43], v[{160+4*nbk}:{163+4*nbk}], 0")
a(f"""  v_cndmask_b32 v45, v224, v225, s[58:59]
  v_rcp_f32 v56, v224
  v_rcp_f32 v57, v225
  v_log_f32 v45, v45
  s_cmp_eq_u32 s35, 1
  v_add_f32 v45, v45, v44
""")
tagit("v59", "v45")
a("  v_mov_b32 v61, v59")
for q in range(2):
    for h in range(2):
        for k in range(4):
            a(f"  v_mul_f32_dpp v{32+2*q+h}, v{192+4*(4*q+k)+h}, v{56+h} quad_perm:[0,1,2,3] row_mask:{1<<k:#x} bank_mask:0xf")
    a(f"  v_cvt_pk_bf16_f32 v{58+2*q}, v{32+2*q}, v{33+2*q}")
a(f"""  s_cbranch_scc1 L_pub_local
  global_store_dwordx2 v54, v[58:59], s[26:27] sc1
  global_store_dwordx2 v54, v[60:61], s[26:27] offset:512 sc1
  s_branch L_pub_done
L_pub_local:                       ; every reader shares this die's L2
  global_store_dwordx2 v54, v[58:59], s[26:27]
  global_store_dwordx2 v54, v[60:61], s[26:27] offset:512
L_pub_done:
""")
stamp(7)
a("  s_cmp_lt_u32 s29, 16")
a("  s_cbranch_scc1 L_wstage")
a("  s_barrier")
dump_stamps()
a("  s_endpgm")

a("L_wstage:")
if OPT['wpos'] == 'late':
    w_weight_loads("l")
a(f"""  ; gather addresses: OP + ((g*2+b')*32 + s16)*OPS + j*128 + (4*half + c4)*16 ; b' = v>>1, half = v&1
  s_lshl_b32 s42, s28, 1
  s_add_u32 s42, s42, s38
  s_mul_i32 s45, s42, {32*OPS}
  s_lshl_b32 s46, s29, 7
  s_add_u32 s45, s45, s46
  s_lshl_b32 s46, s37, 6
  s_add_u32 s45, s45, s46
  s_add_u32 s45, s45, {WS_OP}
  v_lshrrev_b32 v29, 2, {VL}       ; s16
  v_mul_u32_u24 v30, {OPS}, v29
  v_and_b32 v31, 3, {VL}
  v_lshl_add_u32 v30, v31, 4, v30
  v_add_u32 v30, s45, v30
  v_add_u32 v31, {16*OPS}, v30        ; s16+16
  v_xor_b32 v24, s36, v16
  v_lshl_add_u32 v24, v24, 5, v15
  v_add_u32 v25, {RB}, v24
  v_add_u32 v24, {RA}, v24
  v_and_b32 v26, 1, {VL}
  v_lshlrev_b32 v27, 5, v26
  v_lshl_add_u32 v27, v13, 3, v27
  v_add_u32 v27, {HV}, v27
  v_lshlrev_b32 v28, 6, v26
  v_lshl_add_u32 v28, v13, 3, v28
  v_add_u32 v28, {OV}, v28
  v_and_b32 v54, 3, {VL}
  v_lshlrev_b32 v54, 2, v54
  v_and_b32 v55, 1, v13
  v_lshl_add_u32 v54, v55, 5, v54
  v_lshrrev_b32 v55, 1, v13
  v_lshl_add_u32 v54, v55, 1, v54
  s_lshl_b32 s42, s38, 6
  s_lshl_b32 s45, s37, 4
  s_add_u32 s42, s42, s45
  s_add_u32 s42, s42, {OV}
  v_add_u32 v54, s42, v54
  s_lshl_b32 s42, s28, 4
  s_add_u32 s42, s42, s29
  s_mul_i32 s42, s42, {APS}
  s_lshl_b32 s45, s36, 7
  s_add_u32 s42, s42, s45
  s_add_u32 s42, s42, {WS_AP}
  v_lshlrev_b32 v55, 3, {VL}
  v_add_u32 v55, s42, v55
  s_lshl_b32 s42, s38, 2
  s_add_u32 s42, s42, {GT}
  v_mov_b32 v29, s42
  ds_read_b32 v50, v29
  s_mov_b32 s56, 0xf000f000
  s_mov_b32 s57, 0xf000f000
  s_mov_b32 s33, 0
  s_waitcnt vmcnt(0) lgkmcnt(0)
  s_barrier
""")
stamp(8)
a("""  global_load_dwordx4 v[32:35], v30, s[26:27] sc1
  global_load_dwordx4 v[36:39], v31, s[26:27] sc1
  ds_read_b64 v[106:107], v27""")
for cb in range(7):
    a(f"  ds_read_b64_tr_b16 v[{92+2*cb}:{93+2*cb}], v25 offset:{cb*2048}")
for cb in range(7):
    a(f"  ds_read_b64_tr_b16 v[{64+4*cb}:{65+4*cb}], v24 offset:{cb*4096}")
    a(f"  ds_read_b64_tr_b16 v[{66+4*cb}:{67+4*cb}], v24 offset:{cb*4096+2048}")
a("  s_waitcnt lgkmcnt(14)")
for cb in range(7):
    a(f"  v_mfma_f32_16x16x16_bf16 v[{110+4*cb}:{113+4*cb}], v[106:107], v[{92+2*cb}:{93+2*cb}], 0")
a("  s_waitcnt vmcnt(0)")
a("  s_branch L_ochk")
a(f"""L_opoll:
  global_load_dwordx4 v[32:35], v30, s[26:27] sc1
  global_load_dwordx4 v[36:39], v31, s[26:27] sc1
  s_waitcnt vmcnt(0)
L_ochk:
""")
check_regs("v48", [33, 35, 37, 39])
poll_end("v48", "L_opoll", "L_ook")
stamp(9)
rec(12, "s33")
a(f"""  v_max_f32 v52, v33, v37
  v_max_f32 v53, v35, v39
  v_lshlrev_b32 v40, 16, v32       ; A: d0h0
  v_and_b32 v41, 0xffff0000, v32   ;    d0h1
  v_permlane16_swap_b32 v52, v53
  v_lshlrev_b32 v42, 16, v34       ;    d1h0
  v_and_b32 v43, 0xffff0000, v34   ;    d1h1
  v_max_f32 v52, v52, v53          ; rows: h0(01) h1(01) h0(23) h1(23)
  v_mov_b32 v53, v52
  v_lshlrev_b32 v44, 16, v36       ; B
  v_and_b32 v45, 0xffff0000, v36
  v_permlane32_swap_b32 v52, v53
  v_max_f32 v52, v52, v53
  v_lshlrev_b32 v46, 16, v38
  v_and_b32 v47, 0xffff0000, v38
  v_max_f32_dpp v52, v52, v52 row_shr:4 row_mask:0xf bank_mask:0xf
  s_nop 1
  v_max_f32_dpp v52, v52, v52 row_shr:8 row_mask:0xf bank_mask:0xf
  s_nop 0
  v_readlane_b32 s42, v52, 15
  v_readlane_b32 s45, v52, 31
  s_nop 1
  v_subrev_f32 v33, s42, v33
  v_subrev_f32 v37, s42, v37
  v_subrev_f32 v35, s45, v35
  v_subrev_f32 v39, s45, v39
  v_exp_f32 v33, v33               ; w A h0
  v_exp_f32 v37, v37               ; w B h0
  v_exp_f32 v35, v35               ; w A h1
  v_exp_f32 v39, v39               ; w B h1
  s_nop 0
  v_mul_f32 v40, v40, v33
  v_mul_f32 v41, v41, v35
  v_mul_f32 v42, v42, v33
  v_mul_f32 v43, v43, v35
  v_fmac_f32 v40, v44, v37
  v_fmac_f32 v41, v45, v39
  v_fmac_f32 v42, v46, v37
  v_fmac_f32 v43, v47, v39
  v_add_f32 v52, v33, v37          ; den h0
  v_add_f32 v53, v35, v39          ; den h1
  s_nop 0
  v_permlane16_swap_b32 v40, v41
  v_permlane16_swap_b32 v42, v43
  v_permlane16_swap_b32 v52, v53
  v_add_f32 v40, v40, v41
  v_add_f32 v42, v42, v43
  v_add_f32 v52, v52, v53
  v_mov_b32 v53, v52
  s_nop 1
  v_permlane32_swap_b32 v40, v42
  v_permlane32_swap_b32 v52, v53
  v_add_f32 v40, v40, v42
  v_add_f32 v52, v52, v53          ; rows h0 h1 h0 h1
  s_nop 0
  v_add_f32_dpp v40, v40, v40 row_shr:4 row_mask:0xf bank_mask:0xf
  v_add_f32_dpp v52, v52, v52 row_shr:4 row_mask:0xf bank_mask:0xf
  s_nop 0
  v_add_f32_dpp v40, v40, v40 row_shr:8 row_mask:0xf bank_mask:0xf
  v_add_f32_dpp v52, v52, v52 row_shr:8 row_mask:0xf bank_mask:0xf
  v_mul_f32 v40, v40, v50          ; * gate
  v_rcp_f32 v52, v52
  s_mov_b64 exec, s[56:57]
  v_mul_f32 v40, v40, v52
  v_cvt_pk_bf16_f32 v40, v40, v40
  ds_write_b16 v54, v40
  s_mov_b64 exec, -1
  s_waitcnt lgkmcnt(0)
  s_barrier
  ds_read2_b64 v[40:43], v28 offset0:0 offset1:4
  s_waitcnt lgkmcnt(0)
""")
for cb in range(7):
    a(f"  v_mfma_f32_16x16x32_bf16 v[{110+4*cb}:{113+4*cb}], v[40:43], v[{64+4*cb}:{67+4*cb}], v[{110+4*cb}:{113+4*cb}]")
a("  s_mov_b64 exec, 0xffff")
a("  s_nop 0")
for cb in range(7):
    r = 110 + 4*cb
    tagit(f"v{r}", f"v{r}")
    a(f"  global_store_dwordx2 v55, v[{r}:{r+1}], s[26:27] offset:{512*cb} sc1")
stamp(10)
a("  s_mov_b64 exec, -1")
dump_stamps()
a("  s_endpgm")

a("L_aux:")
tr_lane_setup()
for nb in range(4):
    a(f"  v_xor_b32 v{24+nb}, {nb}, v16")
    a(f"  v_lshl_add_u32 v{24+nb}, v{24+nb}, 5, v15")
    a(f"  v_add_u32 v{24+nb}, {RC}, v{24+nb}")
h_unit_index("s39")
a(f"""  s_mul_i32 s40, s39, 9363
  s_lshr_b32 s40, s40, 16          ; cbh
  s_mul_i32 s41, s40, 7
  s_sub_u32 s41, s39, s41          ; kp
  v_and_b32 v28, 1, {VL}
  v_mul_u32_u24 v28, 896, v28
  v_lshl_add_u32 v28, v13, 3, v28
  s_lshl_b32 s42, s41, 7
  s_add_u32 s42, s42, {XB}
  v_add_u32 v28, s42, v28
  s_mul_i32 s42, s41, {2*7168}
  s_lshl_b32 s43, s40, 8
  s_add_u32 s42, s42, s43
  s_add_u32 s42, s42, {WS_HP}
  v_lshlrev_b32 v31, 2, {VL}
  v_add_u32 v31, s42, v31
  v_add_u32 v30, 7168, v31
  s_waitcnt lgkmcnt(0)
""")
tau_setup()
xid_value("s34")
a(f"""  s_lshl_b32 s42, s28, 7
  s_lshl_b32 s43, s29, 2
  s_add_u32 s42, s42, s43
  s_add_u32 s42, s42, {WS_XID}
  v_mov_b32 v6, s42
  v_mov_b32 v7, s34
  s_waitcnt vmcnt(0)
  s_mov_b64 exec, 1
  global_store_dword v6, v7, s[26:27] sc1
  s_mov_b64 exec, -1
  s_barrier                        ; barrier Q
  s_barrier                        ; barrier Q2
""")
stamp(2)
if OPT['tlb']:
    a(f"""  s_lshl_b32 s42, s28, 9
  s_lshl_b32 s43, s29, 4
  s_add_u32 s42, s42, s43
  s_mul_i32 s42, s42, 896
  v_mov_b32 v6, s42
  v_mov_b32 v7, 0
  s_mov_b64 exec, 1
  global_load_dword v2, v6, s[12:13] nt
  global_load_dword v2, v7, s[18:19] offset:64 nt
  global_load_dword v2, v7, s[22:23] nt
  s_mov_b64 exec, -1
""")
a("  s_cmp_ge_u32 s39, 196")
a("  s_cbranch_scc1 L_nohpub")
for st in range(2):
    a(f"  ds_read2_b64 v[{48+4*st}:{51+4*st}], v28 offset0:{8*st} offset1:{8*st+4}")
    for nb in range(4):
        r = 96 + 16*st + 4*nb
        a(f"  ds_read_b64_tr_b16 v[{r}:{r+1}], v{24+nb} offset:{st*4096}")
        a(f"  ds_read_b64_tr_b16 v[{r+2}:{r+3}], v{24+nb} offset:{st*4096+2048}")
for st in range(2):
    a(f"  s_waitcnt lgkmcnt({9 - 9*st})")
    for nb in range(4):
        r = 96 + 16*st + 4*nb
        c = "0" if st == 0 else f"v[{32+4*nb}:{35+4*nb}]"
        a(f"  v_mfma_f32_16x16x32_bf16 v[{32+4*nb}:{35+4*nb}], v[{48+4*st}:{51+4*st}], v[{r}:{r+3}], {c}")
a("  s_nop 7")
for r in range(2):
    a(f"  v_permlane16_swap_b32 v{32+r}, v{36+r}")
    a(f"  v_permlane16_swap_b32 v{40+r}, v{44+r}")
a("  s_nop 1")
for r in range(2):
    a(f"  v_permlane32_swap_b32 v{32+r}, v{40+r}")
a("  s_nop 1")
tagit("v32", "v32")
tagit("v33", "v33")
a("""  global_store_dword v31, v32, s[26:27] sc1
  global_store_dword v30, v33, s[26:27] sc1
L_nohpub:""")
stamp(5)
a("  s_cmp_ge_u32 s29, 16")
a("  s_cbranch_scc1 L_aux_a")
a("  v_mov_b32 v44, 0")
a("  v_mov_b32 v45, 0")
for r in range(4):
    a(f"  v_lshlrev_b32 v46, 16, v{78+r}")
    a(f"  v_and_b32 v47, 0xffff0000, v{78+r}")
    for b in range(2):
        a(f"  v_lshlrev_b32 v48, 16, v{70+4*b+r}")
        a(f"  v_and_b32 v49, 0xffff0000, v{70+4*b+r}")
        a(f"  v_mul_f32 v48, v48, v46")
        a(f"  v_mul_f32 v49, v49, v47")
        a(f"  v_cvt_pk_bf16_f32 v48, v48, v49")
        a(f"  v_lshlrev_b32 v49, 16, v48")
        a(f"  v_and_b32 v48, 0xffff0000, v48")
        a(f"  v_add_f32 v{44+b}, v{44+b}, v49")
        a(f"  v_add_f32 v{44+b}, v{44+b}, v48")
a(f"""  v_cmp_gt_u32 vcc, 56, {VL}
  s_nop 1
  v_cndmask_b32 v44, 0, v44, vcc
  v_cndmask_b32 v45, 0, v45, vcc
  s_nop 1
""")
for sh in (1, 2, 4, 8):
    a(f"  v_add_f32_dpp v44, v44, v44 row_shr:{sh} row_mask:0xf bank_mask:0xf")
    a(f"  v_add_f32_dpp v45, v45, v45 row_shr:{sh} row_mask:0xf bank_mask:0xf")
    a("  s_nop 0")
a(f"""  v_add_f32_dpp v44, v44, v44 row_bcast:15 row_mask:0xa bank_mask:0xf
  v_add_f32_dpp v45, v45, v45 row_bcast:15 row_mask:0xa bank_mask:0xf
  s_nop 0
  v_add_f32_dpp v44, v44, v44 row_bcast:31 row_mask:0xc bank_mask:0xf
  v_add_f32_dpp v45, v45, v45 row_bcast:31 row_mask:0xc bank_mask:0xf
  s_nop 0
  v_readlane_b32 s42, v44, 63
  v_readlane_b32 s43, v45, 63
  s_nop 1
  v_and_b32 v46, 1, {VL}
  v_cmp_eq_u32 vcc, 0, v46
  v_mov_b32 v47, s43
  v_mov_b32 v48, s42
  v_cndmask_b32 v47, v47, v48, vcc
  v_mul_f32 v47, 0xbfb8aa3b, v47   ; -log2e * z
  v_exp_f32 v47, v47
  s_nop 0
  v_add_f32 v47, 1.0, v47
  v_rcp_f32 v47, v47               ; g[b = lane&1]
  s_nop 0
  v_sub_f32 v82, 1.0, v47          ; 1-g
  v_lshlrev_b32 v46, 2, v46
  v_add_u32 v46, {GT}, v46
  s_mov_b64 exec, 3
  ds_write_b32 v46, v47
  s_mov_b64 exec, -1
  s_waitcnt lgkmcnt(0)
""")
stamp(3)
a("L_aux_a:")
a("  s_barrier")
a("  s_cmp_lt_u32 s29, 16")
a("  s_cbranch_scc1 L_aux_w")
a("  s_cmp_lt_u32 s29, 23")
a("  s_cbranch_scc1 L_final")
dump_stamps()
a("  s_endpgm")

a(f"""L_final:
  s_sub_u32 s36, s29, 16           ; p
  s_lshl_b32 s37, s36, 3
  s_add_u32 s37, s37, s28          ; c
  v_lshrrev_b32 v29, 2, {VL}       ; u16
  v_mul_u32_u24 v30, {APS}, v29
  v_and_b32 v31, 3, {VL}
  v_lshl_add_u32 v30, v31, 4, v30
  s_lshl_b32 s42, s37, 6
  s_add_u32 s42, s42, {WS_AP}
  v_add_u32 v30, s42, v30
""")
for k in range(8):
    a(f"  v_add_u32 v{16+k}, {k*16*APS}, v30")
a(f"""  ; out + b*896 + (8c + 2*c4 + (r>>1))*2
  v_and_b32 v28, 1, v13
  v_mul_u32_u24 v28, 896, v28
  v_lshl_add_u32 v28, v31, 2, v28
  v_lshrrev_b32 v29, 1, v13
  v_lshl_add_u32 v28, v29, 1, v28
  s_lshl_b32 s42, s37, 4
  v_add_u32 v28, s42, v28
  s_mov_b32 s56, 0xf000f000
  s_mov_b32 s57, 0xf000f000
  v_mov_b32 v29, {WS_E}
  s_barrier                        ; barrier B
  s_barrier                        ; barrier C
  s_mov_b32 s33, 0
""")
stamp(8)
a("L_fpoll:")
for k in range(8):
    a(f"  global_load_dwordx4 v[{32+4*k}:{35+4*k}], v{16+k}, s[26:27] sc1")
a("  s_waitcnt vmcnt(0)")
check_regs("v64", [32+4*k+q for k in range(8) for q in (0, 2)])
poll_end("v64", "L_fpoll", "L_fok", sleep=OPT['fsleep'])
stamp(9)
rec(12, "s33")
for k in (1, 3, 5, 7):
    for r in range(4):
        a(f"  v_add_f32 v{32+4*(k-1)+r}, v{32+4*(k-1)+r}, v{32+4*k+r}")
for k in (2, 6):
    for r in range(4):
        a(f"  v_add_f32 v{32+4*(k-2)+r}, v{32+4*(k-2)+r}, v{32+4*k+r}")
for r in range(4):
    a(f"  v_add_f32 v{32+r}, v{32+r}, v{48+r}")
a(f"""  s_nop 1
  v_permlane16_swap_b32 v32, v33
  v_permlane16_swap_b32 v34, v35
  v_add_f32 v32, v32, v33
  v_add_f32 v34, v34, v35
  s_nop 1
  v_permlane32_swap_b32 v32, v34
  v_add_f32 v32, v32, v34
  s_nop 1
  v_add_f32_dpp v32, v32, v32 row_shr:4 row_mask:0xf bank_mask:0xf
  s_nop 1
  v_add_f32_dpp v32, v32, v32 row_shr:8 row_mask:0xf bank_mask:0xf
  s_mov_b64 exec, s[56:57]
  v_cvt_pk_bf16_f32 v32, v32, v32
  global_store_short v28, v32, s[22:23] sc1
  s_cmp_lg_u32 s37, 0
  s_cbranch_scc1 L_noE
  s_mov_b64 exec, 1
  global_store_dword v29, {VTAU}, s[26:27] sc1
L_noE:
  s_mov_b64 exec, -1
""")
if OPT['deadline']:
    a(f"""L_dl:
  s_memrealtime s[56:57]
  s_waitcnt lgkmcnt(0)
  s_sub_u32 s33, s56, s96
  s_cmp_lt_u32 s33, {OPT['deadline']}
  s_cbranch_scc1 L_dl""")
stamp(10)
if OPT['dbgts']:
    a("  s_waitcnt lgkmcnt(0)")
    a("  s_cmp_lg_u32 s37, 0")
    a("  s_cbranch_scc1 L_nodbg")
    a("  s_mov_b64 exec, 1")
    a("  v_mov_b32 v8, 0")
    for q in range(4):
        for r in range(4):
            k = 4*q + r
            a(f"  s_sub_u32 s33, s{64+2*k}, s64")
            a(f"  v_mov_b32 v{12+r}, s33")
        a(f"  global_store_dwordx4 v8, v[12:15], s[24:25] offset:{16*q}")
        a("  s_nop 1")
    a("L_nodbg:")
else:
    dump_stamps()
a("  s_endpgm")

a("L_aux_w:")
a(f"""  ; h gather set-up: lanes (kp = l>>3 (0..6), b = (l>>2)&1, q4 = l&3) ; HP + (kp*2+b)*7168 + (16u + 4*q4)*4
  s_lshl_b32 s38, s28, 4
  s_add_u32 s38, s38, s29          ; u = g*16 + j
  v_lshrrev_b32 v85, 3, {VL}
  v_bfe_u32 v86, {VL}, 2, 1
  v_lshl_add_u32 v85, v85, 1, v86
  v_mul_u32_u24 v85, 7168, v85
  v_and_b32 v87, 3, {VL}
  v_lshl_add_u32 v85, v87, 4, v85
  s_lshl_b32 s42, s38, 6
  s_add_u32 s42, s42, {WS_HP}
  v_add_u32 v85, s42, v85
  v_readlane_b32 s42, v82, 0
  v_readlane_b32 s43, v82, 1
  v_cmp_eq_u32 vcc, 0, v86
  v_mov_b32 v36, s43
  v_mov_b32 v37, s42
  v_cndmask_b32 v83, v36, v37, vcc
  v_lshlrev_b32 v84, 5, v86
  v_lshl_add_u32 v84, v87, 3, v84
  v_add_u32 v84, {HV}, v84          ; HV + b*32 + q4*8
""")
a("  s_barrier                        ; barrier B")
stamp(6)
a(f"""  v_mov_b32 v32, 0
  v_mov_b32 v33, 0
  v_mov_b32 v34, 0
  v_mov_b32 v35, 0
  s_cmp_ge_u32 s38, 112
  s_cbranch_scc1 L_hdone
  s_mov_b32 s56, -1
  s_mov_b32 s57, 0x00ffffff
  s_mov_b64 exec, s[56:57]
  s_mov_b32 s33, 0
L_hpoll:
  global_load_dwordx4 v[32:35], v85, s[26:27] sc1
  s_waitcnt vmcnt(0)
""")
check_regs("v40", range(32, 36))
poll_end("v40", "L_hpoll", "L_hok")
a("  s_mov_b64 exec, -1")
a("  s_nop 1")
for r in range(4):
    a(f"  v_add_f32_dpp v{32+r}, v{32+r}, v{32+r} row_ror:8 row_mask:0xf bank_mask:0xf")
for r in range(4):
    a(f"  v_mov_b32 v{36+r}, v{32+r}")
a("  s_nop 1")
for r in range(4):
    a(f"  v_permlane16_swap_b32 v{32+r}, v{36+r}")
for r in range(4):
    a(f"  v_add_f32 v{32+r}, v{32+r}, v{36+r}")
for r in range(4):
    a(f"  v_mov_b32 v{36+r}, v{32+r}")
a("  s_nop 1")
for r in range(4):
    a(f"  v_permlane32_swap_b32 v{32+r}, v{36+r}")
for r in range(4):
    a(f"  v_add_f32 v{32+r}, v{32+r}, v{36+r}")
a("L_hdone:")
for r in range(4):
    a(f"  v_max_f32 v{32+r}, 0, v{32+r}")
    a(f"  v_mul_f32 v{32+r}, v{32+r}, v83")
a(f"""  v_cvt_pk_bf16_f32 v32, v32, v33
  v_cvt_pk_bf16_f32 v33, v34, v35
  s_mov_b64 exec, 0xff
  ds_write_b64 v84, v[32:33]
  s_mov_b64 exec, -1
  s_waitcnt lgkmcnt(0)
""")
stamp(7)
a("  s_barrier                        ; barrier D1")
dump_stamps()
a("L_end:")
a("  s_endpgm")
a("L_code_end:")
a(footer(vgpr=232, sgpr=100))
open(sys.argv[1], "w").write(a.text())
```

```python
import sys
from asmlib import *

OPT = dict(stamp=0, spin=400000, nt=1, qwait=3, sleep=0, fsleep=0, fast=1, tlb=0, prefetch=1,
           ops=2176, aps=3712, deadline=0, dbgts=0, wpos='q', a2=1, opre=1)
for a_ in sys.argv[2:]:
    k, v = a_.split('=')
    assert k in OPT, k
    OPT[k] = int(v) if v.lstrip('-').isdigit() else v
STAMP = OPT['stamp']
OPS = OPT['ops']; APS = OPT['aps']

WS_E = 0
WS_XID = 0x400
WS_QP = 0x1000
WS_HP = 0x21000
WS_OP = 0x40000
WS_AP = 0x180000
WS_TS = 0x300000
assert WS_HP + 7*2*7168 <= WS_OP and WS_OP + 512*OPS <= WS_AP and WS_AP + 128*APS <= WS_TS

KBUF = 0
VBUF = 32768
RA = 65536
RB = 94208
RC = 108544
XB = 116736
QB = 118784
OV = 119936
HV = 120064
GT = 120128
LDS_BYTES = 120320

C_LOG2E_16 = 0x3DB8AA3B
NT = " nt" if OPT['nt'] else ""
VTAU = "v4"
VL = "v5"

a = Asm()
def stamp(k):
    if STAMP:
        a(f"  s_memrealtime s[{64+2*k}:{65+2*k}]")
def rec(k, sreg):
    if STAMP:
        a(f"  s_mov_b32 s{64+2*k}, {sreg}")

def srd(dst, ptr, size):
    a(f"  s_mov_b32 s{dst}, s{ptr}")
    a(f"  s_mov_b32 s{dst+1}, s{ptr+1}")
    a(f"  s_mov_b32 s{dst+2}, {size}")
    a(f"  s_mov_b32 s{dst+3}, 0x20000")

def dma(voff, srdreg, soff):
    a(f"  buffer_load_dwordx4 {voff}, s[{srdreg}:{srdreg+3}], {soff} offen{NT} lds")

def tagit(dst, src):
    a(f"  v_bfi_b32 {dst}, s32, {VTAU}, {src}")

def check_regs(acc, regs, first=True):
    regs = list(regs)
    for r in regs:
        a(f"  v_xor_b32 v{r}, s31, v{r}")
    if first:
        if len(regs) >= 3:
            a(f"  v_or3_b32 {acc}, v{regs[0]}, v{regs[1]}, v{regs[2]}"); regs = regs[3:]
        else:
            a(f"  v_or_b32 {acc}, v{regs[0]}, v{regs[1]}"); regs = regs[2:]
    while len(regs) >= 2:
        a(f"  v_or3_b32 {acc}, {acc}, v{regs[0]}, v{regs[1]}"); regs = regs[2:]
    if regs:
        a(f"  v_or_b32 {acc}, {acc}, v{regs[0]}")

def poll_end(acc, lab_retry, lab_ok, cnt="s33", sleep=None, masked=False):
    sleep = OPT['sleep'] if sleep is None else sleep
    if not masked:
        a(f"  v_and_b32 {acc}, 0xff, {acc}")
    a(f"  v_cmp_ne_u32 vcc, 0, {acc}")
    a(f"  s_add_u32 {cnt}, {cnt}, 1")
    a(f"  s_cmp_gt_u32 {cnt}, {OPT['spin']}")
    a(f"  s_cbranch_scc1 {lab_ok}")
    if sleep:
        a(f"  s_cbranch_vccz {lab_ok}")
        a(f"  s_sleep {sleep}")
        a(f"  s_branch {lab_retry}")
    else:
        a(f"  s_cbranch_vccnz {lab_retry}")
    a(f"{lab_ok}:")

def dump_stamps():
    if not STAMP or OPT['dbgts']:
        return
    a("  s_waitcnt lgkmcnt(0)")
    a("  s_mul_i32 s33, s2, 5")
    a("  s_add_u32 s33, s33, s30")
    a("  s_lshl_b32 s33, s33, 6")
    a(f"  s_add_u32 s33, s33, {WS_TS}")
    a("  v_mov_b32 v8, s33")
    a("  s_mov_b64 exec, 1")
    for q in range(4):
        for r in range(4):
            a(f"  v_mov_b32 v{12+r}, s{64+2*(4*q+r)}")
        a(f"  global_store_dwordx4 v8, v[12:15], s[26:27] offset:{16*q}")
        a("  s_nop 1")

def tau_setup():
    a("  s_and_b32 s31, s31, 0xff")
    a("  s_mul_i32 s31, s31, 5")
    a("  s_add_u32 s31, s31, 59")
    a("  s_and_b32 s31, s31, 0xff")
    a(f"  v_mov_b32 {VTAU}, s31")

def xid_value(dst):
    a(f"  s_getreg_b32 {dst}, hwreg(HW_REG_XCC_ID, 0, 4)")
    a(f"  s_lshl_b32 {dst}, {dst}, 24")
    a(f"  s_mul_i32 s33, s31, 0x010101")
    a(f"  s_or_b32 {dst}, {dst}, s33")

def tr_lane_setup():
    a(f"""  v_bfe_u32 v14, {VL}, 2, 2        ; r4
  v_lshl_add_u32 v15, v13, 2, v14  ; row = 4*g4+r4
  v_bfe_u32 v16, v15, 1, 2         ; f
  v_and_b32 v17, 3, {VL}           ; c
  v_lshlrev_b32 v15, 7, v15
  v_lshl_add_u32 v15, v17, 3, v15  ; row*128 + c*8""")

def h_unit_index(dst):
    a(f"""  s_lshl_b32 {dst}, s28, 4
  s_add_u32 {dst}, {dst}, s29
  s_sub_u32 {dst}, {dst}, 16       ; P: g*16 + p
  s_lshl_b32 s33, s29, 3
  s_add_u32 s33, s33, s28
  s_add_u32 s33, s33, 128          ; W: 128 + i*8 + g
  s_cmp_lt_u32 s29, 16
  s_cselect_b32 {dst}, s33, {dst}""")

a(header(256, 320, LDS_BYTES))
if STAMP:
    for k in range(16):
        a(f"  s_mov_b32 s{64+2*k}, 0")
stamp(0)
if OPT['deadline']:
    a("  s_memrealtime s[96:97]")
a(f"""  s_getpc_b64 s[34:35]
L_pc:
  s_cmp_ge_u32 s2, 256
  s_cbranch_scc1 L_end
  s_load_dwordx16 s[4:19], s[0:1], 0
  s_load_dwordx8 s[20:27], s[0:1], 64
  v_lshlrev_b32 v1, {5 if OPT['prefetch'] else 0}, v0
  v_min_u32 v1, {"L_code_end - L_pc - 4" if OPT['prefetch'] else 0}, v1
  global_load_dword v3, v1, s[34:35]
  v_lshrrev_b32 v2, 6, v0
  v_and_b32 {VL}, 63, v0
  s_and_b32 s28, s2, 7             ; g
  v_readfirstlane_b32 s30, v2
  s_lshr_b32 s29, s2, 3            ; j
  s_mov_b32 s32, 0xff
  v_lshrrev_b32 v13, 4, {VL}       ; g4
  s_cmp_lg_u32 s30, 0
  s_cbranch_scc1 L_att
  ; ---- aux wave, first part: x -> LDS, gate inputs
  v_lshlrev_b32 v18, 4, {VL}
  v_add_u32 v21, 1024, v18
  s_waitcnt lgkmcnt(0)
  s_load_dword s31, s[26:27], {WS_E}
""")
stamp(1)
srd(52, 4, SZ['x'])
a(f"""  s_mov_b32 m0, {XB}
  s_cmp_ge_u32 s29, 16
  buffer_load_dwordx4 v18, s[52:55], 0 offen lds
  s_mov_b32 m0, {XB+1024}
  s_nop 0
  buffer_load_dwordx4 v21, s[52:55], 0 offen lds
  s_cbranch_scc1 L_aux
  s_mov_b32 s56, -1
  s_mov_b32 s57, 0x00ffffff
  s_mov_b64 exec, s[56:57]
  global_load_dwordx4 v[70:73], v18, s[4:5]
  global_load_dwordx4 v[74:77], v18, s[4:5] offset:896
  global_load_dwordx4 v[78:81], v18, s[20:21]
  s_mov_b64 exec, -1
  s_branch L_aux
""")

a(f"""L_att:
  v_lshrrev_b32 v8, 3, {VL}
  v_bfe_u32 v9, {VL}, 4, 2         ; (row>>1)&3
  v_and_b32 v10, 7, {VL}
  v_lshlrev_b32 v11, 1, v9
  v_xor_b32 v11, v11, v10
  v_lshlrev_b32 v11, 4, v11        ; *16 bytes
  s_sub_u32 s36, s30, 1            ; v
  s_and_b32 s37, s36, 1            ; kh
  s_lshr_b32 s38, s36, 1           ; dh
  v_lshl_add_u32 v18, v8, 13, v11
  s_lshr_b32 s42, s29, 3
  s_mul_i32 s42, s42, {112*8192}
  s_lshl_b32 s43, s28, 10
  s_add_u32 s42, s42, s43
  s_and_b32 s43, s29, 7
  s_lshl_b32 s43, s43, 7
  s_add_u32 s42, s42, s43
  s_lshl_b32 s43, s36, 16          ; v*8*8192
  s_add_u32 s42, s42, s43
  s_lshl_b32 s43, s36, 10
  s_add_u32 s43, s43, {RA}
  s_waitcnt lgkmcnt(0)
  s_load_dword s31, s[26:27], {WS_E}
""")
stamp(1)
srd(52, 10, SZ['wq'])
for k in range(4):
    if k == 3:
        a("  s_cmp_ge_u32 s36, 2")
        a("  s_cbranch_scc1 L_wq_done")
    a(f"  s_add_u32 m0, s43, {k*4096}")
    a(f"  s_add_u32 s45, s42, {k*4*8*8192}")
    dma("v18", 52, "s45")
a("L_wq_done:")
h_unit_index("s45")
a(f"""  s_mul_i32 s46, s45, 9363
  s_lshr_b32 s46, s46, 16          ; cbh = u1/7
  s_mul_i32 s47, s46, 7
  s_sub_u32 s47, s45, s47          ; kp = u1%7
  s_min_u32 s46, s46, 27
  s_lshl_b32 s46, s46, 7
  s_mul_i32 s47, s47, {64*3584}
  s_add_u32 s46, s46, s47
  s_mul_i32 s47, s36, {8*3584}
  s_add_u32 s46, s46, s47
  s_cmp_lt_u32 s45, 196
  s_cselect_b32 s45, 0, 0x40000000
  v_mul_u32_u24 v18, 3584, v8
  v_add3_u32 v18, v18, v11, s45
  s_lshl_b32 s47, s36, 10
  s_add_u32 s47, s47, {RC}
""")
srd(52, 16, SZ['w1'])
for k in range(2):
    a(f"  s_add_u32 m0, s47, {k*4096}")
    a(f"  s_add_u32 s45, s46, {k*4*8*3584}")
    dma("v18", 52, "s45")
a(f"""  v_xor_b32 v12, v9, v10
  v_lshlrev_b32 v12, 4, v12
  s_and_b32 s39, s29, 1            ; b
  s_lshr_b32 s40, s29, 1           ; s (0..15)
  s_lshl_b32 s41, s39, 3
  s_add_u32 s41, s41, s28          ; b*8+g
  s_lshl_b32 s41, s41, 21          ; *4096*512
  s_lshl_b32 s42, s40, 15          ; s*64*512
  s_add_u32 s41, s41, s42
  s_lshl_b32 s42, s37, 14          ; kh*32*512
  s_add_u32 s41, s41, s42
  s_lshl_b32 s42, s38, 8           ; dh*256
  s_add_u32 s41, s41, s42
  s_add_u32 s41, s41, {3072*512}
  s_lshl_b32 s43, s38, 14
  s_lshl_b32 s42, s37, 12
  s_add_u32 s43, s43, s42
  v_lshlrev_b32 v18, 9, v8         ; row*512
  v_add_u32 v19, v18, v12
  v_xor_b32 v20, 64, v19
  v_add_u32 v21, v18, v11          ; V voffset
""")
srd(44, 6, SZ['k'])
srd(48, 8, SZ['v'])
for c2 in range(2):
    for jj in range(4):
        a(f"  s_add_u32 m0, s43, {KBUF + c2*8192 + jj*1024}")
        a(f"  s_add_u32 s42, s41, {c2*128 + jj*4096}")
        dma("v20" if jj & 1 else "v19", 44, "s42")
tr_lane_setup()
a(f"""  ; q projection tile nb = v : addresses
  v_xor_b32 v24, s36, v16
  v_lshl_add_u32 v24, v24, 5, v15
  v_add_u32 v24, {RA}, v24
  v_and_b32 v25, 1, {VL}
  v_mul_u32_u24 v25, 896, v25
  v_lshl_add_u32 v25, v13, 3, v25
  s_lshr_b32 s42, s29, 3           ; kp
  s_mul_i32 s45, s42, 224
  s_add_u32 s45, s45, {XB}
  v_add_u32 v25, s45, v25
  s_lshl_b32 s45, s28, 14
  s_lshl_b32 s42, s42, 12
  s_add_u32 s45, s45, s42
  s_and_b32 s42, s29, 7
  s_lshl_b32 s42, s42, 8
  s_add_u32 s45, s45, s42
  s_lshl_b32 s42, s36, 6
  s_add_u32 s45, s45, s42
  s_add_u32 s45, s45, {WS_QP}
  v_lshlrev_b32 v26, 2, {VL}
  v_add_u32 v26, s45, v26
""")
a("  s_waitcnt lgkmcnt(0)")
tau_setup()
a("  s_waitcnt vmcnt(10)")
a("  s_barrier")
for st in range(3):
    a(f"  ds_read2_b64 v[{32+4*st}:{35+4*st}], v25 offset0:{8*st} offset1:{8*st+4}")
    a(f"  ds_read_b64_tr_b16 v[{48+4*st}:{49+4*st}], v24 offset:{st*4096}")
    a(f"  ds_read_b64_tr_b16 v[{50+4*st}:{51+4*st}], v24 offset:{st*4096+2048}")
a(f"  ds_read_b64 v[44:45], v25 offset:192")
a(f"  ds_read_b64_tr_b16 v[60:61], v24 offset:{3*4096}")
for st in range(3):
    a(f"  s_waitcnt lgkmcnt({8 - 3*st})")
    c = "0" if st == 0 else "v[64:67]"
    a(f"  v_mfma_f32_16x16x32_bf16 v[64:67], v[{32+4*st}:{35+4*st}], v[{48+4*st}:{51+4*st}], {c}")
a("  s_waitcnt lgkmcnt(0)")
a("  v_mfma_f32_16x16x16_bf16 v[68:71], v[44:45], v[60:61], 0")
a("  s_mov_b64 exec, 0xffff")
a("  s_nop 6")
a("  v_add_f32 v64, v64, v68")
a("  v_add_f32 v65, v65, v69")
tagit("v64", "v64")
tagit("v65", "v65")
a(f"""  global_store_dword v26, v64, s[26:27] sc1
  global_store_dword v26, v65, s[26:27] offset:2048 sc1
  s_mov_b64 exec, -1
""")
stamp(14)
a("  s_waitcnt vmcnt(10)")
a("  s_barrier")
for c2 in range(2):
    for jj in range(4):
        a(f"  s_add_u32 m0, s43, {VBUF + c2*8192 + jj*1024}")
        a(f"  s_add_u32 s42, s41, {c2*128 + jj*4096}")
        dma("v21", 48, "s42")
stamp(2)
a(f"""  ; K operand address: key*128 + (g4 ^ ((key>>1)&7))*16 + kh*4096
  v_and_b32 v22, 15, {VL}
  v_bfe_u32 v23, {VL}, 1, 3
  v_xor_b32 v23, v23, v13
  v_lshlrev_b32 v23, 4, v23
  v_lshl_add_u32 v22, v22, 7, v23
  s_lshl_b32 s42, s37, 12
  v_add_u32 v22, s42, v22
  v_xor_b32 v23, 64, v22
  s_add_u32 s42, s43, {VBUF}
""")
for nb in range(4):
    a(f"  v_xor_b32 v{24+nb}, {nb}, v16")
    a(f"  v_lshl_add_u32 v{24+nb}, v{24+nb}, 5, v15")
    a(f"  v_add_u32 v{24+nb}, s42, v{24+nb}")
a(f"""  ; q operand address: QB + (l&1)*576 + g4*16
  v_and_b32 v28, 1, {VL}
  v_mul_u32_u24 v28, 576, v28
  v_lshl_add_u32 v28, v13, 4, v28
  v_add_u32 v28, {QB}, v28
  s_lshl_b32 s42, s28, 14
  s_lshl_b32 s45, s39, 11
  s_add_u32 s42, s42, s45
  s_lshl_b32 s45, s37, 10
  s_add_u32 s42, s42, s45
  s_lshl_b32 s45, s38, 9
  s_add_u32 s42, s42, s45
  s_add_u32 s42, s42, {WS_QP}
  v_lshrrev_b32 v29, 5, {VL}       ; kpl
  v_and_b32 v30, 31, {VL}          ; c
  v_lshlrev_b32 v31, 12, v29
  v_lshl_add_u32 v31, v30, 4, v31
  v_add_u32 v51, s42, v31
  v_add_u32 v52, 8192, v51
  s_lshl_b32 s42, s28, 7
  s_add_u32 s42, s42, {WS_XID}
  v_lshl_add_u32 v50, v30, 2, s42
  s_mul_i32 s42, s37, 576
  s_lshl_b32 s45, s38, 8
  s_add_u32 s42, s42, s45
  s_add_u32 s42, s42, {QB}
  v_lshlrev_b32 v30, 3, v30
  v_lshl_add_u32 v30, v29, 2, v30
  v_add_u32 v53, s42, v30
  s_lshl_b32 s42, s28, 1
  s_add_u32 s42, s42, s39
  s_lshl_b32 s42, s42, 5
  s_lshl_b32 s45, s40, 1
  s_add_u32 s42, s42, s45
  s_add_u32 s42, s42, s37
  s_mul_i32 s42, s42, {OPS}
  s_lshl_b32 s45, s38, 10
  s_add_u32 s42, s42, s45
  s_add_u32 s42, s42, {WS_OP}
  v_lshlrev_b32 v54, 3, {VL}
  v_add_u32 v54, s42, v54
  s_lshl_b32 s42, s28, 1
  s_add_u32 s42, s42, s38
  s_mul_i32 s33, s42, {32*OPS}
  s_lshl_b32 s56, s29, 7
  s_add_u32 s33, s33, s56
  s_lshl_b32 s56, s37, 6
  s_add_u32 s33, s33, s56
  s_add_u32 s33, s33, {WS_OP}
  v_lshrrev_b32 v6, 2, {VL}       ; s16
  v_mul_u32_u24 v7, {OPS}, v6
  v_and_b32 v62, 3, {VL}
  v_lshl_add_u32 v7, v62, 4, v7
  v_add_u32 v62, s33, v7
  v_add_u32 v63, {16*OPS}, v62        ; s16+16
  v_mov_b32 v46, 0x3f803f80
  v_mov_b32 v47, 0x3f803f80
  v_mov_b32 v48, 0x3f803f80
  v_mov_b32 v49, 0x3f803f80
  v_and_b32 v55, 1, {VL}
  v_cmp_eq_u32 s[58:59], 1, v55
""")
xid_value("s34")
a("  s_mov_b32 s35, 0xffffff")
a("  s_waitcnt vmcnt(8)")
stamp(3)
a("  s_barrier")
for tt in range(2):
    for t in range(8):
        r = 64 + (tt*8 + t)*4
        a(f"  ds_read_b128 v[{r}:{r+3}], v{23 if t & 1 else 22} offset:{KBUF + (t>>1)*8192 + tt*2048}")

def w_weight_setup():
    srd(44, 12, SZ['wo'])
    srd(52, 18, SZ['w2'])
    a(f"""  s_lshl_b32 s42, s28, 9
  s_lshl_b32 s61, s29, 4
  s_add_u32 s42, s42, s61          ; g*512 + 16j
  s_lshl_b32 s61, s38, 8
  s_add_u32 s42, s42, s61          ; + h*256
  s_lshl_b32 s61, s37, 3
  s_add_u32 s42, s42, s61          ; + half*8
  s_mul_i32 s61, s42, 896
  s_lshl_b32 s60, s36, 10
  s_add_u32 s60, s60, {RA}
  v_mul_u32_u24 v19, 896, v8
  v_add_u32 v19, v19, v11
  s_lshl_b32 s33, s28, 4
  s_add_u32 s33, s33, s29          ; u
  s_min_u32 s42, s33, 111
  s_lshl_b32 s42, s42, 4
  s_lshl_b32 s62, s37, 3
  s_add_u32 s42, s42, s62          ; 16u + q*8   (q = v&1)
  s_mul_i32 s42, s42, 896
  s_lshl_b32 s62, s38, 7
  s_add_u32 s62, s42, s62          ; + (v>>1)*128
  s_cmp_lt_u32 s33, 112
  s_cselect_b32 s33, 0, 0x40000000
  v_add_u32 v20, s33, v19
  s_lshl_b32 s63, s38, 11
  s_lshl_b32 s33, s37, 10
  s_add_u32 s63, s63, s33
  s_add_u32 s63, s63, {RB}         ; RB + (v>>1)*2048 + q*1024
""")

def w_weight_loads(tagname):
    for cb in range(7):
        a(f"  s_add_u32 m0, s60, {cb*4096}")
        a(f"  s_add_u32 s33, s61, {cb*128}")
        dma("v19", 44, "s33")
    for k in range(4):
        if k == 3:
            a("  s_cmp_lg_u32 s38, 0")
            a(f"  s_cbranch_scc1 L_w2_done{tagname}")
        a(f"  s_add_u32 m0, s63, {k*4096}")
        a(f"  s_add_u32 s33, s62, {k*256}")
        dma("v20", 52, "s33")
    a(f"L_w2_done{tagname}:")

def q_loads():
    a("  global_load_dwordx4 v[32:35], v51, s[26:27] sc1")
    a("  global_load_dwordx4 v[36:39], v52, s[26:27] sc1")
    a("  global_load_dword v41, v50, s[26:27] sc1")

a("  s_cmp_lt_u32 s29, 16")
a("  s_cbranch_scc0 L_q_p")
w_weight_setup()
if OPT['wpos'] == 'first':
    pass
if OPT['wpos'] == 'q':
    a(f"  s_waitcnt vmcnt({OPT['qwait']})")
    stamp(4)
    q_loads()
    if OPT['a2']:
        a("  s_barrier")
    w_weight_loads("a")
    if OPT['opre']:
        a("  global_load_dword v2, v62, s[26:27] sc1")
        a("  global_load_dword v3, v63, s[26:27] sc1")
    a("  s_mov_b32 s33, 0")
    a(f"  s_waitcnt vmcnt({12 if OPT['opre'] else 10})")
    a("  s_branch L_qchk")
a(f"""L_q_p:
  s_mov_b32 s33, 0
  s_waitcnt vmcnt({OPT['qwait']})
""")
stamp(4)
a("L_qpoll:")
q_loads()
a("  s_waitcnt vmcnt(0)")
a("L_qchk:")
check_regs("v40", range(32, 40))
a("  v_xor_b32 v41, s34, v41")
a("  v_and_b32 v40, 0xff, v40")
a("  v_and_or_b32 v40, v41, s35, v40")
poll_end("v40", "L_qpoll", "L_qok", masked=True)
stamp(5)
rec(13, "s33")
if OPT['wpos'] == 'mid':
    a("  s_cmp_lt_u32 s29, 16")
    a("  s_cbranch_scc0 L_nomid")
    w_weight_loads("m")
    a("L_nomid:")
for nbk in range(8):
    r = 160 + 4*nbk
    off = (nbk >> 2)*8192
    a(f"  ds_read_b64_tr_b16 v[{r}:{r+1}], v{24 + (nbk & 3)} offset:{off}")
    a(f"  ds_read_b64_tr_b16 v[{r+2}:{r+3}], v{24 + (nbk & 3)} offset:{off + 2048}")
a(f"""  v_add_f32 v32, v32, v36
  v_add_f32 v33, v33, v37
  v_add_f32 v34, v34, v38
  v_add_f32 v35, v35, v39
  v_cmp_ne_u32 vcc, 0, v41
  s_nop 0
  v_permlane32_swap_b32 v32, v34
  v_permlane32_swap_b32 v33, v35
  v_add_f32 v32, v32, v34
  v_add_f32 v33, v33, v35
  v_cvt_pk_bf16_f32 v32, v32, v33
  ds_write_b32 v53, v32
  s_cmp_eq_u64 vcc, 0
  s_cselect_b32 s35, {1 if OPT['fast'] else 0}, 0
  s_waitcnt lgkmcnt(0)
  s_barrier
""")
stamp(6)
for t in range(8):
    a(f"  ds_read_b128 v[{128+4*t}:{131+4*t}], v28 offset:{64*t}")
a(f"  s_mov_b32 s42, {C_LOG2E_16:#x}")
for t in range(8):
    a(f"  s_waitcnt lgkmcnt({7-t})")
    for tt in range(2):
        kr = 64 + (tt*8 + t)*4
        c = "0" if t == 0 else f"v[{32+4*tt}:{35+4*tt}]"
        a(f"  v_mfma_f32_16x16x32_bf16 v[{32+4*tt}:{35+4*tt}], v[{kr}:{kr+3}], v[{128+4*t}:{131+4*t}], {c}")
a(f"""  s_nop 6
  v_max3_f32 v44, v32, v33, v34
  v_max3_f32 v45, v36, v37, v38
  v_max3_f32 v44, v44, v35, v39
  v_max_f32 v44, v44, v45
  v_mov_b32 v45, v44
  s_nop 1
  v_permlane16_swap_b32 v44, v45
  v_max_f32 v44, v44, v45
  v_mov_b32 v45, v44
  s_nop 1
  v_permlane32_swap_b32 v44, v45
  v_max_f32 v44, v44, v45
  v_mul_f32 v44, s42, v44
""")
for r in range(8):
    a(f"  v_fma_f32 v{32+r}, v{32+r}, s42, -v44")
for r in range(8):
    a(f"  v_exp_f32 v{32+r}, v{32+r}")
a("  s_nop 0")
for r in range(4):
    a(f"  v_cvt_pk_bf16_f32 v{40+r}, v{32+2*r}, v{33+2*r}")
a("  s_nop 1")
a("  v_mfma_f32_16x16x32_bf16 v[224:227], v[40:43], v[46:49], 0")
for nbk in range(8):
    a(f"  v_mfma_f32_16x16x32_bf16 v[{192+4*nbk}:{195+4*nbk}], v[40:43], v[{160+4*nbk}:{163+4*nbk}], 0")
a(f"""  v_cndmask_b32 v45, v224, v225, s[58:59]
  v_rcp_f32 v56, v224
  v_rcp_f32 v57, v225
  v_log_f32 v45, v45
  s_cmp_eq_u32 s35, 1
  v_add_f32 v45, v45, v44
""")
tagit("v59", "v45")
a("  v_mov_b32 v61, v59")
for q in range(2):
    for h in range(2):
        for k in range(4):
            a(f"  v_mul_f32_dpp v{32+2*q+h}, v{192+4*(4*q+k)+h}, v{56+h} quad_perm:[0,1,2,3] row_mask:{1<<k:#x} bank_mask:0xf")
    a(f"  v_cvt_pk_bf16_f32 v{58+2*q}, v{32+2*q}, v{33+2*q}")
a(f"""  s_cbranch_scc1 L_pub_local
  global_store_dwordx2 v54, v[58:59], s[26:27] sc1
  global_store_dwordx2 v54, v[60:61], s[26:27] offset:512 sc1
  s_branch L_pub_done
L_pub_local:                       ; every reader shares this die's L2
  global_store_dwordx2 v54, v[58:59], s[26:27]
  global_store_dwordx2 v54, v[60:61], s[26:27] offset:512
L_pub_done:
""")
stamp(7)
a("  s_cmp_lt_u32 s29, 16")
a("  s_cbranch_scc1 L_wstage")
a("  s_barrier")
dump_stamps()
a("  s_endpgm")

a("L_wstage:")
if OPT['wpos'] == 'late':
    w_weight_loads("l")
a(f"""  v_xor_b32 v24, s36, v16
  v_lshl_add_u32 v24, v24, 5, v15
  v_add_u32 v25, {RB}, v24
  v_add_u32 v24, {RA}, v24
  v_and_b32 v26, 1, {VL}
  v_lshlrev_b32 v27, 5, v26
  v_lshl_add_u32 v27, v13, 3, v27
  v_add_u32 v27, {HV}, v27
  v_lshlrev_b32 v28, 6, v26
  v_lshl_add_u32 v28, v13, 3, v28
  v_add_u32 v28, {OV}, v28
  v_and_b32 v54, 3, {VL}
  v_lshlrev_b32 v54, 2, v54
  v_and_b32 v55, 1, v13
  v_lshl_add_u32 v54, v55, 5, v54
  v_lshrrev_b32 v55, 1, v13
  v_lshl_add_u32 v54, v55, 1, v54
  s_lshl_b32 s42, s38, 6
  s_lshl_b32 s45, s37, 4
  s_add_u32 s42, s42, s45
  s_add_u32 s42, s42, {OV}
  v_add_u32 v54, s42, v54
  s_lshl_b32 s42, s28, 4
  s_add_u32 s42, s42, s29
  s_mul_i32 s42, s42, {APS}
  s_lshl_b32 s45, s36, 7
  s_add_u32 s42, s42, s45
  s_add_u32 s42, s42, {WS_AP}
  v_lshlrev_b32 v55, 3, {VL}
  v_add_u32 v55, s42, v55
  s_lshl_b32 s42, s38, 2
  s_add_u32 s42, s42, {GT}
  v_mov_b32 v29, s42
  ds_read_b32 v50, v29
  s_mov_b32 s56, 0xf000f000
  s_mov_b32 s57, 0xf000f000
  s_mov_b32 s33, 0
  s_waitcnt vmcnt(0) lgkmcnt(0)
  s_barrier
""")
stamp(8)
a("""  global_load_dwordx4 v[32:35], v62, s[26:27] sc1
  global_load_dwordx4 v[36:39], v63, s[26:27] sc1
  ds_read_b64 v[106:107], v27""")
for cb in range(7):
    a(f"  ds_read_b64_tr_b16 v[{92+2*cb}:{93+2*cb}], v25 offset:{cb*2048}")
for cb in range(7):
    a(f"  ds_read_b64_tr_b16 v[{64+4*cb}:{65+4*cb}], v24 offset:{cb*4096}")
    a(f"  ds_read_b64_tr_b16 v[{66+4*cb}:{67+4*cb}], v24 offset:{cb*4096+2048}")
a("  s_waitcnt lgkmcnt(14)")
for cb in range(7):
    a(f"  v_mfma_f32_16x16x16_bf16 v[{110+4*cb}:{113+4*cb}], v[106:107], v[{92+2*cb}:{93+2*cb}], 0")
a("  s_waitcnt vmcnt(0)")
a("  s_branch L_ochk")
a(f"""L_opoll:
  global_load_dwordx4 v[32:35], v62, s[26:27] sc1
  global_load_dwordx4 v[36:39], v63, s[26:27] sc1
  s_waitcnt vmcnt(0)
L_ochk:
""")
check_regs("v48", [33, 35, 37, 39])
poll_end("v48", "L_opoll", "L_ook")
stamp(9)
rec(12, "s33")
a(f"""  v_max_f32 v52, v33, v37
  v_max_f32 v53, v35, v39
  v_lshlrev_b32 v40, 16, v32       ; A: d0h0
  v_and_b32 v41, 0xffff0000, v32   ;    d0h1
  v_permlane16_swap_b32 v52, v53
  v_lshlrev_b32 v42, 16, v34       ;    d1h0
  v_and_b32 v43, 0xffff0000, v34   ;    d1h1
  v_max_f32 v52, v52, v53          ; rows: h0(01) h1(01) h0(23) h1(23)
  v_mov_b32 v53, v52
  v_lshlrev_b32 v44, 16, v36       ; B
  v_and_b32 v45, 0xffff0000, v36
  v_permlane32_swap_b32 v52, v53
  v_max_f32 v52, v52, v53
  v_lshlrev_b32 v46, 16, v38
  v_and_b32 v47, 0xffff0000, v38
  v_max_f32_dpp v52, v52, v52 row_shr:4 row_mask:0xf bank_mask:0xf
  s_nop 1
  v_max_f32_dpp v52, v52, v52 row_shr:8 row_mask:0xf bank_mask:0xf
  s_nop 0
  v_readlane_b32 s42, v52, 15
  v_readlane_b32 s45, v52, 31
  s_nop 1
  v_subrev_f32 v33, s42, v33
  v_subrev_f32 v37, s42, v37
  v_subrev_f32 v35, s45, v35
  v_subrev_f32 v39, s45, v39
  v_exp_f32 v33, v33               ; w A h0
  v_exp_f32 v37, v37               ; w B h0
  v_exp_f32 v35, v35               ; w A h1
  v_exp_f32 v39, v39               ; w B h1
  s_nop 0
  v_mul_f32 v40, v40, v33
  v_mul_f32 v41, v41, v35
  v_mul_f32 v42, v42, v33
  v_mul_f32 v43, v43, v35
  v_fmac_f32 v40, v44, v37
  v_fmac_f32 v41, v45, v39
  v_fmac_f32 v42, v46, v37
  v_fmac_f32 v43, v47, v39
  v_add_f32 v52, v33, v37          ; den h0
  v_add_f32 v53, v35, v39          ; den h1
  s_nop 0
  v_permlane16_swap_b32 v40, v41
  v_permlane16_swap_b32 v42, v43
  v_permlane16_swap_b32 v52, v53
  v_add_f32 v40, v40, v41
  v_add_f32 v42, v42, v43
  v_add_f32 v52, v52, v53
  v_mov_b32 v53, v52
  s_nop 1
  v_permlane32_swap_b32 v40, v42
  v_permlane32_swap_b32 v52, v53
  v_add_f32 v40, v40, v42
  v_add_f32 v52, v52, v53          ; rows h0 h1 h0 h1
  s_nop 0
  v_add_f32_dpp v40, v40, v40 row_shr:4 row_mask:0xf bank_mask:0xf
  v_add_f32_dpp v52, v52, v52 row_shr:4 row_mask:0xf bank_mask:0xf
  s_nop 0
  v_add_f32_dpp v40, v40, v40 row_shr:8 row_mask:0xf bank_mask:0xf
  v_add_f32_dpp v52, v52, v52 row_shr:8 row_mask:0xf bank_mask:0xf
  v_mul_f32 v40, v40, v50          ; * gate
  v_rcp_f32 v52, v52
  s_mov_b64 exec, s[56:57]
  v_mul_f32 v40, v40, v52
  v_cvt_pk_bf16_f32 v40, v40, v40
  ds_write_b16 v54, v40
  s_mov_b64 exec, -1
  s_waitcnt lgkmcnt(0)
  s_barrier
  ds_read2_b64 v[40:43], v28 offset0:0 offset1:4
  s_waitcnt lgkmcnt(0)
""")
for cb in range(7):
    a(f"  v_mfma_f32_16x16x32_bf16 v[{110+4*cb}:{113+4*cb}], v[40:43], v[{64+4*cb}:{67+4*cb}], v[{110+4*cb}:{113+4*cb}]")
a("  s_mov_b64 exec, 0xffff")
a("  s_nop 0")
for cb in range(7):
    r = 110 + 4*cb
    tagit(f"v{r}", f"v{r}")
    a(f"  global_store_dwordx2 v55, v[{r}:{r+1}], s[26:27] offset:{512*cb} sc1")
stamp(10)
a("  s_mov_b64 exec, -1")
dump_stamps()
a("  s_endpgm")

a("L_aux:")
tr_lane_setup()
for nb in range(4):
    a(f"  v_xor_b32 v{24+nb}, {nb}, v16")
    a(f"  v_lshl_add_u32 v{24+nb}, v{24+nb}, 5, v15")
    a(f"  v_add_u32 v{24+nb}, {RC}, v{24+nb}")
h_unit_index("s39")
a(f"""  s_mul_i32 s40, s39, 9363
  s_lshr_b32 s40, s40, 16          ; cbh
  s_mul_i32 s41, s40, 7
  s_sub_u32 s41, s39, s41          ; kp
  v_and_b32 v28, 1, {VL}
  v_mul_u32_u24 v28, 896, v28
  v_lshl_add_u32 v28, v13, 3, v28
  s_lshl_b32 s42, s41, 7
  s_add_u32 s42, s42, {XB}
  v_add_u32 v28, s42, v28
  s_mul_i32 s42, s41, {2*7168}
  s_lshl_b32 s43, s40, 8
  s_add_u32 s42, s42, s43
  s_add_u32 s42, s42, {WS_HP}
  v_lshlrev_b32 v31, 2, {VL}
  v_add_u32 v31, s42, v31
  v_add_u32 v30, 7168, v31
  s_waitcnt lgkmcnt(0)
""")
tau_setup()
xid_value("s34")
a(f"""  s_lshl_b32 s42, s28, 7
  s_lshl_b32 s43, s29, 2
  s_add_u32 s42, s42, s43
  s_add_u32 s42, s42, {WS_XID}
  v_mov_b32 v6, s42
  v_mov_b32 v7, s34
  s_waitcnt vmcnt(0)
  s_mov_b64 exec, 1
  global_store_dword v6, v7, s[26:27] sc1
  s_mov_b64 exec, -1
  s_barrier                        ; barrier Q
  s_barrier                        ; barrier Q2
""")
stamp(2)
if OPT['tlb']:
    a(f"""  s_lshl_b32 s42, s28, 9
  s_lshl_b32 s43, s29, 4
  s_add_u32 s42, s42, s43
  s_mul_i32 s42, s42, 896
  v_mov_b32 v6, s42
  v_mov_b32 v7, 0
  s_mov_b64 exec, 1
  global_load_dword v2, v6, s[12:13] nt
  global_load_dword v2, v7, s[18:19] offset:64 nt
  global_load_dword v2, v7, s[22:23] nt
  s_mov_b64 exec, -1
""")
a("  s_cmp_ge_u32 s39, 196")
a("  s_cbranch_scc1 L_nohpub")
for st in range(2):
    a(f"  ds_read2_b64 v[{48+4*st}:{51+4*st}], v28 offset0:{8*st} offset1:{8*st+4}")
    for nb in range(4):
        r = 96 + 16*st + 4*nb
        a(f"  ds_read_b64_tr_b16 v[{r}:{r+1}], v{24+nb} offset:{st*4096}")
        a(f"  ds_read_b64_tr_b16 v[{r+2}:{r+3}], v{24+nb} offset:{st*4096+2048}")
for st in range(2):
    a(f"  s_waitcnt lgkmcnt({9 - 9*st})")
    for nb in range(4):
        r = 96 + 16*st + 4*nb
        c = "0" if st == 0 else f"v[{32+4*nb}:{35+4*nb}]"
        a(f"  v_mfma_f32_16x16x32_bf16 v[{32+4*nb}:{35+4*nb}], v[{48+4*st}:{51+4*st}], v[{r}:{r+3}], {c}")
a("  s_nop 7")
for r in range(2):
    a(f"  v_permlane16_swap_b32 v{32+r}, v{36+r}")
    a(f"  v_permlane16_swap_b32 v{40+r}, v{44+r}")
a("  s_nop 1")
for r in range(2):
    a(f"  v_permlane32_swap_b32 v{32+r}, v{40+r}")
a("  s_nop 1")
tagit("v32", "v32")
tagit("v33", "v33")
a("""  global_store_dword v31, v32, s[26:27] sc1
  global_store_dword v30, v33, s[26:27] sc1
L_nohpub:""")
stamp(5)
a("  s_cmp_ge_u32 s29, 16")
a("  s_cbranch_scc1 L_aux_a")
a("  v_mov_b32 v44, 0")
a("  v_mov_b32 v45, 0")
for r in range(4):
    a(f"  v_lshlrev_b32 v46, 16, v{78+r}")
    a(f"  v_and_b32 v47, 0xffff0000, v{78+r}")
    for b in range(2):
        a(f"  v_lshlrev_b32 v48, 16, v{70+4*b+r}")
        a(f"  v_and_b32 v49, 0xffff0000, v{70+4*b+r}")
        a(f"  v_mul_f32 v48, v48, v46")
        a(f"  v_mul_f32 v49, v49, v47")
        a(f"  v_cvt_pk_bf16_f32 v48, v48, v49")
        a(f"  v_lshlrev_b32 v49, 16, v48")
        a(f"  v_and_b32 v48, 0xffff0000, v48")
        a(f"  v_add_f32 v{44+b}, v{44+b}, v49")
        a(f"  v_add_f32 v{44+b}, v{44+b}, v48")
a(f"""  v_cmp_gt_u32 vcc, 56, {VL}
  s_nop 1
  v_cndmask_b32 v44, 0, v44, vcc
  v_cndmask_b32 v45, 0, v45, vcc
  s_nop 1
""")
for sh in (1, 2, 4, 8):
    a(f"  v_add_f32_dpp v44, v44, v44 row_shr:{sh} row_mask:0xf bank_mask:0xf")
    a(f"  v_add_f32_dpp v45, v45, v45 row_shr:{sh} row_mask:0xf bank_mask:0xf")
    a("  s_nop 0")
a(f"""  v_add_f32_dpp v44, v44, v44 row_bcast:15 row_mask:0xa bank_mask:0xf
  v_add_f32_dpp v45, v45, v45 row_bcast:15 row_mask:0xa bank_mask:0xf
  s_nop 0
  v_add_f32_dpp v44, v44, v44 row_bcast:31 row_mask:0xc bank_mask:0xf
  v_add_f32_dpp v45, v45, v45 row_bcast:31 row_mask:0xc bank_mask:0xf
  s_nop 0
  v_readlane_b32 s42, v44, 63
  v_readlane_b32 s43, v45, 63
  s_nop 1
  v_and_b32 v46, 1, {VL}
  v_cmp_eq_u32 vcc, 0, v46
  v_mov_b32 v47, s43
  v_mov_b32 v48, s42
  v_cndmask_b32 v47, v47, v48, vcc
  v_mul_f32 v47, 0xbfb8aa3b, v47   ; -log2e * z
  v_exp_f32 v47, v47
  s_nop 0
  v_add_f32 v47, 1.0, v47
  v_rcp_f32 v47, v47               ; g[b = lane&1]
  s_nop 0
  v_sub_f32 v82, 1.0, v47          ; 1-g
  v_lshlrev_b32 v46, 2, v46
  v_add_u32 v46, {GT}, v46
  s_mov_b64 exec, 3
  ds_write_b32 v46, v47
  s_mov_b64 exec, -1
  s_waitcnt lgkmcnt(0)
""")
stamp(3)
a("L_aux_a:")
a("  s_barrier")
a("  s_cmp_lt_u32 s29, 16")
a("  s_cbranch_scc1 L_aux_w")
a("  s_cmp_lt_u32 s29, 23")
a("  s_cbranch_scc1 L_final")
dump_stamps()
a("  s_endpgm")

a(f"""L_final:
  s_sub_u32 s36, s29, 16           ; p
  s_lshl_b32 s37, s36, 3
  s_add_u32 s37, s37, s28          ; c
  v_lshrrev_b32 v29, 2, {VL}       ; u16
  v_mul_u32_u24 v30, {APS}, v29
  v_and_b32 v31, 3, {VL}
  v_lshl_add_u32 v30, v31, 4, v30
  s_lshl_b32 s42, s37, 6
  s_add_u32 s42, s42, {WS_AP}
  v_add_u32 v30, s42, v30
""")
for k in range(8):
    a(f"  v_add_u32 v{16+k}, {k*16*APS}, v30")
a(f"""  ; out + b*896 + (8c + 2*c4 + (r>>1))*2
  v_and_b32 v28, 1, v13
  v_mul_u32_u24 v28, 896, v28
  v_lshl_add_u32 v28, v31, 2, v28
  v_lshrrev_b32 v29, 1, v13
  v_lshl_add_u32 v28, v29, 1, v28
  s_lshl_b32 s42, s37, 4
  v_add_u32 v28, s42, v28
  s_mov_b32 s56, 0xf000f000
  s_mov_b32 s57, 0xf000f000
  v_mov_b32 v29, {WS_E}
  s_barrier                        ; barrier B
  s_barrier                        ; barrier C
  s_mov_b32 s33, 0
""")
stamp(8)
a("L_fpoll:")
for k in range(8):
    a(f"  global_load_dwordx4 v[{32+4*k}:{35+4*k}], v{16+k}, s[26:27] sc1")
a("  s_waitcnt vmcnt(0)")
check_regs("v64", [32+4*k+q for k in range(8) for q in (0, 2)])
poll_end("v64", "L_fpoll", "L_fok", sleep=OPT['fsleep'])
stamp(9)
rec(12, "s33")
for k in (1, 3, 5, 7):
    for r in range(4):
        a(f"  v_add_f32 v{32+4*(k-1)+r}, v{32+4*(k-1)+r}, v{32+4*k+r}")
for k in (2, 6):
    for r in range(4):
        a(f"  v_add_f32 v{32+4*(k-2)+r}, v{32+4*(k-2)+r}, v{32+4*k+r}")
for r in range(4):
    a(f"  v_add_f32 v{32+r}, v{32+r}, v{48+r}")
a(f"""  s_nop 1
  v_permlane16_swap_b32 v32, v33
  v_permlane16_swap_b32 v34, v35
  v_add_f32 v32, v32, v33
  v_add_f32 v34, v34, v35
  s_nop 1
  v_permlane32_swap_b32 v32, v34
  v_add_f32 v32, v32, v34
  s_nop 1
  v_add_f32_dpp v32, v32, v32 row_shr:4 row_mask:0xf bank_mask:0xf
  s_nop 1
  v_add_f32_dpp v32, v32, v32 row_shr:8 row_mask:0xf bank_mask:0xf
  s_mov_b64 exec, s[56:57]
  v_cvt_pk_bf16_f32 v32, v32, v32
  global_store_short v28, v32, s[22:23] sc1
  s_cmp_lg_u32 s37, 0
  s_cbranch_scc1 L_noE
  s_mov_b64 exec, 1
  global_store_dword v29, {VTAU}, s[26:27] sc1
L_noE:
  s_mov_b64 exec, -1
""")
if OPT['deadline']:
    a(f"""L_dl:
  s_memrealtime s[56:57]
  s_waitcnt lgkmcnt(0)
  s_sub_u32 s33, s56, s96
  s_cmp_lt_u32 s33, {OPT['deadline']}
  s_cbranch_scc1 L_dl""")
stamp(10)
if OPT['dbgts']:
    a("  s_waitcnt lgkmcnt(0)")
    a("  s_cmp_lg_u32 s37, 0")
    a("  s_cbranch_scc1 L_nodbg")
    a("  s_mov_b64 exec, 1")
    a("  v_mov_b32 v8, 0")
    for q in range(4):
        for r in range(4):
            k = 4*q + r
            a(f"  s_sub_u32 s33, s{64+2*k}, s64")
            a(f"  v_mov_b32 v{12+r}, s33")
        a(f"  global_store_dwordx4 v8, v[12:15], s[24:25] offset:{16*q}")
        a("  s_nop 1")
    a("L_nodbg:")
else:
    dump_stamps()
a("  s_endpgm")

a("L_aux_w:")
a(f"""  ; h gather set-up: lanes (kp = l>>3 (0..6), b = (l>>2)&1, q4 = l&3) ; HP + (kp*2+b)*7168 + (16u + 4*q4)*4
  s_lshl_b32 s38, s28, 4
  s_add_u32 s38, s38, s29          ; u = g*16 + j
  v_lshrrev_b32 v85, 3, {VL}
  v_bfe_u32 v86, {VL}, 2, 1
  v_lshl_add_u32 v85, v85, 1, v86
  v_mul_u32_u24 v85, 7168, v85
  v_and_b32 v87, 3, {VL}
  v_lshl_add_u32 v85, v87, 4, v85
  s_lshl_b32 s42, s38, 6
  s_add_u32 s42, s42, {WS_HP}
  v_add_u32 v85, s42, v85
  v_readlane_b32 s42, v82, 0
  v_readlane_b32 s43, v82, 1
  v_cmp_eq_u32 vcc, 0, v86
  v_mov_b32 v36, s43
  v_mov_b32 v37, s42
  v_cndmask_b32 v83, v36, v37, vcc
  v_lshlrev_b32 v84, 5, v86
  v_lshl_add_u32 v84, v87, 3, v84
  v_add_u32 v84, {HV}, v84          ; HV + b*32 + q4*8
""")
a(f"""  v_mov_b32 v32, 0
  v_mov_b32 v33, 0
  v_mov_b32 v34, 0
  v_mov_b32 v35, 0
  s_mov_b32 s56, -1
  s_mov_b32 s57, 0x00ffffff
  s_mov_b32 s33, 0
  s_setprio 3
""")
if OPT['a2'] and OPT['wpos'] == 'q':
    a("  s_barrier                        ; barrier A2")
a(f"""  s_cmp_ge_u32 s38, 112
  s_cbranch_scc1 L_hskip
  s_mov_b64 exec, s[56:57]
  global_load_dwordx4 v[32:35], v85, s[26:27] sc1
  s_mov_b64 exec, -1
L_hskip:
  s_barrier                        ; barrier B
""")
stamp(6)
a(f"""  s_cmp_ge_u32 s38, 112
  s_cbranch_scc1 L_hdone
  s_mov_b64 exec, s[56:57]
  s_waitcnt vmcnt(0)
  s_branch L_hchk
L_hpoll:
  global_load_dwordx4 v[32:35], v85, s[26:27] sc1
  s_waitcnt vmcnt(0)
L_hchk:
""")
check_regs("v40", range(32, 36))
poll_end("v40", "L_hpoll", "L_hok")
a("  s_mov_b64 exec, -1")
a("  s_nop 1")
for r in range(4):
    a(f"  v_add_f32_dpp v{32+r}, v{32+r}, v{32+r} row_ror:8 row_mask:0xf bank_mask:0xf")
for r in range(4):
    a(f"  v_mov_b32 v{36+r}, v{32+r}")
a("  s_nop 1")
for r in range(4):
    a(f"  v_permlane16_swap_b32 v{32+r}, v{36+r}")
for r in range(4):
    a(f"  v_add_f32 v{32+r}, v{32+r}, v{36+r}")
for r in range(4):
    a(f"  v_mov_b32 v{36+r}, v{32+r}")
a("  s_nop 1")
for r in range(4):
    a(f"  v_permlane32_swap_b32 v{32+r}, v{36+r}")
for r in range(4):
    a(f"  v_add_f32 v{32+r}, v{32+r}, v{36+r}")
a("L_hdone:")
for r in range(4):
    a(f"  v_max_f32 v{32+r}, 0, v{32+r}")
    a(f"  v_mul_f32 v{32+r}, v{32+r}, v83")
a(f"""  v_cvt_pk_bf16_f32 v32, v32, v33
  v_cvt_pk_bf16_f32 v33, v34, v35
  s_mov_b64 exec, 0xff
  ds_write_b64 v84, v[32:33]
  s_mov_b64 exec, -1
  s_waitcnt lgkmcnt(0)
""")
stamp(7)
a("  s_barrier                        ; barrier D1")
dump_stamps()
a("L_end:")
a("  s_endpgm")
a("L_code_end:")
a(footer(vgpr=232, sgpr=100))
open(sys.argv[1], "w").write(a.text())
```

```python
import sys
from asmlib import *

OPT = dict(stamp=0, spin=400000, nt=1, qwait=3, sleep=0, fsleep=0, fast=1, tlb=0, prefetch=1,
           ops=2176, aps=3712, deadline=0, dbgts=0, wpos='q', a2=1, opre=1, fsets=3, outflag='sc1', apack=0, fdelay=0, appad=1)
for a_ in sys.argv[2:]:
    k, v = a_.split('=')
    assert k in OPT, k
    OPT[k] = int(v) if v.lstrip('-').isdigit() else v
STAMP = OPT['stamp']
OPS = OPT['ops']; APS = 7296 if OPT['appad'] else OPT['aps']

WS_E = 0
WS_XID = 0x400
WS_QP = 0x1000
WS_HP = 0x21000
WS_OP = 0x40000
WS_AP = 0x180000
WS_TS = 0x300000
assert WS_HP + 7*2*7168 <= WS_OP and WS_OP + 512*OPS <= WS_AP and WS_AP + 128*APS <= WS_TS

KBUF = 0
VBUF = 32768
RA = 65536
RB = 94208
RC = 108544
XB = 116736
QB = 118784
OV = 119936
HV = 120064
GT = 120128
LDS_BYTES = 120320

C_LOG2E_16 = 0x3DB8AA3B
NT = " nt" if OPT['nt'] else ""
VTAU = "v4"
VL = "v5"

a = Asm()
def stamp(k):
    if STAMP:
        a(f"  s_memrealtime s[{64+2*k}:{65+2*k}]")
def rec(k, sreg):
    if STAMP:
        a(f"  s_mov_b32 s{64+2*k}, {sreg}")

def srd(dst, ptr, size):
    a(f"  s_mov_b32 s{dst}, s{ptr}")
    a(f"  s_mov_b32 s{dst+1}, s{ptr+1}")
    a(f"  s_mov_b32 s{dst+2}, {size}")
    a(f"  s_mov_b32 s{dst+3}, 0x20000")

def dma(voff, srdreg, soff):
    a(f"  buffer_load_dwordx4 {voff}, s[{srdreg}:{srdreg+3}], {soff} offen{NT} lds")

def tagit(dst, src):
    a(f"  v_bfi_b32 {dst}, s32, {VTAU}, {src}")

def check_regs(acc, regs, first=True):
    regs = list(regs)
    for r in regs:
        a(f"  v_xor_b32 v{r}, s31, v{r}")
    if first:
        if len(regs) >= 3:
            a(f"  v_or3_b32 {acc}, v{regs[0]}, v{regs[1]}, v{regs[2]}"); regs = regs[3:]
        else:
            a(f"  v_or_b32 {acc}, v{regs[0]}, v{regs[1]}"); regs = regs[2:]
    while len(regs) >= 2:
        a(f"  v_or3_b32 {acc}, {acc}, v{regs[0]}, v{regs[1]}"); regs = regs[2:]
    if regs:
        a(f"  v_or_b32 {acc}, {acc}, v{regs[0]}")

def poll_end(acc, lab_retry, lab_ok, cnt="s33", sleep=None, masked=False):
    sleep = OPT['sleep'] if sleep is None else sleep
    if not masked:
        a(f"  v_and_b32 {acc}, 0xff, {acc}")
    a(f"  v_cmp_ne_u32 vcc, 0, {acc}")
    a(f"  s_add_u32 {cnt}, {cnt}, 1")
    a(f"  s_cmp_gt_u32 {cnt}, {OPT['spin']}")
    a(f"  s_cbranch_scc1 {lab_ok}")
    if sleep:
        a(f"  s_cbranch_vccz {lab_ok}")
        a(f"  s_sleep {sleep}")
        a(f"  s_branch {lab_retry}")
    else:
        a(f"  s_cbranch_vccnz {lab_retry}")
    a(f"{lab_ok}:")

def dump_stamps():
    if not STAMP or OPT['dbgts']:
        return
    a("  s_waitcnt lgkmcnt(0)")
    a("  s_mul_i32 s33, s2, 5")
    a("  s_add_u32 s33, s33, s30")
    a("  s_lshl_b32 s33, s33, 6")
    a(f"  s_add_u32 s33, s33, {WS_TS}")
    a("  v_mov_b32 v8, s33")
    a("  s_mov_b64 exec, 1")
    for q in range(4):
        for r in range(4):
            a(f"  v_mov_b32 v{12+r}, s{64+2*(4*q+r)}")
        a(f"  global_store_dwordx4 v8, v[12:15], s[26:27] offset:{16*q}")
        a("  s_nop 1")

def tau_setup():
    a("  s_and_b32 s31, s31, 0xff")
    a("  s_mul_i32 s31, s31, 5")
    a("  s_add_u32 s31, s31, 59")
    a("  s_and_b32 s31, s31, 0xff")
    a(f"  v_mov_b32 {VTAU}, s31")

def xid_value(dst):
    a(f"  s_getreg_b32 {dst}, hwreg(HW_REG_XCC_ID, 0, 4)")
    a(f"  s_lshl_b32 {dst}, {dst}, 24")
    a(f"  s_mul_i32 s33, s31, 0x010101")
    a(f"  s_or_b32 {dst}, {dst}, s33")

def tr_lane_setup():
    a(f"""  v_bfe_u32 v14, {VL}, 2, 2        ; r4
  v_lshl_add_u32 v15, v13, 2, v14  ; row = 4*g4+r4
  v_bfe_u32 v16, v15, 1, 2         ; f
  v_and_b32 v17, 3, {VL}           ; c
  v_lshlrev_b32 v15, 7, v15
  v_lshl_add_u32 v15, v17, 3, v15  ; row*128 + c*8""")

def h_unit_index(dst):
    a(f"""  s_lshl_b32 {dst}, s28, 4
  s_add_u32 {dst}, {dst}, s29
  s_sub_u32 {dst}, {dst}, 16       ; P: g*16 + p
  s_lshl_b32 s33, s29, 3
  s_add_u32 s33, s33, s28
  s_add_u32 s33, s33, 128          ; W: 128 + i*8 + g
  s_cmp_lt_u32 s29, 16
  s_cselect_b32 {dst}, s33, {dst}""")

a(header(256, 320, LDS_BYTES))
if STAMP:
    for k in range(16):
        a(f"  s_mov_b32 s{64+2*k}, 0")
stamp(0)
if OPT['deadline']:
    a("  s_memrealtime s[96:97]")
a(f"""  s_getpc_b64 s[34:35]
L_pc:
  s_cmp_ge_u32 s2, 256
  s_cbranch_scc1 L_end
  s_load_dwordx16 s[4:19], s[0:1], 0
  s_load_dwordx8 s[20:27], s[0:1], 64
  v_lshlrev_b32 v1, {5 if OPT['prefetch'] else 0}, v0
  v_min_u32 v1, {"L_code_end - L_pc - 4" if OPT['prefetch'] else 0}, v1
  global_load_dword v3, v1, s[34:35]
  v_lshrrev_b32 v2, 6, v0
  v_and_b32 {VL}, 63, v0
  s_and_b32 s28, s2, 7             ; g
  v_readfirstlane_b32 s30, v2
  s_lshr_b32 s29, s2, 3            ; j
  s_mov_b32 s32, 0xff
  v_lshrrev_b32 v13, 4, {VL}       ; g4
  s_cmp_lg_u32 s30, 0
  s_cbranch_scc1 L_att
  ; ---- aux wave, first part: x -> LDS, gate inputs
  v_lshlrev_b32 v18, 4, {VL}
  v_add_u32 v21, 1024, v18
  s_waitcnt lgkmcnt(0)
  s_load_dword s31, s[26:27], {WS_E}
""")
stamp(1)
srd(52, 4, SZ['x'])
a(f"""  s_mov_b32 m0, {XB}
  s_cmp_ge_u32 s29, 16
  buffer_load_dwordx4 v18, s[52:55], 0 offen lds
  s_mov_b32 m0, {XB+1024}
  s_nop 0
  buffer_load_dwordx4 v21, s[52:55], 0 offen lds
  s_cbranch_scc1 L_aux
  s_mov_b32 s56, -1
  s_mov_b32 s57, 0x00ffffff
  s_mov_b64 exec, s[56:57]
  global_load_dwordx4 v[70:73], v18, s[4:5]
  global_load_dwordx4 v[74:77], v18, s[4:5] offset:896
  global_load_dwordx4 v[78:81], v18, s[20:21]
  s_mov_b64 exec, -1
  s_branch L_aux
""")

a(f"""L_att:
  v_lshrrev_b32 v8, 3, {VL}
  v_bfe_u32 v9, {VL}, 4, 2         ; (row>>1)&3
  v_and_b32 v10, 7, {VL}
  v_lshlrev_b32 v11, 1, v9
  v_xor_b32 v11, v11, v10
  v_lshlrev_b32 v11, 4, v11        ; *16 bytes
  s_sub_u32 s36, s30, 1            ; v
  s_and_b32 s37, s36, 1            ; kh
  s_lshr_b32 s38, s36, 1           ; dh
  v_lshl_add_u32 v18, v8, 13, v11
  s_lshr_b32 s42, s29, 3
  s_mul_i32 s42, s42, {112*8192}
  s_lshl_b32 s43, s28, 10
  s_add_u32 s42, s42, s43
  s_and_b32 s43, s29, 7
  s_lshl_b32 s43, s43, 7
  s_add_u32 s42, s42, s43
  s_lshl_b32 s43, s36, 16          ; v*8*8192
  s_add_u32 s42, s42, s43
  s_lshl_b32 s43, s36, 10
  s_add_u32 s43, s43, {RA}
  s_waitcnt lgkmcnt(0)
  s_load_dword s31, s[26:27], {WS_E}
""")
stamp(1)
srd(52, 10, SZ['wq'])
for k in range(4):
    if k == 3:
        a("  s_cmp_ge_u32 s36, 2")
        a("  s_cbranch_scc1 L_wq_done")
    a(f"  s_add_u32 m0, s43, {k*4096}")
    a(f"  s_add_u32 s45, s42, {k*4*8*8192}")
    dma("v18", 52, "s45")
a("L_wq_done:")
h_unit_index("s45")
a(f"""  s_mul_i32 s46, s45, 9363
  s_lshr_b32 s46, s46, 16          ; cbh = u1/7
  s_mul_i32 s47, s46, 7
  s_sub_u32 s47, s45, s47          ; kp = u1%7
  s_min_u32 s46, s46, 27
  s_lshl_b32 s46, s46, 7
  s_mul_i32 s47, s47, {64*3584}
  s_add_u32 s46, s46, s47
  s_mul_i32 s47, s36, {8*3584}
  s_add_u32 s46, s46, s47
  s_cmp_lt_u32 s45, 196
  s_cselect_b32 s45, 0, 0x40000000
  v_mul_u32_u24 v18, 3584, v8
  v_add3_u32 v18, v18, v11, s45
  s_lshl_b32 s47, s36, 10
  s_add_u32 s47, s47, {RC}
""")
srd(52, 16, SZ['w1'])
for k in range(2):
    a(f"  s_add_u32 m0, s47, {k*4096}")
    a(f"  s_add_u32 s45, s46, {k*4*8*3584}")
    dma("v18", 52, "s45")
a(f"""  v_xor_b32 v12, v9, v10
  v_lshlrev_b32 v12, 4, v12
  s_and_b32 s39, s29, 1            ; b
  s_lshr_b32 s40, s29, 1           ; s (0..15)
  s_lshl_b32 s41, s39, 3
  s_add_u32 s41, s41, s28          ; b*8+g
  s_lshl_b32 s41, s41, 21          ; *4096*512
  s_lshl_b32 s42, s40, 15          ; s*64*512
  s_add_u32 s41, s41, s42
  s_lshl_b32 s42, s37, 14          ; kh*32*512
  s_add_u32 s41, s41, s42
  s_lshl_b32 s42, s38, 8           ; dh*256
  s_add_u32 s41, s41, s42
  s_add_u32 s41, s41, {3072*512}
  s_lshl_b32 s43, s38, 14
  s_lshl_b32 s42, s37, 12
  s_add_u32 s43, s43, s42
  v_lshlrev_b32 v18, 9, v8         ; row*512
  v_add_u32 v19, v18, v12
  v_xor_b32 v20, 64, v19
  v_add_u32 v21, v18, v11          ; V voffset
""")
srd(44, 6, SZ['k'])
srd(48, 8, SZ['v'])
for c2 in range(2):
    for jj in range(4):
        a(f"  s_add_u32 m0, s43, {KBUF + c2*8192 + jj*1024}")
        a(f"  s_add_u32 s42, s41, {c2*128 + jj*4096}")
        dma("v20" if jj & 1 else "v19", 44, "s42")
tr_lane_setup()
a(f"""  ; q projection tile nb = v : addresses
  v_xor_b32 v24, s36, v16
  v_lshl_add_u32 v24, v24, 5, v15
  v_add_u32 v24, {RA}, v24
  v_and_b32 v25, 1, {VL}
  v_mul_u32_u24 v25, 896, v25
  v_lshl_add_u32 v25, v13, 3, v25
  s_lshr_b32 s42, s29, 3           ; kp
  s_mul_i32 s45, s42, 224
  s_add_u32 s45, s45, {XB}
  v_add_u32 v25, s45, v25
  s_lshl_b32 s45, s28, 14
  s_lshl_b32 s42, s42, 12
  s_add_u32 s45, s45, s42
  s_and_b32 s42, s29, 7
  s_lshl_b32 s42, s42, 8
  s_add_u32 s45, s45, s42
  s_lshl_b32 s42, s36, 6
  s_add_u32 s45, s45, s42
  s_add_u32 s45, s45, {WS_QP}
  v_lshlrev_b32 v26, 2, {VL}
  v_add_u32 v26, s45, v26
""")
a("  s_waitcnt lgkmcnt(0)")
tau_setup()
a("  s_waitcnt vmcnt(10)")
a("  s_barrier")
for st in range(3):
    a(f"  ds_read2_b64 v[{32+4*st}:{35+4*st}], v25 offset0:{8*st} offset1:{8*st+4}")
    a(f"  ds_read_b64_tr_b16 v[{48+4*st}:{49+4*st}], v24 offset:{st*4096}")
    a(f"  ds_read_b64_tr_b16 v[{50+4*st}:{51+4*st}], v24 offset:{st*4096+2048}")
a(f"  ds_read_b64 v[44:45], v25 offset:192")
a(f"  ds_read_b64_tr_b16 v[60:61], v24 offset:{3*4096}")
for st in range(3):
    a(f"  s_waitcnt lgkmcnt({8 - 3*st})")
    c = "0" if st == 0 else "v[64:67]"
    a(f"  v_mfma_f32_16x16x32_bf16 v[64:67], v[{32+4*st}:{35+4*st}], v[{48+4*st}:{51+4*st}], {c}")
a("  s_waitcnt lgkmcnt(0)")
a("  v_mfma_f32_16x16x16_bf16 v[68:71], v[44:45], v[60:61], 0")
a("  s_mov_b64 exec, 0xffff")
a("  s_nop 6")
a("  v_add_f32 v64, v64, v68")
a("  v_add_f32 v65, v65, v69")
tagit("v64", "v64")
tagit("v65", "v65")
a(f"""  global_store_dword v26, v64, s[26:27] sc1
  global_store_dword v26, v65, s[26:27] offset:2048 sc1
  s_mov_b64 exec, -1
""")
stamp(14)
a("  s_waitcnt vmcnt(10)")
a("  s_barrier")
for c2 in range(2):
    for jj in range(4):
        a(f"  s_add_u32 m0, s43, {VBUF + c2*8192 + jj*1024}")
        a(f"  s_add_u32 s42, s41, {c2*128 + jj*4096}")
        dma("v21", 48, "s42")
stamp(2)
a(f"""  ; K operand address: key*128 + (g4 ^ ((key>>1)&7))*16 + kh*4096
  v_and_b32 v22, 15, {VL}
  v_bfe_u32 v23, {VL}, 1, 3
  v_xor_b32 v23, v23, v13
  v_lshlrev_b32 v23, 4, v23
  v_lshl_add_u32 v22, v22, 7, v23
  s_lshl_b32 s42, s37, 12
  v_add_u32 v22, s42, v22
  v_xor_b32 v23, 64, v22
  s_add_u32 s42, s43, {VBUF}
""")
for nb in range(4):
    a(f"  v_xor_b32 v{24+nb}, {nb}, v16")
    a(f"  v_lshl_add_u32 v{24+nb}, v{24+nb}, 5, v15")
    a(f"  v_add_u32 v{24+nb}, s42, v{24+nb}")
a(f"""  ; q operand address: QB + (l&1)*576 + g4*16
  v_and_b32 v28, 1, {VL}
  v_mul_u32_u24 v28, 576, v28
  v_lshl_add_u32 v28, v13, 4, v28
  v_add_u32 v28, {QB}, v28
  s_lshl_b32 s42, s28, 14
  s_lshl_b32 s45, s39, 11
  s_add_u32 s42, s42, s45
  s_lshl_b32 s45, s37, 10
  s_add_u32 s42, s42, s45
  s_lshl_b32 s45, s38, 9
  s_add_u32 s42, s42, s45
  s_add_u32 s42, s42, {WS_QP}
  v_lshrrev_b32 v29, 5, {VL}       ; kpl
  v_and_b32 v30, 31, {VL}          ; c
  v_lshlrev_b32 v31, 12, v29
  v_lshl_add_u32 v31, v30, 4, v31
  v_add_u32 v51, s42, v31
  v_add_u32 v52, 8192, v51
  s_lshl_b32 s42, s28, 7
  s_add_u32 s42, s42, {WS_XID}
  v_lshl_add_u32 v50, v30, 2, s42
  s_mul_i32 s42, s37, 576
  s_lshl_b32 s45, s38, 8
  s_add_u32 s42, s42, s45
  s_add_u32 s42, s42, {QB}
  v_lshlrev_b32 v30, 3, v30
  v_lshl_add_u32 v30, v29, 2, v30
  v_add_u32 v53, s42, v30
  s_lshl_b32 s42, s28, 1
  s_add_u32 s42, s42, s39
  s_lshl_b32 s42, s42, 5
  s_lshl_b32 s45, s40, 1
  s_add_u32 s42, s42, s45
  s_add_u32 s42, s42, s37
  s_mul_i32 s42, s42, {OPS}
  s_lshl_b32 s45, s38, 10
  s_add_u32 s42, s42, s45
  s_add_u32 s42, s42, {WS_OP}
  v_lshlrev_b32 v54, 3, {VL}
  v_add_u32 v54, s42, v54
  s_lshl_b32 s42, s28, 1
  s_add_u32 s42, s42, s38
  s_mul_i32 s33, s42, {32*OPS}
  s_lshl_b32 s56, s29, 7
  s_add_u32 s33, s33, s56
  s_lshl_b32 s56, s37, 6
  s_add_u32 s33, s33, s56
  s_add_u32 s33, s33, {WS_OP}
  v_lshrrev_b32 v6, 2, {VL}       ; s16
  v_mul_u32_u24 v7, {OPS}, v6
  v_and_b32 v62, 3, {VL}
  v_lshl_add_u32 v7, v62, 4, v7
  v_add_u32 v62, s33, v7
  v_add_u32 v63, {16*OPS}, v62        ; s16+16
  v_mov_b32 v46, 0x3f803f80
  v_mov_b32 v47, 0x3f803f80
  v_mov_b32 v48, 0x3f803f80
  v_mov_b32 v49, 0x3f803f80
  v_and_b32 v55, 1, {VL}
  v_cmp_eq_u32 s[58:59], 1, v55
""")
xid_value("s34")
a("  s_mov_b32 s35, 0xffffff")
a("  s_waitcnt vmcnt(8)")
stamp(3)
a("  s_barrier")
for tt in range(2):
    for t in range(8):
        r = 64 + (tt*8 + t)*4
        a(f"  ds_read_b128 v[{r}:{r+3}], v{23 if t & 1 else 22} offset:{KBUF + (t>>1)*8192 + tt*2048}")

def w_weight_setup():
    srd(44, 12, SZ['wo'])
    srd(52, 18, SZ['w2'])
    a(f"""  s_lshl_b32 s42, s28, 9
  s_lshl_b32 s61, s29, 4
  s_add_u32 s42, s42, s61          ; g*512 + 16j
  s_lshl_b32 s61, s38, 8
  s_add_u32 s42, s42, s61          ; + h*256
  s_lshl_b32 s61, s37, 3
  s_add_u32 s42, s42, s61          ; + half*8
  s_mul_i32 s61, s42, 896
  s_lshl_b32 s60, s36, 10
  s_add_u32 s60, s60, {RA}
  v_mul_u32_u24 v19, 896, v8
  v_add_u32 v19, v19, v11
  s_lshl_b32 s33, s28, 4
  s_add_u32 s33, s33, s29          ; u
  s_min_u32 s42, s33, 111
  s_lshl_b32 s42, s42, 4
  s_lshl_b32 s62, s37, 3
  s_add_u32 s42, s42, s62          ; 16u + q*8   (q = v&1)
  s_mul_i32 s42, s42, 896
  s_lshl_b32 s62, s38, 7
  s_add_u32 s62, s42, s62          ; + (v>>1)*128
  s_cmp_lt_u32 s33, 112
  s_cselect_b32 s33, 0, 0x40000000
  v_add_u32 v20, s33, v19
  s_lshl_b32 s63, s38, 11
  s_lshl_b32 s33, s37, 10
  s_add_u32 s63, s63, s33
  s_add_u32 s63, s63, {RB}         ; RB + (v>>1)*2048 + q*1024
""")

def w_weight_loads(tagname):
    for cb in range(7):
        a(f"  s_add_u32 m0, s60, {cb*4096}")
        a(f"  s_add_u32 s33, s61, {cb*128}")
        dma("v19", 44, "s33")
    for k in range(4):
        if k == 3:
            a("  s_cmp_lg_u32 s38, 0")
            a(f"  s_cbranch_scc1 L_w2_done{tagname}")
        a(f"  s_add_u32 m0, s63, {k*4096}")
        a(f"  s_add_u32 s33, s62, {k*256}")
        dma("v20", 52, "s33")
    a(f"L_w2_done{tagname}:")

def q_loads():
    a("  global_load_dwordx4 v[32:35], v51, s[26:27] sc1")
    a("  global_load_dwordx4 v[36:39], v52, s[26:27] sc1")
    a("  global_load_dword v41, v50, s[26:27] sc1")

a("  s_cmp_lt_u32 s29, 16")
a("  s_cbranch_scc0 L_q_p")
w_weight_setup()
if OPT['wpos'] == 'first':
    pass
if OPT['wpos'] == 'q':
    a(f"  s_waitcnt vmcnt({OPT['qwait']})")
    stamp(4)
    q_loads()
    if OPT['a2']:
        a("  s_barrier")
    w_weight_loads("a")
    if OPT['opre']:
        a("  global_load_dword v2, v62, s[26:27] sc1")
        a("  global_load_dword v3, v63, s[26:27] sc1")
    a("  s_mov_b32 s33, 0")
    a(f"  s_waitcnt vmcnt({12 if OPT['opre'] else 10})")
    a("  s_branch L_qchk")
a(f"""L_q_p:
  s_mov_b32 s33, 0
  s_waitcnt vmcnt({OPT['qwait']})
""")
stamp(4)
a("L_qpoll:")
q_loads()
a("  s_waitcnt vmcnt(0)")
a("L_qchk:")
check_regs("v40", range(32, 40))
a("  v_xor_b32 v41, s34, v41")
a("  v_and_b32 v40, 0xff, v40")
a("  v_and_or_b32 v40, v41, s35, v40")
poll_end("v40", "L_qpoll", "L_qok", masked=True)
stamp(5)
rec(13, "s33")
if OPT['wpos'] == 'mid':
    a("  s_cmp_lt_u32 s29, 16")
    a("  s_cbranch_scc0 L_nomid")
    w_weight_loads("m")
    a("L_nomid:")
for nbk in range(8):
    r = 160 + 4*nbk
    off = (nbk >> 2)*8192
    a(f"  ds_read_b64_tr_b16 v[{r}:{r+1}], v{24 + (nbk & 3)} offset:{off}")
    a(f"  ds_read_b64_tr_b16 v[{r+2}:{r+3}], v{24 + (nbk & 3)} offset:{off + 2048}")
a(f"""  v_add_f32 v32, v32, v36
  v_add_f32 v33, v33, v37
  v_add_f32 v34, v34, v38
  v_add_f32 v35, v35, v39
  v_cmp_ne_u32 vcc, 0, v41
  s_nop 0
  v_permlane32_swap_b32 v32, v34
  v_permlane32_swap_b32 v33, v35
  v_add_f32 v32, v32, v34
  v_add_f32 v33, v33, v35
  v_cvt_pk_bf16_f32 v32, v32, v33
  ds_write_b32 v53, v32
  s_cmp_eq_u64 vcc, 0
  s_cselect_b32 s35, {1 if OPT['fast'] else 0}, 0
  s_waitcnt lgkmcnt(0)
  s_barrier
""")
stamp(6)
for t in range(8):
    a(f"  ds_read_b128 v[{128+4*t}:{131+4*t}], v28 offset:{64*t}")
a(f"  s_mov_b32 s42, {C_LOG2E_16:#x}")
for t in range(8):
    a(f"  s_waitcnt lgkmcnt({7-t})")
    for tt in range(2):
        kr = 64 + (tt*8 + t)*4
        c = "0" if t == 0 else f"v[{32+4*tt}:{35+4*tt}]"
        a(f"  v_mfma_f32_16x16x32_bf16 v[{32+4*tt}:{35+4*tt}], v[{kr}:{kr+3}], v[{128+4*t}:{131+4*t}], {c}")
a(f"""  s_nop 6
  v_max3_f32 v44, v32, v33, v34
  v_max3_f32 v45, v36, v37, v38
  v_max3_f32 v44, v44, v35, v39
  v_max_f32 v44, v44, v45
  v_mov_b32 v45, v44
  s_nop 1
  v_permlane16_swap_b32 v44, v45
  v_max_f32 v44, v44, v45
  v_mov_b32 v45, v44
  s_nop 1
  v_permlane32_swap_b32 v44, v45
  v_max_f32 v44, v44, v45
  v_mul_f32 v44, s42, v44
""")
for r in range(8):
    a(f"  v_fma_f32 v{32+r}, v{32+r}, s42, -v44")
for r in range(8):
    a(f"  v_exp_f32 v{32+r}, v{32+r}")
a("  s_nop 0")
for r in range(4):
    a(f"  v_cvt_pk_bf16_f32 v{40+r}, v{32+2*r}, v{33+2*r}")
a("  s_nop 1")
a("  v_mfma_f32_16x16x32_bf16 v[224:227], v[40:43], v[46:49], 0")
for nbk in range(8):
    a(f"  v_mfma_f32_16x16x32_bf16 v[{192+4*nbk}:{195+4*nbk}], v[40:43], v[{160+4*nbk}:{163+4*nbk}], 0")
a(f"""  v_cndmask_b32 v45, v224, v225, s[58:59]
  v_rcp_f32 v56, v224
  v_rcp_f32 v57, v225
  v_log_f32 v45, v45
  s_cmp_eq_u32 s35, 1
  v_add_f32 v45, v45, v44
""")
tagit("v59", "v45")
a("  v_mov_b32 v61, v59")
for q in range(2):
    for h in range(2):
        for k in range(4):
            a(f"  v_mul_f32_dpp v{32+2*q+h}, v{192+4*(4*q+k)+h}, v{56+h} quad_perm:[0,1,2,3] row_mask:{1<<k:#x} bank_mask:0xf")
    a(f"  v_cvt_pk_bf16_f32 v{58+2*q}, v{32+2*q}, v{33+2*q}")
a(f"""  s_cbranch_scc1 L_pub_local
  global_store_dwordx2 v54, v[58:59], s[26:27] sc1
  global_store_dwordx2 v54, v[60:61], s[26:27] offset:512 sc1
  s_branch L_pub_done
L_pub_local:                       ; every reader shares this die's L2
  global_store_dwordx2 v54, v[58:59], s[26:27]
  global_store_dwordx2 v54, v[60:61], s[26:27] offset:512
L_pub_done:
""")
stamp(7)
a("  s_cmp_lt_u32 s29, 16")
a("  s_cbranch_scc1 L_wstage")
a("  s_barrier")
dump_stamps()
a("  s_endpgm")

a("L_wstage:")
if OPT['wpos'] == 'late':
    w_weight_loads("l")
a(f"""  v_xor_b32 v24, s36, v16
  v_lshl_add_u32 v24, v24, 5, v15
  v_add_u32 v25, {RB}, v24
  v_add_u32 v24, {RA}, v24
  v_and_b32 v26, 1, {VL}
  v_lshlrev_b32 v27, 5, v26
  v_lshl_add_u32 v27, v13, 3, v27
  v_add_u32 v27, {HV}, v27
  v_lshlrev_b32 v28, 6, v26
  v_lshl_add_u32 v28, v13, 3, v28
  v_add_u32 v28, {OV}, v28
  v_and_b32 v54, 3, {VL}
  v_lshlrev_b32 v54, 2, v54
  v_and_b32 v55, 1, v13
  v_lshl_add_u32 v54, v55, 5, v54
  v_lshrrev_b32 v55, 1, v13
  v_lshl_add_u32 v54, v55, 1, v54
  s_lshl_b32 s42, s38, 6
  s_lshl_b32 s45, s37, 4
  s_add_u32 s42, s42, s45
  s_add_u32 s42, s42, {OV}
  v_add_u32 v54, s42, v54
  s_lshl_b32 s42, s28, 4
  s_add_u32 s42, s42, s29
  s_mul_i32 s42, s42, {APS}
  s_lshl_b32 s45, s36, {8 if OPT['appad'] else 7}
  s_add_u32 s42, s42, s45
  s_add_u32 s42, s42, {WS_AP}
  v_lshlrev_b32 v55, 3, {VL}
  v_add_u32 v55, s42, v55
  v_bfe_u32 v56, {VL}, 3, 1
  v_lshl_add_u32 v56, v56, 6, v55
  v_add_u32 v57, 4096, v56
  s_lshl_b32 s42, s38, 2
  s_add_u32 s42, s42, {GT}
  v_mov_b32 v29, s42
  ds_read_b32 v50, v29
  s_mov_b32 s56, 0xf000f000
  s_mov_b32 s57, 0xf000f000
  s_mov_b32 s33, 0
  s_waitcnt vmcnt(0) lgkmcnt(0)
  s_barrier
""")
stamp(8)
a("""  global_load_dwordx4 v[32:35], v62, s[26:27] sc1
  global_load_dwordx4 v[36:39], v63, s[26:27] sc1
  ds_read_b64 v[106:107], v27""")
for cb in range(7):
    a(f"  ds_read_b64_tr_b16 v[{92+2*cb}:{93+2*cb}], v25 offset:{cb*2048}")
for cb in range(7):
    a(f"  ds_read_b64_tr_b16 v[{64+4*cb}:{65+4*cb}], v24 offset:{cb*4096}")
    a(f"  ds_read_b64_tr_b16 v[{66+4*cb}:{67+4*cb}], v24 offset:{cb*4096+2048}")
a("  s_waitcnt lgkmcnt(14)")
for cb in range(7):
    a(f"  v_mfma_f32_16x16x16_bf16 v[{110+4*cb}:{113+4*cb}], v[106:107], v[{92+2*cb}:{93+2*cb}], 0")
a("  s_waitcnt vmcnt(0)")
a("  s_branch L_ochk")
a(f"""L_opoll:
  global_load_dwordx4 v[32:35], v62, s[26:27] sc1
  global_load_dwordx4 v[36:39], v63, s[26:27] sc1
  s_waitcnt vmcnt(0)
L_ochk:
""")
check_regs("v48", [33, 35, 37, 39])
poll_end("v48", "L_opoll", "L_ook")
stamp(9)
rec(12, "s33")
a(f"""  v_max_f32 v52, v33, v37
  v_max_f32 v53, v35, v39
  v_lshlrev_b32 v40, 16, v32       ; A: d0h0
  v_and_b32 v41, 0xffff0000, v32   ;    d0h1
  v_permlane16_swap_b32 v52, v53
  v_lshlrev_b32 v42, 16, v34       ;    d1h0
  v_and_b32 v43, 0xffff0000, v34   ;    d1h1
  v_max_f32 v52, v52, v53          ; rows: h0(01) h1(01) h0(23) h1(23)
  v_mov_b32 v53, v52
  v_lshlrev_b32 v44, 16, v36       ; B
  v_and_b32 v45, 0xffff0000, v36
  v_permlane32_swap_b32 v52, v53
  v_max_f32 v52, v52, v53
  v_lshlrev_b32 v46, 16, v38
  v_and_b32 v47, 0xffff0000, v38
  v_max_f32_dpp v52, v52, v52 row_shr:4 row_mask:0xf bank_mask:0xf
  s_nop 1
  v_max_f32_dpp v52, v52, v52 row_shr:8 row_mask:0xf bank_mask:0xf
  s_nop 0
  v_readlane_b32 s42, v52, 15
  v_readlane_b32 s45, v52, 31
  s_nop 1
  v_subrev_f32 v33, s42, v33
  v_subrev_f32 v37, s42, v37
  v_subrev_f32 v35, s45, v35
  v_subrev_f32 v39, s45, v39
  v_exp_f32 v33, v33               ; w A h0
  v_exp_f32 v37, v37               ; w B h0
  v_exp_f32 v35, v35               ; w A h1
  v_exp_f32 v39, v39               ; w B h1
  s_nop 0
  v_mul_f32 v40, v40, v33
  v_mul_f32 v41, v41, v35
  v_mul_f32 v42, v42, v33
  v_mul_f32 v43, v43, v35
  v_fmac_f32 v40, v44, v37
  v_fmac_f32 v41, v45, v39
  v_fmac_f32 v42, v46, v37
  v_fmac_f32 v43, v47, v39
  v_add_f32 v52, v33, v37          ; den h0
  v_add_f32 v53, v35, v39          ; den h1
  s_nop 0
  v_permlane16_swap_b32 v40, v41
  v_permlane16_swap_b32 v42, v43
  v_permlane16_swap_b32 v52, v53
  v_add_f32 v40, v40, v41
  v_add_f32 v42, v42, v43
  v_add_f32 v52, v52, v53
  v_mov_b32 v53, v52
  s_nop 1
  v_permlane32_swap_b32 v40, v42
  v_permlane32_swap_b32 v52, v53
  v_add_f32 v40, v40, v42
  v_add_f32 v52, v52, v53          ; rows h0 h1 h0 h1
  s_nop 0
  v_add_f32_dpp v40, v40, v40 row_shr:4 row_mask:0xf bank_mask:0xf
  v_add_f32_dpp v52, v52, v52 row_shr:4 row_mask:0xf bank_mask:0xf
  s_nop 0
  v_add_f32_dpp v40, v40, v40 row_shr:8 row_mask:0xf bank_mask:0xf
  v_add_f32_dpp v52, v52, v52 row_shr:8 row_mask:0xf bank_mask:0xf
  v_mul_f32 v40, v40, v50          ; * gate
  v_rcp_f32 v52, v52
  s_mov_b64 exec, s[56:57]
  v_mul_f32 v40, v40, v52
  v_cvt_pk_bf16_f32 v40, v40, v40
  ds_write_b16 v54, v40
  s_mov_b64 exec, -1
  s_waitcnt lgkmcnt(0)
  s_barrier
  ds_read2_b64 v[40:43], v28 offset0:0 offset1:4
  s_waitcnt lgkmcnt(0)
""")
for cb in range(7):
    a(f"  v_mfma_f32_16x16x32_bf16 v[{110+4*cb}:{113+4*cb}], v[40:43], v[{64+4*cb}:{67+4*cb}], v[{110+4*cb}:{113+4*cb}]")
a("  s_mov_b64 exec, 0xffff")
a("  s_nop 0")
for cb in range(7):
    r = 110 + 4*cb
    tagit(f"v{r}", f"v{r}")
    if OPT['appad']:
        a(f"  global_store_dwordx2 v{56 if cb < 4 else 57}, v[{r}:{r+1}], s[26:27] offset:{1024*(cb % 4)} sc1")
    else:
        a(f"  global_store_dwordx2 v55, v[{r}:{r+1}], s[26:27] offset:{512*cb} sc1")
stamp(10)
if OPT['apack']:
    a("  s_waitcnt vmcnt(0)")
    stamp(11)
a("  s_mov_b64 exec, -1")
dump_stamps()
a("  s_endpgm")

a("L_aux:")
tr_lane_setup()
for nb in range(4):
    a(f"  v_xor_b32 v{24+nb}, {nb}, v16")
    a(f"  v_lshl_add_u32 v{24+nb}, v{24+nb}, 5, v15")
    a(f"  v_add_u32 v{24+nb}, {RC}, v{24+nb}")
h_unit_index("s39")
a(f"""  s_mul_i32 s40, s39, 9363
  s_lshr_b32 s40, s40, 16          ; cbh
  s_mul_i32 s41, s40, 7
  s_sub_u32 s41, s39, s41          ; kp
  v_and_b32 v28, 1, {VL}
  v_mul_u32_u24 v28, 896, v28
  v_lshl_add_u32 v28, v13, 3, v28
  s_lshl_b32 s42, s41, 7
  s_add_u32 s42, s42, {XB}
  v_add_u32 v28, s42, v28
  s_mul_i32 s42, s41, {2*7168}
  s_lshl_b32 s43, s40, 8
  s_add_u32 s42, s42, s43
  s_add_u32 s42, s42, {WS_HP}
  v_lshlrev_b32 v31, 2, {VL}
  v_add_u32 v31, s42, v31
  v_add_u32 v30, 7168, v31
  s_waitcnt lgkmcnt(0)
""")
tau_setup()
xid_value("s34")
a(f"""  s_lshl_b32 s42, s28, 7
  s_lshl_b32 s43, s29, 2
  s_add_u32 s42, s42, s43
  s_add_u32 s42, s42, {WS_XID}
  v_mov_b32 v6, s42
  v_mov_b32 v7, s34
  s_waitcnt vmcnt(0)
  s_mov_b64 exec, 1
  global_store_dword v6, v7, s[26:27] sc1
  s_mov_b64 exec, -1
  s_barrier                        ; barrier Q
  s_barrier                        ; barrier Q2
""")
stamp(2)
if OPT['tlb']:
    a(f"""  s_lshl_b32 s42, s28, 9
  s_lshl_b32 s43, s29, 4
  s_add_u32 s42, s42, s43
  s_mul_i32 s42, s42, 896
  v_mov_b32 v6, s42
  v_mov_b32 v7, 0
  s_mov_b64 exec, 1
  global_load_dword v2, v6, s[12:13] nt
  global_load_dword v2, v7, s[18:19] offset:64 nt
  global_load_dword v2, v7, s[22:23] nt
  s_mov_b64 exec, -1
""")
a("  s_cmp_ge_u32 s39, 196")
a("  s_cbranch_scc1 L_nohpub")
for st in range(2):
    a(f"  ds_read2_b64 v[{48+4*st}:{51+4*st}], v28 offset0:{8*st} offset1:{8*st+4}")
    for nb in range(4):
        r = 96 + 16*st + 4*nb
        a(f"  ds_read_b64_tr_b16 v[{r}:{r+1}], v{24+nb} offset:{st*4096}")
        a(f"  ds_read_b64_tr_b16 v[{r+2}:{r+3}], v{24+nb} offset:{st*4096+2048}")
for st in range(2):
    a(f"  s_waitcnt lgkmcnt({9 - 9*st})")
    for nb in range(4):
        r = 96 + 16*st + 4*nb
        c = "0" if st == 0 else f"v[{32+4*nb}:{35+4*nb}]"
        a(f"  v_mfma_f32_16x16x32_bf16 v[{32+4*nb}:{35+4*nb}], v[{48+4*st}:{51+4*st}], v[{r}:{r+3}], {c}")
a("  s_nop 7")
for r in range(2):
    a(f"  v_permlane16_swap_b32 v{32+r}, v{36+r}")
    a(f"  v_permlane16_swap_b32 v{40+r}, v{44+r}")
a("  s_nop 1")
for r in range(2):
    a(f"  v_permlane32_swap_b32 v{32+r}, v{40+r}")
a("  s_nop 1")
tagit("v32", "v32")
tagit("v33", "v33")
a("""  global_store_dword v31, v32, s[26:27] sc1
  global_store_dword v30, v33, s[26:27] sc1
L_nohpub:""")
stamp(5)
a("  s_cmp_ge_u32 s29, 16")
a("  s_cbranch_scc1 L_aux_a")
a("  v_mov_b32 v44, 0")
a("  v_mov_b32 v45, 0")
for r in range(4):
    a(f"  v_lshlrev_b32 v46, 16, v{78+r}")
    a(f"  v_and_b32 v47, 0xffff0000, v{78+r}")
    for b in range(2):
        a(f"  v_lshlrev_b32 v48, 16, v{70+4*b+r}")
        a(f"  v_and_b32 v49, 0xffff0000, v{70+4*b+r}")
        a(f"  v_mul_f32 v48, v48, v46")
        a(f"  v_mul_f32 v49, v49, v47")
        a(f"  v_cvt_pk_bf16_f32 v48, v48, v49")
        a(f"  v_lshlrev_b32 v49, 16, v48")
        a(f"  v_and_b32 v48, 0xffff0000, v48")
        a(f"  v_add_f32 v{44+b}, v{44+b}, v49")
        a(f"  v_add_f32 v{44+b}, v{44+b}, v48")
a(f"""  v_cmp_gt_u32 vcc, 56, {VL}
  s_nop 1
  v_cndmask_b32 v44, 0, v44, vcc
  v_cndmask_b32 v45, 0, v45, vcc
  s_nop 1
""")
for sh in (1, 2, 4, 8):
    a(f"  v_add_f32_dpp v44, v44, v44 row_shr:{sh} row_mask:0xf bank_mask:0xf")
    a(f"  v_add_f32_dpp v45, v45, v45 row_shr:{sh} row_mask:0xf bank_mask:0xf")
    a("  s_nop 0")
a(f"""  v_add_f32_dpp v44, v44, v44 row_bcast:15 row_mask:0xa bank_mask:0xf
  v_add_f32_dpp v45, v45, v45 row_bcast:15 row_mask:0xa bank_mask:0xf
  s_nop 0
  v_add_f32_dpp v44, v44, v44 row_bcast:31 row_mask:0xc bank_mask:0xf
  v_add_f32_dpp v45, v45, v45 row_bcast:31 row_mask:0xc bank_mask:0xf
  s_nop 0
  v_readlane_b32 s42, v44, 63
  v_readlane_b32 s43, v45, 63
  s_nop 1
  v_and_b32 v46, 1, {VL}
  v_cmp_eq_u32 vcc, 0, v46
  v_mov_b32 v47, s43
  v_mov_b32 v48, s42
  v_cndmask_b32 v47, v47, v48, vcc
  v_mul_f32 v47, 0xbfb8aa3b, v47   ; -log2e * z
  v_exp_f32 v47, v47
  s_nop 0
  v_add_f32 v47, 1.0, v47
  v_rcp_f32 v47, v47               ; g[b = lane&1]
  s_nop 0
  v_sub_f32 v82, 1.0, v47          ; 1-g
  v_lshlrev_b32 v46, 2, v46
  v_add_u32 v46, {GT}, v46
  s_mov_b64 exec, 3
  ds_write_b32 v46, v47
  s_mov_b64 exec, -1
  s_waitcnt lgkmcnt(0)
""")
stamp(3)
a("L_aux_a:")
a("  s_barrier")
a("  s_cmp_lt_u32 s29, 16")
a("  s_cbranch_scc1 L_aux_w")
a("  s_cmp_lt_u32 s29, 23")
a("  s_cbranch_scc1 L_final")
dump_stamps()
a("  s_endpgm")

a(f"""L_final:
  s_sub_u32 s36, s29, 16           ; p
  s_lshl_b32 s37, s36, 3
  s_add_u32 s37, s37, s28          ; c
  v_lshrrev_b32 v29, 2, {VL}       ; u16
  v_mul_u32_u24 v30, {APS}, v29
  v_and_b32 v31, 3, {VL}
  v_lshl_add_u32 v30, v31, 4, v30
  s_lshl_b32 s42, s37, {7 if OPT['appad'] else 6}
  s_add_u32 s42, s42, {WS_AP}
  v_add_u32 v30, s42, v30
""")
for k in range(8):
    a(f"  v_add_u32 v{16+k}, {k*16*APS}, v30")
a(f"""  ; out + b*896 + (8c + 2*c4 + (r>>1))*2
  v_and_b32 v28, 1, v13
  v_mul_u32_u24 v28, 896, v28
  v_lshl_add_u32 v28, v31, 2, v28
  v_lshrrev_b32 v29, 1, v13
  v_lshl_add_u32 v28, v29, 1, v28
  s_lshl_b32 s42, s37, 4
  v_add_u32 v28, s42, v28
  s_mov_b32 s56, 0xf000f000
  s_mov_b32 s57, 0xf000f000
  v_mov_b32 v29, {WS_E}
  s_barrier                        ; barrier B
  s_barrier                        ; barrier C
  s_mov_b32 s33, 0
""")
if OPT['fdelay']:
    a(f"""L_fd:
  s_memrealtime s[60:61]
  s_waitcnt lgkmcnt(0)
  s_sub_u32 s62, s60, s64
  s_cmp_lt_u32 s62, {OPT['fdelay']}
  s_cbranch_scc1 L_fd""")
stamp(8)
NS = OPT['fsets']
def fbase(i): return 32 + 32*i
def fissue(i):
    for k in range(8):
        a(f"  global_load_dwordx4 v[{fbase(i)+4*k}:{fbase(i)+4*k+3}], v{16+k}, s[26:27] sc1")
for i in range(NS):
    fissue(i)
a("L_fpoll:")
for i in range(NS):
    a(f"  s_waitcnt vmcnt({8*(NS-1)})")
    check_regs("v14", [fbase(i)+4*k+q for k in range(8) for q in (0, 2)])
    a("  v_and_b32 v14, 0xff, v14")
    a("  v_cmp_ne_u32 vcc, 0, v14")
    a("  s_add_u32 s33, s33, 1")
    a(f"  s_cmp_gt_u32 s33, {OPT['spin']}")
    a(f"  s_cbranch_scc1 L_fok{i}")
    a(f"  s_cbranch_vccz L_fok{i}")
    fissue(i)
a("  s_branch L_fpoll")
TB = 144
for i in range(NS):
    a(f"L_fok{i}:")
    for k in range(4):
        for h in range(2):
            x = fbase(i) + 8*k + 2*h
            a(f"  v_pk_add_f32 v[{TB+4*k+2*h}:{TB+4*k+2*h+1}], v[{x}:{x+1}], v[{x+4}:{x+5}]")
    if i < NS-1:
        a("  s_branch L_fsum")
a("L_fsum:")
stamp(9)
rec(12, "s33")
for h in range(2):
    a(f"  v_pk_add_f32 v[{TB+2*h}:{TB+2*h+1}], v[{TB+2*h}:{TB+2*h+1}], v[{TB+4+2*h}:{TB+5+2*h}]")
    a(f"  v_pk_add_f32 v[{TB+8+2*h}:{TB+9+2*h}], v[{TB+8+2*h}:{TB+9+2*h}], v[{TB+12+2*h}:{TB+13+2*h}]")
for h in range(2):
    a(f"  v_pk_add_f32 v[{160+2*h}:{161+2*h}], v[{TB+2*h}:{TB+2*h+1}], v[{TB+8+2*h}:{TB+9+2*h}]")
a(f"""  s_nop 1
  v_permlane16_swap_b32 v160, v161
  v_permlane16_swap_b32 v162, v163
  v_add_f32 v160, v160, v161
  v_add_f32 v162, v162, v163
  s_nop 1
  v_permlane32_swap_b32 v160, v162
  v_add_f32 v160, v160, v162
  s_nop 1
  v_add_f32_dpp v160, v160, v160 row_shr:4 row_mask:0xf bank_mask:0xf
  s_nop 1
  v_add_f32_dpp v160, v160, v160 row_shr:8 row_mask:0xf bank_mask:0xf
  s_mov_b64 exec, s[56:57]
  v_cvt_pk_bf16_f32 v160, v160, v160
  global_store_short v28, v160, s[22:23]{' ' + OPT['outflag'].replace('_', ' ') if OPT['outflag'] != 'none' else ''}
  s_cmp_lg_u32 s37, 0
  s_cbranch_scc1 L_noE
  s_mov_b64 exec, 1
  global_store_dword v29, {VTAU}, s[26:27] sc1
L_noE:
  s_mov_b64 exec, -1
""")
if OPT['deadline']:
    a(f"""L_dl:
  s_memrealtime s[56:57]
  s_waitcnt lgkmcnt(0)
  s_sub_u32 s33, s56, s96
  s_cmp_lt_u32 s33, {OPT['deadline']}
  s_cbranch_scc1 L_dl""")
stamp(10)
if OPT['dbgts']:
    a("  s_waitcnt lgkmcnt(0)")
    a("  s_cmp_lg_u32 s37, 0")
    a("  s_cbranch_scc1 L_nodbg")
    a("  s_mov_b64 exec, 1")
    a("  v_mov_b32 v8, 0")
    for q in range(4):
        for r in range(4):
            k = 4*q + r
            a(f"  s_sub_u32 s33, s{64+2*k}, s64")
            a(f"  v_mov_b32 v{12+r}, s33")
        a(f"  global_store_dwordx4 v8, v[12:15], s[24:25] offset:{16*q}")
        a("  s_nop 1")
    a("L_nodbg:")
else:
    dump_stamps()
a("  s_endpgm")

a("L_aux_w:")
a(f"""  ; h gather set-up: lanes (kp = l>>3 (0..6), b = (l>>2)&1, q4 = l&3) ; HP + (kp*2+b)*7168 + (16u + 4*q4)*4
  s_lshl_b32 s38, s28, 4
  s_add_u32 s38, s38, s29          ; u = g*16 + j
  v_lshrrev_b32 v85, 3, {VL}
  v_bfe_u32 v86, {VL}, 2, 1
  v_lshl_add_u32 v85, v85, 1, v86
  v_mul_u32_u24 v85, 7168, v85
  v_and_b32 v87, 3, {VL}
  v_lshl_add_u32 v85, v87, 4, v85
  s_lshl_b32 s42, s38, 6
  s_add_u32 s42, s42, {WS_HP}
  v_add_u32 v85, s42, v85
  v_readlane_b32 s42, v82, 0
  v_readlane_b32 s43, v82, 1
  v_cmp_eq_u32 vcc, 0, v86
  v_mov_b32 v36, s43
  v_mov_b32 v37, s42
  v_cndmask_b32 v83, v36, v37, vcc
  v_lshlrev_b32 v84, 5, v86
  v_lshl_add_u32 v84, v87, 3, v84
  v_add_u32 v84, {HV}, v84          ; HV + b*32 + q4*8
""")
a(f"""  v_mov_b32 v32, 0
  v_mov_b32 v33, 0
  v_mov_b32 v34, 0
  v_mov_b32 v35, 0
  s_mov_b32 s56, -1
  s_mov_b32 s57, 0x00ffffff
  s_mov_b32 s33, 0
  s_setprio 3
""")
if OPT['a2'] and OPT['wpos'] == 'q':
    a("  s_barrier                        ; barrier A2")
a(f"""  s_cmp_ge_u32 s38, 112
  s_cbranch_scc1 L_hskip
  s_mov_b64 exec, s[56:57]
  global_load_dwordx4 v[32:35], v85, s[26:27] sc1
  s_mov_b64 exec, -1
L_hskip:
  s_barrier                        ; barrier B
""")
stamp(6)
a(f"""  s_cmp_ge_u32 s38, 112
  s_cbranch_scc1 L_hdone
  s_mov_b64 exec, s[56:57]
  s_waitcnt vmcnt(0)
  s_branch L_hchk
L_hpoll:
  global_load_dwordx4 v[32:35], v85, s[26:27] sc1
  s_waitcnt vmcnt(0)
L_hchk:
""")
check_regs("v40", range(32, 36))
poll_end("v40", "L_hpoll", "L_hok")
a("  s_mov_b64 exec, -1")
a("  s_nop 1")
for r in range(4):
    a(f"  v_add_f32_dpp v{32+r}, v{32+r}, v{32+r} row_ror:8 row_mask:0xf bank_mask:0xf")
for r in range(4):
    a(f"  v_mov_b32 v{36+r}, v{32+r}")
a("  s_nop 1")
for r in range(4):
    a(f"  v_permlane16_swap_b32 v{32+r}, v{36+r}")
for r in range(4):
    a(f"  v_add_f32 v{32+r}, v{32+r}, v{36+r}")
for r in range(4):
    a(f"  v_mov_b32 v{36+r}, v{32+r}")
a("  s_nop 1")
for r in range(4):
    a(f"  v_permlane32_swap_b32 v{32+r}, v{36+r}")
for r in range(4):
    a(f"  v_add_f32 v{32+r}, v{32+r}, v{36+r}")
a("L_hdone:")
for r in range(4):
    a(f"  v_max_f32 v{32+r}, 0, v{32+r}")
    a(f"  v_mul_f32 v{32+r}, v{32+r}, v83")
a(f"""  v_cvt_pk_bf16_f32 v32, v32, v33
  v_cvt_pk_bf16_f32 v33, v34, v35
  s_mov_b64 exec, 0xff
  ds_write_b64 v84, v[32:33]
  s_mov_b64 exec, -1
  s_waitcnt lgkmcnt(0)
""")
stamp(7)
a("  s_barrier                        ; barrier D1")
dump_stamps()
a("L_end:")
a("  s_endpgm")
a("L_code_end:")
a(footer(vgpr=232, sgpr=100))
open(sys.argv[1], "w").write(a.text())
```

```python
import sys
from asmlib import *

OPT = dict(stamp=0, spin=400000, nt=1, qwait=3, sleep=0, fsleep=0, fast=1, tlb=0, prefetch=1,
           ops=2176, aps=3712, deadline=0, dbgts=0, wpos='q', a2=1, opre=1, fsets=1, outflag='sc1', apack=0, fdelay=0, appad=1, early=0)
for a_ in sys.argv[2:]:
    k, v = a_.split('=')
    assert k in OPT, k
    OPT[k] = int(v) if v.lstrip('-').isdigit() else v
STAMP = OPT['stamp']
OPS = OPT['ops']; APS = 7296 if OPT['appad'] else OPT['aps']

WS_E = 0
WS_XID = 0x400
WS_QP = 0x1000
WS_HP = 0x21000
WS_OP = 0x40000
WS_AP = 0x180000
WS_TS = 0x300000
assert WS_HP + 7*2*7168 <= WS_OP and WS_OP + 512*OPS <= WS_AP and WS_AP + 128*APS <= WS_TS

KBUF = 0
VBUF = 32768
RA = 65536
RB = 94208
RC = 108544
XB = 116736
QB = 118784
OV = 119936
HV = 120064
GT = 120128
LDS_BYTES = 120320

C_LOG2E_16 = 0x3DB8AA3B
NT = " nt" if OPT['nt'] else ""
VTAU = "v4"
VL = "v5"

a = Asm()
def stamp(k, final=False):
    if STAMP == 1 or (STAMP == 2 and (k == 0 or final)):
        a(f"  s_memrealtime s[{64+2*k}:{65+2*k}]")
def rec(k, sreg):
    if STAMP == 1:
        a(f"  s_mov_b32 s{64+2*k}, {sreg}")

def srd(dst, ptr, size):
    a(f"  s_mov_b32 s{dst}, s{ptr}")
    a(f"  s_mov_b32 s{dst+1}, s{ptr+1}")
    a(f"  s_mov_b32 s{dst+2}, {size}")
    a(f"  s_mov_b32 s{dst+3}, 0x20000")

def dma(voff, srdreg, soff):
    a(f"  buffer_load_dwordx4 {voff}, s[{srdreg}:{srdreg+3}], {soff} offen{NT} lds")

def tagit(dst, src):
    a(f"  v_bfi_b32 {dst}, s32, {VTAU}, {src}")

def check_regs(acc, regs, first=True):
    regs = list(regs)
    for r in regs:
        a(f"  v_xor_b32 v{r}, s31, v{r}")
    if first:
        if len(regs) >= 3:
            a(f"  v_or3_b32 {acc}, v{regs[0]}, v{regs[1]}, v{regs[2]}"); regs = regs[3:]
        else:
            a(f"  v_or_b32 {acc}, v{regs[0]}, v{regs[1]}"); regs = regs[2:]
    while len(regs) >= 2:
        a(f"  v_or3_b32 {acc}, {acc}, v{regs[0]}, v{regs[1]}"); regs = regs[2:]
    if regs:
        a(f"  v_or_b32 {acc}, {acc}, v{regs[0]}")

def poll_end(acc, lab_retry, lab_ok, cnt="s33", sleep=None, masked=False):
    sleep = OPT['sleep'] if sleep is None else sleep
    if not masked:
        a(f"  v_and_b32 {acc}, 0xff, {acc}")
    a(f"  v_cmp_ne_u32 vcc, 0, {acc}")
    a(f"  s_add_u32 {cnt}, {cnt}, 1")
    a(f"  s_cmp_gt_u32 {cnt}, {OPT['spin']}")
    a(f"  s_cbranch_scc1 {lab_ok}")
    if sleep:
        a(f"  s_cbranch_vccz {lab_ok}")
        a(f"  s_sleep {sleep}")
        a(f"  s_branch {lab_retry}")
    else:
        a(f"  s_cbranch_vccnz {lab_retry}")
    a(f"{lab_ok}:")

def dump_stamps():
    if not STAMP or OPT['dbgts']:
        return
    a("  s_waitcnt lgkmcnt(0)")
    a("  s_mul_i32 s33, s2, 5")
    a("  s_add_u32 s33, s33, s30")
    a("  s_lshl_b32 s33, s33, 6")
    a(f"  s_add_u32 s33, s33, {WS_TS}")
    a("  v_mov_b32 v8, s33")
    a("  s_mov_b64 exec, 1")
    for q in range(4):
        for r in range(4):
            a(f"  v_mov_b32 v{12+r}, s{64+2*(4*q+r)}")
        a(f"  global_store_dwordx4 v8, v[12:15], s[26:27] offset:{16*q}")
        a("  s_nop 1")

def tau_setup():
    a("  s_and_b32 s31, s31, 0xff")
    a("  s_mul_i32 s31, s31, 5")
    a("  s_add_u32 s31, s31, 59")
    a("  s_and_b32 s31, s31, 0xff")
    a(f"  v_mov_b32 {VTAU}, s31")

def xid_value(dst):
    a(f"  s_getreg_b32 {dst}, hwreg(HW_REG_XCC_ID, 0, 4)")
    a(f"  s_lshl_b32 {dst}, {dst}, 24")
    a(f"  s_mul_i32 s33, s31, 0x010101")
    a(f"  s_or_b32 {dst}, {dst}, s33")

def tr_lane_setup():
    a(f"""  v_bfe_u32 v14, {VL}, 2, 2        ; r4
  v_lshl_add_u32 v15, v13, 2, v14  ; row = 4*g4+r4
  v_bfe_u32 v16, v15, 1, 2         ; f
  v_and_b32 v17, 3, {VL}           ; c
  v_lshlrev_b32 v15, 7, v15
  v_lshl_add_u32 v15, v17, 3, v15  ; row*128 + c*8""")

def h_unit_index(dst):
    a(f"""  s_lshl_b32 {dst}, s28, 4
  s_add_u32 {dst}, {dst}, s29
  s_sub_u32 {dst}, {dst}, 16       ; P: g*16 + p
  s_lshl_b32 s33, s29, 3
  s_add_u32 s33, s33, s28
  s_add_u32 s33, s33, 128          ; W: 128 + i*8 + g
  s_cmp_lt_u32 s29, 16
  s_cselect_b32 {dst}, s33, {dst}""")

a(header(256, 320, LDS_BYTES))
stamp(0)
if OPT['deadline']:
    a("  s_memrealtime s[96:97]")
a(f"""  s_load_dwordx16 s[4:19], s[0:1], 0
  s_load_dwordx8 s[20:27], s[0:1], 64
  s_getpc_b64 s[34:35]
L_pc:
  v_lshlrev_b32 v1, {5 if OPT['prefetch'] else 0}, v0
  v_min_u32 v1, {"L_code_end - L_pc - 4" if OPT['prefetch'] else 0}, v1
  s_cmpk_ge_u32 s2, 0x100
  s_cbranch_scc1 L_end
  global_load_dword v3, v1, s[34:35]
  v_lshrrev_b32 v2, 6, v0
  v_and_b32 {VL}, 63, v0
  v_readfirstlane_b32 s30, v2
  v_lshrrev_b32 v8, 3, {VL}
  v_bfe_u32 v9, {VL}, 4, 2         ; (row>>1)&3
  v_and_b32 v10, 7, {VL}
  v_lshlrev_b32 v11, 1, v9
  v_xor_b32 v11, v11, v10
  v_lshlrev_b32 v11, 4, v11        ; *16 bytes
  v_lshl_add_u32 v18, v8, 13, v11
  s_and_b32 s28, s2, 7             ; g
  s_cmp_eq_u32 s30, 0
  s_cbranch_scc1 L_aux0
  s_lshr_b32 s42, s2, 6            ; kp
  s_mul_i32 s42, s42, {112*8192}
  s_lshl_b32 s43, s28, 10
  s_add_u32 s42, s42, s43
  s_bfe_u32 s43, s2, 0x30003       ; j&7
  s_lshl_b32 s43, s43, 7
  s_add_u32 s42, s42, s43
  s_sub_u32 s36, s30, 1            ; v
  s_lshl_b32 s43, s36, 16          ; v*8*8192
  s_add_u32 s42, s42, s43
  v_add_u32 v18, s42, v18
  s_lshl_b32 s43, s36, 10
  s_add_u32 m0, s43, {RA}
  s_lshl_b32 s44, 1, 18
  s_movk_i32 s45, 0x1000
  s_waitcnt lgkmcnt(0)
  global_load_lds_dwordx4 v18, s[10:11]{NT}
  s_add_u32 m0, m0, s45
  v_add_u32 v18, s44, v18
  global_load_lds_dwordx4 v18, s[10:11]{NT}
  s_add_u32 m0, m0, s45
  v_add_u32 v18, s44, v18
  global_load_lds_dwordx4 v18, s[10:11]{NT}
  s_cmp_ge_u32 s36, 2
  s_cbranch_scc1 L_wq_done
  s_add_u32 m0, m0, s45
  v_add_u32 v18, s44, v18
  global_load_lds_dwordx4 v18, s[10:11]{NT}
""")
a("L_wq_done:")
if STAMP:
    for k in range(1, 16):
        a(f"  s_mov_b32 s{64+2*k}, 0")
a(f"""  s_load_dword s31, s[26:27], {WS_E}
  s_lshr_b32 s29, s2, 3            ; j
  s_mov_b32 s32, 0xff
  v_lshrrev_b32 v13, 4, {VL}       ; g4
  s_and_b32 s37, s36, 1            ; kh
  s_lshr_b32 s38, s36, 1           ; dh""")
stamp(1)
h_unit_index("s45")
a(f"""  s_mul_i32 s46, s45, 9363
  s_lshr_b32 s46, s46, 16          ; cbh = u1/7
  s_mul_i32 s47, s46, 7
  s_sub_u32 s47, s45, s47          ; kp = u1%7
  s_min_u32 s46, s46, 27
  s_lshl_b32 s46, s46, 7
  s_mul_i32 s47, s47, {64*3584}
  s_add_u32 s46, s46, s47
  s_mul_i32 s47, s36, {8*3584}
  s_add_u32 s46, s46, s47
  s_cmp_lt_u32 s45, 196
  s_cselect_b32 s45, 0, 0x40000000
  v_mul_u32_u24 v18, 3584, v8
  v_add3_u32 v18, v18, v11, s45
  s_lshl_b32 s47, s36, 10
  s_add_u32 s47, s47, {RC}
""")
srd(52, 16, SZ['w1'])
for k in range(2):
    a(f"  s_add_u32 m0, s47, {k*4096}")
    a(f"  s_add_u32 s45, s46, {k*4*8*3584}")
    dma("v18", 52, "s45")
a(f"""  v_xor_b32 v12, v9, v10
  v_lshlrev_b32 v12, 4, v12
  s_and_b32 s39, s29, 1            ; b
  s_lshr_b32 s40, s29, 1           ; s (0..15)
  s_lshl_b32 s41, s39, 3
  s_add_u32 s41, s41, s28          ; b*8+g
  s_lshl_b32 s41, s41, 21          ; *4096*512
  s_lshl_b32 s42, s40, 15          ; s*64*512
  s_add_u32 s41, s41, s42
  s_lshl_b32 s42, s37, 14          ; kh*32*512
  s_add_u32 s41, s41, s42
  s_lshl_b32 s42, s38, 8           ; dh*256
  s_add_u32 s41, s41, s42
  s_add_u32 s41, s41, {3072*512}
  s_lshl_b32 s43, s38, 14
  s_lshl_b32 s42, s37, 12
  s_add_u32 s43, s43, s42
  v_lshlrev_b32 v18, 9, v8         ; row*512
  v_add_u32 v19, v18, v12
  v_xor_b32 v20, 64, v19
  v_add_u32 v21, v18, v11          ; V voffset
""")
srd(44, 6, SZ['k'])
srd(48, 8, SZ['v'])
for c2 in range(2):
    for jj in range(4):
        a(f"  s_add_u32 m0, s43, {KBUF + c2*8192 + jj*1024}")
        a(f"  s_add_u32 s42, s41, {c2*128 + jj*4096}")
        dma("v20" if jj & 1 else "v19", 44, "s42")
tr_lane_setup()
a(f"""  ; q projection tile nb = v : addresses
  v_xor_b32 v24, s36, v16
  v_lshl_add_u32 v24, v24, 5, v15
  v_add_u32 v24, {RA}, v24
  v_and_b32 v25, 1, {VL}
  v_mul_u32_u24 v25, 896, v25
  v_lshl_add_u32 v25, v13, 3, v25
  s_lshr_b32 s42, s29, 3           ; kp
  s_mul_i32 s45, s42, 224
  s_add_u32 s45, s45, {XB}
  v_add_u32 v25, s45, v25
  s_lshl_b32 s45, s28, 14
  s_lshl_b32 s42, s42, 12
  s_add_u32 s45, s45, s42
  s_and_b32 s42, s29, 7
  s_lshl_b32 s42, s42, 8
  s_add_u32 s45, s45, s42
  s_lshl_b32 s42, s36, 6
  s_add_u32 s45, s45, s42
  s_add_u32 s45, s45, {WS_QP}
  v_lshlrev_b32 v26, 2, {VL}
  v_add_u32 v26, s45, v26
""")
a("  s_waitcnt lgkmcnt(0)")
tau_setup()
a("  s_waitcnt vmcnt(10)")
a("  s_barrier")
for st in range(3):
    a(f"  ds_read2_b64 v[{32+4*st}:{35+4*st}], v25 offset0:{8*st} offset1:{8*st+4}")
    a(f"  ds_read_b64_tr_b16 v[{48+4*st}:{49+4*st}], v24 offset:{st*4096}")
    a(f"  ds_read_b64_tr_b16 v[{50+4*st}:{51+4*st}], v24 offset:{st*4096+2048}")
a(f"  ds_read_b64 v[44:45], v25 offset:192")
a(f"  ds_read_b64_tr_b16 v[60:61], v24 offset:{3*4096}")
for st in range(3):
    a(f"  s_waitcnt lgkmcnt({8 - 3*st})")
    c = "0" if st == 0 else "v[64:67]"
    a(f"  v_mfma_f32_16x16x32_bf16 v[64:67], v[{32+4*st}:{35+4*st}], v[{48+4*st}:{51+4*st}], {c}")
a("  s_waitcnt lgkmcnt(0)")
a("  v_mfma_f32_16x16x16_bf16 v[68:71], v[44:45], v[60:61], 0")
a("  s_mov_b64 exec, 0xffff")
a("  s_nop 6")
a("  v_add_f32 v64, v64, v68")
a("  v_add_f32 v65, v65, v69")
tagit("v64", "v64")
tagit("v65", "v65")
a(f"""  global_store_dword v26, v64, s[26:27] sc1
  global_store_dword v26, v65, s[26:27] offset:2048 sc1
  s_mov_b64 exec, -1
""")
stamp(14)
a("  s_waitcnt vmcnt(10)")
a("  s_barrier")
for c2 in range(2):
    for jj in range(4):
        a(f"  s_add_u32 m0, s43, {VBUF + c2*8192 + jj*1024}")
        a(f"  s_add_u32 s42, s41, {c2*128 + jj*4096}")
        dma("v21", 48, "s42")
stamp(2)
a(f"""  ; K operand address: key*128 + (g4 ^ ((key>>1)&7))*16 + kh*4096
  v_and_b32 v22, 15, {VL}
  v_bfe_u32 v23, {VL}, 1, 3
  v_xor_b32 v23, v23, v13
  v_lshlrev_b32 v23, 4, v23
  v_lshl_add_u32 v22, v22, 7, v23
  s_lshl_b32 s42, s37, 12
  v_add_u32 v22, s42, v22
  v_xor_b32 v23, 64, v22
  s_add_u32 s42, s43, {VBUF}
""")
for nb in range(4):
    a(f"  v_xor_b32 v{24+nb}, {nb}, v16")
    a(f"  v_lshl_add_u32 v{24+nb}, v{24+nb}, 5, v15")
    a(f"  v_add_u32 v{24+nb}, s42, v{24+nb}")
a(f"""  ; q operand address: QB + (l&1)*576 + g4*16
  v_and_b32 v28, 1, {VL}
  v_mul_u32_u24 v28, 576, v28
  v_lshl_add_u32 v28, v13, 4, v28
  v_add_u32 v28, {QB}, v28
  s_lshl_b32 s42, s28, 14
  s_lshl_b32 s45, s39, 11
  s_add_u32 s42, s42, s45
  s_lshl_b32 s45, s37, 10
  s_add_u32 s42, s42, s45
  s_lshl_b32 s45, s38, 9
  s_add_u32 s42, s42, s45
  s_add_u32 s42, s42, {WS_QP}
  v_lshrrev_b32 v29, 5, {VL}       ; kpl
  v_and_b32 v30, 31, {VL}          ; c
  v_lshlrev_b32 v31, 12, v29
  v_lshl_add_u32 v31, v30, 4, v31
  v_add_u32 v51, s42, v31
  v_add_u32 v52, 8192, v51
  s_lshl_b32 s42, s28, 7
  s_add_u32 s42, s42, {WS_XID}
  v_lshl_add_u32 v50, v30, 2, s42
  s_mul_i32 s42, s37, 576
  s_lshl_b32 s45, s38, 8
  s_add_u32 s42, s42, s45
  s_add_u32 s42, s42, {QB}
  v_lshlrev_b32 v30, 3, v30
  v_lshl_add_u32 v30, v29, 2, v30
  v_add_u32 v53, s42, v30
  s_lshl_b32 s42, s28, 1
  s_add_u32 s42, s42, s39
  s_lshl_b32 s42, s42, 5
  s_lshl_b32 s45, s40, 1
  s_add_u32 s42, s42, s45
  s_add_u32 s42, s42, s37
  s_mul_i32 s42, s42, {OPS}
  s_lshl_b32 s45, s38, 10
  s_add_u32 s42, s42, s45
  s_add_u32 s42, s42, {WS_OP}
  v_lshlrev_b32 v54, 3, {VL}
  v_add_u32 v54, s42, v54
  s_lshl_b32 s42, s28, 1
  s_add_u32 s42, s42, s38
  s_mul_i32 s33, s42, {32*OPS}
  s_lshl_b32 s56, s29, 7
  s_add_u32 s33, s33, s56
  s_lshl_b32 s56, s37, 6
  s_add_u32 s33, s33, s56
  s_add_u32 s33, s33, {WS_OP}
  v_lshrrev_b32 v6, 2, {VL}       ; s16
  v_mul_u32_u24 v7, {OPS}, v6
  v_and_b32 v62, 3, {VL}
  v_lshl_add_u32 v7, v62, 4, v7
  v_add_u32 v62, s33, v7
  v_add_u32 v63, {16*OPS}, v62        ; s16+16
  v_mov_b32 v46, 0x3f803f80
  v_mov_b32 v47, 0x3f803f80
  v_mov_b32 v48, 0x3f803f80
  v_mov_b32 v49, 0x3f803f80
  v_and_b32 v55, 1, {VL}
  v_cmp_eq_u32 s[58:59], 1, v55
""")
xid_value("s34")
a("  s_mov_b32 s35, 0xffffff")
a("  s_waitcnt vmcnt(8)")
stamp(3)
a("  s_barrier")
for tt in range(2):
    for t in range(8):
        r = 64 + (tt*8 + t)*4
        a(f"  ds_read_b128 v[{r}:{r+3}], v{23 if t & 1 else 22} offset:{KBUF + (t>>1)*8192 + tt*2048}")

def w_weight_setup():
    srd(44, 12, SZ['wo'])
    srd(52, 18, SZ['w2'])
    a(f"""  s_lshl_b32 s42, s28, 9
  s_lshl_b32 s61, s29, 4
  s_add_u32 s42, s42, s61          ; g*512 + 16j
  s_lshl_b32 s61, s38, 8
  s_add_u32 s42, s42, s61          ; + h*256
  s_lshl_b32 s61, s37, 3
  s_add_u32 s42, s42, s61          ; + half*8
  s_mul_i32 s61, s42, 896
  s_lshl_b32 s60, s36, 10
  s_add_u32 s60, s60, {RA}
  v_mul_u32_u24 v19, 896, v8
  v_add_u32 v19, v19, v11
  s_lshl_b32 s33, s28, 4
  s_add_u32 s33, s33, s29          ; u
  s_min_u32 s42, s33, 111
  s_lshl_b32 s42, s42, 4
  s_lshl_b32 s62, s37, 3
  s_add_u32 s42, s42, s62          ; 16u + q*8   (q = v&1)
  s_mul_i32 s42, s42, 896
  s_lshl_b32 s62, s38, 7
  s_add_u32 s62, s42, s62          ; + (v>>1)*128
  s_cmp_lt_u32 s33, 112
  s_cselect_b32 s33, 0, 0x40000000
  v_add_u32 v20, s33, v19
  s_lshl_b32 s63, s38, 11
  s_lshl_b32 s33, s37, 10
  s_add_u32 s63, s63, s33
  s_add_u32 s63, s63, {RB}         ; RB + (v>>1)*2048 + q*1024
""")

def w_weight_loads(tagname):
    for cb in range(7):
        a(f"  s_add_u32 m0, s60, {cb*4096}")
        a(f"  s_add_u32 s33, s61, {cb*128}")
        dma("v19", 44, "s33")
    for k in range(4):
        if k == 3:
            a("  s_cmp_lg_u32 s38, 0")
            a(f"  s_cbranch_scc1 L_w2_done{tagname}")
        a(f"  s_add_u32 m0, s63, {k*4096}")
        a(f"  s_add_u32 s33, s62, {k*256}")
        dma("v20", 52, "s33")
    a(f"L_w2_done{tagname}:")

def q_loads():
    a("  global_load_dwordx4 v[32:35], v51, s[26:27] sc1")
    a("  global_load_dwordx4 v[36:39], v52, s[26:27] sc1")
    a("  global_load_dword v41, v50, s[26:27] sc1")

a("  s_cmp_lt_u32 s29, 16")
a("  s_cbranch_scc0 L_q_p")
w_weight_setup()
if OPT['wpos'] == 'first':
    pass
if OPT['wpos'] == 'q':
    a(f"  s_waitcnt vmcnt({OPT['qwait']})")
    stamp(4)
    q_loads()
    if OPT['a2']:
        a("  s_barrier")
    w_weight_loads("a")
    if OPT['opre']:
        a("  global_load_dword v2, v62, s[26:27] sc1")
        a("  global_load_dword v3, v63, s[26:27] sc1")
    a("  s_mov_b32 s33, 0")
    NY = 12 if OPT['opre'] else 10
    a("  s_cmp_lg_u32 s38, 0")
    a("  s_cbranch_scc1 L_qw10")
    a(f"  s_waitcnt vmcnt({NY+1})")
    a("  s_branch L_qchk")
    a("L_qw10:")
    a(f"  s_waitcnt vmcnt({NY})")
    a("  s_branch L_qchk")
a(f"""L_q_p:
  s_mov_b32 s33, 0
  s_waitcnt vmcnt({OPT['qwait']})
""")
stamp(4)
a("L_qpoll:")
q_loads()
a("  s_waitcnt vmcnt(0)")
a("L_qchk:")
check_regs("v40", range(32, 40))
a("  v_xor_b32 v41, s34, v41")
a("  v_and_b32 v40, 0xff, v40")
a("  v_and_or_b32 v40, v41, s35, v40")
poll_end("v40", "L_qpoll", "L_qok", masked=True)
stamp(5)
rec(13, "s33")
if OPT['wpos'] == 'mid':
    a("  s_cmp_lt_u32 s29, 16")
    a("  s_cbranch_scc0 L_nomid")
    w_weight_loads("m")
    a("L_nomid:")
for nbk in range(8):
    r = 160 + 4*nbk
    off = (nbk >> 2)*8192
    a(f"  ds_read_b64_tr_b16 v[{r}:{r+1}], v{24 + (nbk & 3)} offset:{off}")
    a(f"  ds_read_b64_tr_b16 v[{r+2}:{r+3}], v{24 + (nbk & 3)} offset:{off + 2048}")
a(f"""  v_add_f32 v32, v32, v36
  v_add_f32 v33, v33, v37
  v_add_f32 v34, v34, v38
  v_add_f32 v35, v35, v39
  v_cmp_ne_u32 vcc, 0, v41
  s_nop 0
  v_permlane32_swap_b32 v32, v34
  v_permlane32_swap_b32 v33, v35
  v_add_f32 v32, v32, v34
  v_add_f32 v33, v33, v35
  v_cvt_pk_bf16_f32 v32, v32, v33
  ds_write_b32 v53, v32
  s_cmp_eq_u64 vcc, 0
  s_cselect_b32 s35, {1 if OPT['fast'] else 0}, 0
  s_waitcnt lgkmcnt(0)
  s_barrier
""")
stamp(6)
for t in range(8):
    a(f"  ds_read_b128 v[{128+4*t}:{131+4*t}], v28 offset:{64*t}")
a(f"  s_mov_b32 s42, {C_LOG2E_16:#x}")
for t in range(8):
    a(f"  s_waitcnt lgkmcnt({7-t})")
    for tt in range(2):
        kr = 64 + (tt*8 + t)*4
        c = "0" if t == 0 else f"v[{32+4*tt}:{35+4*tt}]"
        a(f"  v_mfma_f32_16x16x32_bf16 v[{32+4*tt}:{35+4*tt}], v[{kr}:{kr+3}], v[{128+4*t}:{131+4*t}], {c}")
a(f"""  s_nop 6
  v_max3_f32 v44, v32, v33, v34
  v_max3_f32 v45, v36, v37, v38
  v_max3_f32 v44, v44, v35, v39
  v_max_f32 v44, v44, v45
  v_mov_b32 v45, v44
  s_nop 1
  v_permlane16_swap_b32 v44, v45
  v_max_f32 v44, v44, v45
  v_mov_b32 v45, v44
  s_nop 1
  v_permlane32_swap_b32 v44, v45
  v_max_f32 v44, v44, v45
  v_mul_f32 v44, s42, v44
""")
for r in range(8):
    a(f"  v_fma_f32 v{32+r}, v{32+r}, s42, -v44")
for r in range(8):
    a(f"  v_exp_f32 v{32+r}, v{32+r}")
a("  s_nop 0")
for r in range(4):
    a(f"  v_cvt_pk_bf16_f32 v{40+r}, v{32+2*r}, v{33+2*r}")
a("  s_nop 1")
a("  v_mfma_f32_16x16x32_bf16 v[224:227], v[40:43], v[46:49], 0")
for nbk in range(8):
    a(f"  v_mfma_f32_16x16x32_bf16 v[{192+4*nbk}:{195+4*nbk}], v[40:43], v[{160+4*nbk}:{163+4*nbk}], 0")
a(f"""  v_cndmask_b32 v45, v224, v225, s[58:59]
  v_rcp_f32 v56, v224
  v_rcp_f32 v57, v225
  v_log_f32 v45, v45
  s_cmp_eq_u32 s35, 1
  v_add_f32 v45, v45, v44
""")
tagit("v59", "v45")
a("  v_mov_b32 v61, v59")
for q in range(2):
    for h in range(2):
        for k in range(4):
            a(f"  v_mul_f32_dpp v{32+2*q+h}, v{192+4*(4*q+k)+h}, v{56+h} quad_perm:[0,1,2,3] row_mask:{1<<k:#x} bank_mask:0xf")
    a(f"  v_cvt_pk_bf16_f32 v{58+2*q}, v{32+2*q}, v{33+2*q}")
a(f"""  s_cbranch_scc1 L_pub_local
  global_store_dwordx2 v54, v[58:59], s[26:27] sc1
  global_store_dwordx2 v54, v[60:61], s[26:27] offset:512 sc1
  s_branch L_pub_done
L_pub_local:                       ; every reader shares this die's L2
  global_store_dwordx2 v54, v[58:59], s[26:27]
  global_store_dwordx2 v54, v[60:61], s[26:27] offset:512
L_pub_done:
""")
stamp(7)
a("  s_cmp_lt_u32 s29, 16")
a("  s_cbranch_scc1 L_wstage")
a("  s_barrier")
dump_stamps()
a("  s_endpgm")

a("L_wstage:")
if OPT['wpos'] == 'late':
    w_weight_loads("l")
a(f"""  v_xor_b32 v24, s36, v16
  v_lshl_add_u32 v24, v24, 5, v15
  v_add_u32 v25, {RB}, v24
  v_add_u32 v24, {RA}, v24
  v_and_b32 v26, 1, {VL}
  v_lshlrev_b32 v27, 5, v26
  v_lshl_add_u32 v27, v13, 3, v27
  v_add_u32 v27, {HV}, v27
  v_lshlrev_b32 v28, 6, v26
  v_lshl_add_u32 v28, v13, 3, v28
  v_add_u32 v28, {OV}, v28
  v_and_b32 v54, 3, {VL}
  v_lshlrev_b32 v54, 2, v54
  v_and_b32 v55, 1, v13
  v_lshl_add_u32 v54, v55, 5, v54
  v_lshrrev_b32 v55, 1, v13
  v_lshl_add_u32 v54, v55, 1, v54
  s_lshl_b32 s42, s38, 6
  s_lshl_b32 s45, s37, 4
  s_add_u32 s42, s42, s45
  s_add_u32 s42, s42, {OV}
  v_add_u32 v54, s42, v54
  s_lshl_b32 s42, s28, 4
  s_add_u32 s42, s42, s29
  s_mul_i32 s42, s42, {APS}
  s_lshl_b32 s45, s36, {8 if OPT['appad'] else 7}
  s_add_u32 s42, s42, s45
  s_add_u32 s42, s42, {WS_AP}
  v_lshlrev_b32 v55, 3, {VL}
  v_add_u32 v55, s42, v55
  v_bfe_u32 v56, {VL}, 3, 1
  v_lshl_add_u32 v56, v56, 6, v55
  v_add_u32 v57, 4096, v56
  s_lshl_b32 s42, s38, 2
  s_add_u32 s42, s42, {GT}
  v_mov_b32 v29, s42
  ds_read_b32 v50, v29
  s_mov_b32 s56, 0xf000f000
  s_mov_b32 s57, 0xf000f000
  s_mov_b32 s33, 0
  s_waitcnt vmcnt(0) lgkmcnt(0)
""")
if OPT['early']:
    a("""  global_load_dwordx4 v[32:35], v62, s[26:27] sc1
  global_load_dwordx4 v[36:39], v63, s[26:27] sc1""")
a("  s_barrier")
stamp(8)
if not OPT['early']:
    a("""  global_load_dwordx4 v[32:35], v62, s[26:27] sc1
  global_load_dwordx4 v[36:39], v63, s[26:27] sc1""")
a("  ds_read_b64 v[106:107], v27")
for cb in range(7):
    a(f"  ds_read_b64_tr_b16 v[{92+2*cb}:{93+2*cb}], v25 offset:{cb*2048}")
for cb in range(7):
    a(f"  ds_read_b64_tr_b16 v[{64+4*cb}:{65+4*cb}], v24 offset:{cb*4096}")
    a(f"  ds_read_b64_tr_b16 v[{66+4*cb}:{67+4*cb}], v24 offset:{cb*4096+2048}")
a("  s_waitcnt vmcnt(0)")
a("  s_branch L_ochk")
a(f"""L_opoll:
  global_load_dwordx4 v[32:35], v62, s[26:27] sc1
  global_load_dwordx4 v[36:39], v63, s[26:27] sc1
  s_waitcnt vmcnt(0)
L_ochk:
""")
check_regs("v48", [33, 35, 37, 39])
poll_end("v48", "L_opoll", "L_ook")
stamp(9)
rec(12, "s33")
a(f"""  v_max_f32 v52, v33, v37
  v_max_f32 v53, v35, v39
  v_lshlrev_b32 v40, 16, v32       ; A: d0h0
  v_and_b32 v41, 0xffff0000, v32   ;    d0h1
  v_permlane16_swap_b32 v52, v53
  v_lshlrev_b32 v42, 16, v34       ;    d1h0
  v_and_b32 v43, 0xffff0000, v34   ;    d1h1
  v_max_f32 v52, v52, v53          ; rows: h0(01) h1(01) h0(23) h1(23)
  v_mov_b32 v53, v52
  v_lshlrev_b32 v44, 16, v36       ; B
  v_and_b32 v45, 0xffff0000, v36
  v_permlane32_swap_b32 v52, v53
  v_max_f32 v52, v52, v53
  v_lshlrev_b32 v46, 16, v38
  v_and_b32 v47, 0xffff0000, v38
  v_max_f32_dpp v52, v52, v52 row_shr:4 row_mask:0xf bank_mask:0xf
  s_nop 1
  v_max_f32_dpp v52, v52, v52 row_shr:8 row_mask:0xf bank_mask:0xf
  s_nop 0
  v_readlane_b32 s42, v52, 15
  v_readlane_b32 s45, v52, 31
  s_nop 1
  v_subrev_f32 v33, s42, v33
  v_subrev_f32 v37, s42, v37
  v_subrev_f32 v35, s45, v35
  v_subrev_f32 v39, s45, v39
  v_exp_f32 v33, v33               ; w A h0
  v_exp_f32 v37, v37               ; w B h0
  v_exp_f32 v35, v35               ; w A h1
  v_exp_f32 v39, v39               ; w B h1
  s_nop 0
  v_mul_f32 v40, v40, v33
  v_mul_f32 v41, v41, v35
  v_mul_f32 v42, v42, v33
  v_mul_f32 v43, v43, v35
  v_fmac_f32 v40, v44, v37
  v_fmac_f32 v41, v45, v39
  v_fmac_f32 v42, v46, v37
  v_fmac_f32 v43, v47, v39
  v_add_f32 v52, v33, v37          ; den h0
  v_add_f32 v53, v35, v39          ; den h1
  s_nop 0
  v_permlane16_swap_b32 v40, v41
  v_permlane16_swap_b32 v42, v43
  v_permlane16_swap_b32 v52, v53
  v_add_f32 v40, v40, v41
  v_add_f32 v42, v42, v43
  v_add_f32 v52, v52, v53
  v_mov_b32 v53, v52
  s_nop 1
  v_permlane32_swap_b32 v40, v42
  v_permlane32_swap_b32 v52, v53
  v_add_f32 v40, v40, v42
  v_add_f32 v52, v52, v53          ; rows h0 h1 h0 h1
  s_nop 0
  v_add_f32_dpp v40, v40, v40 row_shr:4 row_mask:0xf bank_mask:0xf
  v_add_f32_dpp v52, v52, v52 row_shr:4 row_mask:0xf bank_mask:0xf
  s_nop 0
  v_add_f32_dpp v40, v40, v40 row_shr:8 row_mask:0xf bank_mask:0xf
  v_add_f32_dpp v52, v52, v52 row_shr:8 row_mask:0xf bank_mask:0xf
  v_mul_f32 v40, v40, v50          ; * gate
  v_rcp_f32 v52, v52
  s_mov_b64 exec, s[56:57]
  v_mul_f32 v40, v40, v52
  v_cvt_pk_bf16_f32 v40, v40, v40
  ds_write_b16 v54, v40
  s_mov_b64 exec, -1
  s_waitcnt lgkmcnt(1)
""")
for cb in range(7):
    a(f"  v_mfma_f32_16x16x16_bf16 v[{110+4*cb}:{113+4*cb}], v[106:107], v[{92+2*cb}:{93+2*cb}], 0")
a(f"""  s_waitcnt lgkmcnt(0)
  s_barrier
  ds_read2_b64 v[40:43], v28 offset0:0 offset1:4
  s_waitcnt lgkmcnt(0)
""")
for cb in range(7):
    a(f"  v_mfma_f32_16x16x32_bf16 v[{110+4*cb}:{113+4*cb}], v[40:43], v[{64+4*cb}:{67+4*cb}], v[{110+4*cb}:{113+4*cb}]")
a("  s_mov_b64 exec, 0xffff")
a("  s_nop 0")
for cb in range(7):
    r = 110 + 4*cb
    tagit(f"v{r}", f"v{r}")
    if OPT['appad']:
        a(f"  global_store_dwordx2 v{56 if cb < 4 else 57}, v[{r}:{r+1}], s[26:27] offset:{1024*(cb % 4)} sc1")
    else:
        a(f"  global_store_dwordx2 v55, v[{r}:{r+1}], s[26:27] offset:{512*cb} sc1")
stamp(10)
if OPT['apack']:
    a("  s_waitcnt vmcnt(0)")
    stamp(11)
a("  s_mov_b64 exec, -1")
dump_stamps()
a("  s_endpgm")

a("L_aux0:")
if STAMP:
    for k in range(1, 16):
        a(f"  s_mov_b32 s{64+2*k}, 0")
a(f"""  s_lshr_b32 s29, s2, 3            ; j
  s_mov_b32 s32, 0xff
  v_lshrrev_b32 v13, 4, {VL}       ; g4
  v_lshlrev_b32 v18, 4, {VL}
  v_add_u32 v21, 1024, v18
  s_waitcnt lgkmcnt(0)
  s_load_dword s31, s[26:27], {WS_E}
""")
stamp(1)
srd(52, 4, SZ['x'])
a(f"""  s_mov_b32 m0, {XB}
  s_cmp_ge_u32 s29, 16
  buffer_load_dwordx4 v18, s[52:55], 0 offen lds
  s_mov_b32 m0, {XB+1024}
  s_nop 0
  buffer_load_dwordx4 v21, s[52:55], 0 offen lds
  s_cbranch_scc1 L_aux
  s_mov_b32 s56, -1
  s_mov_b32 s57, 0x00ffffff
  s_mov_b64 exec, s[56:57]
  global_load_dwordx4 v[70:73], v18, s[4:5]
  global_load_dwordx4 v[74:77], v18, s[4:5] offset:896
  global_load_dwordx4 v[78:81], v18, s[20:21]
  s_mov_b64 exec, -1
""")
a("L_aux:")
tr_lane_setup()
for nb in range(4):
    a(f"  v_xor_b32 v{24+nb}, {nb}, v16")
    a(f"  v_lshl_add_u32 v{24+nb}, v{24+nb}, 5, v15")
    a(f"  v_add_u32 v{24+nb}, {RC}, v{24+nb}")
h_unit_index("s39")
a(f"""  s_mul_i32 s40, s39, 9363
  s_lshr_b32 s40, s40, 16          ; cbh
  s_mul_i32 s41, s40, 7
  s_sub_u32 s41, s39, s41          ; kp
  v_and_b32 v28, 1, {VL}
  v_mul_u32_u24 v28, 896, v28
  v_lshl_add_u32 v28, v13, 3, v28
  s_lshl_b32 s42, s41, 7
  s_add_u32 s42, s42, {XB}
  v_add_u32 v28, s42, v28
  s_mul_i32 s42, s41, {2*7168}
  s_lshl_b32 s43, s40, 8
  s_add_u32 s42, s42, s43
  s_add_u32 s42, s42, {WS_HP}
  v_lshlrev_b32 v31, 2, {VL}
  v_add_u32 v31, s42, v31
  v_add_u32 v30, 7168, v31
  s_waitcnt lgkmcnt(0)
""")
tau_setup()
xid_value("s34")
a(f"""  s_lshl_b32 s42, s28, 7
  s_lshl_b32 s43, s29, 2
  s_add_u32 s42, s42, s43
  s_add_u32 s42, s42, {WS_XID}
  v_mov_b32 v6, s42
  v_mov_b32 v7, s34
  s_waitcnt vmcnt(0)
  s_mov_b64 exec, 1
  global_store_dword v6, v7, s[26:27] sc1
  s_mov_b64 exec, -1
  s_barrier                        ; barrier Q
  s_barrier                        ; barrier Q2
""")
stamp(2)
if OPT['tlb']:
    a(f"""  s_lshl_b32 s42, s28, 9
  s_lshl_b32 s43, s29, 4
  s_add_u32 s42, s42, s43
  s_mul_i32 s42, s42, 896
  v_mov_b32 v6, s42
  v_mov_b32 v7, 0
  s_mov_b64 exec, 1
  global_load_dword v2, v6, s[12:13] nt
  global_load_dword v2, v7, s[18:19] offset:64 nt
  global_load_dword v2, v7, s[22:23] nt
  s_mov_b64 exec, -1
""")
a("  s_cmp_ge_u32 s39, 196")
a("  s_cbranch_scc1 L_nohpub")
for st in range(2):
    a(f"  ds_read2_b64 v[{48+4*st}:{51+4*st}], v28 offset0:{8*st} offset1:{8*st+4}")
    for nb in range(4):
        r = 96 + 16*st + 4*nb
        a(f"  ds_read_b64_tr_b16 v[{r}:{r+1}], v{24+nb} offset:{st*4096}")
        a(f"  ds_read_b64_tr_b16 v[{r+2}:{r+3}], v{24+nb} offset:{st*4096+2048}")
for st in range(2):
    a(f"  s_waitcnt lgkmcnt({9 - 9*st})")
    for nb in range(4):
        r = 96 + 16*st + 4*nb
        c = "0" if st == 0 else f"v[{32+4*nb}:{35+4*nb}]"
        a(f"  v_mfma_f32_16x16x32_bf16 v[{32+4*nb}:{35+4*nb}], v[{48+4*st}:{51+4*st}], v[{r}:{r+3}], {c}")
a("  s_nop 7")
for r in range(2):
    a(f"  v_permlane16_swap_b32 v{32+r}, v{36+r}")
    a(f"  v_permlane16_swap_b32 v{40+r}, v{44+r}")
a("  s_nop 1")
for r in range(2):
    a(f"  v_permlane32_swap_b32 v{32+r}, v{40+r}")
a("  s_nop 1")
tagit("v32", "v32")
tagit("v33", "v33")
a("""  global_store_dword v31, v32, s[26:27] sc1
  global_store_dword v30, v33, s[26:27] sc1
L_nohpub:""")
stamp(5)
a("  s_cmp_ge_u32 s29, 16")
a("  s_cbranch_scc1 L_aux_a")
a("  v_mov_b32 v44, 0")
a("  v_mov_b32 v45, 0")
for r in range(4):
    a(f"  v_lshlrev_b32 v46, 16, v{78+r}")
    a(f"  v_and_b32 v47, 0xffff0000, v{78+r}")
    for b in range(2):
        a(f"  v_lshlrev_b32 v48, 16, v{70+4*b+r}")
        a(f"  v_and_b32 v49, 0xffff0000, v{70+4*b+r}")
        a(f"  v_mul_f32 v48, v48, v46")
        a(f"  v_mul_f32 v49, v49, v47")
        a(f"  v_cvt_pk_bf16_f32 v48, v48, v49")
        a(f"  v_lshlrev_b32 v49, 16, v48")
        a(f"  v_and_b32 v48, 0xffff0000, v48")
        a(f"  v_add_f32 v{44+b}, v{44+b}, v49")
        a(f"  v_add_f32 v{44+b}, v{44+b}, v48")
a(f"""  v_cmp_gt_u32 vcc, 56, {VL}
  s_nop 1
  v_cndmask_b32 v44, 0, v44, vcc
  v_cndmask_b32 v45, 0, v45, vcc
  s_nop 1
""")
for sh in (1, 2, 4, 8):
    a(f"  v_add_f32_dpp v44, v44, v44 row_shr:{sh} row_mask:0xf bank_mask:0xf")
    a(f"  v_add_f32_dpp v45, v45, v45 row_shr:{sh} row_mask:0xf bank_mask:0xf")
    a("  s_nop 0")
a(f"""  v_add_f32_dpp v44, v44, v44 row_bcast:15 row_mask:0xa bank_mask:0xf
  v_add_f32_dpp v45, v45, v45 row_bcast:15 row_mask:0xa bank_mask:0xf
  s_nop 0
  v_add_f32_dpp v44, v44, v44 row_bcast:31 row_mask:0xc bank_mask:0xf
  v_add_f32_dpp v45, v45, v45 row_bcast:31 row_mask:0xc bank_mask:0xf
  s_nop 0
  v_readlane_b32 s42, v44, 63
  v_readlane_b32 s43, v45, 63
  s_nop 1
  v_and_b32 v46, 1, {VL}
  v_cmp_eq_u32 vcc, 0, v46
  v_mov_b32 v47, s43
  v_mov_b32 v48, s42
  v_cndmask_b32 v47, v47, v48, vcc
  v_mul_f32 v47, 0xbfb8aa3b, v47   ; -log2e * z
  v_exp_f32 v47, v47
  s_nop 0
  v_add_f32 v47, 1.0, v47
  v_rcp_f32 v47, v47               ; g[b = lane&1]
  s_nop 0
  v_sub_f32 v82, 1.0, v47          ; 1-g
  v_lshlrev_b32 v46, 2, v46
  v_add_u32 v46, {GT}, v46
  s_mov_b64 exec, 3
  ds_write_b32 v46, v47
  s_mov_b64 exec, -1
  s_waitcnt lgkmcnt(0)
""")
stamp(3)
a("L_aux_a:")
a("  s_barrier")
a("  s_cmp_lt_u32 s29, 16")
a("  s_cbranch_scc1 L_aux_w")
a("  s_cmp_lt_u32 s29, 23")
a("  s_cbranch_scc1 L_final")
dump_stamps()
a("  s_endpgm")

a(f"""L_final:
  s_sub_u32 s36, s29, 16           ; p
  s_lshl_b32 s37, s36, 3
  s_add_u32 s37, s37, s28          ; c
  v_lshrrev_b32 v29, 2, {VL}       ; u16
  v_mul_u32_u24 v30, {APS}, v29
  v_and_b32 v31, 3, {VL}
  v_lshl_add_u32 v30, v31, 4, v30
  s_lshl_b32 s42, s37, {7 if OPT['appad'] else 6}
  s_add_u32 s42, s42, {WS_AP}
  v_add_u32 v30, s42, v30
""")
for k in range(8):
    a(f"  v_add_u32 v{16+k}, {k*16*APS}, v30")
a(f"""  ; out + b*896 + (8c + 2*c4 + (r>>1))*2
  v_and_b32 v28, 1, v13
  v_mul_u32_u24 v28, 896, v28
  v_lshl_add_u32 v28, v31, 2, v28
  v_lshrrev_b32 v29, 1, v13
  v_lshl_add_u32 v28, v29, 1, v28
  s_lshl_b32 s42, s37, 4
  v_add_u32 v28, s42, v28
  s_mov_b32 s56, 0xf000f000
  s_mov_b32 s57, 0xf000f000
  v_mov_b32 v29, {WS_E}
  s_barrier                        ; barrier B
  s_barrier                        ; barrier C
  s_mov_b32 s33, 0
""")
if OPT['fdelay']:
    a(f"""L_fd:
  s_memrealtime s[60:61]
  s_waitcnt lgkmcnt(0)
  s_sub_u32 s62, s60, s64
  s_cmp_lt_u32 s62, {OPT['fdelay']}
  s_cbranch_scc1 L_fd""")
stamp(8)
NS = OPT['fsets']
def fbase(i): return 32 + 32*i
def fissue(i):
    for k in range(8):
        a(f"  global_load_dwordx4 v[{fbase(i)+4*k}:{fbase(i)+4*k+3}], v{16+k}, s[26:27] sc1")
for i in range(NS):
    fissue(i)
a("L_fpoll:")
for i in range(NS):
    a(f"  s_waitcnt vmcnt({8*(NS-1)})")
    check_regs("v14", [fbase(i)+4*k+q for k in range(8) for q in (0, 2)])
    a("  v_and_b32 v14, 0xff, v14")
    a("  v_cmp_ne_u32 vcc, 0, v14")
    a("  s_add_u32 s33, s33, 1")
    a(f"  s_cmp_gt_u32 s33, {OPT['spin']}")
    a(f"  s_cbranch_scc1 L_fok{i}")
    a(f"  s_cbranch_vccz L_fok{i}")
    if OPT['fsleep']:
        a(f"  s_sleep {OPT['fsleep']}")
    fissue(i)
a("  s_branch L_fpoll")
TB = 144
for i in range(NS):
    a(f"L_fok{i}:")
    for k in range(4):
        for h in range(2):
            x = fbase(i) + 8*k + 2*h
            a(f"  v_pk_add_f32 v[{TB+4*k+2*h}:{TB+4*k+2*h+1}], v[{x}:{x+1}], v[{x+4}:{x+5}]")
    if i < NS-1:
        a("  s_branch L_fsum")
a("L_fsum:")
stamp(9)
rec(12, "s33")
for h in range(2):
    a(f"  v_pk_add_f32 v[{TB+2*h}:{TB+2*h+1}], v[{TB+2*h}:{TB+2*h+1}], v[{TB+4+2*h}:{TB+5+2*h}]")
    a(f"  v_pk_add_f32 v[{TB+8+2*h}:{TB+9+2*h}], v[{TB+8+2*h}:{TB+9+2*h}], v[{TB+12+2*h}:{TB+13+2*h}]")
for h in range(2):
    a(f"  v_pk_add_f32 v[{160+2*h}:{161+2*h}], v[{TB+2*h}:{TB+2*h+1}], v[{TB+8+2*h}:{TB+9+2*h}]")
a(f"""  s_nop 1
  v_permlane16_swap_b32 v160, v161
  v_permlane16_swap_b32 v162, v163
  v_add_f32 v160, v160, v161
  v_add_f32 v162, v162, v163
  s_nop 1
  v_permlane32_swap_b32 v160, v162
  v_add_f32 v160, v160, v162
  s_nop 1
  v_add_f32_dpp v160, v160, v160 row_shr:4 row_mask:0xf bank_mask:0xf
  s_nop 1
  v_add_f32_dpp v160, v160, v160 row_shr:8 row_mask:0xf bank_mask:0xf
  s_mov_b64 exec, s[56:57]
  v_cvt_pk_bf16_f32 v160, v160, v160
  global_store_short v28, v160, s[22:23]{' ' + OPT['outflag'].replace('_', ' ') if OPT['outflag'] != 'none' else ''}
  s_cmp_lg_u32 s37, 0
  s_cbranch_scc1 L_noE
  s_mov_b64 exec, 1
  global_store_dword v29, {VTAU}, s[26:27] sc1
L_noE:
  s_mov_b64 exec, -1
""")
if OPT['deadline']:
    a(f"""L_dl:
  s_memrealtime s[56:57]
  s_waitcnt lgkmcnt(0)
  s_sub_u32 s33, s56, s96
  s_cmp_lt_u32 s33, {OPT['deadline']}
  s_cbranch_scc1 L_dl""")
stamp(10, final=True)
if OPT['dbgts']:
    a("  s_waitcnt lgkmcnt(0)")
    a("  s_cmp_lg_u32 s37, 0")
    a("  s_cbranch_scc1 L_nodbg")
    a("  s_mov_b64 exec, 1")
    a("  v_mov_b32 v8, 0")
    for q in range(4):
        for r in range(4):
            k = 4*q + r
            a(f"  s_sub_u32 s33, s{64+2*k}, s64")
            a(f"  v_mov_b32 v{12+r}, s33")
        a(f"  global_store_dwordx4 v8, v[12:15], s[24:25] offset:{16*q}")
        a("  s_nop 1")
    a("L_nodbg:")
else:
    dump_stamps()
a("  s_endpgm")

a("L_aux_w:")
a(f"""  ; h gather set-up: lanes (kp = l>>3 (0..6), b = (l>>2)&1, q4 = l&3) ; HP + (kp*2+b)*7168 + (16u + 4*q4)*4
  s_lshl_b32 s38, s28, 4
  s_add_u32 s38, s38, s29          ; u = g*16 + j
  v_lshrrev_b32 v85, 3, {VL}
  v_bfe_u32 v86, {VL}, 2, 1
  v_lshl_add_u32 v85, v85, 1, v86
  v_mul_u32_u24 v85, 7168, v85
  v_and_b32 v87, 3, {VL}
  v_lshl_add_u32 v85, v87, 4, v85
  s_lshl_b32 s42, s38, 6
  s_add_u32 s42, s42, {WS_HP}
  v_add_u32 v85, s42, v85
  v_readlane_b32 s42, v82, 0
  v_readlane_b32 s43, v82, 1
  v_cmp_eq_u32 vcc, 0, v86
  s_nop 0
  v_mov_b32 v36, s43
  v_mov_b32 v37, s42
  v_cndmask_b32 v83, v36, v37, vcc
  v_lshlrev_b32 v84, 5, v86
  v_lshl_add_u32 v84, v87, 3, v84
  v_add_u32 v84, {HV}, v84          ; HV + b*32 + q4*8
""")
a(f"""  v_mov_b32 v32, 0
  v_mov_b32 v33, 0
  v_mov_b32 v34, 0
  v_mov_b32 v35, 0
  s_mov_b32 s56, -1
  s_mov_b32 s57, 0x00ffffff
  s_mov_b32 s33, 0
  s_setprio 3
""")
if OPT['a2'] and OPT['wpos'] == 'q':
    a("  s_barrier                        ; barrier A2")
a(f"""  s_cmp_ge_u32 s38, 112
  s_cbranch_scc1 L_hskip
  s_mov_b64 exec, s[56:57]
  global_load_dwordx4 v[32:35], v85, s[26:27] sc1
  s_mov_b64 exec, -1
L_hskip:
  s_barrier                        ; barrier B
""")
stamp(6)
a(f"""  s_cmp_ge_u32 s38, 112
  s_cbranch_scc1 L_hdone
  s_mov_b64 exec, s[56:57]
  s_waitcnt vmcnt(0)
  s_branch L_hchk
L_hpoll:
  global_load_dwordx4 v[32:35], v85, s[26:27] sc1
  s_waitcnt vmcnt(0)
L_hchk:
""")
check_regs("v40", range(32, 36))
poll_end("v40", "L_hpoll", "L_hok")
a("  s_mov_b64 exec, -1")
a("  s_nop 1")
for r in range(4):
    a(f"  v_add_f32_dpp v{32+r}, v{32+r}, v{32+r} row_ror:8 row_mask:0xf bank_mask:0xf")
for r in range(4):
    a(f"  v_mov_b32 v{36+r}, v{32+r}")
a("  s_nop 1")
for r in range(4):
    a(f"  v_permlane16_swap_b32 v{32+r}, v{36+r}")
for r in range(4):
    a(f"  v_add_f32 v{32+r}, v{32+r}, v{36+r}")
for r in range(4):
    a(f"  v_mov_b32 v{36+r}, v{32+r}")
a("  s_nop 1")
for r in range(4):
    a(f"  v_permlane32_swap_b32 v{32+r}, v{36+r}")
for r in range(4):
    a(f"  v_add_f32 v{32+r}, v{32+r}, v{36+r}")
a("L_hdone:")
for r in range(4):
    a(f"  v_max_f32 v{32+r}, 0, v{32+r}")
    a(f"  v_mul_f32 v{32+r}, v{32+r}, v83")
a(f"""  v_cvt_pk_bf16_f32 v32, v32, v33
  v_cvt_pk_bf16_f32 v33, v34, v35
  s_mov_b64 exec, 0xff
  ds_write_b64 v84, v[32:33]
  s_mov_b64 exec, -1
  s_waitcnt lgkmcnt(0)
""")
stamp(7)
a("  s_barrier                        ; barrier D1")
dump_stamps()
a("L_end:")
a("  s_endpgm")
a("L_code_end:")
a(footer(vgpr=232, sgpr=100))
open(sys.argv[1], "w").write(a.text())
```

```python
import sys
from asmlib import *

OPT = dict(stamp=0, spin=400000, nt=1, qwait=3, sleep=0, fsleep=0, fast=1, tlb=0, prefetch=1,
           ops=2176, aps=3712, deadline=0, dbgts=0, wpos='q', a2=1, opre=1, fsets=1, outflag='sc1', apack=0, fdelay=0, appad=1, early=0, probe1=0)
for a_ in sys.argv[2:]:
    k, v = a_.split('=')
    assert k in OPT, k
    OPT[k] = int(v) if v.lstrip('-').isdigit() else v
STAMP = OPT['stamp']
OPS = OPT['ops']; APS = 7296 if OPT['appad'] else OPT['aps']

WS_E = 0
WS_XID = 0x400
WS_QP = 0x1000
WS_HP = 0x21000
WS_OP = 0x40000
WS_AP = 0x180000
WS_TS = 0x300000
assert WS_HP + 7*2*7168 <= WS_OP and WS_OP + 512*OPS <= WS_AP and WS_AP + 128*APS <= WS_TS

KBUF = 0
VBUF = 32768
RA = 65536
RB = 94208
RC = 108544
XB = 116736
QB = 118784
OV = 119936
HV = 120064
GT = 120128
LDS_BYTES = 120320

C_LOG2E_16 = 0x3DB8AA3B
NT = " nt" if OPT['nt'] else ""
VTAU = "v4"
VL = "v5"

a = Asm()
def stamp(k, final=False):
    if STAMP == 1 or (STAMP == 2 and (k == 0 or final)):
        a(f"  s_memrealtime s[{64+2*k}:{65+2*k}]")
def rec(k, sreg):
    if STAMP == 1:
        a(f"  s_mov_b32 s{64+2*k}, {sreg}")

def srd(dst, ptr, size):
    a(f"  s_mov_b32 s{dst}, s{ptr}")
    a(f"  s_mov_b32 s{dst+1}, s{ptr+1}")
    a(f"  s_mov_b32 s{dst+2}, {size}")
    a(f"  s_mov_b32 s{dst+3}, 0x20000")

def dma(voff, srdreg, soff):
    a(f"  buffer_load_dwordx4 {voff}, s[{srdreg}:{srdreg+3}], {soff} offen{NT} lds")

def tagit(dst, src):
    a(f"  v_bfi_b32 {dst}, s32, {VTAU}, {src}")

def check_regs(acc, regs, first=True):
    regs = list(regs)
    for r in regs:
        a(f"  v_xor_b32 v{r}, s31, v{r}")
    if first:
        if len(regs) >= 3:
            a(f"  v_or3_b32 {acc}, v{regs[0]}, v{regs[1]}, v{regs[2]}"); regs = regs[3:]
        else:
            a(f"  v_or_b32 {acc}, v{regs[0]}, v{regs[1]}"); regs = regs[2:]
    while len(regs) >= 2:
        a(f"  v_or3_b32 {acc}, {acc}, v{regs[0]}, v{regs[1]}"); regs = regs[2:]
    if regs:
        a(f"  v_or_b32 {acc}, {acc}, v{regs[0]}")

def poll_end(acc, lab_retry, lab_ok, cnt="s33", sleep=None, masked=False):
    sleep = OPT['sleep'] if sleep is None else sleep
    if not masked:
        a(f"  v_and_b32 {acc}, 0xff, {acc}")
    a(f"  v_cmp_ne_u32 vcc, 0, {acc}")
    a(f"  s_add_u32 {cnt}, {cnt}, 1")
    a(f"  s_cmp_gt_u32 {cnt}, {OPT['spin']}")
    a(f"  s_cbranch_scc1 {lab_ok}")
    if sleep:
        a(f"  s_cbranch_vccz {lab_ok}")
        a(f"  s_sleep {sleep}")
        a(f"  s_branch {lab_retry}")
    else:
        a(f"  s_cbranch_vccnz {lab_retry}")
    a(f"{lab_ok}:")

def dump_stamps():
    if not STAMP or OPT['dbgts']:
        return
    a("  s_waitcnt lgkmcnt(0)")
    a("  s_mul_i32 s33, s2, 5")
    a("  s_add_u32 s33, s33, s30")
    a("  s_lshl_b32 s33, s33, 6")
    a(f"  s_add_u32 s33, s33, {WS_TS}")
    a("  v_mov_b32 v8, s33")
    a("  s_mov_b64 exec, 1")
    for q in range(4):
        for r in range(4):
            a(f"  v_mov_b32 v{12+r}, s{64+2*(4*q+r)}")
        a(f"  global_store_dwordx4 v8, v[12:15], s[26:27] offset:{16*q}")
        a("  s_nop 1")

def tau_setup():
    a("  s_and_b32 s31, s31, 0xff")
    a("  s_mul_i32 s31, s31, 5")
    a("  s_add_u32 s31, s31, 59")
    a("  s_and_b32 s31, s31, 0xff")
    a(f"  v_mov_b32 {VTAU}, s31")

def xid_value(dst):
    a(f"  s_getreg_b32 {dst}, hwreg(HW_REG_XCC_ID, 0, 4)")
    a(f"  s_lshl_b32 {dst}, {dst}, 24")
    a(f"  s_mul_i32 s33, s31, 0x010101")
    a(f"  s_or_b32 {dst}, {dst}, s33")

def tr_lane_setup():
    a(f"""  v_bfe_u32 v14, {VL}, 2, 2        ; r4
  v_lshl_add_u32 v15, v13, 2, v14  ; row = 4*g4+r4
  v_bfe_u32 v16, v15, 1, 2         ; f
  v_and_b32 v17, 3, {VL}           ; c
  v_lshlrev_b32 v15, 7, v15
  v_lshl_add_u32 v15, v17, 3, v15  ; row*128 + c*8""")

def h_unit_index(dst):
    a(f"""  s_lshl_b32 {dst}, s28, 4
  s_add_u32 {dst}, {dst}, s29
  s_sub_u32 {dst}, {dst}, 16       ; P: g*16 + p
  s_lshl_b32 s33, s29, 3
  s_add_u32 s33, s33, s28
  s_add_u32 s33, s33, 128          ; W: 128 + i*8 + g
  s_cmp_lt_u32 s29, 16
  s_cselect_b32 {dst}, s33, {dst}""")

a(header(256, 320, LDS_BYTES))
stamp(0)
if OPT['deadline'] or OPT['probe1']:
    a("  s_memrealtime s[96:97]")
a(f"""  s_load_dwordx16 s[4:19], s[0:1], 0
  s_load_dwordx8 s[20:27], s[0:1], 64
  s_getpc_b64 s[34:35]
L_pc:
  v_lshlrev_b32 v1, {5 if OPT['prefetch'] else 0}, v0
  v_min_u32 v1, {"L_code_end - L_pc - 4" if OPT['prefetch'] else 0}, v1
  s_cmpk_ge_u32 s2, 0x100
  s_cbranch_scc1 L_end
  global_load_dword v3, v1, s[34:35]
  v_lshrrev_b32 v2, 6, v0
  v_and_b32 {VL}, 63, v0
  v_readfirstlane_b32 s30, v2
  v_lshrrev_b32 v8, 3, {VL}
  v_bfe_u32 v9, {VL}, 4, 2         ; (row>>1)&3
  v_and_b32 v10, 7, {VL}
  v_lshlrev_b32 v11, 1, v9
  v_xor_b32 v11, v11, v10
  v_lshlrev_b32 v11, 4, v11        ; *16 bytes
  v_lshl_add_u32 v18, v8, 13, v11
  s_and_b32 s28, s2, 7             ; g
  s_cmp_eq_u32 s30, 0
  s_cbranch_scc1 L_aux0
  s_lshr_b32 s42, s2, 6            ; kp
  s_mul_i32 s42, s42, {112*8192}
  s_lshl_b32 s43, s28, 10
  s_add_u32 s42, s42, s43
  s_bfe_u32 s43, s2, 0x30003       ; j&7
  s_lshl_b32 s43, s43, 7
  s_add_u32 s42, s42, s43
  s_sub_u32 s36, s30, 1            ; v
  s_lshl_b32 s43, s36, 16          ; v*8*8192
  s_add_u32 s42, s42, s43
  v_add_u32 v18, s42, v18
  s_lshl_b32 s43, s36, 10
  s_add_u32 m0, s43, {RA}
  s_lshl_b32 s44, 1, 18
  s_movk_i32 s45, 0x1000
  s_waitcnt lgkmcnt(0)
  global_load_lds_dwordx4 v18, s[10:11]{NT}
  s_add_u32 m0, m0, s45
  v_add_u32 v18, s44, v18
  global_load_lds_dwordx4 v18, s[10:11]{NT}
  s_add_u32 m0, m0, s45
  v_add_u32 v18, s44, v18
  global_load_lds_dwordx4 v18, s[10:11]{NT}
  s_cmp_ge_u32 s36, 2
  s_cbranch_scc1 L_wq_done
  s_add_u32 m0, m0, s45
  v_add_u32 v18, s44, v18
  global_load_lds_dwordx4 v18, s[10:11]{NT}
""")
a("L_wq_done:")
if OPT['probe1']:
    a(f"""L_pr1:
  s_memrealtime s[56:57]
  s_waitcnt lgkmcnt(0)
  s_sub_u32 s33, s56, s96
  s_cmp_lt_u32 s33, {OPT['probe1']}
  s_cbranch_scc1 L_pr1""")
if STAMP:
    for k in range(1, 16):
        a(f"  s_mov_b32 s{64+2*k}, 0")
a(f"""  s_load_dword s31, s[26:27], {WS_E}
  s_lshr_b32 s29, s2, 3            ; j
  s_mov_b32 s32, 0xff
  v_lshrrev_b32 v13, 4, {VL}       ; g4
  s_and_b32 s37, s36, 1            ; kh
  s_lshr_b32 s38, s36, 1           ; dh""")
stamp(1)
h_unit_index("s45")
a(f"""  s_mul_i32 s46, s45, 9363
  s_lshr_b32 s46, s46, 16          ; cbh = u1/7
  s_mul_i32 s47, s46, 7
  s_sub_u32 s47, s45, s47          ; kp = u1%7
  s_min_u32 s46, s46, 27
  s_lshl_b32 s46, s46, 7
  s_mul_i32 s47, s47, {64*3584}
  s_add_u32 s46, s46, s47
  s_mul_i32 s47, s36, {8*3584}
  s_add_u32 s46, s46, s47
  s_cmp_lt_u32 s45, 196
  s_cselect_b32 s45, 0, 0x40000000
  v_mul_u32_u24 v18, 3584, v8
  v_add3_u32 v18, v18, v11, s45
  s_lshl_b32 s47, s36, 10
  s_add_u32 s47, s47, {RC}
""")
srd(52, 16, SZ['w1'])
for k in range(2):
    a(f"  s_add_u32 m0, s47, {k*4096}")
    a(f"  s_add_u32 s45, s46, {k*4*8*3584}")
    dma("v18", 52, "s45")
a(f"""  v_xor_b32 v12, v9, v10
  v_lshlrev_b32 v12, 4, v12
  s_and_b32 s39, s29, 1            ; b
  s_lshr_b32 s40, s29, 1           ; s (0..15)
  s_lshl_b32 s41, s39, 3
  s_add_u32 s41, s41, s28          ; b*8+g
  s_lshl_b32 s41, s41, 21          ; *4096*512
  s_lshl_b32 s42, s40, 15          ; s*64*512
  s_add_u32 s41, s41, s42
  s_lshl_b32 s42, s37, 14          ; kh*32*512
  s_add_u32 s41, s41, s42
  s_lshl_b32 s42, s38, 8           ; dh*256
  s_add_u32 s41, s41, s42
  s_add_u32 s41, s41, {3072*512}
  s_lshl_b32 s43, s38, 14
  s_lshl_b32 s42, s37, 12
  s_add_u32 s43, s43, s42
  v_lshlrev_b32 v18, 9, v8         ; row*512
  v_add_u32 v19, v18, v12
  v_xor_b32 v20, 64, v19
  v_add_u32 v21, v18, v11          ; V voffset
""")
srd(44, 6, SZ['k'])
srd(48, 8, SZ['v'])
for c2 in range(2):
    for jj in range(4):
        a(f"  s_add_u32 m0, s43, {KBUF + c2*8192 + jj*1024}")
        a(f"  s_add_u32 s42, s41, {c2*128 + jj*4096}")
        dma("v20" if jj & 1 else "v19", 44, "s42")
tr_lane_setup()
a(f"""  ; q projection tile nb = v : addresses
  v_xor_b32 v24, s36, v16
  v_lshl_add_u32 v24, v24, 5, v15
  v_add_u32 v24, {RA}, v24
  v_and_b32 v25, 1, {VL}
  v_mul_u32_u24 v25, 896, v25
  v_lshl_add_u32 v25, v13, 3, v25
  s_lshr_b32 s42, s29, 3           ; kp
  s_mul_i32 s45, s42, 224
  s_add_u32 s45, s45, {XB}
  v_add_u32 v25, s45, v25
  s_lshl_b32 s45, s28, 14
  s_lshl_b32 s42, s42, 12
  s_add_u32 s45, s45, s42
  s_and_b32 s42, s29, 7
  s_lshl_b32 s42, s42, 8
  s_add_u32 s45, s45, s42
  s_lshl_b32 s42, s36, 6
  s_add_u32 s45, s45, s42
  s_add_u32 s45, s45, {WS_QP}
  v_lshlrev_b32 v26, 2, {VL}
  v_add_u32 v26, s45, v26
""")
a("  s_waitcnt lgkmcnt(0)")
tau_setup()
a("  s_waitcnt vmcnt(10)")
a("  s_barrier")
for st in range(3):
    a(f"  ds_read2_b64 v[{32+4*st}:{35+4*st}], v25 offset0:{8*st} offset1:{8*st+4}")
    a(f"  ds_read_b64_tr_b16 v[{48+4*st}:{49+4*st}], v24 offset:{st*4096}")
    a(f"  ds_read_b64_tr_b16 v[{50+4*st}:{51+4*st}], v24 offset:{st*4096+2048}")
a(f"  ds_read_b64 v[44:45], v25 offset:192")
a(f"  ds_read_b64_tr_b16 v[60:61], v24 offset:{3*4096}")
for st in range(3):
    a(f"  s_waitcnt lgkmcnt({8 - 3*st})")
    c = "0" if st == 0 else "v[64:67]"
    a(f"  v_mfma_f32_16x16x32_bf16 v[64:67], v[{32+4*st}:{35+4*st}], v[{48+4*st}:{51+4*st}], {c}")
a("  s_waitcnt lgkmcnt(0)")
a("  v_mfma_f32_16x16x16_bf16 v[68:71], v[44:45], v[60:61], 0")
a("  s_mov_b64 exec, 0xffff")
a("  s_nop 6")
a("  v_add_f32 v64, v64, v68")
a("  v_add_f32 v65, v65, v69")
tagit("v64", "v64")
tagit("v65", "v65")
a(f"""  global_store_dword v26, v64, s[26:27] sc1
  global_store_dword v26, v65, s[26:27] offset:2048 sc1
  s_mov_b64 exec, -1
""")
stamp(14)
a("  s_waitcnt vmcnt(10)")
a("  s_barrier")
for c2 in range(2):
    for jj in range(4):
        a(f"  s_add_u32 m0, s43, {VBUF + c2*8192 + jj*1024}")
        a(f"  s_add_u32 s42, s41, {c2*128 + jj*4096}")
        dma("v21", 48, "s42")
stamp(2)
a(f"""  ; K operand address: key*128 + (g4 ^ ((key>>1)&7))*16 + kh*4096
  v_and_b32 v22, 15, {VL}
  v_bfe_u32 v23, {VL}, 1, 3
  v_xor_b32 v23, v23, v13
  v_lshlrev_b32 v23, 4, v23
  v_lshl_add_u32 v22, v22, 7, v23
  s_lshl_b32 s42, s37, 12
  v_add_u32 v22, s42, v22
  v_xor_b32 v23, 64, v22
  s_add_u32 s42, s43, {VBUF}
""")
for nb in range(4):
    a(f"  v_xor_b32 v{24+nb}, {nb}, v16")
    a(f"  v_lshl_add_u32 v{24+nb}, v{24+nb}, 5, v15")
    a(f"  v_add_u32 v{24+nb}, s42, v{24+nb}")
a(f"""  ; q operand address: QB + (l&1)*576 + g4*16
  v_and_b32 v28, 1, {VL}
  v_mul_u32_u24 v28, 576, v28
  v_lshl_add_u32 v28, v13, 4, v28
  v_add_u32 v28, {QB}, v28
  s_lshl_b32 s42, s28, 14
  s_lshl_b32 s45, s39, 11
  s_add_u32 s42, s42, s45
  s_lshl_b32 s45, s37, 10
  s_add_u32 s42, s42, s45
  s_lshl_b32 s45, s38, 9
  s_add_u32 s42, s42, s45
  s_add_u32 s42, s42, {WS_QP}
  v_lshrrev_b32 v29, 5, {VL}       ; kpl
  v_and_b32 v30, 31, {VL}          ; c
  v_lshlrev_b32 v31, 12, v29
  v_lshl_add_u32 v31, v30, 4, v31
  v_add_u32 v51, s42, v31
  v_add_u32 v52, 8192, v51
  s_lshl_b32 s42, s28, 7
  s_add_u32 s42, s42, {WS_XID}
  v_lshl_add_u32 v50, v30, 2, s42
  s_mul_i32 s42, s37, 576
  s_lshl_b32 s45, s38, 8
  s_add_u32 s42, s42, s45
  s_add_u32 s42, s42, {QB}
  v_lshlrev_b32 v30, 3, v30
  v_lshl_add_u32 v30, v29, 2, v30
  v_add_u32 v53, s42, v30
  s_lshl_b32 s42, s28, 1
  s_add_u32 s42, s42, s39
  s_lshl_b32 s42, s42, 5
  s_lshl_b32 s45, s40, 1
  s_add_u32 s42, s42, s45
  s_add_u32 s42, s42, s37
  s_mul_i32 s42, s42, {OPS}
  s_lshl_b32 s45, s38, 10
  s_add_u32 s42, s42, s45
  s_add_u32 s42, s42, {WS_OP}
  v_lshlrev_b32 v54, 3, {VL}
  v_add_u32 v54, s42, v54
  s_lshl_b32 s42, s28, 1
  s_add_u32 s42, s42, s38
  s_mul_i32 s33, s42, {32*OPS}
  s_lshl_b32 s56, s29, 7
  s_add_u32 s33, s33, s56
  s_lshl_b32 s56, s37, 6
  s_add_u32 s33, s33, s56
  s_add_u32 s33, s33, {WS_OP}
  v_lshrrev_b32 v6, 2, {VL}       ; s16
  v_mul_u32_u24 v7, {OPS}, v6
  v_and_b32 v62, 3, {VL}
  v_lshl_add_u32 v7, v62, 4, v7
  v_add_u32 v62, s33, v7
  v_add_u32 v63, {16*OPS}, v62        ; s16+16
  v_mov_b32 v46, 0x3f803f80
  v_mov_b32 v47, 0x3f803f80
  v_mov_b32 v48, 0x3f803f80
  v_mov_b32 v49, 0x3f803f80
  v_and_b32 v55, 1, {VL}
  v_cmp_eq_u32 s[58:59], 1, v55
""")
xid_value("s34")
a("  s_mov_b32 s35, 0xffffff")
a("  s_waitcnt vmcnt(8)")
stamp(3)
a("  s_barrier")
for tt in range(2):
    for t in range(8):
        r = 64 + (tt*8 + t)*4
        a(f"  ds_read_b128 v[{r}:{r+3}], v{23 if t & 1 else 22} offset:{KBUF + (t>>1)*8192 + tt*2048}")

def w_weight_setup():
    srd(44, 12, SZ['wo'])
    srd(52, 18, SZ['w2'])
    a(f"""  s_lshl_b32 s42, s28, 9
  s_lshl_b32 s61, s29, 4
  s_add_u32 s42, s42, s61          ; g*512 + 16j
  s_lshl_b32 s61, s38, 8
  s_add_u32 s42, s42, s61          ; + h*256
  s_lshl_b32 s61, s37, 3
  s_add_u32 s42, s42, s61          ; + half*8
  s_mul_i32 s61, s42, 896
  s_lshl_b32 s60, s36, 10
  s_add_u32 s60, s60, {RA}
  v_mul_u32_u24 v19, 896, v8
  v_add_u32 v19, v19, v11
  s_lshl_b32 s33, s28, 4
  s_add_u32 s33, s33, s29          ; u
  s_min_u32 s42, s33, 111
  s_lshl_b32 s42, s42, 4
  s_lshl_b32 s62, s37, 3
  s_add_u32 s42, s42, s62          ; 16u + q*8   (q = v&1)
  s_mul_i32 s42, s42, 896
  s_lshl_b32 s62, s38, 7
  s_add_u32 s62, s42, s62          ; + (v>>1)*128
  s_cmp_lt_u32 s33, 112
  s_cselect_b32 s33, 0, 0x40000000
  v_add_u32 v20, s33, v19
  s_lshl_b32 s63, s38, 11
  s_lshl_b32 s33, s37, 10
  s_add_u32 s63, s63, s33
  s_add_u32 s63, s63, {RB}         ; RB + (v>>1)*2048 + q*1024
""")

def w_weight_loads(tagname):
    for cb in range(7):
        a(f"  s_add_u32 m0, s60, {cb*4096}")
        a(f"  s_add_u32 s33, s61, {cb*128}")
        dma("v19", 44, "s33")
    for k in range(4):
        if k == 3:
            a("  s_cmp_lg_u32 s38, 0")
            a(f"  s_cbranch_scc1 L_w2_done{tagname}")
        a(f"  s_add_u32 m0, s63, {k*4096}")
        a(f"  s_add_u32 s33, s62, {k*256}")
        dma("v20", 52, "s33")
    a(f"L_w2_done{tagname}:")

def q_loads():
    a("  global_load_dwordx4 v[32:35], v51, s[26:27] sc1")
    a("  global_load_dwordx4 v[36:39], v52, s[26:27] sc1")
    a("  global_load_dword v41, v50, s[26:27] sc1")

a("  s_cmp_lt_u32 s29, 16")
a("  s_cbranch_scc0 L_q_p")
w_weight_setup()
if OPT['wpos'] == 'first':
    pass
if OPT['wpos'] == 'q':
    a(f"  s_waitcnt vmcnt({OPT['qwait']})")
    stamp(4)
    q_loads()
    if OPT['a2']:
        a("  s_barrier")
    w_weight_loads("a")
    if OPT['opre']:
        a("  global_load_dword v2, v62, s[26:27] sc1")
        a("  global_load_dword v3, v63, s[26:27] sc1")
    a("  s_mov_b32 s33, 0")
    NY = 12 if OPT['opre'] else 10
    a("  s_cmp_lg_u32 s38, 0")
    a("  s_cbranch_scc1 L_qw10")
    a(f"  s_waitcnt vmcnt({NY+1})")
    a("  s_branch L_qchk")
    a("L_qw10:")
    a(f"  s_waitcnt vmcnt({NY})")
    a("  s_branch L_qchk")
a(f"""L_q_p:
  s_mov_b32 s33, 0
  s_waitcnt vmcnt({OPT['qwait']})
""")
stamp(4)
a("L_qpoll:")
q_loads()
a("  s_waitcnt vmcnt(0)")
a("L_qchk:")
check_regs("v40", range(32, 40))
a("  v_xor_b32 v41, s34, v41")
a("  v_and_b32 v40, 0xff, v40")
a("  v_and_or_b32 v40, v41, s35, v40")
poll_end("v40", "L_qpoll", "L_qok", masked=True)
stamp(5)
rec(13, "s33")
if OPT['wpos'] == 'mid':
    a("  s_cmp_lt_u32 s29, 16")
    a("  s_cbranch_scc0 L_nomid")
    w_weight_loads("m")
    a("L_nomid:")
for nbk in range(8):
    r = 160 + 4*nbk
    off = (nbk >> 2)*8192
    a(f"  ds_read_b64_tr_b16 v[{r}:{r+1}], v{24 + (nbk & 3)} offset:{off}")
    a(f"  ds_read_b64_tr_b16 v[{r+2}:{r+3}], v{24 + (nbk & 3)} offset:{off + 2048}")
a(f"""  v_add_f32 v32, v32, v36
  v_add_f32 v33, v33, v37
  v_add_f32 v34, v34, v38
  v_add_f32 v35, v35, v39
  v_cmp_ne_u32 vcc, 0, v41
  s_nop 0
  v_permlane32_swap_b32 v32, v34
  v_permlane32_swap_b32 v33, v35
  v_add_f32 v32, v32, v34
  v_add_f32 v33, v33, v35
  v_cvt_pk_bf16_f32 v32, v32, v33
  ds_write_b32 v53, v32
  s_cmp_eq_u64 vcc, 0
  s_cselect_b32 s35, {1 if OPT['fast'] else 0}, 0
  s_waitcnt lgkmcnt(0)
  s_barrier
""")
stamp(6)
for t in range(8):
    a(f"  ds_read_b128 v[{128+4*t}:{131+4*t}], v28 offset:{64*t}")
a(f"  s_mov_b32 s42, {C_LOG2E_16:#x}")
for t in range(8):
    a(f"  s_waitcnt lgkmcnt({7-t})")
    for tt in range(2):
        kr = 64 + (tt*8 + t)*4
        c = "0" if t == 0 else f"v[{32+4*tt}:{35+4*tt}]"
        a(f"  v_mfma_f32_16x16x32_bf16 v[{32+4*tt}:{35+4*tt}], v[{kr}:{kr+3}], v[{128+4*t}:{131+4*t}], {c}")
a(f"""  s_nop 6
  v_max3_f32 v44, v32, v33, v34
  v_max3_f32 v45, v36, v37, v38
  v_max3_f32 v44, v44, v35, v39
  v_max_f32 v44, v44, v45
  v_mov_b32 v45, v44
  s_nop 1
  v_permlane16_swap_b32 v44, v45
  v_max_f32 v44, v44, v45
  v_mov_b32 v45, v44
  s_nop 1
  v_permlane32_swap_b32 v44, v45
  v_max_f32 v44, v44, v45
  v_mul_f32 v44, s42, v44
""")
for r in range(8):
    a(f"  v_fma_f32 v{32+r}, v{32+r}, s42, -v44")
for r in range(8):
    a(f"  v_exp_f32 v{32+r}, v{32+r}")
a("  s_nop 0")
for r in range(4):
    a(f"  v_cvt_pk_bf16_f32 v{40+r}, v{32+2*r}, v{33+2*r}")
a("  s_nop 1")
a("  v_mfma_f32_16x16x32_bf16 v[224:227], v[40:43], v[46:49], 0")
for nbk in range(8):
    a(f"  v_mfma_f32_16x16x32_bf16 v[{192+4*nbk}:{195+4*nbk}], v[40:43], v[{160+4*nbk}:{163+4*nbk}], 0")
a(f"""  v_cndmask_b32 v45, v224, v225, s[58:59]
  v_rcp_f32 v56, v224
  v_rcp_f32 v57, v225
  v_log_f32 v45, v45
  s_cmp_eq_u32 s35, 1
  v_add_f32 v45, v45, v44
""")
tagit("v59", "v45")
a("  v_mov_b32 v61, v59")
for q in range(2):
    for h in range(2):
        for k in range(4):
            a(f"  v_mul_f32_dpp v{32+2*q+h}, v{192+4*(4*q+k)+h}, v{56+h} quad_perm:[0,1,2,3] row_mask:{1<<k:#x} bank_mask:0xf")
    a(f"  v_cvt_pk_bf16_f32 v{58+2*q}, v{32+2*q}, v{33+2*q}")
a(f"""  s_cbranch_scc1 L_pub_local
  global_store_dwordx2 v54, v[58:59], s[26:27] sc1
  global_store_dwordx2 v54, v[60:61], s[26:27] offset:512 sc1
  s_branch L_pub_done
L_pub_local:                       ; every reader shares this die's L2
  global_store_dwordx2 v54, v[58:59], s[26:27]
  global_store_dwordx2 v54, v[60:61], s[26:27] offset:512
L_pub_done:
""")
stamp(7)
a("  s_cmp_lt_u32 s29, 16")
a("  s_cbranch_scc1 L_wstage")
a("  s_barrier")
dump_stamps()
a("  s_endpgm")

a("L_wstage:")
if OPT['wpos'] == 'late':
    w_weight_loads("l")
a(f"""  v_xor_b32 v24, s36, v16
  v_lshl_add_u32 v24, v24, 5, v15
  v_add_u32 v25, {RB}, v24
  v_add_u32 v24, {RA}, v24
  v_and_b32 v26, 1, {VL}
  v_lshlrev_b32 v27, 5, v26
  v_lshl_add_u32 v27, v13, 3, v27
  v_add_u32 v27, {HV}, v27
  v_lshlrev_b32 v28, 6, v26
  v_lshl_add_u32 v28, v13, 3, v28
  v_add_u32 v28, {OV}, v28
  v_and_b32 v54, 3, {VL}
  v_lshlrev_b32 v54, 2, v54
  v_and_b32 v55, 1, v13
  v_lshl_add_u32 v54, v55, 5, v54
  v_lshrrev_b32 v55, 1, v13
  v_lshl_add_u32 v54, v55, 1, v54
  s_lshl_b32 s42, s38, 6
  s_lshl_b32 s45, s37, 4
  s_add_u32 s42, s42, s45
  s_add_u32 s42, s42, {OV}
  v_add_u32 v54, s42, v54
  s_lshl_b32 s42, s28, 4
  s_add_u32 s42, s42, s29
  s_mul_i32 s42, s42, {APS}
  s_lshl_b32 s45, s36, {8 if OPT['appad'] else 7}
  s_add_u32 s42, s42, s45
  s_add_u32 s42, s42, {WS_AP}
  v_lshlrev_b32 v55, 3, {VL}
  v_add_u32 v55, s42, v55
  v_bfe_u32 v56, {VL}, 3, 1
  v_lshl_add_u32 v56, v56, 6, v55
  v_add_u32 v57, 4096, v56
  s_lshl_b32 s42, s38, 2
  s_add_u32 s42, s42, {GT}
  v_mov_b32 v29, s42
  ds_read_b32 v50, v29
  s_mov_b32 s56, 0xf000f000
  s_mov_b32 s57, 0xf000f000
  s_mov_b32 s33, 0
  s_waitcnt vmcnt(0) lgkmcnt(0)
""")
if OPT['early']:
    a("""  global_load_dwordx4 v[32:35], v62, s[26:27] sc1
  global_load_dwordx4 v[36:39], v63, s[26:27] sc1""")
a("  s_barrier")
stamp(8)
if not OPT['early']:
    a("""  global_load_dwordx4 v[32:35], v62, s[26:27] sc1
  global_load_dwordx4 v[36:39], v63, s[26:27] sc1""")
a("  ds_read_b64 v[106:107], v27")
for cb in range(7):
    a(f"  ds_read_b64_tr_b16 v[{92+2*cb}:{93+2*cb}], v25 offset:{cb*2048}")
for cb in range(7):
    a(f"  ds_read_b64_tr_b16 v[{64+4*cb}:{65+4*cb}], v24 offset:{cb*4096}")
    a(f"  ds_read_b64_tr_b16 v[{66+4*cb}:{67+4*cb}], v24 offset:{cb*4096+2048}")
a("  s_waitcnt vmcnt(0)")
a("  s_branch L_ochk")
a(f"""L_opoll:
  global_load_dwordx4 v[32:35], v62, s[26:27] sc1
  global_load_dwordx4 v[36:39], v63, s[26:27] sc1
  s_waitcnt vmcnt(0)
L_ochk:
""")
check_regs("v48", [33, 35, 37, 39])
poll_end("v48", "L_opoll", "L_ook")
stamp(9)
rec(12, "s33")
a(f"""  v_max_f32 v52, v33, v37
  v_max_f32 v53, v35, v39
  v_lshlrev_b32 v40, 16, v32       ; A: d0h0
  v_and_b32 v41, 0xffff0000, v32   ;    d0h1
  v_permlane16_swap_b32 v52, v53
  v_lshlrev_b32 v42, 16, v34       ;    d1h0
  v_and_b32 v43, 0xffff0000, v34   ;    d1h1
  v_max_f32 v52, v52, v53          ; rows: h0(01) h1(01) h0(23) h1(23)
  v_mov_b32 v53, v52
  v_lshlrev_b32 v44, 16, v36       ; B
  v_and_b32 v45, 0xffff0000, v36
  v_permlane32_swap_b32 v52, v53
  v_max_f32 v52, v52, v53
  v_lshlrev_b32 v46, 16, v38
  v_and_b32 v47, 0xffff0000, v38
  v_max_f32_dpp v52, v52, v52 row_shr:4 row_mask:0xf bank_mask:0xf
  s_nop 1
  v_max_f32_dpp v52, v52, v52 row_shr:8 row_mask:0xf bank_mask:0xf
  s_nop 0
  v_readlane_b32 s42, v52, 15
  v_readlane_b32 s45, v52, 31
  s_nop 1
  v_subrev_f32 v33, s42, v33
  v_subrev_f32 v37, s42, v37
  v_subrev_f32 v35, s45, v35
  v_subrev_f32 v39, s45, v39
  v_exp_f32 v33, v33               ; w A h0
  v_exp_f32 v37, v37               ; w B h0
  v_exp_f32 v35, v35               ; w A h1
  v_exp_f32 v39, v39               ; w B h1
  s_nop 0
  v_mul_f32 v40, v40, v33
  v_mul_f32 v41, v41, v35
  v_mul_f32 v42, v42, v33
  v_mul_f32 v43, v43, v35
  v_fmac_f32 v40, v44, v37
  v_fmac_f32 v41, v45, v39
  v_fmac_f32 v42, v46, v37
  v_fmac_f32 v43, v47, v39
  v_add_f32 v52, v33, v37          ; den h0
  v_add_f32 v53, v35, v39          ; den h1
  s_nop 0
  v_permlane16_swap_b32 v40, v41
  v_permlane16_swap_b32 v42, v43
  v_permlane16_swap_b32 v52, v53
  v_add_f32 v40, v40, v41
  v_add_f32 v42, v42, v43
  v_add_f32 v52, v52, v53
  v_mov_b32 v53, v52
  s_nop 1
  v_permlane32_swap_b32 v40, v42
  v_permlane32_swap_b32 v52, v53
  v_add_f32 v40, v40, v42
  v_add_f32 v52, v52, v53          ; rows h0 h1 h0 h1
  s_nop 0
  v_add_f32_dpp v40, v40, v40 row_shr:4 row_mask:0xf bank_mask:0xf
  v_add_f32_dpp v52, v52, v52 row_shr:4 row_mask:0xf bank_mask:0xf
  s_nop 0
  v_add_f32_dpp v40, v40, v40 row_shr:8 row_mask:0xf bank_mask:0xf
  v_add_f32_dpp v52, v52, v52 row_shr:8 row_mask:0xf bank_mask:0xf
  v_mul_f32 v40, v40, v50          ; * gate
  v_rcp_f32 v52, v52
  s_mov_b64 exec, s[56:57]
  v_mul_f32 v40, v40, v52
  v_cvt_pk_bf16_f32 v40, v40, v40
  ds_write_b16 v54, v40
  s_mov_b64 exec, -1
  s_waitcnt lgkmcnt(1)
""")
for cb in range(7):
    a(f"  v_mfma_f32_16x16x16_bf16 v[{110+4*cb}:{113+4*cb}], v[106:107], v[{92+2*cb}:{93+2*cb}], 0")
a(f"""  s_waitcnt lgkmcnt(0)
  s_barrier
  ds_read2_b64 v[40:43], v28 offset0:0 offset1:4
  s_waitcnt lgkmcnt(0)
""")
for cb in range(7):
    a(f"  v_mfma_f32_16x16x32_bf16 v[{110+4*cb}:{113+4*cb}], v[40:43], v[{64+4*cb}:{67+4*cb}], v[{110+4*cb}:{113+4*cb}]")
a("  s_mov_b64 exec, 0xffff")
a("  s_nop 0")
for cb in range(7):
    r = 110 + 4*cb
    tagit(f"v{r}", f"v{r}")
    if OPT['appad']:
        a(f"  global_store_dwordx2 v{56 if cb < 4 else 57}, v[{r}:{r+1}], s[26:27] offset:{1024*(cb % 4)} sc1")
    else:
        a(f"  global_store_dwordx2 v55, v[{r}:{r+1}], s[26:27] offset:{512*cb} sc1")
stamp(10)
if OPT['apack']:
    a("  s_waitcnt vmcnt(0)")
    stamp(11)
a("  s_mov_b64 exec, -1")
dump_stamps()
a("  s_endpgm")

a("L_aux0:")
if STAMP:
    for k in range(1, 16):
        a(f"  s_mov_b32 s{64+2*k}, 0")
a(f"""  s_lshr_b32 s29, s2, 3            ; j
  s_mov_b32 s32, 0xff
  v_lshrrev_b32 v13, 4, {VL}       ; g4
  v_lshlrev_b32 v18, 4, {VL}
  v_add_u32 v21, 1024, v18
  s_waitcnt lgkmcnt(0)
  s_load_dword s31, s[26:27], {WS_E}
""")
stamp(1)
srd(52, 4, SZ['x'])
a(f"""  s_mov_b32 m0, {XB}
  s_cmp_ge_u32 s29, 16
  buffer_load_dwordx4 v18, s[52:55], 0 offen lds
  s_mov_b32 m0, {XB+1024}
  s_nop 0
  buffer_load_dwordx4 v21, s[52:55], 0 offen lds
  s_cbranch_scc1 L_aux
  s_mov_b32 s56, -1
  s_mov_b32 s57, 0x00ffffff
  s_mov_b64 exec, s[56:57]
  global_load_dwordx4 v[70:73], v18, s[4:5]
  global_load_dwordx4 v[74:77], v18, s[4:5] offset:896
  global_load_dwordx4 v[78:81], v18, s[20:21]
  s_mov_b64 exec, -1
""")
a("L_aux:")
tr_lane_setup()
for nb in range(4):
    a(f"  v_xor_b32 v{24+nb}, {nb}, v16")
    a(f"  v_lshl_add_u32 v{24+nb}, v{24+nb}, 5, v15")
    a(f"  v_add_u32 v{24+nb}, {RC}, v{24+nb}")
h_unit_index("s39")
a(f"""  s_mul_i32 s40, s39, 9363
  s_lshr_b32 s40, s40, 16          ; cbh
  s_mul_i32 s41, s40, 7
  s_sub_u32 s41, s39, s41          ; kp
  v_and_b32 v28, 1, {VL}
  v_mul_u32_u24 v28, 896, v28
  v_lshl_add_u32 v28, v13, 3, v28
  s_lshl_b32 s42, s41, 7
  s_add_u32 s42, s42, {XB}
  v_add_u32 v28, s42, v28
  s_mul_i32 s42, s41, {2*7168}
  s_lshl_b32 s43, s40, 8
  s_add_u32 s42, s42, s43
  s_add_u32 s42, s42, {WS_HP}
  v_lshlrev_b32 v31, 2, {VL}
  v_add_u32 v31, s42, v31
  v_add_u32 v30, 7168, v31
  s_waitcnt lgkmcnt(0)
""")
tau_setup()
xid_value("s34")
a(f"""  s_lshl_b32 s42, s28, 7
  s_lshl_b32 s43, s29, 2
  s_add_u32 s42, s42, s43
  s_add_u32 s42, s42, {WS_XID}
  v_mov_b32 v6, s42
  v_mov_b32 v7, s34
  s_waitcnt vmcnt(0)
  s_mov_b64 exec, 1
  global_store_dword v6, v7, s[26:27] sc1
  s_mov_b64 exec, -1
  s_barrier                        ; barrier Q
  s_barrier                        ; barrier Q2
""")
stamp(2)
if OPT['tlb']:
    a(f"""  s_lshl_b32 s42, s28, 9
  s_lshl_b32 s43, s29, 4
  s_add_u32 s42, s42, s43
  s_mul_i32 s42, s42, 896
  v_mov_b32 v6, s42
  v_mov_b32 v7, 0
  s_mov_b64 exec, 1
  global_load_dword v2, v6, s[12:13] nt
  global_load_dword v2, v7, s[18:19] offset:64 nt
  global_load_dword v2, v7, s[22:23] nt
  s_mov_b64 exec, -1
""")
a("  s_cmp_ge_u32 s39, 196")
a("  s_cbranch_scc1 L_nohpub")
for st in range(2):
    a(f"  ds_read2_b64 v[{48+4*st}:{51+4*st}], v28 offset0:{8*st} offset1:{8*st+4}")
    for nb in range(4):
        r = 96 + 16*st + 4*nb
        a(f"  ds_read_b64_tr_b16 v[{r}:{r+1}], v{24+nb} offset:{st*4096}")
        a(f"  ds_read_b64_tr_b16 v[{r+2}:{r+3}], v{24+nb} offset:{st*4096+2048}")
for st in range(2):
    a(f"  s_waitcnt lgkmcnt({9 - 9*st})")
    for nb in range(4):
        r = 96 + 16*st + 4*nb
        c = "0" if st == 0 else f"v[{32+4*nb}:{35+4*nb}]"
        a(f"  v_mfma_f32_16x16x32_bf16 v[{32+4*nb}:{35+4*nb}], v[{48+4*st}:{51+4*st}], v[{r}:{r+3}], {c}")
a("  s_nop 7")
for r in range(2):
    a(f"  v_permlane16_swap_b32 v{32+r}, v{36+r}")
    a(f"  v_permlane16_swap_b32 v{40+r}, v{44+r}")
a("  s_nop 1")
for r in range(2):
    a(f"  v_permlane32_swap_b32 v{32+r}, v{40+r}")
a("  s_nop 1")
tagit("v32", "v32")
tagit("v33", "v33")
a("""  global_store_dword v31, v32, s[26:27] sc1
  global_store_dword v30, v33, s[26:27] sc1
L_nohpub:""")
stamp(5)
a("  s_cmp_ge_u32 s29, 16")
a("  s_cbranch_scc1 L_aux_a")
a("  v_mov_b32 v44, 0")
a("  v_mov_b32 v45, 0")
for r in range(4):
    a(f"  v_lshlrev_b32 v46, 16, v{78+r}")
    a(f"  v_and_b32 v47, 0xffff0000, v{78+r}")
    for b in range(2):
        a(f"  v_lshlrev_b32 v48, 16, v{70+4*b+r}")
        a(f"  v_and_b32 v49, 0xffff0000, v{70+4*b+r}")
        a(f"  v_mul_f32 v48, v48, v46")
        a(f"  v_mul_f32 v49, v49, v47")
        a(f"  v_cvt_pk_bf16_f32 v48, v48, v49")
        a(f"  v_lshlrev_b32 v49, 16, v48")
        a(f"  v_and_b32 v48, 0xffff0000, v48")
        a(f"  v_add_f32 v{44+b}, v{44+b}, v49")
        a(f"  v_add_f32 v{44+b}, v{44+b}, v48")
a(f"""  v_cmp_gt_u32 vcc, 56, {VL}
  s_nop 1
  v_cndmask_b32 v44, 0, v44, vcc
  v_cndmask_b32 v45, 0, v45, vcc
  s_nop 1
""")
for sh in (1, 2, 4, 8):
    a(f"  v_add_f32_dpp v44, v44, v44 row_shr:{sh} row_mask:0xf bank_mask:0xf")
    a(f"  v_add_f32_dpp v45, v45, v45 row_shr:{sh} row_mask:0xf bank_mask:0xf")
    a("  s_nop 0")
a(f"""  v_add_f32_dpp v44, v44, v44 row_bcast:15 row_mask:0xa bank_mask:0xf
  v_add_f32_dpp v45, v45, v45 row_bcast:15 row_mask:0xa bank_mask:0xf
  s_nop 0
  v_add_f32_dpp v44, v44, v44 row_bcast:31 row_mask:0xc bank_mask:0xf
  v_add_f32_dpp v45, v45, v45 row_bcast:31 row_mask:0xc bank_mask:0xf
  s_nop 0
  v_readlane_b32 s42, v44, 63
  v_readlane_b32 s43, v45, 63
  s_nop 1
  v_and_b32 v46, 1, {VL}
  v_cmp_eq_u32 vcc, 0, v46
  v_mov_b32 v47, s43
  v_mov_b32 v48, s42
  v_cndmask_b32 v47, v47, v48, vcc
  v_mul_f32 v47, 0xbfb8aa3b, v47   ; -log2e * z
  v_exp_f32 v47, v47
  s_nop 0
  v_add_f32 v47, 1.0, v47
  v_rcp_f32 v47, v47               ; g[b = lane&1]
  s_nop 0
  v_sub_f32 v82, 1.0, v47          ; 1-g
  v_lshlrev_b32 v46, 2, v46
  v_add_u32 v46, {GT}, v46
  s_mov_b64 exec, 3
  ds_write_b32 v46, v47
  s_mov_b64 exec, -1
  s_waitcnt lgkmcnt(0)
""")
stamp(3)
a("L_aux_a:")
a("  s_barrier")
a("  s_cmp_lt_u32 s29, 16")
a("  s_cbranch_scc1 L_aux_w")
a("  s_cmp_lt_u32 s29, 23")
a("  s_cbranch_scc1 L_final")
dump_stamps()
a("  s_endpgm")

a(f"""L_final:
  s_sub_u32 s36, s29, 16           ; p
  s_lshl_b32 s37, s36, 3
  s_add_u32 s37, s37, s28          ; c
  v_lshrrev_b32 v29, 2, {VL}       ; u16
  v_mul_u32_u24 v30, {APS}, v29
  v_and_b32 v31, 3, {VL}
  v_lshl_add_u32 v30, v31, 4, v30
  s_lshl_b32 s42, s37, {7 if OPT['appad'] else 6}
  s_add_u32 s42, s42, {WS_AP}
  v_add_u32 v30, s42, v30
""")
for k in range(8):
    a(f"  v_add_u32 v{16+k}, {k*16*APS}, v30")
a(f"""  ; out + b*896 + (8c + 2*c4 + (r>>1))*2
  v_and_b32 v28, 1, v13
  v_mul_u32_u24 v28, 896, v28
  v_lshl_add_u32 v28, v31, 2, v28
  v_lshrrev_b32 v29, 1, v13
  v_lshl_add_u32 v28, v29, 1, v28
  s_lshl_b32 s42, s37, 4
  v_add_u32 v28, s42, v28
  s_mov_b32 s56, 0xf000f000
  s_mov_b32 s57, 0xf000f000
  v_mov_b32 v29, {WS_E}
  s_barrier                        ; barrier B
  s_barrier                        ; barrier C
  s_mov_b32 s33, 0
""")
if OPT['fdelay']:
    a(f"""L_fd:
  s_memrealtime s[60:61]
  s_waitcnt lgkmcnt(0)
  s_sub_u32 s62, s60, s64
  s_cmp_lt_u32 s62, {OPT['fdelay']}
  s_cbranch_scc1 L_fd""")
stamp(8)
NS = OPT['fsets']
def fbase(i): return 32 + 32*i
def fissue(i):
    for k in range(8):
        a(f"  global_load_dwordx4 v[{fbase(i)+4*k}:{fbase(i)+4*k+3}], v{16+k}, s[26:27] sc1")
for i in range(NS):
    fissue(i)
a("L_fpoll:")
for i in range(NS):
    a(f"  s_waitcnt vmcnt({8*(NS-1)})")
    check_regs("v14", [fbase(i)+4*k+q for k in range(8) for q in (0, 2)])
    a("  v_and_b32 v14, 0xff, v14")
    a("  v_cmp_ne_u32 vcc, 0, v14")
    a("  s_add_u32 s33, s33, 1")
    a(f"  s_cmp_gt_u32 s33, {OPT['spin']}")
    a(f"  s_cbranch_scc1 L_fok{i}")
    a(f"  s_cbranch_vccz L_fok{i}")
    if OPT['fsleep']:
        a(f"  s_sleep {OPT['fsleep']}")
    fissue(i)
a("  s_branch L_fpoll")
TB = 144
for i in range(NS):
    a(f"L_fok{i}:")
    for k in range(4):
        for h in range(2):
            x = fbase(i) + 8*k + 2*h
            a(f"  v_pk_add_f32 v[{TB+4*k+2*h}:{TB+4*k+2*h+1}], v[{x}:{x+1}], v[{x+4}:{x+5}]")
    if i < NS-1:
        a("  s_branch L_fsum")
a("L_fsum:")
stamp(9)
rec(12, "s33")
for h in range(2):
    a(f"  v_pk_add_f32 v[{TB+2*h}:{TB+2*h+1}], v[{TB+2*h}:{TB+2*h+1}], v[{TB+4+2*h}:{TB+5+2*h}]")
    a(f"  v_pk_add_f32 v[{TB+8+2*h}:{TB+9+2*h}], v[{TB+8+2*h}:{TB+9+2*h}], v[{TB+12+2*h}:{TB+13+2*h}]")
for h in range(2):
    a(f"  v_pk_add_f32 v[{160+2*h}:{161+2*h}], v[{TB+2*h}:{TB+2*h+1}], v[{TB+8+2*h}:{TB+9+2*h}]")
a(f"""  s_nop 1
  v_permlane16_swap_b32 v160, v161
  v_permlane16_swap_b32 v162, v163
  v_add_f32 v160, v160, v161
  v_add_f32 v162, v162, v163
  s_nop 1
  v_permlane32_swap_b32 v160, v162
  v_add_f32 v160, v160, v162
  s_nop 1
  v_add_f32_dpp v160, v160, v160 row_shr:4 row_mask:0xf bank_mask:0xf
  s_nop 1
  v_add_f32_dpp v160, v160, v160 row_shr:8 row_mask:0xf bank_mask:0xf
  s_mov_b64 exec, s[56:57]
  v_cvt_pk_bf16_f32 v160, v160, v160
  global_store_short v28, v160, s[22:23]{' ' + OPT['outflag'].replace('_', ' ') if OPT['outflag'] != 'none' else ''}
  s_cmp_lg_u32 s37, 0
  s_cbranch_scc1 L_noE
  s_mov_b64 exec, 1
  global_store_dword v29, {VTAU}, s[26:27] sc1
L_noE:
  s_mov_b64 exec, -1
""")
if OPT['deadline']:
    a(f"""L_dl:
  s_memrealtime s[56:57]
  s_waitcnt lgkmcnt(0)
  s_sub_u32 s33, s56, s96
  s_cmp_lt_u32 s33, {OPT['deadline']}
  s_cbranch_scc1 L_dl""")
stamp(10, final=True)
if OPT['dbgts']:
    a("  s_waitcnt lgkmcnt(0)")
    a("  s_cmp_lg_u32 s37, 0")
    a("  s_cbranch_scc1 L_nodbg")
    a("  s_mov_b64 exec, 1")
    a("  v_mov_b32 v8, 0")
    for q in range(4):
        for r in range(4):
            k = 4*q + r
            a(f"  s_sub_u32 s33, s{64+2*k}, s64")
            a(f"  v_mov_b32 v{12+r}, s33")
        a(f"  global_store_dwordx4 v8, v[12:15], s[24:25] offset:{16*q}")
        a("  s_nop 1")
    a("L_nodbg:")
else:
    dump_stamps()
a("  s_endpgm")

a("L_aux_w:")
a(f"""  ; h gather set-up: lanes (kp = l>>3 (0..6), b = (l>>2)&1, q4 = l&3) ; HP + (kp*2+b)*7168 + (16u + 4*q4)*4
  s_lshl_b32 s38, s28, 4
  s_add_u32 s38, s38, s29          ; u = g*16 + j
  v_lshrrev_b32 v85, 3, {VL}
  v_bfe_u32 v86, {VL}, 2, 1
  v_lshl_add_u32 v85, v85, 1, v86
  v_mul_u32_u24 v85, 7168, v85
  v_and_b32 v87, 3, {VL}
  v_lshl_add_u32 v85, v87, 4, v85
  s_lshl_b32 s42, s38, 6
  s_add_u32 s42, s42, {WS_HP}
  v_add_u32 v85, s42, v85
  v_readlane_b32 s42, v82, 0
  v_readlane_b32 s43, v82, 1
  v_cmp_eq_u32 vcc, 0, v86
  s_nop 0
  v_mov_b32 v36, s43
  v_mov_b32 v37, s42
  v_cndmask_b32 v83, v36, v37, vcc
  v_lshlrev_b32 v84, 5, v86
  v_lshl_add_u32 v84, v87, 3, v84
  v_add_u32 v84, {HV}, v84          ; HV + b*32 + q4*8
""")
a(f"""  v_mov_b32 v32, 0
  v_mov_b32 v33, 0
  v_mov_b32 v34, 0
  v_mov_b32 v35, 0
  s_mov_b32 s56, -1
  s_mov_b32 s57, 0x00ffffff
  s_mov_b32 s33, 0
  s_setprio 3
""")
if OPT['a2'] and OPT['wpos'] == 'q':
    a("  s_barrier                        ; barrier A2")
a(f"""  s_cmp_ge_u32 s38, 112
  s_cbranch_scc1 L_hskip
  s_mov_b64 exec, s[56:57]
  global_load_dwordx4 v[32:35], v85, s[26:27] sc1
  s_mov_b64 exec, -1
L_hskip:
  s_barrier                        ; barrier B
""")
stamp(6)
a(f"""  s_cmp_ge_u32 s38, 112
  s_cbranch_scc1 L_hdone
  s_mov_b64 exec, s[56:57]
  s_waitcnt vmcnt(0)
  s_branch L_hchk
L_hpoll:
  global_load_dwordx4 v[32:35], v85, s[26:27] sc1
  s_waitcnt vmcnt(0)
L_hchk:
""")
check_regs("v40", range(32, 36))
poll_end("v40", "L_hpoll", "L_hok")
a("  s_mov_b64 exec, -1")
a("  s_nop 1")
for r in range(4):
    a(f"  v_add_f32_dpp v{32+r}, v{32+r}, v{32+r} row_ror:8 row_mask:0xf bank_mask:0xf")
for r in range(4):
    a(f"  v_mov_b32 v{36+r}, v{32+r}")
a("  s_nop 1")
for r in range(4):
    a(f"  v_permlane16_swap_b32 v{32+r}, v{36+r}")
for r in range(4):
    a(f"  v_add_f32 v{32+r}, v{32+r}, v{36+r}")
for r in range(4):
    a(f"  v_mov_b32 v{36+r}, v{32+r}")
a("  s_nop 1")
for r in range(4):
    a(f"  v_permlane32_swap_b32 v{32+r}, v{36+r}")
for r in range(4):
    a(f"  v_add_f32 v{32+r}, v{32+r}, v{36+r}")
a("L_hdone:")
for r in range(4):
    a(f"  v_max_f32 v{32+r}, 0, v{32+r}")
    a(f"  v_mul_f32 v{32+r}, v{32+r}, v83")
a(f"""  v_cvt_pk_bf16_f32 v32, v32, v33
  v_cvt_pk_bf16_f32 v33, v34, v35
  s_mov_b64 exec, 0xff
  ds_write_b64 v84, v[32:33]
  s_mov_b64 exec, -1
  s_waitcnt lgkmcnt(0)
""")
stamp(7)
a("  s_barrier                        ; barrier D1")
dump_stamps()
a("L_end:")
a("  s_endpgm")
a("L_code_end:")
a(footer(vgpr=232, sgpr=100))
open(sys.argv[1], "w").write(a.text())
```

```python
import sys
from asmlib import *

OPT = dict(stamp=0, spin=400000, nt=1, qwait=3, sleep=0, fsleep=0, fast=1, tlb=0, prefetch=1,
           ops=2176, aps=3712, deadline=0, dbgts=0, wpos='q', a2=1, opre=1, fsets=1, outflag='sc1', apack=0, fdelay=0, appad=1, early=0, probe1=0, amp=-1, ampwg=37, ampwave=1)
for a_ in sys.argv[2:]:
    k, v = a_.split('=')
    assert k in OPT, k
    OPT[k] = int(v) if v.lstrip('-').isdigit() else v
STAMP = OPT['stamp']
OPS = OPT['ops']; APS = 7296 if OPT['appad'] else OPT['aps']

WS_E = 0
WS_XID = 0x400
WS_QP = 0x1000
WS_HP = 0x21000
WS_OP = 0x40000
WS_AP = 0x180000
WS_TS = 0x300000
assert WS_HP + 7*2*7168 <= WS_OP and WS_OP + 512*OPS <= WS_AP and WS_AP + 128*APS <= WS_TS

KBUF = 0
VBUF = 32768
RA = 65536
RB = 94208
RC = 108544
XB = 116736
QB = 118784
OV = 119936
HV = 120064
GT = 120128
LDS_BYTES = 120320

C_LOG2E_16 = 0x3DB8AA3B
NT = " nt" if OPT['nt'] else ""
VTAU = "v4"
VL = "v5"

a = Asm()
def stamp(k, final=False):
    if STAMP == 1 or (STAMP == 2 and (k == 0 or final)) or (STAMP == 3 and k in (0, OPT['amp'])):
        a(f"  s_memrealtime s[{64+2*k}:{65+2*k}]")
def rec(k, sreg):
    if STAMP == 1:
        a(f"  s_mov_b32 s{64+2*k}, {sreg}")

def srd(dst, ptr, size):
    a(f"  s_mov_b32 s{dst}, s{ptr}")
    a(f"  s_mov_b32 s{dst+1}, s{ptr+1}")
    a(f"  s_mov_b32 s{dst+2}, {size}")
    a(f"  s_mov_b32 s{dst+3}, 0x20000")

def dma(voff, srdreg, soff):
    a(f"  buffer_load_dwordx4 {voff}, s[{srdreg}:{srdreg+3}], {soff} offen{NT} lds")

def tagit(dst, src):
    a(f"  v_bfi_b32 {dst}, s32, {VTAU}, {src}")

def check_regs(acc, regs, first=True):
    regs = list(regs)
    for r in regs:
        a(f"  v_xor_b32 v{r}, s31, v{r}")
    if first:
        if len(regs) >= 3:
            a(f"  v_or3_b32 {acc}, v{regs[0]}, v{regs[1]}, v{regs[2]}"); regs = regs[3:]
        else:
            a(f"  v_or_b32 {acc}, v{regs[0]}, v{regs[1]}"); regs = regs[2:]
    while len(regs) >= 2:
        a(f"  v_or3_b32 {acc}, {acc}, v{regs[0]}, v{regs[1]}"); regs = regs[2:]
    if regs:
        a(f"  v_or_b32 {acc}, {acc}, v{regs[0]}")

def poll_end(acc, lab_retry, lab_ok, cnt="s33", sleep=None, masked=False):
    sleep = OPT['sleep'] if sleep is None else sleep
    if not masked:
        a(f"  v_and_b32 {acc}, 0xff, {acc}")
    a(f"  v_cmp_ne_u32 vcc, 0, {acc}")
    a(f"  s_add_u32 {cnt}, {cnt}, 1")
    a(f"  s_cmp_gt_u32 {cnt}, {OPT['spin']}")
    a(f"  s_cbranch_scc1 {lab_ok}")
    if sleep:
        a(f"  s_cbranch_vccz {lab_ok}")
        a(f"  s_sleep {sleep}")
        a(f"  s_branch {lab_retry}")
    else:
        a(f"  s_cbranch_vccnz {lab_retry}")
    a(f"{lab_ok}:")

def dump_stamps():
    if STAMP == 3:
        lab = a.label("L_amp")
        k = OPT['amp']
        a(f"""  s_cmp_lg_u32 s2, {OPT['ampwg']}
  s_cbranch_scc1 {lab}_x
  s_cmp_lg_u32 s30, {OPT['ampwave']}
  s_cbranch_scc1 {lab}_x
  s_waitcnt lgkmcnt(0)
  s_sub_u32 s33, s{64+2*k}, s64
  s_mul_i32 s33, s33, 10
  s_add_u32 s33, s33, 1200
{lab}:
  s_memrealtime s[56:57]
  s_waitcnt lgkmcnt(0)
  s_sub_u32 s56, s56, s64
  s_cmp_lt_u32 s56, s33
  s_cbranch_scc1 {lab}
{lab}_x:""")
        return
    if not STAMP or OPT['dbgts']:
        return
    a("  s_waitcnt lgkmcnt(0)")
    a("  s_mul_i32 s33, s2, 5")
    a("  s_add_u32 s33, s33, s30")
    a("  s_lshl_b32 s33, s33, 6")
    a(f"  s_add_u32 s33, s33, {WS_TS}")
    a("  v_mov_b32 v8, s33")
    a("  s_mov_b64 exec, 1")
    for q in range(4):
        for r in range(4):
            a(f"  v_mov_b32 v{12+r}, s{64+2*(4*q+r)}")
        a(f"  global_store_dwordx4 v8, v[12:15], s[26:27] offset:{16*q}")
        a("  s_nop 1")

def tau_setup():
    a("  s_and_b32 s31, s31, 0xff")
    a("  s_mul_i32 s31, s31, 5")
    a("  s_add_u32 s31, s31, 59")
    a("  s_and_b32 s31, s31, 0xff")
    a(f"  v_mov_b32 {VTAU}, s31")

def xid_value(dst):
    a(f"  s_getreg_b32 {dst}, hwreg(HW_REG_XCC_ID, 0, 4)")
    a(f"  s_lshl_b32 {dst}, {dst}, 24")
    a(f"  s_mul_i32 s33, s31, 0x010101")
    a(f"  s_or_b32 {dst}, {dst}, s33")

def tr_lane_setup():
    a(f"""  v_bfe_u32 v14, {VL}, 2, 2        ; r4
  v_lshl_add_u32 v15, v13, 2, v14  ; row = 4*g4+r4
  v_bfe_u32 v16, v15, 1, 2         ; f
  v_and_b32 v17, 3, {VL}           ; c
  v_lshlrev_b32 v15, 7, v15
  v_lshl_add_u32 v15, v17, 3, v15  ; row*128 + c*8""")

def h_unit_index(dst):
    a(f"""  s_lshl_b32 {dst}, s28, 4
  s_add_u32 {dst}, {dst}, s29
  s_sub_u32 {dst}, {dst}, 16       ; P: g*16 + p
  s_lshl_b32 s33, s29, 3
  s_add_u32 s33, s33, s28
  s_add_u32 s33, s33, 128          ; W: 128 + i*8 + g
  s_cmp_lt_u32 s29, 16
  s_cselect_b32 {dst}, s33, {dst}""")

a(header(256, 320, LDS_BYTES))
stamp(0)
if OPT['deadline'] or OPT['probe1']:
    a("  s_memrealtime s[96:97]")
a(f"""  s_load_dwordx16 s[4:19], s[0:1], 0
  s_load_dwordx8 s[20:27], s[0:1], 64
  s_getpc_b64 s[34:35]
L_pc:
  v_lshlrev_b32 v1, {5 if OPT['prefetch'] else 0}, v0
  v_min_u32 v1, {"L_code_end - L_pc - 4" if OPT['prefetch'] else 0}, v1
  s_cmpk_ge_u32 s2, 0x100
  s_cbranch_scc1 L_end
  global_load_dword v3, v1, s[34:35]
  v_lshrrev_b32 v2, 6, v0
  v_and_b32 {VL}, 63, v0
  v_readfirstlane_b32 s30, v2
  v_lshrrev_b32 v8, 3, {VL}
  v_bfe_u32 v9, {VL}, 4, 2         ; (row>>1)&3
  v_and_b32 v10, 7, {VL}
  v_lshlrev_b32 v11, 1, v9
  v_xor_b32 v11, v11, v10
  v_lshlrev_b32 v11, 4, v11        ; *16 bytes
  v_lshl_add_u32 v18, v8, 13, v11
  s_and_b32 s28, s2, 7             ; g
  s_cmp_eq_u32 s30, 0
  s_cbranch_scc1 L_aux0
  s_lshr_b32 s42, s2, 6            ; kp
  s_mul_i32 s42, s42, {112*8192}
  s_lshl_b32 s43, s28, 10
  s_add_u32 s42, s42, s43
  s_bfe_u32 s43, s2, 0x30003       ; j&7
  s_lshl_b32 s43, s43, 7
  s_add_u32 s42, s42, s43
  s_sub_u32 s36, s30, 1            ; v
  s_lshl_b32 s43, s36, 16          ; v*8*8192
  s_add_u32 s42, s42, s43
  v_add_u32 v18, s42, v18
  s_lshl_b32 s43, s36, 10
  s_add_u32 m0, s43, {RA}
  s_lshl_b32 s44, 1, 18
  s_movk_i32 s45, 0x1000
  s_waitcnt lgkmcnt(0)
  global_load_lds_dwordx4 v18, s[10:11]{NT}
  s_add_u32 m0, m0, s45
  v_add_u32 v18, s44, v18
  global_load_lds_dwordx4 v18, s[10:11]{NT}
  s_add_u32 m0, m0, s45
  v_add_u32 v18, s44, v18
  global_load_lds_dwordx4 v18, s[10:11]{NT}
  s_cmp_ge_u32 s36, 2
  s_cbranch_scc1 L_wq_done
  s_add_u32 m0, m0, s45
  v_add_u32 v18, s44, v18
  global_load_lds_dwordx4 v18, s[10:11]{NT}
""")
a("L_wq_done:")
if OPT['probe1']:
    a(f"""L_pr1:
  s_memrealtime s[56:57]
  s_waitcnt lgkmcnt(0)
  s_sub_u32 s33, s56, s96
  s_cmp_lt_u32 s33, {OPT['probe1']}
  s_cbranch_scc1 L_pr1""")
if STAMP in (1, 2):
    for k in range(1, 16):
        a(f"  s_mov_b32 s{64+2*k}, 0")
if STAMP == 3: stamp(15)
a(f"""  s_load_dword s31, s[26:27], {WS_E}
  s_lshr_b32 s29, s2, 3            ; j
  s_mov_b32 s32, 0xff
  v_lshrrev_b32 v13, 4, {VL}       ; g4
  s_and_b32 s37, s36, 1            ; kh
  s_lshr_b32 s38, s36, 1           ; dh""")
stamp(1)
h_unit_index("s45")
a(f"""  s_mul_i32 s46, s45, 9363
  s_lshr_b32 s46, s46, 16          ; cbh = u1/7
  s_mul_i32 s47, s46, 7
  s_sub_u32 s47, s45, s47          ; kp = u1%7
  s_min_u32 s46, s46, 27
  s_lshl_b32 s46, s46, 7
  s_mul_i32 s47, s47, {64*3584}
  s_add_u32 s46, s46, s47
  s_mul_i32 s47, s36, {8*3584}
  s_add_u32 s46, s46, s47
  s_cmp_lt_u32 s45, 196
  s_cselect_b32 s45, 0, 0x40000000
  v_mul_u32_u24 v18, 3584, v8
  v_add3_u32 v18, v18, v11, s45
  s_lshl_b32 s47, s36, 10
  s_add_u32 s47, s47, {RC}
""")
srd(52, 16, SZ['w1'])
for k in range(2):
    a(f"  s_add_u32 m0, s47, {k*4096}")
    a(f"  s_add_u32 s45, s46, {k*4*8*3584}")
    dma("v18", 52, "s45")
a(f"""  v_xor_b32 v12, v9, v10
  v_lshlrev_b32 v12, 4, v12
  s_and_b32 s39, s29, 1            ; b
  s_lshr_b32 s40, s29, 1           ; s (0..15)
  s_lshl_b32 s41, s39, 3
  s_add_u32 s41, s41, s28          ; b*8+g
  s_lshl_b32 s41, s41, 21          ; *4096*512
  s_lshl_b32 s42, s40, 15          ; s*64*512
  s_add_u32 s41, s41, s42
  s_lshl_b32 s42, s37, 14          ; kh*32*512
  s_add_u32 s41, s41, s42
  s_lshl_b32 s42, s38, 8           ; dh*256
  s_add_u32 s41, s41, s42
  s_add_u32 s41, s41, {3072*512}
  s_lshl_b32 s43, s38, 14
  s_lshl_b32 s42, s37, 12
  s_add_u32 s43, s43, s42
  v_lshlrev_b32 v18, 9, v8         ; row*512
  v_add_u32 v19, v18, v12
  v_xor_b32 v20, 64, v19
  v_add_u32 v21, v18, v11          ; V voffset
""")
srd(44, 6, SZ['k'])
srd(48, 8, SZ['v'])
for c2 in range(2):
    for jj in range(4):
        a(f"  s_add_u32 m0, s43, {KBUF + c2*8192 + jj*1024}")
        a(f"  s_add_u32 s42, s41, {c2*128 + jj*4096}")
        dma("v20" if jj & 1 else "v19", 44, "s42")
tr_lane_setup()
a(f"""  ; q projection tile nb = v : addresses
  v_xor_b32 v24, s36, v16
  v_lshl_add_u32 v24, v24, 5, v15
  v_add_u32 v24, {RA}, v24
  v_and_b32 v25, 1, {VL}
  v_mul_u32_u24 v25, 896, v25
  v_lshl_add_u32 v25, v13, 3, v25
  s_lshr_b32 s42, s29, 3           ; kp
  s_mul_i32 s45, s42, 224
  s_add_u32 s45, s45, {XB}
  v_add_u32 v25, s45, v25
  s_lshl_b32 s45, s28, 14
  s_lshl_b32 s42, s42, 12
  s_add_u32 s45, s45, s42
  s_and_b32 s42, s29, 7
  s_lshl_b32 s42, s42, 8
  s_add_u32 s45, s45, s42
  s_lshl_b32 s42, s36, 6
  s_add_u32 s45, s45, s42
  s_add_u32 s45, s45, {WS_QP}
  v_lshlrev_b32 v26, 2, {VL}
  v_add_u32 v26, s45, v26
""")
a("  s_waitcnt lgkmcnt(0)")
tau_setup()
a("  s_waitcnt vmcnt(10)")
a("  s_barrier")
for st in range(3):
    a(f"  ds_read2_b64 v[{32+4*st}:{35+4*st}], v25 offset0:{8*st} offset1:{8*st+4}")
    a(f"  ds_read_b64_tr_b16 v[{48+4*st}:{49+4*st}], v24 offset:{st*4096}")
    a(f"  ds_read_b64_tr_b16 v[{50+4*st}:{51+4*st}], v24 offset:{st*4096+2048}")
a(f"  ds_read_b64 v[44:45], v25 offset:192")
a(f"  ds_read_b64_tr_b16 v[60:61], v24 offset:{3*4096}")
for st in range(3):
    a(f"  s_waitcnt lgkmcnt({8 - 3*st})")
    c = "0" if st == 0 else "v[64:67]"
    a(f"  v_mfma_f32_16x16x32_bf16 v[64:67], v[{32+4*st}:{35+4*st}], v[{48+4*st}:{51+4*st}], {c}")
a("  s_waitcnt lgkmcnt(0)")
a("  v_mfma_f32_16x16x16_bf16 v[68:71], v[44:45], v[60:61], 0")
a("  s_mov_b64 exec, 0xffff")
a("  s_nop 6")
a("  v_add_f32 v64, v64, v68")
a("  v_add_f32 v65, v65, v69")
tagit("v64", "v64")
tagit("v65", "v65")
a(f"""  global_store_dword v26, v64, s[26:27] sc1
  global_store_dword v26, v65, s[26:27] offset:2048 sc1
  s_mov_b64 exec, -1
""")
stamp(14)
a("  s_waitcnt vmcnt(10)")
a("  s_barrier")
for c2 in range(2):
    for jj in range(4):
        a(f"  s_add_u32 m0, s43, {VBUF + c2*8192 + jj*1024}")
        a(f"  s_add_u32 s42, s41, {c2*128 + jj*4096}")
        dma("v21", 48, "s42")
stamp(2)
a(f"""  ; K operand address: key*128 + (g4 ^ ((key>>1)&7))*16 + kh*4096
  v_and_b32 v22, 15, {VL}
  v_bfe_u32 v23, {VL}, 1, 3
  v_xor_b32 v23, v23, v13
  v_lshlrev_b32 v23, 4, v23
  v_lshl_add_u32 v22, v22, 7, v23
  s_lshl_b32 s42, s37, 12
  v_add_u32 v22, s42, v22
  v_xor_b32 v23, 64, v22
  s_add_u32 s42, s43, {VBUF}
""")
for nb in range(4):
    a(f"  v_xor_b32 v{24+nb}, {nb}, v16")
    a(f"  v_lshl_add_u32 v{24+nb}, v{24+nb}, 5, v15")
    a(f"  v_add_u32 v{24+nb}, s42, v{24+nb}")
a(f"""  ; q operand address: QB + (l&1)*576 + g4*16
  v_and_b32 v28, 1, {VL}
  v_mul_u32_u24 v28, 576, v28
  v_lshl_add_u32 v28, v13, 4, v28
  v_add_u32 v28, {QB}, v28
  s_lshl_b32 s42, s28, 14
  s_lshl_b32 s45, s39, 11
  s_add_u32 s42, s42, s45
  s_lshl_b32 s45, s37, 10
  s_add_u32 s42, s42, s45
  s_lshl_b32 s45, s38, 9
  s_add_u32 s42, s42, s45
  s_add_u32 s42, s42, {WS_QP}
  v_lshrrev_b32 v29, 5, {VL}       ; kpl
  v_and_b32 v30, 31, {VL}          ; c
  v_lshlrev_b32 v31, 12, v29
  v_lshl_add_u32 v31, v30, 4, v31
  v_add_u32 v51, s42, v31
  v_add_u32 v52, 8192, v51
  s_lshl_b32 s42, s28, 7
  s_add_u32 s42, s42, {WS_XID}
  v_lshl_add_u32 v50, v30, 2, s42
  s_mul_i32 s42, s37, 576
  s_lshl_b32 s45, s38, 8
  s_add_u32 s42, s42, s45
  s_add_u32 s42, s42, {QB}
  v_lshlrev_b32 v30, 3, v30
  v_lshl_add_u32 v30, v29, 2, v30
  v_add_u32 v53, s42, v30
  s_lshl_b32 s42, s28, 1
  s_add_u32 s42, s42, s39
  s_lshl_b32 s42, s42, 5
  s_lshl_b32 s45, s40, 1
  s_add_u32 s42, s42, s45
  s_add_u32 s42, s42, s37
  s_mul_i32 s42, s42, {OPS}
  s_lshl_b32 s45, s38, 10
  s_add_u32 s42, s42, s45
  s_add_u32 s42, s42, {WS_OP}
  v_lshlrev_b32 v54, 3, {VL}
  v_add_u32 v54, s42, v54
  s_lshl_b32 s42, s28, 1
  s_add_u32 s42, s42, s38
  s_mul_i32 s33, s42, {32*OPS}
  s_lshl_b32 s56, s29, 7
  s_add_u32 s33, s33, s56
  s_lshl_b32 s56, s37, 6
  s_add_u32 s33, s33, s56
  s_add_u32 s33, s33, {WS_OP}
  v_lshrrev_b32 v6, 2, {VL}       ; s16
  v_mul_u32_u24 v7, {OPS}, v6
  v_and_b32 v62, 3, {VL}
  v_lshl_add_u32 v7, v62, 4, v7
  v_add_u32 v62, s33, v7
  v_add_u32 v63, {16*OPS}, v62        ; s16+16
  v_mov_b32 v46, 0x3f803f80
  v_mov_b32 v47, 0x3f803f80
  v_mov_b32 v48, 0x3f803f80
  v_mov_b32 v49, 0x3f803f80
  v_and_b32 v55, 1, {VL}
  v_cmp_eq_u32 s[58:59], 1, v55
""")
xid_value("s34")
a("  s_mov_b32 s35, 0xffffff")
a("  s_waitcnt vmcnt(8)")
stamp(3)
a("  s_barrier")
for tt in range(2):
    for t in range(8):
        r = 64 + (tt*8 + t)*4
        a(f"  ds_read_b128 v[{r}:{r+3}], v{23 if t & 1 else 22} offset:{KBUF + (t>>1)*8192 + tt*2048}")

def w_weight_setup():
    srd(44, 12, SZ['wo'])
    srd(52, 18, SZ['w2'])
    a(f"""  s_lshl_b32 s42, s28, 9
  s_lshl_b32 s61, s29, 4
  s_add_u32 s42, s42, s61          ; g*512 + 16j
  s_lshl_b32 s61, s38, 8
  s_add_u32 s42, s42, s61          ; + h*256
  s_lshl_b32 s61, s37, 3
  s_add_u32 s42, s42, s61          ; + half*8
  s_mul_i32 s61, s42, 896
  s_lshl_b32 s60, s36, 10
  s_add_u32 s60, s60, {RA}
  v_mul_u32_u24 v19, 896, v8
  v_add_u32 v19, v19, v11
  s_lshl_b32 s33, s28, 4
  s_add_u32 s33, s33, s29          ; u
  s_min_u32 s42, s33, 111
  s_lshl_b32 s42, s42, 4
  s_lshl_b32 s62, s37, 3
  s_add_u32 s42, s42, s62          ; 16u + q*8   (q = v&1)
  s_mul_i32 s42, s42, 896
  s_lshl_b32 s62, s38, 7
  s_add_u32 s62, s42, s62          ; + (v>>1)*128
  s_cmp_lt_u32 s33, 112
  s_cselect_b32 s33, 0, 0x40000000
  v_add_u32 v20, s33, v19
  s_lshl_b32 s63, s38, 11
  s_lshl_b32 s33, s37, 10
  s_add_u32 s63, s63, s33
  s_add_u32 s63, s63, {RB}         ; RB + (v>>1)*2048 + q*1024
""")

def w_weight_loads(tagname):
    for cb in range(7):
        a(f"  s_add_u32 m0, s60, {cb*4096}")
        a(f"  s_add_u32 s33, s61, {cb*128}")
        dma("v19", 44, "s33")
    for k in range(4):
        if k == 3:
            a("  s_cmp_lg_u32 s38, 0")
            a(f"  s_cbranch_scc1 L_w2_done{tagname}")
        a(f"  s_add_u32 m0, s63, {k*4096}")
        a(f"  s_add_u32 s33, s62, {k*256}")
        dma("v20", 52, "s33")
    a(f"L_w2_done{tagname}:")

def q_loads():
    a("  global_load_dwordx4 v[32:35], v51, s[26:27] sc1")
    a("  global_load_dwordx4 v[36:39], v52, s[26:27] sc1")
    a("  global_load_dword v41, v50, s[26:27] sc1")

a("  s_cmp_lt_u32 s29, 16")
a("  s_cbranch_scc0 L_q_p")
w_weight_setup()
if OPT['wpos'] == 'first':
    pass
if OPT['wpos'] == 'q':
    a(f"  s_waitcnt vmcnt({OPT['qwait']})")
    stamp(4)
    q_loads()
    if OPT['a2']:
        a("  s_barrier")
    w_weight_loads("a")
    if OPT['opre']:
        a("  global_load_dword v2, v62, s[26:27] sc1")
        a("  global_load_dword v3, v63, s[26:27] sc1")
    a("  s_mov_b32 s33, 0")
    NY = 12 if OPT['opre'] else 10
    a("  s_cmp_lg_u32 s38, 0")
    a("  s_cbranch_scc1 L_qw10")
    a(f"  s_waitcnt vmcnt({NY+1})")
    a("  s_branch L_qchk")
    a("L_qw10:")
    a(f"  s_waitcnt vmcnt({NY})")
    a("  s_branch L_qchk")
a(f"""L_q_p:
  s_mov_b32 s33, 0
  s_waitcnt vmcnt({OPT['qwait']})
""")
stamp(4)
a("L_qpoll:")
q_loads()
a("  s_waitcnt vmcnt(0)")
a("L_qchk:")
check_regs("v40", range(32, 40))
a("  v_xor_b32 v41, s34, v41")
a("  v_and_b32 v40, 0xff, v40")
a("  v_and_or_b32 v40, v41, s35, v40")
poll_end("v40", "L_qpoll", "L_qok", masked=True)
stamp(5)
rec(13, "s33")
if OPT['wpos'] == 'mid':
    a("  s_cmp_lt_u32 s29, 16")
    a("  s_cbranch_scc0 L_nomid")
    w_weight_loads("m")
    a("L_nomid:")
for nbk in range(8):
    r = 160 + 4*nbk
    off = (nbk >> 2)*8192
    a(f"  ds_read_b64_tr_b16 v[{r}:{r+1}], v{24 + (nbk & 3)} offset:{off}")
    a(f"  ds_read_b64_tr_b16 v[{r+2}:{r+3}], v{24 + (nbk & 3)} offset:{off + 2048}")
a(f"""  v_add_f32 v32, v32, v36
  v_add_f32 v33, v33, v37
  v_add_f32 v34, v34, v38
  v_add_f32 v35, v35, v39
  v_cmp_ne_u32 vcc, 0, v41
  s_nop 0
  v_permlane32_swap_b32 v32, v34
  v_permlane32_swap_b32 v33, v35
  v_add_f32 v32, v32, v34
  v_add_f32 v33, v33, v35
  v_cvt_pk_bf16_f32 v32, v32, v33
  ds_write_b32 v53, v32
  s_cmp_eq_u64 vcc, 0
  s_cselect_b32 s35, {1 if OPT['fast'] else 0}, 0
  s_waitcnt lgkmcnt(0)
  s_barrier
""")
stamp(6)
for t in range(8):
    a(f"  ds_read_b128 v[{128+4*t}:{131+4*t}], v28 offset:{64*t}")
a(f"  s_mov_b32 s42, {C_LOG2E_16:#x}")
for t in range(8):
    a(f"  s_waitcnt lgkmcnt({7-t})")
    for tt in range(2):
        kr = 64 + (tt*8 + t)*4
        c = "0" if t == 0 else f"v[{32+4*tt}:{35+4*tt}]"
        a(f"  v_mfma_f32_16x16x32_bf16 v[{32+4*tt}:{35+4*tt}], v[{kr}:{kr+3}], v[{128+4*t}:{131+4*t}], {c}")
a(f"""  s_nop 6
  v_max3_f32 v44, v32, v33, v34
  v_max3_f32 v45, v36, v37, v38
  v_max3_f32 v44, v44, v35, v39
  v_max_f32 v44, v44, v45
  v_mov_b32 v45, v44
  s_nop 1
  v_permlane16_swap_b32 v44, v45
  v_max_f32 v44, v44, v45
  v_mov_b32 v45, v44
  s_nop 1
  v_permlane32_swap_b32 v44, v45
  v_max_f32 v44, v44, v45
  v_mul_f32 v44, s42, v44
""")
for r in range(8):
    a(f"  v_fma_f32 v{32+r}, v{32+r}, s42, -v44")
for r in range(8):
    a(f"  v_exp_f32 v{32+r}, v{32+r}")
a("  s_nop 0")
for r in range(4):
    a(f"  v_cvt_pk_bf16_f32 v{40+r}, v{32+2*r}, v{33+2*r}")
a("  s_nop 1")
a("  v_mfma_f32_16x16x32_bf16 v[224:227], v[40:43], v[46:49], 0")
for nbk in range(8):
    a(f"  v_mfma_f32_16x16x32_bf16 v[{192+4*nbk}:{195+4*nbk}], v[40:43], v[{160+4*nbk}:{163+4*nbk}], 0")
a(f"""  v_cndmask_b32 v45, v224, v225, s[58:59]
  v_rcp_f32 v56, v224
  v_rcp_f32 v57, v225
  v_log_f32 v45, v45
  s_cmp_eq_u32 s35, 1
  v_add_f32 v45, v45, v44
""")
tagit("v59", "v45")
a("  v_mov_b32 v61, v59")
for q in range(2):
    for h in range(2):
        for k in range(4):
            a(f"  v_mul_f32_dpp v{32+2*q+h}, v{192+4*(4*q+k)+h}, v{56+h} quad_perm:[0,1,2,3] row_mask:{1<<k:#x} bank_mask:0xf")
    a(f"  v_cvt_pk_bf16_f32 v{58+2*q}, v{32+2*q}, v{33+2*q}")
a(f"""  s_cbranch_scc1 L_pub_local
  global_store_dwordx2 v54, v[58:59], s[26:27] sc1
  global_store_dwordx2 v54, v[60:61], s[26:27] offset:512 sc1
  s_branch L_pub_done
L_pub_local:                       ; every reader shares this die's L2
  global_store_dwordx2 v54, v[58:59], s[26:27]
  global_store_dwordx2 v54, v[60:61], s[26:27] offset:512
L_pub_done:
""")
stamp(7)
a("  s_cmp_lt_u32 s29, 16")
a("  s_cbranch_scc1 L_wstage")
a("  s_barrier")
dump_stamps()
a("  s_endpgm")

a("L_wstage:")
if OPT['wpos'] == 'late':
    w_weight_loads("l")
a(f"""  v_xor_b32 v24, s36, v16
  v_lshl_add_u32 v24, v24, 5, v15
  v_add_u32 v25, {RB}, v24
  v_add_u32 v24, {RA}, v24
  v_and_b32 v26, 1, {VL}
  v_lshlrev_b32 v27, 5, v26
  v_lshl_add_u32 v27, v13, 3, v27
  v_add_u32 v27, {HV}, v27
  v_lshlrev_b32 v28, 6, v26
  v_lshl_add_u32 v28, v13, 3, v28
  v_add_u32 v28, {OV}, v28
  v_and_b32 v54, 3, {VL}
  v_lshlrev_b32 v54, 2, v54
  v_and_b32 v55, 1, v13
  v_lshl_add_u32 v54, v55, 5, v54
  v_lshrrev_b32 v55, 1, v13
  v_lshl_add_u32 v54, v55, 1, v54
  s_lshl_b32 s42, s38, 6
  s_lshl_b32 s45, s37, 4
  s_add_u32 s42, s42, s45
  s_add_u32 s42, s42, {OV}
  v_add_u32 v54, s42, v54
  s_lshl_b32 s42, s28, 4
  s_add_u32 s42, s42, s29
  s_mul_i32 s42, s42, {APS}
  s_lshl_b32 s45, s36, {8 if OPT['appad'] else 7}
  s_add_u32 s42, s42, s45
  s_add_u32 s42, s42, {WS_AP}
  v_lshlrev_b32 v55, 3, {VL}
  v_add_u32 v55, s42, v55
  v_bfe_u32 v56, {VL}, 3, 1
  v_lshl_add_u32 v56, v56, 6, v55
  v_add_u32 v57, 4096, v56
  s_lshl_b32 s42, s38, 2
  s_add_u32 s42, s42, {GT}
  v_mov_b32 v29, s42
  ds_read_b32 v50, v29
  s_mov_b32 s56, 0xf000f000
  s_mov_b32 s57, 0xf000f000
  s_mov_b32 s33, 0
  s_waitcnt vmcnt(0) lgkmcnt(0)
""")
if OPT['early']:
    a("""  global_load_dwordx4 v[32:35], v62, s[26:27] sc1
  global_load_dwordx4 v[36:39], v63, s[26:27] sc1""")
a("  s_barrier")
stamp(8)
if not OPT['early']:
    a("""  global_load_dwordx4 v[32:35], v62, s[26:27] sc1
  global_load_dwordx4 v[36:39], v63, s[26:27] sc1""")
a("  ds_read_b64 v[106:107], v27")
for cb in range(7):
    a(f"  ds_read_b64_tr_b16 v[{92+2*cb}:{93+2*cb}], v25 offset:{cb*2048}")
for cb in range(7):
    a(f"  ds_read_b64_tr_b16 v[{64+4*cb}:{65+4*cb}], v24 offset:{cb*4096}")
    a(f"  ds_read_b64_tr_b16 v[{66+4*cb}:{67+4*cb}], v24 offset:{cb*4096+2048}")
a("  s_waitcnt vmcnt(0)")
a("  s_branch L_ochk")
a(f"""L_opoll:
  global_load_dwordx4 v[32:35], v62, s[26:27] sc1
  global_load_dwordx4 v[36:39], v63, s[26:27] sc1
  s_waitcnt vmcnt(0)
L_ochk:
""")
check_regs("v48", [33, 35, 37, 39])
poll_end("v48", "L_opoll", "L_ook")
stamp(9)
rec(12, "s33")
a(f"""  v_max_f32 v52, v33, v37
  v_max_f32 v53, v35, v39
  v_lshlrev_b32 v40, 16, v32       ; A: d0h0
  v_and_b32 v41, 0xffff0000, v32   ;    d0h1
  v_permlane16_swap_b32 v52, v53
  v_lshlrev_b32 v42, 16, v34       ;    d1h0
  v_and_b32 v43, 0xffff0000, v34   ;    d1h1
  v_max_f32 v52, v52, v53          ; rows: h0(01) h1(01) h0(23) h1(23)
  v_mov_b32 v53, v52
  v_lshlrev_b32 v44, 16, v36       ; B
  v_and_b32 v45, 0xffff0000, v36
  v_permlane32_swap_b32 v52, v53
  v_max_f32 v52, v52, v53
  v_lshlrev_b32 v46, 16, v38
  v_and_b32 v47, 0xffff0000, v38
  v_max_f32_dpp v52, v52, v52 row_shr:4 row_mask:0xf bank_mask:0xf
  s_nop 1
  v_max_f32_dpp v52, v52, v52 row_shr:8 row_mask:0xf bank_mask:0xf
  s_nop 0
  v_readlane_b32 s42, v52, 15
  v_readlane_b32 s45, v52, 31
  s_nop 1
  v_subrev_f32 v33, s42, v33
  v_subrev_f32 v37, s42, v37
  v_subrev_f32 v35, s45, v35
  v_subrev_f32 v39, s45, v39
  v_exp_f32 v33, v33               ; w A h0
  v_exp_f32 v37, v37               ; w B h0
  v_exp_f32 v35, v35               ; w A h1
  v_exp_f32 v39, v39               ; w B h1
  s_nop 0
  v_mul_f32 v40, v40, v33
  v_mul_f32 v41, v41, v35
  v_mul_f32 v42, v42, v33
  v_mul_f32 v43, v43, v35
  v_fmac_f32 v40, v44, v37
  v_fmac_f32 v41, v45, v39
  v_fmac_f32 v42, v46, v37
  v_fmac_f32 v43, v47, v39
  v_add_f32 v52, v33, v37          ; den h0
  v_add_f32 v53, v35, v39          ; den h1
  s_nop 0
  v_permlane16_swap_b32 v40, v41
  v_permlane16_swap_b32 v42, v43
  v_permlane16_swap_b32 v52, v53
  v_add_f32 v40, v40, v41
  v_add_f32 v42, v42, v43
  v_add_f32 v52, v52, v53
  v_mov_b32 v53, v52
  s_nop 1
  v_permlane32_swap_b32 v40, v42
  v_permlane32_swap_b32 v52, v53
  v_add_f32 v40, v40, v42
  v_add_f32 v52, v52, v53          ; rows h0 h1 h0 h1
  s_nop 0
  v_add_f32_dpp v40, v40, v40 row_shr:4 row_mask:0xf bank_mask:0xf
  v_add_f32_dpp v52, v52, v52 row_shr:4 row_mask:0xf bank_mask:0xf
  s_nop 0
  v_add_f32_dpp v40, v40, v40 row_shr:8 row_mask:0xf bank_mask:0xf
  v_add_f32_dpp v52, v52, v52 row_shr:8 row_mask:0xf bank_mask:0xf
  v_mul_f32 v40, v40, v50          ; * gate
  v_rcp_f32 v52, v52
  s_mov_b64 exec, s[56:57]
  v_mul_f32 v40, v40, v52
  v_cvt_pk_bf16_f32 v40, v40, v40
  ds_write_b16 v54, v40
  s_mov_b64 exec, -1
  s_waitcnt lgkmcnt(1)
""")
for cb in range(7):
    a(f"  v_mfma_f32_16x16x16_bf16 v[{110+4*cb}:{113+4*cb}], v[106:107], v[{92+2*cb}:{93+2*cb}], 0")
a(f"""  s_waitcnt lgkmcnt(0)
  s_barrier
  ds_read2_b64 v[40:43], v28 offset0:0 offset1:4
  s_waitcnt lgkmcnt(0)
""")
for cb in range(7):
    a(f"  v_mfma_f32_16x16x32_bf16 v[{110+4*cb}:{113+4*cb}], v[40:43], v[{64+4*cb}:{67+4*cb}], v[{110+4*cb}:{113+4*cb}]")
a("  s_mov_b64 exec, 0xffff")
a("  s_nop 0")
for cb in range(7):
    r = 110 + 4*cb
    tagit(f"v{r}", f"v{r}")
    if OPT['appad']:
        a(f"  global_store_dwordx2 v{56 if cb < 4 else 57}, v[{r}:{r+1}], s[26:27] offset:{1024*(cb % 4)} sc1")
    else:
        a(f"  global_store_dwordx2 v55, v[{r}:{r+1}], s[26:27] offset:{512*cb} sc1")
stamp(10)
if OPT['apack']:
    a("  s_waitcnt vmcnt(0)")
    stamp(11)
a("  s_mov_b64 exec, -1")
dump_stamps()
a("  s_endpgm")

a("L_aux0:")
if STAMP in (1, 2):
    for k in range(1, 16):
        a(f"  s_mov_b32 s{64+2*k}, 0")
a(f"""  s_lshr_b32 s29, s2, 3            ; j
  s_mov_b32 s32, 0xff
  v_lshrrev_b32 v13, 4, {VL}       ; g4
  v_lshlrev_b32 v18, 4, {VL}
  v_add_u32 v21, 1024, v18
  s_waitcnt lgkmcnt(0)
  s_load_dword s31, s[26:27], {WS_E}
""")
stamp(1)
srd(52, 4, SZ['x'])
a(f"""  s_mov_b32 m0, {XB}
  s_cmp_ge_u32 s29, 16
  buffer_load_dwordx4 v18, s[52:55], 0 offen lds
  s_mov_b32 m0, {XB+1024}
  s_nop 0
  buffer_load_dwordx4 v21, s[52:55], 0 offen lds
  s_cbranch_scc1 L_aux
  s_mov_b32 s56, -1
  s_mov_b32 s57, 0x00ffffff
  s_mov_b64 exec, s[56:57]
  global_load_dwordx4 v[70:73], v18, s[4:5]
  global_load_dwordx4 v[74:77], v18, s[4:5] offset:896
  global_load_dwordx4 v[78:81], v18, s[20:21]
  s_mov_b64 exec, -1
""")
a("L_aux:")
tr_lane_setup()
for nb in range(4):
    a(f"  v_xor_b32 v{24+nb}, {nb}, v16")
    a(f"  v_lshl_add_u32 v{24+nb}, v{24+nb}, 5, v15")
    a(f"  v_add_u32 v{24+nb}, {RC}, v{24+nb}")
h_unit_index("s39")
a(f"""  s_mul_i32 s40, s39, 9363
  s_lshr_b32 s40, s40, 16          ; cbh
  s_mul_i32 s41, s40, 7
  s_sub_u32 s41, s39, s41          ; kp
  v_and_b32 v28, 1, {VL}
  v_mul_u32_u24 v28, 896, v28
  v_lshl_add_u32 v28, v13, 3, v28
  s_lshl_b32 s42, s41, 7
  s_add_u32 s42, s42, {XB}
  v_add_u32 v28, s42, v28
  s_mul_i32 s42, s41, {2*7168}
  s_lshl_b32 s43, s40, 8
  s_add_u32 s42, s42, s43
  s_add_u32 s42, s42, {WS_HP}
  v_lshlrev_b32 v31, 2, {VL}
  v_add_u32 v31, s42, v31
  v_add_u32 v30, 7168, v31
  s_waitcnt lgkmcnt(0)
""")
tau_setup()
xid_value("s34")
a(f"""  s_lshl_b32 s42, s28, 7
  s_lshl_b32 s43, s29, 2
  s_add_u32 s42, s42, s43
  s_add_u32 s42, s42, {WS_XID}
  v_mov_b32 v6, s42
  v_mov_b32 v7, s34
  s_waitcnt vmcnt(0)
  s_mov_b64 exec, 1
  global_store_dword v6, v7, s[26:27] sc1
  s_mov_b64 exec, -1
  s_barrier                        ; barrier Q
  s_barrier                        ; barrier Q2
""")
stamp(2)
if OPT['tlb']:
    a(f"""  s_lshl_b32 s42, s28, 9
  s_lshl_b32 s43, s29, 4
  s_add_u32 s42, s42, s43
  s_mul_i32 s42, s42, 896
  v_mov_b32 v6, s42
  v_mov_b32 v7, 0
  s_mov_b64 exec, 1
  global_load_dword v2, v6, s[12:13] nt
  global_load_dword v2, v7, s[18:19] offset:64 nt
  global_load_dword v2, v7, s[22:23] nt
  s_mov_b64 exec, -1
""")
a("  s_cmp_ge_u32 s39, 196")
a("  s_cbranch_scc1 L_nohpub")
for st in range(2):
    a(f"  ds_read2_b64 v[{48+4*st}:{51+4*st}], v28 offset0:{8*st} offset1:{8*st+4}")
    for nb in range(4):
        r = 96 + 16*st + 4*nb
        a(f"  ds_read_b64_tr_b16 v[{r}:{r+1}], v{24+nb} offset:{st*4096}")
        a(f"  ds_read_b64_tr_b16 v[{r+2}:{r+3}], v{24+nb} offset:{st*4096+2048}")
for st in range(2):
    a(f"  s_waitcnt lgkmcnt({9 - 9*st})")
    for nb in range(4):
        r = 96 + 16*st + 4*nb
        c = "0" if st == 0 else f"v[{32+4*nb}:{35+4*nb}]"
        a(f"  v_mfma_f32_16x16x32_bf16 v[{32+4*nb}:{35+4*nb}], v[{48+4*st}:{51+4*st}], v[{r}:{r+3}], {c}")
a("  s_nop 7")
for r in range(2):
    a(f"  v_permlane16_swap_b32 v{32+r}, v{36+r}")
    a(f"  v_permlane16_swap_b32 v{40+r}, v{44+r}")
a("  s_nop 1")
for r in range(2):
    a(f"  v_permlane32_swap_b32 v{32+r}, v{40+r}")
a("  s_nop 1")
tagit("v32", "v32")
tagit("v33", "v33")
a("""  global_store_dword v31, v32, s[26:27] sc1
  global_store_dword v30, v33, s[26:27] sc1
L_nohpub:""")
stamp(5)
a("  s_cmp_ge_u32 s29, 16")
a("  s_cbranch_scc1 L_aux_a")
a("  v_mov_b32 v44, 0")
a("  v_mov_b32 v45, 0")
for r in range(4):
    a(f"  v_lshlrev_b32 v46, 16, v{78+r}")
    a(f"  v_and_b32 v47, 0xffff0000, v{78+r}")
    for b in range(2):
        a(f"  v_lshlrev_b32 v48, 16, v{70+4*b+r}")
        a(f"  v_and_b32 v49, 0xffff0000, v{70+4*b+r}")
        a(f"  v_mul_f32 v48, v48, v46")
        a(f"  v_mul_f32 v49, v49, v47")
        a(f"  v_cvt_pk_bf16_f32 v48, v48, v49")
        a(f"  v_lshlrev_b32 v49, 16, v48")
        a(f"  v_and_b32 v48, 0xffff0000, v48")
        a(f"  v_add_f32 v{44+b}, v{44+b}, v49")
        a(f"  v_add_f32 v{44+b}, v{44+b}, v48")
a(f"""  v_cmp_gt_u32 vcc, 56, {VL}
  s_nop 1
  v_cndmask_b32 v44, 0, v44, vcc
  v_cndmask_b32 v45, 0, v45, vcc
  s_nop 1
""")
for sh in (1, 2, 4, 8):
    a(f"  v_add_f32_dpp v44, v44, v44 row_shr:{sh} row_mask:0xf bank_mask:0xf")
    a(f"  v_add_f32_dpp v45, v45, v45 row_shr:{sh} row_mask:0xf bank_mask:0xf")
    a("  s_nop 0")
a(f"""  v_add_f32_dpp v44, v44, v44 row_bcast:15 row_mask:0xa bank_mask:0xf
  v_add_f32_dpp v45, v45, v45 row_bcast:15 row_mask:0xa bank_mask:0xf
  s_nop 0
  v_add_f32_dpp v44, v44, v44 row_bcast:31 row_mask:0xc bank_mask:0xf
  v_add_f32_dpp v45, v45, v45 row_bcast:31 row_mask:0xc bank_mask:0xf
  s_nop 0
  v_readlane_b32 s42, v44, 63
  v_readlane_b32 s43, v45, 63
  s_nop 1
  v_and_b32 v46, 1, {VL}
  v_cmp_eq_u32 vcc, 0, v46
  v_mov_b32 v47, s43
  v_mov_b32 v48, s42
  v_cndmask_b32 v47, v47, v48, vcc
  v_mul_f32 v47, 0xbfb8aa3b, v47   ; -log2e * z
  v_exp_f32 v47, v47
  s_nop 0
  v_add_f32 v47, 1.0, v47
  v_rcp_f32 v47, v47               ; g[b = lane&1]
  s_nop 0
  v_sub_f32 v82, 1.0, v47          ; 1-g
  v_lshlrev_b32 v46, 2, v46
  v_add_u32 v46, {GT}, v46
  s_mov_b64 exec, 3
  ds_write_b32 v46, v47
  s_mov_b64 exec, -1
  s_waitcnt lgkmcnt(0)
""")
stamp(3)
a("L_aux_a:")
a("  s_barrier")
a("  s_cmp_lt_u32 s29, 16")
a("  s_cbranch_scc1 L_aux_w")
a("  s_cmp_lt_u32 s29, 23")
a("  s_cbranch_scc1 L_final")
dump_stamps()
a("  s_endpgm")

a(f"""L_final:
  s_sub_u32 s36, s29, 16           ; p
  s_lshl_b32 s37, s36, 3
  s_add_u32 s37, s37, s28          ; c
  v_lshrrev_b32 v29, 2, {VL}       ; u16
  v_mul_u32_u24 v30, {APS}, v29
  v_and_b32 v31, 3, {VL}
  v_lshl_add_u32 v30, v31, 4, v30
  s_lshl_b32 s42, s37, {7 if OPT['appad'] else 6}
  s_add_u32 s42, s42, {WS_AP}
  v_add_u32 v30, s42, v30
""")
for k in range(8):
    a(f"  v_add_u32 v{16+k}, {k*16*APS}, v30")
a(f"""  ; out + b*896 + (8c + 2*c4 + (r>>1))*2
  v_and_b32 v28, 1, v13
  v_mul_u32_u24 v28, 896, v28
  v_lshl_add_u32 v28, v31, 2, v28
  v_lshrrev_b32 v29, 1, v13
  v_lshl_add_u32 v28, v29, 1, v28
  s_lshl_b32 s42, s37, 4
  v_add_u32 v28, s42, v28
  s_mov_b32 s56, 0xf000f000
  s_mov_b32 s57, 0xf000f000
  v_mov_b32 v29, {WS_E}
  s_barrier                        ; barrier B
  s_barrier                        ; barrier C
  s_mov_b32 s33, 0
""")
if OPT['fdelay']:
    a(f"""L_fd:
  s_memrealtime s[60:61]
  s_waitcnt lgkmcnt(0)
  s_sub_u32 s62, s60, s64
  s_cmp_lt_u32 s62, {OPT['fdelay']}
  s_cbranch_scc1 L_fd""")
stamp(8)
NS = OPT['fsets']
def fbase(i): return 32 + 32*i
def fissue(i):
    for k in range(8):
        a(f"  global_load_dwordx4 v[{fbase(i)+4*k}:{fbase(i)+4*k+3}], v{16+k}, s[26:27] sc1")
for i in range(NS):
    fissue(i)
a("L_fpoll:")
for i in range(NS):
    a(f"  s_waitcnt vmcnt({8*(NS-1)})")
    check_regs("v14", [fbase(i)+4*k+q for k in range(8) for q in (0, 2)])
    a("  v_and_b32 v14, 0xff, v14")
    a("  v_cmp_ne_u32 vcc, 0, v14")
    a("  s_add_u32 s33, s33, 1")
    a(f"  s_cmp_gt_u32 s33, {OPT['spin']}")
    a(f"  s_cbranch_scc1 L_fok{i}")
    a(f"  s_cbranch_vccz L_fok{i}")
    if OPT['fsleep']:
        a(f"  s_sleep {OPT['fsleep']}")
    fissue(i)
a("  s_branch L_fpoll")
TB = 144
for i in range(NS):
    a(f"L_fok{i}:")
    for k in range(4):
        for h in range(2):
            x = fbase(i) + 8*k + 2*h
            a(f"  v_pk_add_f32 v[{TB+4*k+2*h}:{TB+4*k+2*h+1}], v[{x}:{x+1}], v[{x+4}:{x+5}]")
    if i < NS-1:
        a("  s_branch L_fsum")
a("L_fsum:")
stamp(9)
rec(12, "s33")
for h in range(2):
    a(f"  v_pk_add_f32 v[{TB+2*h}:{TB+2*h+1}], v[{TB+2*h}:{TB+2*h+1}], v[{TB+4+2*h}:{TB+5+2*h}]")
    a(f"  v_pk_add_f32 v[{TB+8+2*h}:{TB+9+2*h}], v[{TB+8+2*h}:{TB+9+2*h}], v[{TB+12+2*h}:{TB+13+2*h}]")
for h in range(2):
    a(f"  v_pk_add_f32 v[{160+2*h}:{161+2*h}], v[{TB+2*h}:{TB+2*h+1}], v[{TB+8+2*h}:{TB+9+2*h}]")
a(f"""  s_nop 1
  v_permlane16_swap_b32 v160, v161
  v_permlane16_swap_b32 v162, v163
  v_add_f32 v160, v160, v161
  v_add_f32 v162, v162, v163
  s_nop 1
  v_permlane32_swap_b32 v160, v162
  v_add_f32 v160, v160, v162
  s_nop 1
  v_add_f32_dpp v160, v160, v160 row_shr:4 row_mask:0xf bank_mask:0xf
  s_nop 1
  v_add_f32_dpp v160, v160, v160 row_shr:8 row_mask:0xf bank_mask:0xf
  s_mov_b64 exec, s[56:57]
  v_cvt_pk_bf16_f32 v160, v160, v160
  global_store_short v28, v160, s[22:23]{' ' + OPT['outflag'].replace('_', ' ') if OPT['outflag'] != 'none' else ''}
  s_cmp_lg_u32 s37, 0
  s_cbranch_scc1 L_noE
  s_mov_b64 exec, 1
  global_store_dword v29, {VTAU}, s[26:27] sc1
L_noE:
  s_mov_b64 exec, -1
""")
if OPT['deadline']:
    a(f"""L_dl:
  s_memrealtime s[56:57]
  s_waitcnt lgkmcnt(0)
  s_sub_u32 s33, s56, s96
  s_cmp_lt_u32 s33, {OPT['deadline']}
  s_cbranch_scc1 L_dl""")
stamp(10, final=True)
if OPT['dbgts']:
    a("  s_waitcnt lgkmcnt(0)")
    a("  s_cmp_lg_u32 s37, 0")
    a("  s_cbranch_scc1 L_nodbg")
    a("  s_mov_b64 exec, 1")
    a("  v_mov_b32 v8, 0")
    for q in range(4):
        for r in range(4):
            k = 4*q + r
            a(f"  s_sub_u32 s33, s{64+2*k}, s64")
            a(f"  v_mov_b32 v{12+r}, s33")
        a(f"  global_store_dwordx4 v8, v[12:15], s[24:25] offset:{16*q}")
        a("  s_nop 1")
    a("L_nodbg:")
else:
    dump_stamps()
a("  s_endpgm")

a("L_aux_w:")
a(f"""  ; h gather set-up: lanes (kp = l>>3 (0..6), b = (l>>2)&1, q4 = l&3) ; HP + (kp*2+b)*7168 + (16u + 4*q4)*4
  s_lshl_b32 s38, s28, 4
  s_add_u32 s38, s38, s29          ; u = g*16 + j
  v_lshrrev_b32 v85, 3, {VL}
  v_bfe_u32 v86, {VL}, 2, 1
  v_lshl_add_u32 v85, v85, 1, v86
  v_mul_u32_u24 v85, 7168, v85
  v_and_b32 v87, 3, {VL}
  v_lshl_add_u32 v85, v87, 4, v85
  s_lshl_b32 s42, s38, 6
  s_add_u32 s42, s42, {WS_HP}
  v_add_u32 v85, s42, v85
  v_readlane_b32 s42, v82, 0
  v_readlane_b32 s43, v82, 1
  v_cmp_eq_u32 vcc, 0, v86
  s_nop 0
  v_mov_b32 v36, s43
  v_mov_b32 v37, s42
  v_cndmask_b32 v83, v36, v37, vcc
  v_lshlrev_b32 v84, 5, v86
  v_lshl_add_u32 v84, v87, 3, v84
  v_add_u32 v84, {HV}, v84          ; HV + b*32 + q4*8
""")
a(f"""  v_mov_b32 v32, 0
  v_mov_b32 v33, 0
  v_mov_b32 v34, 0
  v_mov_b32 v35, 0
  s_mov_b32 s56, -1
  s_mov_b32 s57, 0x00ffffff
  s_mov_b32 s33, 0
  s_setprio 3
""")
if OPT['a2'] and OPT['wpos'] == 'q':
    a("  s_barrier                        ; barrier A2")
a(f"""  s_cmp_ge_u32 s38, 112
  s_cbranch_scc1 L_hskip
  s_mov_b64 exec, s[56:57]
  global_load_dwordx4 v[32:35], v85, s[26:27] sc1
  s_mov_b64 exec, -1
L_hskip:
  s_barrier                        ; barrier B
""")
stamp(6)
a(f"""  s_cmp_ge_u32 s38, 112
  s_cbranch_scc1 L_hdone
  s_mov_b64 exec, s[56:57]
  s_waitcnt vmcnt(0)
  s_branch L_hchk
L_hpoll:
  global_load_dwordx4 v[32:35], v85, s[26:27] sc1
  s_waitcnt vmcnt(0)
L_hchk:
""")
check_regs("v40", range(32, 36))
poll_end("v40", "L_hpoll", "L_hok")
a("  s_mov_b64 exec, -1")
a("  s_nop 1")
for r in range(4):
    a(f"  v_add_f32_dpp v{32+r}, v{32+r}, v{32+r} row_ror:8 row_mask:0xf bank_mask:0xf")
for r in range(4):
    a(f"  v_mov_b32 v{36+r}, v{32+r}")
a("  s_nop 1")
for r in range(4):
    a(f"  v_permlane16_swap_b32 v{32+r}, v{36+r}")
for r in range(4):
    a(f"  v_add_f32 v{32+r}, v{32+r}, v{36+r}")
for r in range(4):
    a(f"  v_mov_b32 v{36+r}, v{32+r}")
a("  s_nop 1")
for r in range(4):
    a(f"  v_permlane32_swap_b32 v{32+r}, v{36+r}")
for r in range(4):
    a(f"  v_add_f32 v{32+r}, v{32+r}, v{36+r}")
a("L_hdone:")
for r in range(4):
    a(f"  v_max_f32 v{32+r}, 0, v{32+r}")
    a(f"  v_mul_f32 v{32+r}, v{32+r}, v83")
a(f"""  v_cvt_pk_bf16_f32 v32, v32, v33
  v_cvt_pk_bf16_f32 v33, v34, v35
  s_mov_b64 exec, 0xff
  ds_write_b64 v84, v[32:33]
  s_mov_b64 exec, -1
  s_waitcnt lgkmcnt(0)
""")
stamp(7)
a("  s_barrier                        ; barrier D1")
dump_stamps()
a("L_end:")
a("  s_endpgm")
a("L_code_end:")
a(footer(vgpr=232, sgpr=100))
open(sys.argv[1], "w").write(a.text())
```

```python
import sys
from asmlib import *

OPT = dict(stamp=0, spin=400000, nt=1, qwait=3, sleep=0, fsleep=0, fast=1, tlb=0, prefetch=1,
           ops=2176, aps=3712, deadline=0, dbgts=0, wpos='q', a2=1, opre=1, fsets=1, outflag='sc1', apack=0, fdelay=0, appad=1, early=0, probe1=0, amp=-1, ampwg=37, ampwave=1)
for a_ in sys.argv[2:]:
    k, v = a_.split('=')
    assert k in OPT, k
    OPT[k] = int(v) if v.lstrip('-').isdigit() else v
STAMP = OPT['stamp']
OPS = OPT['ops']; APS = 7296 if OPT['appad'] else OPT['aps']

WS_E = 0
WS_XID = 0x400
WS_QP = 0x1000
WS_HP = 0x21000
WS_OP = 0x40000
WS_AP = 0x180000
WS_TS = 0x300000
assert WS_HP + 7*2*7168 <= WS_OP and WS_OP + 512*OPS <= WS_AP and WS_AP + 128*APS <= WS_TS

KBUF = 0
VBUF = 32768
RA = 65536
RB = 94208
RC = 108544
XB = 116736
QB = 118784
OV = 119936
HV = 120064
GT = 120128
LDS_BYTES = 120320

C_LOG2E_16 = 0x3DB8AA3B
NT = " nt" if OPT['nt'] else ""
VTAU = "v4"
VL = "v5"

a = Asm()
def stamp(k, final=False):
    if STAMP == 1 or (STAMP == 2 and (k == 0 or final)) or (STAMP == 3 and k in (0, OPT['amp'])):
        a(f"  s_memrealtime s[{64+2*k}:{65+2*k}]")
def rec(k, sreg):
    if STAMP == 1:
        a(f"  s_mov_b32 s{64+2*k}, {sreg}")

def srd(dst, ptr, size):
    a(f"  s_mov_b32 s{dst}, s{ptr}")
    a(f"  s_mov_b32 s{dst+1}, s{ptr+1}")
    a(f"  s_mov_b32 s{dst+2}, {size}")
    a(f"  s_mov_b32 s{dst+3}, 0x20000")

def dma(voff, srdreg, soff):
    a(f"  buffer_load_dwordx4 {voff}, s[{srdreg}:{srdreg+3}], {soff} offen{NT} lds")

def tagit(dst, src):
    a(f"  v_bfi_b32 {dst}, s32, {VTAU}, {src}")

def check_regs(acc, regs, first=True):
    regs = list(regs)
    for r in regs:
        a(f"  v_xor_b32 v{r}, s31, v{r}")
    if first:
        if len(regs) >= 3:
            a(f"  v_or3_b32 {acc}, v{regs[0]}, v{regs[1]}, v{regs[2]}"); regs = regs[3:]
        else:
            a(f"  v_or_b32 {acc}, v{regs[0]}, v{regs[1]}"); regs = regs[2:]
    while len(regs) >= 2:
        a(f"  v_or3_b32 {acc}, {acc}, v{regs[0]}, v{regs[1]}"); regs = regs[2:]
    if regs:
        a(f"  v_or_b32 {acc}, {acc}, v{regs[0]}")

def poll_end(acc, lab_retry, lab_ok, cnt="s33", sleep=None, masked=False):
    sleep = OPT['sleep'] if sleep is None else sleep
    if not masked:
        a(f"  v_and_b32 {acc}, 0xff, {acc}")
    a(f"  v_cmp_ne_u32 vcc, 0, {acc}")
    a(f"  s_add_u32 {cnt}, {cnt}, 1")
    a(f"  s_cmp_gt_u32 {cnt}, {OPT['spin']}")
    a(f"  s_cbranch_scc1 {lab_ok}")
    if sleep:
        a(f"  s_cbranch_vccz {lab_ok}")
        a(f"  s_sleep {sleep}")
        a(f"  s_branch {lab_retry}")
    else:
        a(f"  s_cbranch_vccnz {lab_retry}")
    a(f"{lab_ok}:")

def dump_stamps():
    if STAMP == 3:
        lab = a.label("L_amp")
        k = OPT['amp']
        a(f"""  s_cmp_lg_u32 s2, {OPT['ampwg']}
  s_cbranch_scc1 {lab}_x
  s_cmp_lg_u32 s30, {OPT['ampwave']}
  s_cbranch_scc1 {lab}_x
  s_waitcnt lgkmcnt(0)
  s_sub_u32 s33, s{64+2*k}, s64
  s_mul_i32 s33, s33, 10
  s_add_u32 s33, s33, 1200
{lab}:
  s_memrealtime s[56:57]
  s_waitcnt lgkmcnt(0)
  s_sub_u32 s56, s56, s64
  s_cmp_lt_u32 s56, s33
  s_cbranch_scc1 {lab}
{lab}_x:""")
        return
    if not STAMP or OPT['dbgts']:
        return
    a("  s_waitcnt lgkmcnt(0)")
    a("  s_mul_i32 s33, s2, 5")
    a("  s_add_u32 s33, s33, s30")
    a("  s_lshl_b32 s33, s33, 6")
    a(f"  s_add_u32 s33, s33, {WS_TS}")
    a("  v_mov_b32 v8, s33")
    a("  s_mov_b64 exec, 1")
    for q in range(4):
        for r in range(4):
            a(f"  v_mov_b32 v{12+r}, s{64+2*(4*q+r)}")
        a(f"  global_store_dwordx4 v8, v[12:15], s[26:27] offset:{16*q}")
        a("  s_nop 1")

def tau_setup():
    a("  s_and_b32 s31, s31, 0xff")
    a("  s_mul_i32 s31, s31, 5")
    a("  s_add_u32 s31, s31, 59")
    a("  s_and_b32 s31, s31, 0xff")
    a(f"  v_mov_b32 {VTAU}, s31")

def xid_value(dst):
    a(f"  s_getreg_b32 {dst}, hwreg(HW_REG_XCC_ID, 0, 4)")
    a(f"  s_lshl_b32 {dst}, {dst}, 24")
    a(f"  s_mul_i32 s33, s31, 0x010101")
    a(f"  s_or_b32 {dst}, {dst}, s33")

def tr_lane_setup():
    a(f"""  v_bfe_u32 v14, {VL}, 2, 2        ; r4
  v_lshl_add_u32 v15, v13, 2, v14  ; row = 4*g4+r4
  v_bfe_u32 v16, v15, 1, 2         ; f
  v_and_b32 v17, 3, {VL}           ; c
  v_lshlrev_b32 v15, 7, v15
  v_lshl_add_u32 v15, v17, 3, v15  ; row*128 + c*8""")

def h_unit_index(dst):
    a(f"""  s_lshl_b32 {dst}, s28, 4
  s_add_u32 {dst}, {dst}, s29
  s_sub_u32 {dst}, {dst}, 16       ; P: g*16 + p
  s_lshl_b32 s33, s29, 3
  s_add_u32 s33, s33, s28
  s_add_u32 s33, s33, 128          ; W: 128 + i*8 + g
  s_cmp_lt_u32 s29, 16
  s_cselect_b32 {dst}, s33, {dst}""")

a(header(256, 320, LDS_BYTES))
stamp(0)
if OPT['deadline'] or OPT['probe1']:
    a("  s_memrealtime s[96:97]")
a(f"""  s_load_dwordx16 s[4:19], s[0:1], 0
  s_load_dwordx8 s[20:27], s[0:1], 64
  s_getpc_b64 s[34:35]
L_pc:
  v_lshlrev_b32 v1, {5 if OPT['prefetch'] else 0}, v0
  v_min_u32 v1, {"L_code_end - L_pc - 4" if OPT['prefetch'] else 0}, v1
  s_cmpk_ge_u32 s2, 0x100
  s_cbranch_scc1 L_end
  global_load_dword v3, v1, s[34:35]
  v_lshrrev_b32 v2, 6, v0
  v_and_b32 {VL}, 63, v0
  v_readfirstlane_b32 s30, v2
  v_lshrrev_b32 v8, 3, {VL}
  v_bfe_u32 v9, {VL}, 4, 2         ; (row>>1)&3
  v_and_b32 v10, 7, {VL}
  v_lshlrev_b32 v11, 1, v9
  v_xor_b32 v11, v11, v10
  v_lshlrev_b32 v11, 4, v11        ; *16 bytes
  v_lshl_add_u32 v18, v8, 13, v11
  s_and_b32 s28, s2, 7             ; g
  s_cmp_eq_u32 s30, 0
  s_cbranch_scc1 L_aux0
  s_lshr_b32 s42, s2, 6            ; kp
  s_mul_i32 s42, s42, {112*8192}
  s_lshl_b32 s43, s28, 10
  s_add_u32 s42, s42, s43
  s_bfe_u32 s43, s2, 0x30003       ; j&7
  s_lshl_b32 s43, s43, 7
  s_add_u32 s42, s42, s43
  s_sub_u32 s36, s30, 1            ; v
  s_lshl_b32 s43, s36, 16          ; v*8*8192
  s_add_u32 s42, s42, s43
  v_add_u32 v18, s42, v18
  s_lshl_b32 s43, s36, 10
  s_add_u32 m0, s43, {RA}
  s_lshl_b32 s44, 1, 18
  s_movk_i32 s45, 0x1000
  s_waitcnt lgkmcnt(0)
  global_load_lds_dwordx4 v18, s[10:11]{NT}
  s_add_u32 m0, m0, s45
  v_add_u32 v18, s44, v18
  global_load_lds_dwordx4 v18, s[10:11]{NT}
  s_add_u32 m0, m0, s45
  v_add_u32 v18, s44, v18
  global_load_lds_dwordx4 v18, s[10:11]{NT}
  s_cmp_ge_u32 s36, 2
  s_cbranch_scc1 L_wq_done
  s_add_u32 m0, m0, s45
  v_add_u32 v18, s44, v18
  global_load_lds_dwordx4 v18, s[10:11]{NT}
""")
a("L_wq_done:")
if OPT['probe1']:
    a(f"""L_pr1:
  s_memrealtime s[56:57]
  s_waitcnt lgkmcnt(0)
  s_sub_u32 s33, s56, s96
  s_cmp_lt_u32 s33, {OPT['probe1']}
  s_cbranch_scc1 L_pr1""")
if STAMP in (1, 2):
    for k in range(1, 16):
        a(f"  s_mov_b32 s{64+2*k}, 0")
if STAMP == 3: stamp(15)
a(f"""  s_load_dword s31, s[26:27], {WS_E}
  s_lshr_b32 s29, s2, 3            ; j
  s_mov_b32 s32, 0xff
  v_lshrrev_b32 v13, 4, {VL}       ; g4
  s_and_b32 s37, s36, 1            ; kh
  s_lshr_b32 s38, s36, 1           ; dh""")
stamp(1)
h_unit_index("s45")
a(f"""  s_mul_i32 s46, s45, 9363
  s_lshr_b32 s46, s46, 16          ; cbh = u1/7
  s_mul_i32 s47, s46, 7
  s_sub_u32 s47, s45, s47          ; kp = u1%7
  s_min_u32 s46, s46, 27
  s_lshl_b32 s46, s46, 7
  s_mul_i32 s47, s47, {64*3584}
  s_add_u32 s46, s46, s47
  s_mul_i32 s47, s36, {8*3584}
  s_add_u32 s46, s46, s47
  s_cmp_lt_u32 s45, 196
  s_cselect_b32 s45, 0, 0x40000000
  v_mul_u32_u24 v18, 3584, v8
  v_add3_u32 v18, v18, v11, s45
  s_lshl_b32 s47, s36, 10
  s_add_u32 s47, s47, {RC}
""")
srd(52, 16, SZ['w1'])
for k in range(2):
    a(f"  s_add_u32 m0, s47, {k*4096}")
    a(f"  s_add_u32 s45, s46, {k*4*8*3584}")
    dma("v18", 52, "s45")
a(f"""  v_xor_b32 v12, v9, v10
  v_lshlrev_b32 v12, 4, v12
  s_and_b32 s39, s29, 1            ; b
  s_lshr_b32 s40, s29, 1           ; s (0..15)
  s_lshl_b32 s41, s39, 3
  s_add_u32 s41, s41, s28          ; b*8+g
  s_lshl_b32 s41, s41, 21          ; *4096*512
  s_lshl_b32 s42, s40, 15          ; s*64*512
  s_add_u32 s41, s41, s42
  s_lshl_b32 s42, s37, 14          ; kh*32*512
  s_add_u32 s41, s41, s42
  s_lshl_b32 s42, s38, 8           ; dh*256
  s_add_u32 s41, s41, s42
  s_add_u32 s41, s41, {3072*512}
  s_lshl_b32 s43, s38, 14
  s_lshl_b32 s42, s37, 12
  s_add_u32 s43, s43, s42
  v_lshlrev_b32 v18, 9, v8         ; row*512
  v_add_u32 v19, v18, v12
  v_xor_b32 v20, 64, v19
  v_add_u32 v21, v18, v11          ; V voffset
""")
srd(44, 6, SZ['k'])
srd(48, 8, SZ['v'])
for c2 in range(2):
    for jj in range(4):
        a(f"  s_add_u32 m0, s43, {KBUF + c2*8192 + jj*1024}")
        a(f"  s_add_u32 s42, s41, {c2*128 + jj*4096}")
        dma("v20" if jj & 1 else "v19", 44, "s42")
tr_lane_setup()
a(f"""  ; q projection tile nb = v : addresses
  v_xor_b32 v24, s36, v16
  v_lshl_add_u32 v24, v24, 5, v15
  v_add_u32 v24, {RA}, v24
  v_and_b32 v25, 1, {VL}
  v_mul_u32_u24 v25, 896, v25
  v_lshl_add_u32 v25, v13, 3, v25
  s_lshr_b32 s42, s29, 3           ; kp
  s_mul_i32 s45, s42, 224
  s_add_u32 s45, s45, {XB}
  v_add_u32 v25, s45, v25
  s_lshl_b32 s45, s28, 14
  s_lshl_b32 s42, s42, 12
  s_add_u32 s45, s45, s42
  s_and_b32 s42, s29, 7
  s_lshl_b32 s42, s42, 8
  s_add_u32 s45, s45, s42
  s_lshl_b32 s42, s36, 6
  s_add_u32 s45, s45, s42
  s_add_u32 s45, s45, {WS_QP}
  v_lshlrev_b32 v26, 2, {VL}
  v_add_u32 v26, s45, v26
""")
a("  s_waitcnt lgkmcnt(0)")
tau_setup()
a("  s_waitcnt vmcnt(10)")
a("  s_barrier")
for st in range(3):
    a(f"  ds_read2_b64 v[{32+4*st}:{35+4*st}], v25 offset0:{8*st} offset1:{8*st+4}")
    a(f"  ds_read_b64_tr_b16 v[{48+4*st}:{49+4*st}], v24 offset:{st*4096}")
    a(f"  ds_read_b64_tr_b16 v[{50+4*st}:{51+4*st}], v24 offset:{st*4096+2048}")
a(f"  ds_read_b64 v[44:45], v25 offset:192")
a(f"  ds_read_b64_tr_b16 v[60:61], v24 offset:{3*4096}")
for st in range(3):
    a(f"  s_waitcnt lgkmcnt({8 - 3*st})")
    c = "0" if st == 0 else "v[64:67]"
    a(f"  v_mfma_f32_16x16x32_bf16 v[64:67], v[{32+4*st}:{35+4*st}], v[{48+4*st}:{51+4*st}], {c}")
a("  s_waitcnt lgkmcnt(0)")
a("  v_mfma_f32_16x16x16_bf16 v[68:71], v[44:45], v[60:61], 0")
a("  s_mov_b64 exec, 0xffff")
a("  s_nop 6")
a("  v_add_f32 v64, v64, v68")
a("  v_add_f32 v65, v65, v69")
tagit("v64", "v64")
tagit("v65", "v65")
a(f"""  global_store_dword v26, v64, s[26:27] sc1
  global_store_dword v26, v65, s[26:27] offset:2048 sc1
  s_mov_b64 exec, -1
""")
stamp(14)
a("  s_waitcnt vmcnt(10)")
a("  s_barrier")
for c2 in range(2):
    for jj in range(4):
        a(f"  s_add_u32 m0, s43, {VBUF + c2*8192 + jj*1024}")
        a(f"  s_add_u32 s42, s41, {c2*128 + jj*4096}")
        dma("v21", 48, "s42")
stamp(2)
a(f"""  ; K operand address: key*128 + (g4 ^ ((key>>1)&7))*16 + kh*4096
  v_and_b32 v22, 15, {VL}
  v_bfe_u32 v23, {VL}, 1, 3
  v_xor_b32 v23, v23, v13
  v_lshlrev_b32 v23, 4, v23
  v_lshl_add_u32 v22, v22, 7, v23
  s_lshl_b32 s42, s37, 12
  v_add_u32 v22, s42, v22
  v_xor_b32 v23, 64, v22
  s_add_u32 s42, s43, {VBUF}
""")
for nb in range(4):
    a(f"  v_xor_b32 v{24+nb}, {nb}, v16")
    a(f"  v_lshl_add_u32 v{24+nb}, v{24+nb}, 5, v15")
    a(f"  v_add_u32 v{24+nb}, s42, v{24+nb}")
a(f"""  ; q operand address: QB + (l&1)*576 + g4*16
  v_and_b32 v28, 1, {VL}
  v_mul_u32_u24 v28, 576, v28
  v_lshl_add_u32 v28, v13, 4, v28
  v_add_u32 v28, {QB}, v28
  s_lshl_b32 s42, s28, 14
  s_lshl_b32 s45, s39, 11
  s_add_u32 s42, s42, s45
  s_lshl_b32 s45, s37, 10
  s_add_u32 s42, s42, s45
  s_lshl_b32 s45, s38, 9
  s_add_u32 s42, s42, s45
  s_add_u32 s42, s42, {WS_QP}
  v_lshrrev_b32 v29, 5, {VL}       ; kpl
  v_and_b32 v30, 31, {VL}          ; c
  v_lshlrev_b32 v31, 12, v29
  v_lshl_add_u32 v31, v30, 4, v31
  v_add_u32 v51, s42, v31
  v_add_u32 v52, 8192, v51
  s_lshl_b32 s42, s28, 7
  s_add_u32 s42, s42, {WS_XID}
  v_lshl_add_u32 v50, v30, 2, s42
  s_mul_i32 s42, s37, 576
  s_lshl_b32 s45, s38, 8
  s_add_u32 s42, s42, s45
  s_add_u32 s42, s42, {QB}
  v_lshlrev_b32 v30, 3, v30
  v_lshl_add_u32 v30, v29, 2, v30
  v_add_u32 v53, s42, v30
  s_lshl_b32 s42, s28, 1
  s_add_u32 s42, s42, s39
  s_lshl_b32 s42, s42, 5
  s_lshl_b32 s45, s40, 1
  s_add_u32 s42, s42, s45
  s_add_u32 s42, s42, s37
  s_mul_i32 s42, s42, {OPS}
  s_lshl_b32 s45, s38, 10
  s_add_u32 s42, s42, s45
  s_add_u32 s42, s42, {WS_OP}
  v_lshlrev_b32 v54, 3, {VL}
  v_add_u32 v54, s42, v54
  s_lshl_b32 s42, s28, 1
  s_add_u32 s42, s42, s38
  s_mul_i32 s33, s42, {32*OPS}
  s_lshl_b32 s56, s29, 7
  s_add_u32 s33, s33, s56
  s_lshl_b32 s56, s37, 6
  s_add_u32 s33, s33, s56
  s_add_u32 s33, s33, {WS_OP}
  v_lshrrev_b32 v6, 2, {VL}       ; s16
  v_mul_u32_u24 v7, {OPS}, v6
  v_and_b32 v62, 3, {VL}
  v_lshl_add_u32 v7, v62, 4, v7
  v_add_u32 v62, s33, v7
  v_add_u32 v63, {16*OPS}, v62        ; s16+16
  v_mov_b32 v46, 0x3f803f80
  v_mov_b32 v47, 0x3f803f80
  v_mov_b32 v48, 0x3f803f80
  v_mov_b32 v49, 0x3f803f80
  v_and_b32 v55, 1, {VL}
  v_cmp_eq_u32 s[58:59], 1, v55
""")
xid_value("s34")
a("  s_mov_b32 s35, 0xffffff")
a("  s_waitcnt vmcnt(8)")
stamp(3)
a("  s_barrier")
for tt in range(2):
    for t in range(8):
        r = 64 + (tt*8 + t)*4
        a(f"  ds_read_b128 v[{r}:{r+3}], v{23 if t & 1 else 22} offset:{KBUF + (t>>1)*8192 + tt*2048}")

def w_weight_setup():
    srd(44, 12, SZ['wo'])
    srd(52, 18, SZ['w2'])
    a(f"""  s_lshl_b32 s42, s28, 9
  s_lshl_b32 s61, s29, 4
  s_add_u32 s42, s42, s61          ; g*512 + 16j
  s_lshl_b32 s61, s38, 8
  s_add_u32 s42, s42, s61          ; + h*256
  s_lshl_b32 s61, s37, 3
  s_add_u32 s42, s42, s61          ; + half*8
  s_mul_i32 s61, s42, 896
  s_lshl_b32 s60, s36, 10
  s_add_u32 s60, s60, {RA}
  v_mul_u32_u24 v19, 896, v8
  v_add_u32 v19, v19, v11
  s_lshl_b32 s33, s28, 4
  s_add_u32 s33, s33, s29          ; u
  s_min_u32 s42, s33, 111
  s_lshl_b32 s42, s42, 4
  s_lshl_b32 s62, s37, 3
  s_add_u32 s42, s42, s62          ; 16u + q*8   (q = v&1)
  s_mul_i32 s42, s42, 896
  s_lshl_b32 s62, s38, 7
  s_add_u32 s62, s42, s62          ; + (v>>1)*128
  s_cmp_lt_u32 s33, 112
  s_cselect_b32 s33, 0, 0x40000000
  v_add_u32 v20, s33, v19
  s_lshl_b32 s63, s38, 11
  s_lshl_b32 s33, s37, 10
  s_add_u32 s63, s63, s33
  s_add_u32 s63, s63, {RB}         ; RB + (v>>1)*2048 + q*1024
""")

def w_weight_loads(tagname):
    for cb in range(7):
        a(f"  s_add_u32 m0, s60, {cb*4096}")
        a(f"  s_add_u32 s33, s61, {cb*128}")
        dma("v19", 44, "s33")
    for k in range(4):
        if k == 3:
            a("  s_cmp_lg_u32 s38, 0")
            a(f"  s_cbranch_scc1 L_w2_done{tagname}")
        a(f"  s_add_u32 m0, s63, {k*4096}")
        a(f"  s_add_u32 s33, s62, {k*256}")
        dma("v20", 52, "s33")
    a(f"L_w2_done{tagname}:")

def q_loads():
    a("  global_load_dwordx4 v[32:35], v51, s[26:27] sc1")
    a("  global_load_dwordx4 v[36:39], v52, s[26:27] sc1")
    a("  global_load_dword v41, v50, s[26:27] sc1")

a("  s_cmp_lt_u32 s29, 16")
a("  s_cbranch_scc0 L_q_p")
w_weight_setup()
if OPT['wpos'] == 'first':
    pass
if OPT['wpos'] == 'q':
    a(f"  s_waitcnt vmcnt({OPT['qwait']})")
    stamp(4)
    q_loads()
    if OPT['a2']:
        a("  s_barrier")
    w_weight_loads("a")
    if OPT['opre']:
        a("  global_load_dword v2, v62, s[26:27] sc1")
        a("  global_load_dword v3, v63, s[26:27] sc1")
    a("  s_mov_b32 s33, 0")
    NY = 12 if OPT['opre'] else 10
    a("  s_cmp_lg_u32 s38, 0")
    a("  s_cbranch_scc1 L_qw10")
    a(f"  s_waitcnt vmcnt({NY+1})")
    a("  s_branch L_qchk")
    a("L_qw10:")
    a(f"  s_waitcnt vmcnt({NY})")
    a("  s_branch L_qchk")
a(f"""L_q_p:
  s_mov_b32 s33, 0
  s_waitcnt vmcnt({OPT['qwait']})
""")
stamp(4)
a("L_qpoll:")
q_loads()
a("  s_waitcnt vmcnt(0)")
a("L_qchk:")
check_regs("v40", range(32, 40))
a("  v_xor_b32 v41, s34, v41")
a("  v_and_b32 v40, 0xff, v40")
a("  v_and_or_b32 v40, v41, s35, v40")
poll_end("v40", "L_qpoll", "L_qok", masked=True)
stamp(5)
rec(13, "s33")
if OPT['wpos'] == 'mid':
    a("  s_cmp_lt_u32 s29, 16")
    a("  s_cbranch_scc0 L_nomid")
    w_weight_loads("m")
    a("L_nomid:")
for nbk in range(8):
    r = 160 + 4*nbk
    off = (nbk >> 2)*8192
    a(f"  ds_read_b64_tr_b16 v[{r}:{r+1}], v{24 + (nbk & 3)} offset:{off}")
    a(f"  ds_read_b64_tr_b16 v[{r+2}:{r+3}], v{24 + (nbk & 3)} offset:{off + 2048}")
a(f"""  v_add_f32 v32, v32, v36
  v_add_f32 v33, v33, v37
  v_add_f32 v34, v34, v38
  v_add_f32 v35, v35, v39
  v_cmp_ne_u32 vcc, 0, v41
  s_nop 0
  v_permlane32_swap_b32 v32, v34
  v_permlane32_swap_b32 v33, v35
  v_add_f32 v32, v32, v34
  v_add_f32 v33, v33, v35
  v_cvt_pk_bf16_f32 v32, v32, v33
  ds_write_b32 v53, v32
  s_cmp_eq_u64 vcc, 0
  s_cselect_b32 s35, {1 if OPT['fast'] else 0}, 0
  s_waitcnt lgkmcnt(0)
  s_barrier
""")
stamp(6)
for t in range(8):
    a(f"  ds_read_b128 v[{128+4*t}:{131+4*t}], v28 offset:{64*t}")
a(f"  s_mov_b32 s42, {C_LOG2E_16:#x}")
for t in range(8):
    a(f"  s_waitcnt lgkmcnt({7-t})")
    for tt in range(2):
        kr = 64 + (tt*8 + t)*4
        c = "0" if t == 0 else f"v[{32+4*tt}:{35+4*tt}]"
        a(f"  v_mfma_f32_16x16x32_bf16 v[{32+4*tt}:{35+4*tt}], v[{kr}:{kr+3}], v[{128+4*t}:{131+4*t}], {c}")
a(f"""  s_nop 6
  v_max3_f32 v44, v32, v33, v34
  v_max3_f32 v45, v36, v37, v38
  v_max3_f32 v44, v44, v35, v39
  v_max_f32 v44, v44, v45
  v_mov_b32 v45, v44
  s_nop 1
  v_permlane16_swap_b32 v44, v45
  v_max_f32 v44, v44, v45
  v_mov_b32 v45, v44
  s_nop 1
  v_permlane32_swap_b32 v44, v45
  v_max_f32 v44, v44, v45
  v_mul_f32 v44, s42, v44
""")
for r in range(8):
    a(f"  v_fma_f32 v{32+r}, v{32+r}, s42, -v44")
for r in range(8):
    a(f"  v_exp_f32 v{32+r}, v{32+r}")
a("  s_nop 0")
for r in range(4):
    a(f"  v_cvt_pk_bf16_f32 v{40+r}, v{32+2*r}, v{33+2*r}")
a("  s_nop 1")
a("  v_mfma_f32_16x16x32_bf16 v[224:227], v[40:43], v[46:49], 0")
for nbk in range(8):
    a(f"  v_mfma_f32_16x16x32_bf16 v[{192+4*nbk}:{195+4*nbk}], v[40:43], v[{160+4*nbk}:{163+4*nbk}], 0")
a(f"""  v_cndmask_b32 v45, v224, v225, s[58:59]
  v_rcp_f32 v56, v224
  v_rcp_f32 v57, v225
  v_log_f32 v45, v45
  s_cmp_eq_u32 s35, 1
  v_add_f32 v45, v45, v44
""")
tagit("v59", "v45")
a("  v_mov_b32 v61, v59")
for q in range(2):
    for h in range(2):
        for k in range(4):
            a(f"  v_mul_f32_dpp v{32+2*q+h}, v{192+4*(4*q+k)+h}, v{56+h} quad_perm:[0,1,2,3] row_mask:{1<<k:#x} bank_mask:0xf")
    a(f"  v_cvt_pk_bf16_f32 v{58+2*q}, v{32+2*q}, v{33+2*q}")
a(f"""  s_cbranch_scc1 L_pub_local
  global_store_dwordx2 v54, v[58:59], s[26:27] sc1
  global_store_dwordx2 v54, v[60:61], s[26:27] offset:512 sc1
  s_branch L_pub_done
L_pub_local:                       ; every reader shares this die's L2
  global_store_dwordx2 v54, v[58:59], s[26:27]
  global_store_dwordx2 v54, v[60:61], s[26:27] offset:512
L_pub_done:
""")
stamp(7)
a("  s_cmp_lt_u32 s29, 16")
a("  s_cbranch_scc1 L_wstage")
a("  s_barrier")
dump_stamps()
a("  s_endpgm")

a("L_wstage:")
if OPT['wpos'] == 'late':
    w_weight_loads("l")
a(f"""  v_xor_b32 v24, s36, v16
  v_lshl_add_u32 v24, v24, 5, v15
  v_add_u32 v25, {RB}, v24
  v_add_u32 v24, {RA}, v24
  v_and_b32 v26, 1, {VL}
  v_lshlrev_b32 v27, 5, v26
  v_lshl_add_u32 v27, v13, 3, v27
  v_add_u32 v27, {HV}, v27
  v_lshlrev_b32 v28, 6, v26
  v_lshl_add_u32 v28, v13, 3, v28
  v_add_u32 v28, {OV}, v28
  v_and_b32 v54, 3, {VL}
  v_lshlrev_b32 v54, 2, v54
  v_and_b32 v55, 1, v13
  v_lshl_add_u32 v54, v55, 5, v54
  v_lshrrev_b32 v55, 1, v13
  v_lshl_add_u32 v54, v55, 1, v54
  s_lshl_b32 s42, s38, 6
  s_lshl_b32 s45, s37, 4
  s_add_u32 s42, s42, s45
  s_add_u32 s42, s42, {OV}
  v_add_u32 v54, s42, v54
  s_lshl_b32 s42, s28, 4
  s_add_u32 s42, s42, s29
  s_mul_i32 s42, s42, {APS}
  s_lshl_b32 s45, s36, {8 if OPT['appad'] else 7}
  s_add_u32 s42, s42, s45
  s_add_u32 s42, s42, {WS_AP}
  v_lshlrev_b32 v55, 3, {VL}
  v_add_u32 v55, s42, v55
  v_bfe_u32 v56, {VL}, 3, 1
  v_lshl_add_u32 v56, v56, 6, v55
  v_add_u32 v57, 4096, v56
  s_lshl_b32 s42, s38, 2
  s_add_u32 s42, s42, {GT}
  v_mov_b32 v29, s42
  ds_read_b32 v50, v29
  s_mov_b32 s56, 0xf000f000
  s_mov_b32 s57, 0xf000f000
  s_mov_b32 s33, 0
  s_waitcnt vmcnt(0) lgkmcnt(0)
""")
if OPT['early']:
    a("""  global_load_dwordx4 v[32:35], v62, s[26:27] sc1
  global_load_dwordx4 v[36:39], v63, s[26:27] sc1""")
a("  s_barrier")
stamp(8)
if not OPT['early']:
    a("""  global_load_dwordx4 v[32:35], v62, s[26:27] sc1
  global_load_dwordx4 v[36:39], v63, s[26:27] sc1""")
a("  ds_read_b64 v[106:107], v27")
for cb in range(7):
    a(f"  ds_read_b64_tr_b16 v[{92+2*cb}:{93+2*cb}], v25 offset:{cb*2048}")
for cb in range(7):
    a(f"  ds_read_b64_tr_b16 v[{64+4*cb}:{65+4*cb}], v24 offset:{cb*4096}")
    a(f"  ds_read_b64_tr_b16 v[{66+4*cb}:{67+4*cb}], v24 offset:{cb*4096+2048}")
a("  s_waitcnt vmcnt(0)")
a("  s_branch L_ochk")
a(f"""L_opoll:
  global_load_dwordx4 v[32:35], v62, s[26:27] sc1
  global_load_dwordx4 v[36:39], v63, s[26:27] sc1
  s_waitcnt vmcnt(0)
L_ochk:
""")
check_regs("v48", [33, 35, 37, 39])
poll_end("v48", "L_opoll", "L_ook")
stamp(9)
rec(12, "s33")
a(f"""  v_max_f32 v52, v33, v37
  v_max_f32 v53, v35, v39
  v_lshlrev_b32 v40, 16, v32       ; A: d0h0
  v_and_b32 v41, 0xffff0000, v32   ;    d0h1
  v_permlane16_swap_b32 v52, v53
  v_lshlrev_b32 v42, 16, v34       ;    d1h0
  v_and_b32 v43, 0xffff0000, v34   ;    d1h1
  v_max_f32 v52, v52, v53          ; rows: h0(01) h1(01) h0(23) h1(23)
  v_mov_b32 v53, v52
  v_lshlrev_b32 v44, 16, v36       ; B
  v_and_b32 v45, 0xffff0000, v36
  v_permlane32_swap_b32 v52, v53
  v_max_f32 v52, v52, v53
  v_lshlrev_b32 v46, 16, v38
  v_and_b32 v47, 0xffff0000, v38
  v_max_f32_dpp v52, v52, v52 row_shr:4 row_mask:0xf bank_mask:0xf
  s_nop 1
  v_max_f32_dpp v52, v52, v52 row_shr:8 row_mask:0xf bank_mask:0xf
  s_nop 0
  v_readlane_b32 s42, v52, 15
  v_readlane_b32 s45, v52, 31
  s_nop 1
  v_subrev_f32 v33, s42, v33
  v_subrev_f32 v37, s42, v37
  v_subrev_f32 v35, s45, v35
  v_subrev_f32 v39, s45, v39
  v_exp_f32 v33, v33               ; w A h0
  v_exp_f32 v37, v37               ; w B h0
  v_exp_f32 v35, v35               ; w A h1
  v_exp_f32 v39, v39               ; w B h1
  s_nop 0
  v_mul_f32 v40, v40, v33
  v_mul_f32 v41, v41, v35
  v_mul_f32 v42, v42, v33
  v_mul_f32 v43, v43, v35
  v_fmac_f32 v40, v44, v37
  v_fmac_f32 v41, v45, v39
  v_fmac_f32 v42, v46, v37
  v_fmac_f32 v43, v47, v39
  v_add_f32 v52, v33, v37          ; den h0
  v_add_f32 v53, v35, v39          ; den h1
  s_nop 0
  v_permlane16_swap_b32 v40, v41
  v_permlane16_swap_b32 v42, v43
  v_permlane16_swap_b32 v52, v53
  v_add_f32 v40, v40, v41
  v_add_f32 v42, v42, v43
  v_add_f32 v52, v52, v53
  v_mov_b32 v53, v52
  s_nop 1
  v_permlane32_swap_b32 v40, v42
  v_permlane32_swap_b32 v52, v53
  v_add_f32 v40, v40, v42
  v_add_f32 v52, v52, v53          ; rows h0 h1 h0 h1
  s_nop 0
  v_add_f32_dpp v40, v40, v40 row_shr:4 row_mask:0xf bank_mask:0xf
  v_add_f32_dpp v52, v52, v52 row_shr:4 row_mask:0xf bank_mask:0xf
  s_nop 0
  v_add_f32_dpp v40, v40, v40 row_shr:8 row_mask:0xf bank_mask:0xf
  v_add_f32_dpp v52, v52, v52 row_shr:8 row_mask:0xf bank_mask:0xf
  v_mul_f32 v40, v40, v50          ; * gate
  v_rcp_f32 v52, v52
""")
if STAMP == 3: stamp(11)
a(f"""  s_mov_b64 exec, s[56:57]
  v_mul_f32 v40, v40, v52
  v_cvt_pk_bf16_f32 v40, v40, v40
  ds_write_b16 v54, v40
  s_mov_b64 exec, -1
  s_waitcnt lgkmcnt(1)
""")
for cb in range(7):
    a(f"  v_mfma_f32_16x16x16_bf16 v[{110+4*cb}:{113+4*cb}], v[106:107], v[{92+2*cb}:{93+2*cb}], 0")
a(f"""  s_waitcnt lgkmcnt(0)
  s_barrier
""")
if STAMP == 3: stamp(12)
a(f"""  ds_read2_b64 v[40:43], v28 offset0:0 offset1:4
  s_waitcnt lgkmcnt(0)
""")
if STAMP == 3: stamp(13)
for cb in range(7):
    a(f"  v_mfma_f32_16x16x32_bf16 v[{110+4*cb}:{113+4*cb}], v[40:43], v[{64+4*cb}:{67+4*cb}], v[{110+4*cb}:{113+4*cb}]")
a("  s_mov_b64 exec, 0xffff")
a("  s_nop 0")
for cb in range(7):
    r = 110 + 4*cb
    tagit(f"v{r}", f"v{r}")
    if OPT['appad']:
        a(f"  global_store_dwordx2 v{56 if cb < 4 else 57}, v[{r}:{r+1}], s[26:27] offset:{1024*(cb % 4)} sc1")
    else:
        a(f"  global_store_dwordx2 v55, v[{r}:{r+1}], s[26:27] offset:{512*cb} sc1")
stamp(10)
if OPT['apack']:
    a("  s_waitcnt vmcnt(0)")
    stamp(11)
a("  s_mov_b64 exec, -1")
dump_stamps()
a("  s_endpgm")

a("L_aux0:")
if STAMP in (1, 2):
    for k in range(1, 16):
        a(f"  s_mov_b32 s{64+2*k}, 0")
a(f"""  s_lshr_b32 s29, s2, 3            ; j
  s_mov_b32 s32, 0xff
  v_lshrrev_b32 v13, 4, {VL}       ; g4
  v_lshlrev_b32 v18, 4, {VL}
  v_add_u32 v21, 1024, v18
  s_waitcnt lgkmcnt(0)
  s_load_dword s31, s[26:27], {WS_E}
""")
stamp(1)
srd(52, 4, SZ['x'])
a(f"""  s_mov_b32 m0, {XB}
  s_cmp_ge_u32 s29, 16
  buffer_load_dwordx4 v18, s[52:55], 0 offen lds
  s_mov_b32 m0, {XB+1024}
  s_nop 0
  buffer_load_dwordx4 v21, s[52:55], 0 offen lds
  s_cbranch_scc1 L_aux
  s_mov_b32 s56, -1
  s_mov_b32 s57, 0x00ffffff
  s_mov_b64 exec, s[56:57]
  global_load_dwordx4 v[70:73], v18, s[4:5]
  global_load_dwordx4 v[74:77], v18, s[4:5] offset:896
  global_load_dwordx4 v[78:81], v18, s[20:21]
  s_mov_b64 exec, -1
""")
a("L_aux:")
tr_lane_setup()
for nb in range(4):
    a(f"  v_xor_b32 v{24+nb}, {nb}, v16")
    a(f"  v_lshl_add_u32 v{24+nb}, v{24+nb}, 5, v15")
    a(f"  v_add_u32 v{24+nb}, {RC}, v{24+nb}")
h_unit_index("s39")
a(f"""  s_mul_i32 s40, s39, 9363
  s_lshr_b32 s40, s40, 16          ; cbh
  s_mul_i32 s41, s40, 7
  s_sub_u32 s41, s39, s41          ; kp
  v_and_b32 v28, 1, {VL}
  v_mul_u32_u24 v28, 896, v28
  v_lshl_add_u32 v28, v13, 3, v28
  s_lshl_b32 s42, s41, 7
  s_add_u32 s42, s42, {XB}
  v_add_u32 v28, s42, v28
  s_mul_i32 s42, s41, {2*7168}
  s_lshl_b32 s43, s40, 8
  s_add_u32 s42, s42, s43
  s_add_u32 s42, s42, {WS_HP}
  v_lshlrev_b32 v31, 2, {VL}
  v_add_u32 v31, s42, v31
  v_add_u32 v30, 7168, v31
  s_waitcnt lgkmcnt(0)
""")
tau_setup()
xid_value("s34")
a(f"""  s_lshl_b32 s42, s28, 7
  s_lshl_b32 s43, s29, 2
  s_add_u32 s42, s42, s43
  s_add_u32 s42, s42, {WS_XID}
  v_mov_b32 v6, s42
  v_mov_b32 v7, s34
  s_waitcnt vmcnt(0)
  s_mov_b64 exec, 1
  global_store_dword v6, v7, s[26:27] sc1
  s_mov_b64 exec, -1
  s_barrier                        ; barrier Q
  s_barrier                        ; barrier Q2
""")
stamp(2)
if OPT['tlb']:
    a(f"""  s_lshl_b32 s42, s28, 9
  s_lshl_b32 s43, s29, 4
  s_add_u32 s42, s42, s43
  s_mul_i32 s42, s42, 896
  v_mov_b32 v6, s42
  v_mov_b32 v7, 0
  s_mov_b64 exec, 1
  global_load_dword v2, v6, s[12:13] nt
  global_load_dword v2, v7, s[18:19] offset:64 nt
  global_load_dword v2, v7, s[22:23] nt
  s_mov_b64 exec, -1
""")
a("  s_cmp_ge_u32 s39, 196")
a("  s_cbranch_scc1 L_nohpub")
for st in range(2):
    a(f"  ds_read2_b64 v[{48+4*st}:{51+4*st}], v28 offset0:{8*st} offset1:{8*st+4}")
    for nb in range(4):
        r = 96 + 16*st + 4*nb
        a(f"  ds_read_b64_tr_b16 v[{r}:{r+1}], v{24+nb} offset:{st*4096}")
        a(f"  ds_read_b64_tr_b16 v[{r+2}:{r+3}], v{24+nb} offset:{st*4096+2048}")
for st in range(2):
    a(f"  s_waitcnt lgkmcnt({9 - 9*st})")
    for nb in range(4):
        r = 96 + 16*st + 4*nb
        c = "0" if st == 0 else f"v[{32+4*nb}:{35+4*nb}]"
        a(f"  v_mfma_f32_16x16x32_bf16 v[{32+4*nb}:{35+4*nb}], v[{48+4*st}:{51+4*st}], v[{r}:{r+3}], {c}")
a("  s_nop 7")
for r in range(2):
    a(f"  v_permlane16_swap_b32 v{32+r}, v{36+r}")
    a(f"  v_permlane16_swap_b32 v{40+r}, v{44+r}")
a("  s_nop 1")
for r in range(2):
    a(f"  v_permlane32_swap_b32 v{32+r}, v{40+r}")
a("  s_nop 1")
tagit("v32", "v32")
tagit("v33", "v33")
a("""  global_store_dword v31, v32, s[26:27] sc1
  global_store_dword v30, v33, s[26:27] sc1
L_nohpub:""")
stamp(5)
a("  s_cmp_ge_u32 s29, 16")
a("  s_cbranch_scc1 L_aux_a")
a("  v_mov_b32 v44, 0")
a("  v_mov_b32 v45, 0")
for r in range(4):
    a(f"  v_lshlrev_b32 v46, 16, v{78+r}")
    a(f"  v_and_b32 v47, 0xffff0000, v{78+r}")
    for b in range(2):
        a(f"  v_lshlrev_b32 v48, 16, v{70+4*b+r}")
        a(f"  v_and_b32 v49, 0xffff0000, v{70+4*b+r}")
        a(f"  v_mul_f32 v48, v48, v46")
        a(f"  v_mul_f32 v49, v49, v47")
        a(f"  v_cvt_pk_bf16_f32 v48, v48, v49")
        a(f"  v_lshlrev_b32 v49, 16, v48")
        a(f"  v_and_b32 v48, 0xffff0000, v48")
        a(f"  v_add_f32 v{44+b}, v{44+b}, v49")
        a(f"  v_add_f32 v{44+b}, v{44+b}, v48")
a(f"""  v_cmp_gt_u32 vcc, 56, {VL}
  s_nop 1
  v_cndmask_b32 v44, 0, v44, vcc
  v_cndmask_b32 v45, 0, v45, vcc
  s_nop 1
""")
for sh in (1, 2, 4, 8):
    a(f"  v_add_f32_dpp v44, v44, v44 row_shr:{sh} row_mask:0xf bank_mask:0xf")
    a(f"  v_add_f32_dpp v45, v45, v45 row_shr:{sh} row_mask:0xf bank_mask:0xf")
    a("  s_nop 0")
a(f"""  v_add_f32_dpp v44, v44, v44 row_bcast:15 row_mask:0xa bank_mask:0xf
  v_add_f32_dpp v45, v45, v45 row_bcast:15 row_mask:0xa bank_mask:0xf
  s_nop 0
  v_add_f32_dpp v44, v44, v44 row_bcast:31 row_mask:0xc bank_mask:0xf
  v_add_f32_dpp v45, v45, v45 row_bcast:31 row_mask:0xc bank_mask:0xf
  s_nop 0
  v_readlane_b32 s42, v44, 63
  v_readlane_b32 s43, v45, 63
  s_nop 1
  v_and_b32 v46, 1, {VL}
  v_cmp_eq_u32 vcc, 0, v46
  v_mov_b32 v47, s43
  v_mov_b32 v48, s42
  v_cndmask_b32 v47, v47, v48, vcc
  v_mul_f32 v47, 0xbfb8aa3b, v47   ; -log2e * z
  v_exp_f32 v47, v47
  s_nop 0
  v_add_f32 v47, 1.0, v47
  v_rcp_f32 v47, v47               ; g[b = lane&1]
  s_nop 0
  v_sub_f32 v82, 1.0, v47          ; 1-g
  v_lshlrev_b32 v46, 2, v46
  v_add_u32 v46, {GT}, v46
  s_mov_b64 exec, 3
  ds_write_b32 v46, v47
  s_mov_b64 exec, -1
  s_waitcnt lgkmcnt(0)
""")
stamp(3)
a("L_aux_a:")
a("  s_barrier")
a("  s_cmp_lt_u32 s29, 16")
a("  s_cbranch_scc1 L_aux_w")
a("  s_cmp_lt_u32 s29, 23")
a("  s_cbranch_scc1 L_final")
dump_stamps()
a("  s_endpgm")

a(f"""L_final:
  s_sub_u32 s36, s29, 16           ; p
  s_lshl_b32 s37, s36, 3
  s_add_u32 s37, s37, s28          ; c
  v_lshrrev_b32 v29, 2, {VL}       ; u16
  v_mul_u32_u24 v30, {APS}, v29
  v_and_b32 v31, 3, {VL}
  v_lshl_add_u32 v30, v31, 4, v30
  s_lshl_b32 s42, s37, {7 if OPT['appad'] else 6}
  s_add_u32 s42, s42, {WS_AP}
  v_add_u32 v30, s42, v30
""")
for k in range(8):
    a(f"  v_add_u32 v{16+k}, {k*16*APS}, v30")
a(f"""  ; out + b*896 + (8c + 2*c4 + (r>>1))*2
  v_and_b32 v28, 1, v13
  v_mul_u32_u24 v28, 896, v28
  v_lshl_add_u32 v28, v31, 2, v28
  v_lshrrev_b32 v29, 1, v13
  v_lshl_add_u32 v28, v29, 1, v28
  s_lshl_b32 s42, s37, 4
  v_add_u32 v28, s42, v28
  s_mov_b32 s56, 0xf000f000
  s_mov_b32 s57, 0xf000f000
  v_mov_b32 v29, {WS_E}
  s_barrier                        ; barrier B
  s_barrier                        ; barrier C
  s_mov_b32 s33, 0
""")
if OPT['fdelay']:
    a(f"""L_fd:
  s_memrealtime s[60:61]
  s_waitcnt lgkmcnt(0)
  s_sub_u32 s62, s60, s64
  s_cmp_lt_u32 s62, {OPT['fdelay']}
  s_cbranch_scc1 L_fd""")
stamp(8)
NS = OPT['fsets']
def fbase(i): return 32 + 32*i
def fissue(i):
    for k in range(8):
        a(f"  global_load_dwordx4 v[{fbase(i)+4*k}:{fbase(i)+4*k+3}], v{16+k}, s[26:27] sc1")
for i in range(NS):
    fissue(i)
a("L_fpoll:")
for i in range(NS):
    a(f"  s_waitcnt vmcnt({8*(NS-1)})")
    check_regs("v14", [fbase(i)+4*k+q for k in range(8) for q in (0, 2)])
    a("  v_and_b32 v14, 0xff, v14")
    a("  v_cmp_ne_u32 vcc, 0, v14")
    a("  s_add_u32 s33, s33, 1")
    a(f"  s_cmp_gt_u32 s33, {OPT['spin']}")
    a(f"  s_cbranch_scc1 L_fok{i}")
    a(f"  s_cbranch_vccz L_fok{i}")
    if OPT['fsleep']:
        a(f"  s_sleep {OPT['fsleep']}")
    fissue(i)
a("  s_branch L_fpoll")
TB = 144
for i in range(NS):
    a(f"L_fok{i}:")
    for k in range(4):
        for h in range(2):
            x = fbase(i) + 8*k + 2*h
            a(f"  v_pk_add_f32 v[{TB+4*k+2*h}:{TB+4*k+2*h+1}], v[{x}:{x+1}], v[{x+4}:{x+5}]")
    if i < NS-1:
        a("  s_branch L_fsum")
a("L_fsum:")
stamp(9)
rec(12, "s33")
for h in range(2):
    a(f"  v_pk_add_f32 v[{TB+2*h}:{TB+2*h+1}], v[{TB+2*h}:{TB+2*h+1}], v[{TB+4+2*h}:{TB+5+2*h}]")
    a(f"  v_pk_add_f32 v[{TB+8+2*h}:{TB+9+2*h}], v[{TB+8+2*h}:{TB+9+2*h}], v[{TB+12+2*h}:{TB+13+2*h}]")
for h in range(2):
    a(f"  v_pk_add_f32 v[{160+2*h}:{161+2*h}], v[{TB+2*h}:{TB+2*h+1}], v[{TB+8+2*h}:{TB+9+2*h}]")
a(f"""  s_nop 1
  v_permlane16_swap_b32 v160, v161
  v_permlane16_swap_b32 v162, v163
  v_add_f32 v160, v160, v161
  v_add_f32 v162, v162, v163
  s_nop 1
  v_permlane32_swap_b32 v160, v162
  v_add_f32 v160, v160, v162
  s_nop 1
  v_add_f32_dpp v160, v160, v160 row_shr:4 row_mask:0xf bank_mask:0xf
  s_nop 1
  v_add_f32_dpp v160, v160, v160 row_shr:8 row_mask:0xf bank_mask:0xf
  s_mov_b64 exec, s[56:57]
  v_cvt_pk_bf16_f32 v160, v160, v160
  global_store_short v28, v160, s[22:23]{' ' + OPT['outflag'].replace('_', ' ') if OPT['outflag'] != 'none' else ''}
  s_cmp_lg_u32 s37, 0
  s_cbranch_scc1 L_noE
  s_mov_b64 exec, 1
  global_store_dword v29, {VTAU}, s[26:27] sc1
L_noE:
  s_mov_b64 exec, -1
""")
if OPT['deadline']:
    a(f"""L_dl:
  s_memrealtime s[56:57]
  s_waitcnt lgkmcnt(0)
  s_sub_u32 s33, s56, s96
  s_cmp_lt_u32 s33, {OPT['deadline']}
  s_cbranch_scc1 L_dl""")
stamp(10, final=True)
if OPT['dbgts']:
    a("  s_waitcnt lgkmcnt(0)")
    a("  s_cmp_lg_u32 s37, 0")
    a("  s_cbranch_scc1 L_nodbg")
    a("  s_mov_b64 exec, 1")
    a("  v_mov_b32 v8, 0")
    for q in range(4):
        for r in range(4):
            k = 4*q + r
            a(f"  s_sub_u32 s33, s{64+2*k}, s64")
            a(f"  v_mov_b32 v{12+r}, s33")
        a(f"  global_store_dwordx4 v8, v[12:15], s[24:25] offset:{16*q}")
        a("  s_nop 1")
    a("L_nodbg:")
else:
    dump_stamps()
a("  s_endpgm")

a("L_aux_w:")
a(f"""  ; h gather set-up: lanes (kp = l>>3 (0..6), b = (l>>2)&1, q4 = l&3) ; HP + (kp*2+b)*7168 + (16u + 4*q4)*4
  s_lshl_b32 s38, s28, 4
  s_add_u32 s38, s38, s29          ; u = g*16 + j
  v_lshrrev_b32 v85, 3, {VL}
  v_bfe_u32 v86, {VL}, 2, 1
  v_lshl_add_u32 v85, v85, 1, v86
  v_mul_u32_u24 v85, 7168, v85
  v_and_b32 v87, 3, {VL}
  v_lshl_add_u32 v85, v87, 4, v85
  s_lshl_b32 s42, s38, 6
  s_add_u32 s42, s42, {WS_HP}
  v_add_u32 v85, s42, v85
  v_readlane_b32 s42, v82, 0
  v_readlane_b32 s43, v82, 1
  v_cmp_eq_u32 vcc, 0, v86
  s_nop 0
  v_mov_b32 v36, s43
  v_mov_b32 v37, s42
  v_cndmask_b32 v83, v36, v37, vcc
  v_lshlrev_b32 v84, 5, v86
  v_lshl_add_u32 v84, v87, 3, v84
  v_add_u32 v84, {HV}, v84          ; HV + b*32 + q4*8
""")
a(f"""  v_mov_b32 v32, 0
  v_mov_b32 v33, 0
  v_mov_b32 v34, 0
  v_mov_b32 v35, 0
  s_mov_b32 s56, -1
  s_mov_b32 s57, 0x00ffffff
  s_mov_b32 s33, 0
  s_setprio 3
""")
if OPT['a2'] and OPT['wpos'] == 'q':
    a("  s_barrier                        ; barrier A2")
a(f"""  s_cmp_ge_u32 s38, 112
  s_cbranch_scc1 L_hskip
  s_mov_b64 exec, s[56:57]
  global_load_dwordx4 v[32:35], v85, s[26:27] sc1
  s_mov_b64 exec, -1
L_hskip:
  s_barrier                        ; barrier B
""")
stamp(6)
a(f"""  s_cmp_ge_u32 s38, 112
  s_cbranch_scc1 L_hdone
  s_mov_b64 exec, s[56:57]
  s_waitcnt vmcnt(0)
  s_branch L_hchk
L_hpoll:
  global_load_dwordx4 v[32:35], v85, s[26:27] sc1
  s_waitcnt vmcnt(0)
L_hchk:
""")
check_regs("v40", range(32, 36))
poll_end("v40", "L_hpoll", "L_hok")
a("  s_mov_b64 exec, -1")
a("  s_nop 1")
for r in range(4):
    a(f"  v_add_f32_dpp v{32+r}, v{32+r}, v{32+r} row_ror:8 row_mask:0xf bank_mask:0xf")
for r in range(4):
    a(f"  v_mov_b32 v{36+r}, v{32+r}")
a("  s_nop 1")
for r in range(4):
    a(f"  v_permlane16_swap_b32 v{32+r}, v{36+r}")
for r in range(4):
    a(f"  v_add_f32 v{32+r}, v{32+r}, v{36+r}")
for r in range(4):
    a(f"  v_mov_b32 v{36+r}, v{32+r}")
a("  s_nop 1")
for r in range(4):
    a(f"  v_permlane32_swap_b32 v{32+r}, v{36+r}")
for r in range(4):
    a(f"  v_add_f32 v{32+r}, v{32+r}, v{36+r}")
a("L_hdone:")
for r in range(4):
    a(f"  v_max_f32 v{32+r}, 0, v{32+r}")
    a(f"  v_mul_f32 v{32+r}, v{32+r}, v83")
a(f"""  v_cvt_pk_bf16_f32 v32, v32, v33
  v_cvt_pk_bf16_f32 v33, v34, v35
  s_mov_b64 exec, 0xff
  ds_write_b64 v84, v[32:33]
  s_mov_b64 exec, -1
  s_waitcnt lgkmcnt(0)
""")
stamp(7)
a("  s_barrier                        ; barrier D1")
dump_stamps()
a("L_end:")
a("  s_endpgm")
a("L_code_end:")
a(footer(vgpr=232, sgpr=100))
open(sys.argv[1], "w").write(a.text())
```

```python
import sys
from asmlib import *

OPT = dict(stamp=0, spin=400000, nt=1, qwait=3, sleep=0, fsleep=0, fast=1, tlb=0, prefetch=1,
           ops=2176, aps=3712, deadline=0, dbgts=0, wpos='q', a2=1, opre=1, fsets=1, outflag='sc1', apack=0, fdelay=0, appad=1, early=0, probe1=0, amp=-1, ampa=0, ampf=10, ampwg=37, ampwave=1)
for a_ in sys.argv[2:]:
    k, v = a_.split('=')
    assert k in OPT, k
    OPT[k] = int(v) if v.lstrip('-').isdigit() else v
STAMP = OPT['stamp']
OPS = OPT['ops']; APS = 7296 if OPT['appad'] else OPT['aps']

WS_E = 0
WS_XID = 0x400
WS_QP = 0x1000
WS_HP = 0x21000
WS_OP = 0x40000
WS_AP = 0x180000
WS_TS = 0x300000
assert WS_HP + 7*2*7168 <= WS_OP and WS_OP + 512*OPS <= WS_AP and WS_AP + 128*APS <= WS_TS

KBUF = 0
VBUF = 32768
RA = 65536
RB = 94208
RC = 108544
XB = 116736
QB = 118784
OV = 119936
HV = 120064
GT = 120128
LDS_BYTES = 120320

C_LOG2E_16 = 0x3DB8AA3B
NT = " nt" if OPT['nt'] else ""
VTAU = "v4"
VL = "v5"

a = Asm()
def stamp(k, final=False):
    if STAMP == 1 or (STAMP == 2 and (k == 0 or final)) or (STAMP == 3 and k in (0, OPT['amp'], OPT['ampa'])):
        a(f"  s_memrealtime s[{64+2*k}:{65+2*k}]")
def rec(k, sreg):
    if STAMP == 1:
        a(f"  s_mov_b32 s{64+2*k}, {sreg}")

def srd(dst, ptr, size):
    a(f"  s_mov_b32 s{dst}, s{ptr}")
    a(f"  s_mov_b32 s{dst+1}, s{ptr+1}")
    a(f"  s_mov_b32 s{dst+2}, {size}")
    a(f"  s_mov_b32 s{dst+3}, 0x20000")

def dma(voff, srdreg, soff):
    a(f"  buffer_load_dwordx4 {voff}, s[{srdreg}:{srdreg+3}], {soff} offen{NT} lds")

def tagit(dst, src):
    a(f"  v_bfi_b32 {dst}, s32, {VTAU}, {src}")

def check_regs(acc, regs, first=True):
    regs = list(regs)
    for r in regs:
        a(f"  v_xor_b32 v{r}, s31, v{r}")
    if first:
        if len(regs) >= 3:
            a(f"  v_or3_b32 {acc}, v{regs[0]}, v{regs[1]}, v{regs[2]}"); regs = regs[3:]
        else:
            a(f"  v_or_b32 {acc}, v{regs[0]}, v{regs[1]}"); regs = regs[2:]
    while len(regs) >= 2:
        a(f"  v_or3_b32 {acc}, {acc}, v{regs[0]}, v{regs[1]}"); regs = regs[2:]
    if regs:
        a(f"  v_or_b32 {acc}, {acc}, v{regs[0]}")

def poll_end(acc, lab_retry, lab_ok, cnt="s33", sleep=None, masked=False):
    sleep = OPT['sleep'] if sleep is None else sleep
    if not masked:
        a(f"  v_and_b32 {acc}, 0xff, {acc}")
    a(f"  v_cmp_ne_u32 vcc, 0, {acc}")
    a(f"  s_add_u32 {cnt}, {cnt}, 1")
    a(f"  s_cmp_gt_u32 {cnt}, {OPT['spin']}")
    a(f"  s_cbranch_scc1 {lab_ok}")
    if sleep:
        a(f"  s_cbranch_vccz {lab_ok}")
        a(f"  s_sleep {sleep}")
        a(f"  s_branch {lab_retry}")
    else:
        a(f"  s_cbranch_vccnz {lab_retry}")
    a(f"{lab_ok}:")

def dump_stamps():
    if STAMP == 3:
        lab = a.label("L_amp")
        k = OPT['amp']
        a(f"""  s_cmp_lg_u32 s2, {OPT['ampwg']}
  s_cbranch_scc1 {lab}_x
  s_cmp_lg_u32 s30, {OPT['ampwave']}
  s_cbranch_scc1 {lab}_x
  s_waitcnt lgkmcnt(0)
  s_sub_u32 s33, s{64+2*k}, s{64+2*OPT['ampa']}
  s_mul_i32 s33, s33, {OPT['ampf']}
  s_add_u32 s33, s33, 1200
{lab}:
  s_memrealtime s[56:57]
  s_waitcnt lgkmcnt(0)
  s_sub_u32 s56, s56, s64
  s_cmp_lt_u32 s56, s33
  s_cbranch_scc1 {lab}
{lab}_x:""")
        return
    if not STAMP or OPT['dbgts']:
        return
    a("  s_waitcnt lgkmcnt(0)")
    a("  s_mul_i32 s33, s2, 5")
    a("  s_add_u32 s33, s33, s30")
    a("  s_lshl_b32 s33, s33, 6")
    a(f"  s_add_u32 s33, s33, {WS_TS}")
    a("  v_mov_b32 v8, s33")
    a("  s_mov_b64 exec, 1")
    for q in range(4):
        for r in range(4):
            a(f"  v_mov_b32 v{12+r}, s{64+2*(4*q+r)}")
        a(f"  global_store_dwordx4 v8, v[12:15], s[26:27] offset:{16*q}")
        a("  s_nop 1")

def tau_setup():
    a("  s_and_b32 s31, s31, 0xff")
    a("  s_mul_i32 s31, s31, 5")
    a("  s_add_u32 s31, s31, 59")
    a("  s_and_b32 s31, s31, 0xff")
    a(f"  v_mov_b32 {VTAU}, s31")

def xid_value(dst):
    a(f"  s_getreg_b32 {dst}, hwreg(HW_REG_XCC_ID, 0, 4)")
    a(f"  s_lshl_b32 {dst}, {dst}, 24")
    a(f"  s_mul_i32 s33, s31, 0x010101")
    a(f"  s_or_b32 {dst}, {dst}, s33")

def tr_lane_setup():
    a(f"""  v_bfe_u32 v14, {VL}, 2, 2        ; r4
  v_lshl_add_u32 v15, v13, 2, v14  ; row = 4*g4+r4
  v_bfe_u32 v16, v15, 1, 2         ; f
  v_and_b32 v17, 3, {VL}           ; c
  v_lshlrev_b32 v15, 7, v15
  v_lshl_add_u32 v15, v17, 3, v15  ; row*128 + c*8""")

def h_unit_index(dst):
    a(f"""  s_lshl_b32 {dst}, s28, 4
  s_add_u32 {dst}, {dst}, s29
  s_sub_u32 {dst}, {dst}, 16       ; P: g*16 + p
  s_lshl_b32 s33, s29, 3
  s_add_u32 s33, s33, s28
  s_add_u32 s33, s33, 128          ; W: 128 + i*8 + g
  s_cmp_lt_u32 s29, 16
  s_cselect_b32 {dst}, s33, {dst}""")

a(header(256, 320, LDS_BYTES))
stamp(0)
if OPT['deadline'] or OPT['probe1']:
    a("  s_memrealtime s[96:97]")
a(f"""  s_load_dwordx16 s[4:19], s[0:1], 0
  s_load_dwordx8 s[20:27], s[0:1], 64
  s_getpc_b64 s[34:35]
L_pc:
  v_lshlrev_b32 v1, {5 if OPT['prefetch'] else 0}, v0
  v_min_u32 v1, {"L_code_end - L_pc - 4" if OPT['prefetch'] else 0}, v1
  s_cmpk_ge_u32 s2, 0x100
  s_cbranch_scc1 L_end
  global_load_dword v3, v1, s[34:35]
  v_lshrrev_b32 v2, 6, v0
  v_and_b32 {VL}, 63, v0
  v_readfirstlane_b32 s30, v2
  v_lshrrev_b32 v8, 3, {VL}
  v_bfe_u32 v9, {VL}, 4, 2         ; (row>>1)&3
  v_and_b32 v10, 7, {VL}
  v_lshlrev_b32 v11, 1, v9
  v_xor_b32 v11, v11, v10
  v_lshlrev_b32 v11, 4, v11        ; *16 bytes
  v_lshl_add_u32 v18, v8, 13, v11
  s_and_b32 s28, s2, 7             ; g
  s_cmp_eq_u32 s30, 0
  s_cbranch_scc1 L_aux0
  s_lshr_b32 s42, s2, 6            ; kp
  s_mul_i32 s42, s42, {112*8192}
  s_lshl_b32 s43, s28, 10
  s_add_u32 s42, s42, s43
  s_bfe_u32 s43, s2, 0x30003       ; j&7
  s_lshl_b32 s43, s43, 7
  s_add_u32 s42, s42, s43
  s_sub_u32 s36, s30, 1            ; v
  s_lshl_b32 s43, s36, 16          ; v*8*8192
  s_add_u32 s42, s42, s43
  v_add_u32 v18, s42, v18
  s_lshl_b32 s43, s36, 10
  s_add_u32 m0, s43, {RA}
  s_lshl_b32 s44, 1, 18
  s_movk_i32 s45, 0x1000
  s_waitcnt lgkmcnt(0)
  global_load_lds_dwordx4 v18, s[10:11]{NT}
  s_add_u32 m0, m0, s45
  v_add_u32 v18, s44, v18
  global_load_lds_dwordx4 v18, s[10:11]{NT}
  s_add_u32 m0, m0, s45
  v_add_u32 v18, s44, v18
  global_load_lds_dwordx4 v18, s[10:11]{NT}
  s_cmp_ge_u32 s36, 2
  s_cbranch_scc1 L_wq_done
  s_add_u32 m0, m0, s45
  v_add_u32 v18, s44, v18
  global_load_lds_dwordx4 v18, s[10:11]{NT}
""")
a("L_wq_done:")
if OPT['probe1']:
    a(f"""L_pr1:
  s_memrealtime s[56:57]
  s_waitcnt lgkmcnt(0)
  s_sub_u32 s33, s56, s96
  s_cmp_lt_u32 s33, {OPT['probe1']}
  s_cbranch_scc1 L_pr1""")
if STAMP in (1, 2):
    for k in range(1, 16):
        a(f"  s_mov_b32 s{64+2*k}, 0")
if STAMP == 3: stamp(15)
a(f"""  s_load_dword s31, s[26:27], {WS_E}
  s_lshr_b32 s29, s2, 3            ; j
  s_mov_b32 s32, 0xff
  v_lshrrev_b32 v13, 4, {VL}       ; g4
  s_and_b32 s37, s36, 1            ; kh
  s_lshr_b32 s38, s36, 1           ; dh""")
stamp(1)
h_unit_index("s45")
a(f"""  s_mul_i32 s46, s45, 9363
  s_lshr_b32 s46, s46, 16          ; cbh = u1/7
  s_mul_i32 s47, s46, 7
  s_sub_u32 s47, s45, s47          ; kp = u1%7
  s_min_u32 s46, s46, 27
  s_lshl_b32 s46, s46, 7
  s_mul_i32 s47, s47, {64*3584}
  s_add_u32 s46, s46, s47
  s_mul_i32 s47, s36, {8*3584}
  s_add_u32 s46, s46, s47
  s_cmp_lt_u32 s45, 196
  s_cselect_b32 s45, 0, 0x40000000
  v_mul_u32_u24 v18, 3584, v8
  v_add3_u32 v18, v18, v11, s45
  s_lshl_b32 s47, s36, 10
  s_add_u32 s47, s47, {RC}
""")
srd(52, 16, SZ['w1'])
for k in range(2):
    a(f"  s_add_u32 m0, s47, {k*4096}")
    a(f"  s_add_u32 s45, s46, {k*4*8*3584}")
    dma("v18", 52, "s45")
a(f"""  v_xor_b32 v12, v9, v10
  v_lshlrev_b32 v12, 4, v12
  s_and_b32 s39, s29, 1            ; b
  s_lshr_b32 s40, s29, 1           ; s (0..15)
  s_lshl_b32 s41, s39, 3
  s_add_u32 s41, s41, s28          ; b*8+g
  s_lshl_b32 s41, s41, 21          ; *4096*512
  s_lshl_b32 s42, s40, 15          ; s*64*512
  s_add_u32 s41, s41, s42
  s_lshl_b32 s42, s37, 14          ; kh*32*512
  s_add_u32 s41, s41, s42
  s_lshl_b32 s42, s38, 8           ; dh*256
  s_add_u32 s41, s41, s42
  s_add_u32 s41, s41, {3072*512}
  s_lshl_b32 s43, s38, 14
  s_lshl_b32 s42, s37, 12
  s_add_u32 s43, s43, s42
  v_lshlrev_b32 v18, 9, v8         ; row*512
  v_add_u32 v19, v18, v12
  v_xor_b32 v20, 64, v19
  v_add_u32 v21, v18, v11          ; V voffset
""")
srd(44, 6, SZ['k'])
srd(48, 8, SZ['v'])
for c2 in range(2):
    for jj in range(4):
        a(f"  s_add_u32 m0, s43, {KBUF + c2*8192 + jj*1024}")
        a(f"  s_add_u32 s42, s41, {c2*128 + jj*4096}")
        dma("v20" if jj & 1 else "v19", 44, "s42")
tr_lane_setup()
a(f"""  ; q projection tile nb = v : addresses
  v_xor_b32 v24, s36, v16
  v_lshl_add_u32 v24, v24, 5, v15
  v_add_u32 v24, {RA}, v24
  v_and_b32 v25, 1, {VL}
  v_mul_u32_u24 v25, 896, v25
  v_lshl_add_u32 v25, v13, 3, v25
  s_lshr_b32 s42, s29, 3           ; kp
  s_mul_i32 s45, s42, 224
  s_add_u32 s45, s45, {XB}
  v_add_u32 v25, s45, v25
  s_lshl_b32 s45, s28, 14
  s_lshl_b32 s42, s42, 12
  s_add_u32 s45, s45, s42
  s_and_b32 s42, s29, 7
  s_lshl_b32 s42, s42, 8
  s_add_u32 s45, s45, s42
  s_lshl_b32 s42, s36, 6
  s_add_u32 s45, s45, s42
  s_add_u32 s45, s45, {WS_QP}
  v_lshlrev_b32 v26, 2, {VL}
  v_add_u32 v26, s45, v26
""")
a("  s_waitcnt lgkmcnt(0)")
tau_setup()
a("  s_waitcnt vmcnt(10)")
a("  s_barrier")
for st in range(3):
    a(f"  ds_read2_b64 v[{32+4*st}:{35+4*st}], v25 offset0:{8*st} offset1:{8*st+4}")
    a(f"  ds_read_b64_tr_b16 v[{48+4*st}:{49+4*st}], v24 offset:{st*4096}")
    a(f"  ds_read_b64_tr_b16 v[{50+4*st}:{51+4*st}], v24 offset:{st*4096+2048}")
a(f"  ds_read_b64 v[44:45], v25 offset:192")
a(f"  ds_read_b64_tr_b16 v[60:61], v24 offset:{3*4096}")
for st in range(3):
    a(f"  s_waitcnt lgkmcnt({8 - 3*st})")
    c = "0" if st == 0 else "v[64:67]"
    a(f"  v_mfma_f32_16x16x32_bf16 v[64:67], v[{32+4*st}:{35+4*st}], v[{48+4*st}:{51+4*st}], {c}")
a("  s_waitcnt lgkmcnt(0)")
a("  v_mfma_f32_16x16x16_bf16 v[68:71], v[44:45], v[60:61], 0")
a("  s_mov_b64 exec, 0xffff")
a("  s_nop 6")
a("  v_add_f32 v64, v64, v68")
a("  v_add_f32 v65, v65, v69")
tagit("v64", "v64")
tagit("v65", "v65")
a(f"""  global_store_dword v26, v64, s[26:27] sc1
  global_store_dword v26, v65, s[26:27] offset:2048 sc1
  s_mov_b64 exec, -1
""")
stamp(14)
a("  s_waitcnt vmcnt(10)")
a("  s_barrier")
for c2 in range(2):
    for jj in range(4):
        a(f"  s_add_u32 m0, s43, {VBUF + c2*8192 + jj*1024}")
        a(f"  s_add_u32 s42, s41, {c2*128 + jj*4096}")
        dma("v21", 48, "s42")
stamp(2)
a(f"""  ; K operand address: key*128 + (g4 ^ ((key>>1)&7))*16 + kh*4096
  v_and_b32 v22, 15, {VL}
  v_bfe_u32 v23, {VL}, 1, 3
  v_xor_b32 v23, v23, v13
  v_lshlrev_b32 v23, 4, v23
  v_lshl_add_u32 v22, v22, 7, v23
  s_lshl_b32 s42, s37, 12
  v_add_u32 v22, s42, v22
  v_xor_b32 v23, 64, v22
  s_add_u32 s42, s43, {VBUF}
""")
for nb in range(4):
    a(f"  v_xor_b32 v{24+nb}, {nb}, v16")
    a(f"  v_lshl_add_u32 v{24+nb}, v{24+nb}, 5, v15")
    a(f"  v_add_u32 v{24+nb}, s42, v{24+nb}")
a(f"""  ; q operand address: QB + (l&1)*576 + g4*16
  v_and_b32 v28, 1, {VL}
  v_mul_u32_u24 v28, 576, v28
  v_lshl_add_u32 v28, v13, 4, v28
  v_add_u32 v28, {QB}, v28
  s_lshl_b32 s42, s28, 14
  s_lshl_b32 s45, s39, 11
  s_add_u32 s42, s42, s45
  s_lshl_b32 s45, s37, 10
  s_add_u32 s42, s42, s45
  s_lshl_b32 s45, s38, 9
  s_add_u32 s42, s42, s45
  s_add_u32 s42, s42, {WS_QP}
  v_lshrrev_b32 v29, 5, {VL}       ; kpl
  v_and_b32 v30, 31, {VL}          ; c
  v_lshlrev_b32 v31, 12, v29
  v_lshl_add_u32 v31, v30, 4, v31
  v_add_u32 v51, s42, v31
  v_add_u32 v52, 8192, v51
  s_lshl_b32 s42, s28, 7
  s_add_u32 s42, s42, {WS_XID}
  v_lshl_add_u32 v50, v30, 2, s42
  s_mul_i32 s42, s37, 576
  s_lshl_b32 s45, s38, 8
  s_add_u32 s42, s42, s45
  s_add_u32 s42, s42, {QB}
  v_lshlrev_b32 v30, 3, v30
  v_lshl_add_u32 v30, v29, 2, v30
  v_add_u32 v53, s42, v30
  s_lshl_b32 s42, s28, 1
  s_add_u32 s42, s42, s39
  s_lshl_b32 s42, s42, 5
  s_lshl_b32 s45, s40, 1
  s_add_u32 s42, s42, s45
  s_add_u32 s42, s42, s37
  s_mul_i32 s42, s42, {OPS}
  s_lshl_b32 s45, s38, 10
  s_add_u32 s42, s42, s45
  s_add_u32 s42, s42, {WS_OP}
  v_lshlrev_b32 v54, 3, {VL}
  v_add_u32 v54, s42, v54
  s_lshl_b32 s42, s28, 1
  s_add_u32 s42, s42, s38
  s_mul_i32 s33, s42, {32*OPS}
  s_lshl_b32 s56, s29, 7
  s_add_u32 s33, s33, s56
  s_lshl_b32 s56, s37, 6
  s_add_u32 s33, s33, s56
  s_add_u32 s33, s33, {WS_OP}
  v_lshrrev_b32 v6, 2, {VL}       ; s16
  v_mul_u32_u24 v7, {OPS}, v6
  v_and_b32 v62, 3, {VL}
  v_lshl_add_u32 v7, v62, 4, v7
  v_add_u32 v62, s33, v7
  v_add_u32 v63, {16*OPS}, v62        ; s16+16
  v_mov_b32 v46, 0x3f803f80
  v_mov_b32 v47, 0x3f803f80
  v_mov_b32 v48, 0x3f803f80
  v_mov_b32 v49, 0x3f803f80
  v_and_b32 v55, 1, {VL}
  v_cmp_eq_u32 s[58:59], 1, v55
""")
xid_value("s34")
a("  s_mov_b32 s35, 0xffffff")
a("  s_waitcnt vmcnt(8)")
stamp(3)
a("  s_barrier")
for tt in range(2):
    for t in range(8):
        r = 64 + (tt*8 + t)*4
        a(f"  ds_read_b128 v[{r}:{r+3}], v{23 if t & 1 else 22} offset:{KBUF + (t>>1)*8192 + tt*2048}")

def w_weight_setup():
    srd(44, 12, SZ['wo'])
    srd(52, 18, SZ['w2'])
    a(f"""  s_lshl_b32 s42, s28, 9
  s_lshl_b32 s61, s29, 4
  s_add_u32 s42, s42, s61          ; g*512 + 16j
  s_lshl_b32 s61, s38, 8
  s_add_u32 s42, s42, s61          ; + h*256
  s_lshl_b32 s61, s37, 3
  s_add_u32 s42, s42, s61          ; + half*8
  s_mul_i32 s61, s42, 896
  s_lshl_b32 s60, s36, 10
  s_add_u32 s60, s60, {RA}
  v_mul_u32_u24 v19, 896, v8
  v_add_u32 v19, v19, v11
  s_lshl_b32 s33, s28, 4
  s_add_u32 s33, s33, s29          ; u
  s_min_u32 s42, s33, 111
  s_lshl_b32 s42, s42, 4
  s_lshl_b32 s62, s37, 3
  s_add_u32 s42, s42, s62          ; 16u + q*8   (q = v&1)
  s_mul_i32 s42, s42, 896
  s_lshl_b32 s62, s38, 7
  s_add_u32 s62, s42, s62          ; + (v>>1)*128
  s_cmp_lt_u32 s33, 112
  s_cselect_b32 s33, 0, 0x40000000
  v_add_u32 v20, s33, v19
  s_lshl_b32 s63, s38, 11
  s_lshl_b32 s33, s37, 10
  s_add_u32 s63, s63, s33
  s_add_u32 s63, s63, {RB}         ; RB + (v>>1)*2048 + q*1024
""")

def w_weight_loads(tagname):
    for cb in range(7):
        a(f"  s_add_u32 m0, s60, {cb*4096}")
        a(f"  s_add_u32 s33, s61, {cb*128}")
        dma("v19", 44, "s33")
    for k in range(4):
        if k == 3:
            a("  s_cmp_lg_u32 s38, 0")
            a(f"  s_cbranch_scc1 L_w2_done{tagname}")
        a(f"  s_add_u32 m0, s63, {k*4096}")
        a(f"  s_add_u32 s33, s62, {k*256}")
        dma("v20", 52, "s33")
    a(f"L_w2_done{tagname}:")

def q_loads():
    a("  global_load_dwordx4 v[32:35], v51, s[26:27] sc1")
    a("  global_load_dwordx4 v[36:39], v52, s[26:27] sc1")
    a("  global_load_dword v41, v50, s[26:27] sc1")

a("  s_cmp_lt_u32 s29, 16")
a("  s_cbranch_scc0 L_q_p")
w_weight_setup()
if OPT['wpos'] == 'first':
    pass
if OPT['wpos'] == 'q':
    a(f"  s_waitcnt vmcnt({OPT['qwait']})")
    stamp(4)
    q_loads()
    if OPT['a2']:
        a("  s_barrier")
    w_weight_loads("a")
    if OPT['opre']:
        a("  global_load_dword v2, v62, s[26:27] sc1")
        a("  global_load_dword v3, v63, s[26:27] sc1")
    a("  s_mov_b32 s33, 0")
    NY = 12 if OPT['opre'] else 10
    a("  s_cmp_lg_u32 s38, 0")
    a("  s_cbranch_scc1 L_qw10")
    a(f"  s_waitcnt vmcnt({NY+1})")
    a("  s_branch L_qchk")
    a("L_qw10:")
    a(f"  s_waitcnt vmcnt({NY})")
    a("  s_branch L_qchk")
a(f"""L_q_p:
  s_mov_b32 s33, 0
  s_waitcnt vmcnt({OPT['qwait']})
""")
stamp(4)
a("L_qpoll:")
q_loads()
a("  s_waitcnt vmcnt(0)")
a("L_qchk:")
check_regs("v40", range(32, 40))
a("  v_xor_b32 v41, s34, v41")
a("  v_and_b32 v40, 0xff, v40")
a("  v_and_or_b32 v40, v41, s35, v40")
poll_end("v40", "L_qpoll", "L_qok", masked=True)
stamp(5)
rec(13, "s33")
if OPT['wpos'] == 'mid':
    a("  s_cmp_lt_u32 s29, 16")
    a("  s_cbranch_scc0 L_nomid")
    w_weight_loads("m")
    a("L_nomid:")
for nbk in range(8):
    r = 160 + 4*nbk
    off = (nbk >> 2)*8192
    a(f"  ds_read_b64_tr_b16 v[{r}:{r+1}], v{24 + (nbk & 3)} offset:{off}")
    a(f"  ds_read_b64_tr_b16 v[{r+2}:{r+3}], v{24 + (nbk & 3)} offset:{off + 2048}")
a(f"""  v_add_f32 v32, v32, v36
  v_add_f32 v33, v33, v37
  v_add_f32 v34, v34, v38
  v_add_f32 v35, v35, v39
  v_cmp_ne_u32 vcc, 0, v41
  s_nop 0
  v_permlane32_swap_b32 v32, v34
  v_permlane32_swap_b32 v33, v35
  v_add_f32 v32, v32, v34
  v_add_f32 v33, v33, v35
  v_cvt_pk_bf16_f32 v32, v32, v33
  ds_write_b32 v53, v32
  s_cmp_eq_u64 vcc, 0
  s_cselect_b32 s35, {1 if OPT['fast'] else 0}, 0
  s_waitcnt lgkmcnt(0)
  s_barrier
""")
stamp(6)
for t in range(8):
    a(f"  ds_read_b128 v[{128+4*t}:{131+4*t}], v28 offset:{64*t}")
a(f"  s_mov_b32 s42, {C_LOG2E_16:#x}")
for t in range(8):
    a(f"  s_waitcnt lgkmcnt({7-t})")
    for tt in range(2):
        kr = 64 + (tt*8 + t)*4
        c = "0" if t == 0 else f"v[{32+4*tt}:{35+4*tt}]"
        a(f"  v_mfma_f32_16x16x32_bf16 v[{32+4*tt}:{35+4*tt}], v[{kr}:{kr+3}], v[{128+4*t}:{131+4*t}], {c}")
a(f"""  s_nop 6
  v_max3_f32 v44, v32, v33, v34
  v_max3_f32 v45, v36, v37, v38
  v_max3_f32 v44, v44, v35, v39
  v_max_f32 v44, v44, v45
  v_mov_b32 v45, v44
  s_nop 1
  v_permlane16_swap_b32 v44, v45
  v_max_f32 v44, v44, v45
  v_mov_b32 v45, v44
  s_nop 1
  v_permlane32_swap_b32 v44, v45
  v_max_f32 v44, v44, v45
  v_mul_f32 v44, s42, v44
""")
for r in range(8):
    a(f"  v_fma_f32 v{32+r}, v{32+r}, s42, -v44")
for r in range(8):
    a(f"  v_exp_f32 v{32+r}, v{32+r}")
a("  s_nop 0")
for r in range(4):
    a(f"  v_cvt_pk_bf16_f32 v{40+r}, v{32+2*r}, v{33+2*r}")
a("  s_nop 1")
a("  v_mfma_f32_16x16x32_bf16 v[224:227], v[40:43], v[46:49], 0")
for nbk in range(8):
    a(f"  v_mfma_f32_16x16x32_bf16 v[{192+4*nbk}:{195+4*nbk}], v[40:43], v[{160+4*nbk}:{163+4*nbk}], 0")
a(f"""  v_cndmask_b32 v45, v224, v225, s[58:59]
  v_rcp_f32 v56, v224
  v_rcp_f32 v57, v225
  v_log_f32 v45, v45
  s_cmp_eq_u32 s35, 1
  v_add_f32 v45, v45, v44
""")
tagit("v59", "v45")
a("  v_mov_b32 v61, v59")
for q in range(2):
    for h in range(2):
        for k in range(4):
            a(f"  v_mul_f32_dpp v{32+2*q+h}, v{192+4*(4*q+k)+h}, v{56+h} quad_perm:[0,1,2,3] row_mask:{1<<k:#x} bank_mask:0xf")
    a(f"  v_cvt_pk_bf16_f32 v{58+2*q}, v{32+2*q}, v{33+2*q}")
a(f"""  s_cbranch_scc1 L_pub_local
  global_store_dwordx2 v54, v[58:59], s[26:27] sc1
  global_store_dwordx2 v54, v[60:61], s[26:27] offset:512 sc1
  s_branch L_pub_done
L_pub_local:                       ; every reader shares this die's L2
  global_store_dwordx2 v54, v[58:59], s[26:27]
  global_store_dwordx2 v54, v[60:61], s[26:27] offset:512
L_pub_done:
""")
stamp(7)
a("  s_cmp_lt_u32 s29, 16")
a("  s_cbranch_scc1 L_wstage")
a("  s_barrier")
dump_stamps()
a("  s_endpgm")

a("L_wstage:")
if OPT['wpos'] == 'late':
    w_weight_loads("l")
a(f"""  v_xor_b32 v24, s36, v16
  v_lshl_add_u32 v24, v24, 5, v15
  v_add_u32 v25, {RB}, v24
  v_add_u32 v24, {RA}, v24
  v_and_b32 v26, 1, {VL}
  v_lshlrev_b32 v27, 5, v26
  v_lshl_add_u32 v27, v13, 3, v27
  v_add_u32 v27, {HV}, v27
  v_lshlrev_b32 v28, 6, v26
  v_lshl_add_u32 v28, v13, 3, v28
  v_add_u32 v28, {OV}, v28
  v_and_b32 v54, 3, {VL}
  v_lshlrev_b32 v54, 2, v54
  v_and_b32 v55, 1, v13
  v_lshl_add_u32 v54, v55, 5, v54
  v_lshrrev_b32 v55, 1, v13
  v_lshl_add_u32 v54, v55, 1, v54
  s_lshl_b32 s42, s38, 6
  s_lshl_b32 s45, s37, 4
  s_add_u32 s42, s42, s45
  s_add_u32 s42, s42, {OV}
  v_add_u32 v54, s42, v54
  s_lshl_b32 s42, s28, 4
  s_add_u32 s42, s42, s29
  s_mul_i32 s42, s42, {APS}
  s_lshl_b32 s45, s36, {8 if OPT['appad'] else 7}
  s_add_u32 s42, s42, s45
  s_add_u32 s42, s42, {WS_AP}
  v_lshlrev_b32 v55, 3, {VL}
  v_add_u32 v55, s42, v55
  v_bfe_u32 v56, {VL}, 3, 1
  v_lshl_add_u32 v56, v56, 6, v55
  v_add_u32 v57, 4096, v56
  s_lshl_b32 s42, s38, 2
  s_add_u32 s42, s42, {GT}
  v_mov_b32 v29, s42
  ds_read_b32 v50, v29
  s_mov_b32 s56, 0xf000f000
  s_mov_b32 s57, 0xf000f000
  s_mov_b32 s33, 0
  s_waitcnt vmcnt(0) lgkmcnt(0)
""")
if OPT['early']:
    a("""  global_load_dwordx4 v[32:35], v62, s[26:27] sc1
  global_load_dwordx4 v[36:39], v63, s[26:27] sc1""")
a("  s_barrier")
stamp(8)
if not OPT['early']:
    a("""  global_load_dwordx4 v[32:35], v62, s[26:27] sc1
  global_load_dwordx4 v[36:39], v63, s[26:27] sc1""")
a("  ds_read_b64 v[106:107], v27")
for cb in range(7):
    a(f"  ds_read_b64_tr_b16 v[{92+2*cb}:{93+2*cb}], v25 offset:{cb*2048}")
for cb in range(7):
    a(f"  ds_read_b64_tr_b16 v[{64+4*cb}:{65+4*cb}], v24 offset:{cb*4096}")
    a(f"  ds_read_b64_tr_b16 v[{66+4*cb}:{67+4*cb}], v24 offset:{cb*4096+2048}")
a("  s_waitcnt vmcnt(0)")
a("  s_branch L_ochk")
a(f"""L_opoll:
  global_load_dwordx4 v[32:35], v62, s[26:27] sc1
  global_load_dwordx4 v[36:39], v63, s[26:27] sc1
  s_waitcnt vmcnt(0)
L_ochk:
""")
check_regs("v48", [33, 35, 37, 39])
poll_end("v48", "L_opoll", "L_ook")
stamp(9)
rec(12, "s33")
a(f"""  v_max_f32 v52, v33, v37
  v_max_f32 v53, v35, v39
  v_lshlrev_b32 v40, 16, v32       ; A: d0h0
  v_and_b32 v41, 0xffff0000, v32   ;    d0h1
  v_permlane16_swap_b32 v52, v53
  v_lshlrev_b32 v42, 16, v34       ;    d1h0
  v_and_b32 v43, 0xffff0000, v34   ;    d1h1
  v_max_f32 v52, v52, v53          ; rows: h0(01) h1(01) h0(23) h1(23)
  v_mov_b32 v53, v52
  v_lshlrev_b32 v44, 16, v36       ; B
  v_and_b32 v45, 0xffff0000, v36
  v_permlane32_swap_b32 v52, v53
  v_max_f32 v52, v52, v53
  v_lshlrev_b32 v46, 16, v38
  v_and_b32 v47, 0xffff0000, v38
  v_max_f32_dpp v52, v52, v52 row_shr:4 row_mask:0xf bank_mask:0xf
  s_nop 1
  v_max_f32_dpp v52, v52, v52 row_shr:8 row_mask:0xf bank_mask:0xf
  s_nop 0
  v_readlane_b32 s42, v52, 15
  v_readlane_b32 s45, v52, 31
  s_nop 1
  v_subrev_f32 v33, s42, v33
  v_subrev_f32 v37, s42, v37
  v_subrev_f32 v35, s45, v35
  v_subrev_f32 v39, s45, v39
  v_exp_f32 v33, v33               ; w A h0
  v_exp_f32 v37, v37               ; w B h0
  v_exp_f32 v35, v35               ; w A h1
  v_exp_f32 v39, v39               ; w B h1
  s_nop 0
  v_mul_f32 v40, v40, v33
  v_mul_f32 v41, v41, v35
  v_mul_f32 v42, v42, v33
  v_mul_f32 v43, v43, v35
  v_fmac_f32 v40, v44, v37
  v_fmac_f32 v41, v45, v39
  v_fmac_f32 v42, v46, v37
  v_fmac_f32 v43, v47, v39
  v_add_f32 v52, v33, v37          ; den h0
  v_add_f32 v53, v35, v39          ; den h1
  s_nop 0
  v_permlane16_swap_b32 v40, v41
  v_permlane16_swap_b32 v42, v43
  v_permlane16_swap_b32 v52, v53
  v_add_f32 v40, v40, v41
  v_add_f32 v42, v42, v43
  v_add_f32 v52, v52, v53
  v_mov_b32 v53, v52
  s_nop 1
  v_permlane32_swap_b32 v40, v42
  v_permlane32_swap_b32 v52, v53
  v_add_f32 v40, v40, v42
  v_add_f32 v52, v52, v53          ; rows h0 h1 h0 h1
  s_nop 0
  v_add_f32_dpp v40, v40, v40 row_shr:4 row_mask:0xf bank_mask:0xf
  v_add_f32_dpp v52, v52, v52 row_shr:4 row_mask:0xf bank_mask:0xf
  s_nop 0
  v_add_f32_dpp v40, v40, v40 row_shr:8 row_mask:0xf bank_mask:0xf
  v_add_f32_dpp v52, v52, v52 row_shr:8 row_mask:0xf bank_mask:0xf
  v_mul_f32 v40, v40, v50          ; * gate
  v_rcp_f32 v52, v52
""")
if STAMP == 3: stamp(11)
a(f"""  s_mov_b64 exec, s[56:57]
  v_mul_f32 v40, v40, v52
  v_cvt_pk_bf16_f32 v40, v40, v40
  ds_write_b16 v54, v40
  s_mov_b64 exec, -1
  s_waitcnt lgkmcnt(1)
""")
for cb in range(7):
    a(f"  v_mfma_f32_16x16x16_bf16 v[{110+4*cb}:{113+4*cb}], v[106:107], v[{92+2*cb}:{93+2*cb}], 0")
a(f"""  s_waitcnt lgkmcnt(0)
  s_barrier
""")
if STAMP == 3: stamp(12)
a(f"""  ds_read2_b64 v[40:43], v28 offset0:0 offset1:4
  s_waitcnt lgkmcnt(0)
""")
if STAMP == 3: stamp(13)
for cb in range(7):
    a(f"  v_mfma_f32_16x16x32_bf16 v[{110+4*cb}:{113+4*cb}], v[40:43], v[{64+4*cb}:{67+4*cb}], v[{110+4*cb}:{113+4*cb}]")
a("  s_mov_b64 exec, 0xffff")
a("  s_nop 0")
for cb in range(7):
    r = 110 + 4*cb
    tagit(f"v{r}", f"v{r}")
    if OPT['appad']:
        a(f"  global_store_dwordx2 v{56 if cb < 4 else 57}, v[{r}:{r+1}], s[26:27] offset:{1024*(cb % 4)} sc1")
    else:
        a(f"  global_store_dwordx2 v55, v[{r}:{r+1}], s[26:27] offset:{512*cb} sc1")
stamp(10)
if OPT['apack']:
    a("  s_waitcnt vmcnt(0)")
    stamp(11)
a("  s_mov_b64 exec, -1")
dump_stamps()
a("  s_endpgm")

a("L_aux0:")
if STAMP in (1, 2):
    for k in range(1, 16):
        a(f"  s_mov_b32 s{64+2*k}, 0")
a(f"""  s_lshr_b32 s29, s2, 3            ; j
  s_mov_b32 s32, 0xff
  v_lshrrev_b32 v13, 4, {VL}       ; g4
  v_lshlrev_b32 v18, 4, {VL}
  v_add_u32 v21, 1024, v18
  s_waitcnt lgkmcnt(0)
  s_load_dword s31, s[26:27], {WS_E}
""")
stamp(1)
srd(52, 4, SZ['x'])
a(f"""  s_mov_b32 m0, {XB}
  s_cmp_ge_u32 s29, 16
  buffer_load_dwordx4 v18, s[52:55], 0 offen lds
  s_mov_b32 m0, {XB+1024}
  s_nop 0
  buffer_load_dwordx4 v21, s[52:55], 0 offen lds
  s_cbranch_scc1 L_aux
  s_mov_b32 s56, -1
  s_mov_b32 s57, 0x00ffffff
  s_mov_b64 exec, s[56:57]
  global_load_dwordx4 v[70:73], v18, s[4:5]
  global_load_dwordx4 v[74:77], v18, s[4:5] offset:896
  global_load_dwordx4 v[78:81], v18, s[20:21]
  s_mov_b64 exec, -1
""")
a("L_aux:")
tr_lane_setup()
for nb in range(4):
    a(f"  v_xor_b32 v{24+nb}, {nb}, v16")
    a(f"  v_lshl_add_u32 v{24+nb}, v{24+nb}, 5, v15")
    a(f"  v_add_u32 v{24+nb}, {RC}, v{24+nb}")
h_unit_index("s39")
a(f"""  s_mul_i32 s40, s39, 9363
  s_lshr_b32 s40, s40, 16          ; cbh
  s_mul_i32 s41, s40, 7
  s_sub_u32 s41, s39, s41          ; kp
  v_and_b32 v28, 1, {VL}
  v_mul_u32_u24 v28, 896, v28
  v_lshl_add_u32 v28, v13, 3, v28
  s_lshl_b32 s42, s41, 7
  s_add_u32 s42, s42, {XB}
  v_add_u32 v28, s42, v28
  s_mul_i32 s42, s41, {2*7168}
  s_lshl_b32 s43, s40, 8
  s_add_u32 s42, s42, s43
  s_add_u32 s42, s42, {WS_HP}
  v_lshlrev_b32 v31, 2, {VL}
  v_add_u32 v31, s42, v31
  v_add_u32 v30, 7168, v31
  s_waitcnt lgkmcnt(0)
""")
tau_setup()
xid_value("s34")
a(f"""  s_lshl_b32 s42, s28, 7
  s_lshl_b32 s43, s29, 2
  s_add_u32 s42, s42, s43
  s_add_u32 s42, s42, {WS_XID}
  v_mov_b32 v6, s42
  v_mov_b32 v7, s34
  s_waitcnt vmcnt(0)
  s_mov_b64 exec, 1
  global_store_dword v6, v7, s[26:27] sc1
  s_mov_b64 exec, -1
  s_barrier                        ; barrier Q
  s_barrier                        ; barrier Q2
""")
stamp(2)
if OPT['tlb']:
    a(f"""  s_lshl_b32 s42, s28, 9
  s_lshl_b32 s43, s29, 4
  s_add_u32 s42, s42, s43
  s_mul_i32 s42, s42, 896
  v_mov_b32 v6, s42
  v_mov_b32 v7, 0
  s_mov_b64 exec, 1
  global_load_dword v2, v6, s[12:13] nt
  global_load_dword v2, v7, s[18:19] offset:64 nt
  global_load_dword v2, v7, s[22:23] nt
  s_mov_b64 exec, -1
""")
a("  s_cmp_ge_u32 s39, 196")
a("  s_cbranch_scc1 L_nohpub")
for st in range(2):
    a(f"  ds_read2_b64 v[{48+4*st}:{51+4*st}], v28 offset0:{8*st} offset1:{8*st+4}")
    for nb in range(4):
        r = 96 + 16*st + 4*nb
        a(f"  ds_read_b64_tr_b16 v[{r}:{r+1}], v{24+nb} offset:{st*4096}")
        a(f"  ds_read_b64_tr_b16 v[{r+2}:{r+3}], v{24+nb} offset:{st*4096+2048}")
for st in range(2):
    a(f"  s_waitcnt lgkmcnt({9 - 9*st})")
    for nb in range(4):
        r = 96 + 16*st + 4*nb
        c = "0" if st == 0 else f"v[{32+4*nb}:{35+4*nb}]"
        a(f"  v_mfma_f32_16x16x32_bf16 v[{32+4*nb}:{35+4*nb}], v[{48+4*st}:{51+4*st}], v[{r}:{r+3}], {c}")
a("  s_nop 7")
for r in range(2):
    a(f"  v_permlane16_swap_b32 v{32+r}, v{36+r}")
    a(f"  v_permlane16_swap_b32 v{40+r}, v{44+r}")
a("  s_nop 1")
for r in range(2):
    a(f"  v_permlane32_swap_b32 v{32+r}, v{40+r}")
a("  s_nop 1")
tagit("v32", "v32")
tagit("v33", "v33")
a("""  global_store_dword v31, v32, s[26:27] sc1
  global_store_dword v30, v33, s[26:27] sc1
L_nohpub:""")
stamp(5)
a("  s_cmp_ge_u32 s29, 16")
a("  s_cbranch_scc1 L_aux_a")
a("  v_mov_b32 v44, 0")
a("  v_mov_b32 v45, 0")
for r in range(4):
    a(f"  v_lshlrev_b32 v46, 16, v{78+r}")
    a(f"  v_and_b32 v47, 0xffff0000, v{78+r}")
    for b in range(2):
        a(f"  v_lshlrev_b32 v48, 16, v{70+4*b+r}")
        a(f"  v_and_b32 v49, 0xffff0000, v{70+4*b+r}")
        a(f"  v_mul_f32 v48, v48, v46")
        a(f"  v_mul_f32 v49, v49, v47")
        a(f"  v_cvt_pk_bf16_f32 v48, v48, v49")
        a(f"  v_lshlrev_b32 v49, 16, v48")
        a(f"  v_and_b32 v48, 0xffff0000, v48")
        a(f"  v_add_f32 v{44+b}, v{44+b}, v49")
        a(f"  v_add_f32 v{44+b}, v{44+b}, v48")
a(f"""  v_cmp_gt_u32 vcc, 56, {VL}
  s_nop 1
  v_cndmask_b32 v44, 0, v44, vcc
  v_cndmask_b32 v45, 0, v45, vcc
  s_nop 1
""")
for sh in (1, 2, 4, 8):
    a(f"  v_add_f32_dpp v44, v44, v44 row_shr:{sh} row_mask:0xf bank_mask:0xf")
    a(f"  v_add_f32_dpp v45, v45, v45 row_shr:{sh} row_mask:0xf bank_mask:0xf")
    a("  s_nop 0")
a(f"""  v_add_f32_dpp v44, v44, v44 row_bcast:15 row_mask:0xa bank_mask:0xf
  v_add_f32_dpp v45, v45, v45 row_bcast:15 row_mask:0xa bank_mask:0xf
  s_nop 0
  v_add_f32_dpp v44, v44, v44 row_bcast:31 row_mask:0xc bank_mask:0xf
  v_add_f32_dpp v45, v45, v45 row_bcast:31 row_mask:0xc bank_mask:0xf
  s_nop 0
  v_readlane_b32 s42, v44, 63
  v_readlane_b32 s43, v45, 63
  s_nop 1
  v_and_b32 v46, 1, {VL}
  v_cmp_eq_u32 vcc, 0, v46
  v_mov_b32 v47, s43
  v_mov_b32 v48, s42
  v_cndmask_b32 v47, v47, v48, vcc
  v_mul_f32 v47, 0xbfb8aa3b, v47   ; -log2e * z
  v_exp_f32 v47, v47
  s_nop 0
  v_add_f32 v47, 1.0, v47
  v_rcp_f32 v47, v47               ; g[b = lane&1]
  s_nop 0
  v_sub_f32 v82, 1.0, v47          ; 1-g
  v_lshlrev_b32 v46, 2, v46
  v_add_u32 v46, {GT}, v46
  s_mov_b64 exec, 3
  ds_write_b32 v46, v47
  s_mov_b64 exec, -1
  s_waitcnt lgkmcnt(0)
""")
stamp(3)
a("L_aux_a:")
a("  s_barrier")
a("  s_cmp_lt_u32 s29, 16")
a("  s_cbranch_scc1 L_aux_w")
a("  s_cmp_lt_u32 s29, 23")
a("  s_cbranch_scc1 L_final")
dump_stamps()
a("  s_endpgm")

a(f"""L_final:
  s_sub_u32 s36, s29, 16           ; p
  s_lshl_b32 s37, s36, 3
  s_add_u32 s37, s37, s28          ; c
  v_lshrrev_b32 v29, 2, {VL}       ; u16
  v_mul_u32_u24 v30, {APS}, v29
  v_and_b32 v31, 3, {VL}
  v_lshl_add_u32 v30, v31, 4, v30
  s_lshl_b32 s42, s37, {7 if OPT['appad'] else 6}
  s_add_u32 s42, s42, {WS_AP}
  v_add_u32 v30, s42, v30
""")
for k in range(8):
    a(f"  v_add_u32 v{16+k}, {k*16*APS}, v30")
a(f"""  ; out + b*896 + (8c + 2*c4 + (r>>1))*2
  v_and_b32 v28, 1, v13
  v_mul_u32_u24 v28, 896, v28
  v_lshl_add_u32 v28, v31, 2, v28
  v_lshrrev_b32 v29, 1, v13
  v_lshl_add_u32 v28, v29, 1, v28
  s_lshl_b32 s42, s37, 4
  v_add_u32 v28, s42, v28
  s_mov_b32 s56, 0xf000f000
  s_mov_b32 s57, 0xf000f000
  v_mov_b32 v29, {WS_E}
  s_barrier                        ; barrier B
  s_barrier                        ; barrier C
  s_mov_b32 s33, 0
""")
if OPT['fdelay']:
    a(f"""L_fd:
  s_memrealtime s[60:61]
  s_waitcnt lgkmcnt(0)
  s_sub_u32 s62, s60, s64
  s_cmp_lt_u32 s62, {OPT['fdelay']}
  s_cbranch_scc1 L_fd""")
stamp(8)
NS = OPT['fsets']
def fbase(i): return 32 + 32*i
def fissue(i):
    for k in range(8):
        a(f"  global_load_dwordx4 v[{fbase(i)+4*k}:{fbase(i)+4*k+3}], v{16+k}, s[26:27] sc1")
for i in range(NS):
    fissue(i)
a("L_fpoll:")
for i in range(NS):
    a(f"  s_waitcnt vmcnt({8*(NS-1)})")
    check_regs("v14", [fbase(i)+4*k+q for k in range(8) for q in (0, 2)])
    a("  v_and_b32 v14, 0xff, v14")
    a("  v_cmp_ne_u32 vcc, 0, v14")
    a("  s_add_u32 s33, s33, 1")
    a(f"  s_cmp_gt_u32 s33, {OPT['spin']}")
    a(f"  s_cbranch_scc1 L_fok{i}")
    a(f"  s_cbranch_vccz L_fok{i}")
    if OPT['fsleep']:
        a(f"  s_sleep {OPT['fsleep']}")
    fissue(i)
a("  s_branch L_fpoll")
TB = 144
for i in range(NS):
    a(f"L_fok{i}:")
    for k in range(4):
        for h in range(2):
            x = fbase(i) + 8*k + 2*h
            a(f"  v_pk_add_f32 v[{TB+4*k+2*h}:{TB+4*k+2*h+1}], v[{x}:{x+1}], v[{x+4}:{x+5}]")
    if i < NS-1:
        a("  s_branch L_fsum")
a("L_fsum:")
stamp(9)
rec(12, "s33")
for h in range(2):
    a(f"  v_pk_add_f32 v[{TB+2*h}:{TB+2*h+1}], v[{TB+2*h}:{TB+2*h+1}], v[{TB+4+2*h}:{TB+5+2*h}]")
    a(f"  v_pk_add_f32 v[{TB+8+2*h}:{TB+9+2*h}], v[{TB+8+2*h}:{TB+9+2*h}], v[{TB+12+2*h}:{TB+13+2*h}]")
for h in range(2):
    a(f"  v_pk_add_f32 v[{160+2*h}:{161+2*h}], v[{TB+2*h}:{TB+2*h+1}], v[{TB+8+2*h}:{TB+9+2*h}]")
a(f"""  s_nop 1
  v_permlane16_swap_b32 v160, v161
  v_permlane16_swap_b32 v162, v163
  v_add_f32 v160, v160, v161
  v_add_f32 v162, v162, v163
  s_nop 1
  v_permlane32_swap_b32 v160, v162
  v_add_f32 v160, v160, v162
  s_nop 1
  v_add_f32_dpp v160, v160, v160 row_shr:4 row_mask:0xf bank_mask:0xf
  s_nop 1
  v_add_f32_dpp v160, v160, v160 row_shr:8 row_mask:0xf bank_mask:0xf
  s_mov_b64 exec, s[56:57]
  v_cvt_pk_bf16_f32 v160, v160, v160
  global_store_short v28, v160, s[22:23]{' ' + OPT['outflag'].replace('_', ' ') if OPT['outflag'] != 'none' else ''}
  s_cmp_lg_u32 s37, 0
  s_cbranch_scc1 L_noE
  s_mov_b64 exec, 1
  global_store_dword v29, {VTAU}, s[26:27] sc1
L_noE:
  s_mov_b64 exec, -1
""")
if OPT['deadline']:
    a(f"""L_dl:
  s_memrealtime s[56:57]
  s_waitcnt lgkmcnt(0)
  s_sub_u32 s33, s56, s96
  s_cmp_lt_u32 s33, {OPT['deadline']}
  s_cbranch_scc1 L_dl""")
stamp(10, final=True)
if OPT['dbgts']:
    a("  s_waitcnt lgkmcnt(0)")
    a("  s_cmp_lg_u32 s37, 0")
    a("  s_cbranch_scc1 L_nodbg")
    a("  s_mov_b64 exec, 1")
    a("  v_mov_b32 v8, 0")
    for q in range(4):
        for r in range(4):
            k = 4*q + r
            a(f"  s_sub_u32 s33, s{64+2*k}, s64")
            a(f"  v_mov_b32 v{12+r}, s33")
        a(f"  global_store_dwordx4 v8, v[12:15], s[24:25] offset:{16*q}")
        a("  s_nop 1")
    a("L_nodbg:")
else:
    dump_stamps()
a("  s_endpgm")

a("L_aux_w:")
a(f"""  ; h gather set-up: lanes (kp = l>>3 (0..6), b = (l>>2)&1, q4 = l&3) ; HP + (kp*2+b)*7168 + (16u + 4*q4)*4
  s_lshl_b32 s38, s28, 4
  s_add_u32 s38, s38, s29          ; u = g*16 + j
  v_lshrrev_b32 v85, 3, {VL}
  v_bfe_u32 v86, {VL}, 2, 1
  v_lshl_add_u32 v85, v85, 1, v86
  v_mul_u32_u24 v85, 7168, v85
  v_and_b32 v87, 3, {VL}
  v_lshl_add_u32 v85, v87, 4, v85
  s_lshl_b32 s42, s38, 6
  s_add_u32 s42, s42, {WS_HP}
  v_add_u32 v85, s42, v85
  v_readlane_b32 s42, v82, 0
  v_readlane_b32 s43, v82, 1
  v_cmp_eq_u32 vcc, 0, v86
  s_nop 0
  v_mov_b32 v36, s43
  v_mov_b32 v37, s42
  v_cndmask_b32 v83, v36, v37, vcc
  v_lshlrev_b32 v84, 5, v86
  v_lshl_add_u32 v84, v87, 3, v84
  v_add_u32 v84, {HV}, v84          ; HV + b*32 + q4*8
""")
a(f"""  v_mov_b32 v32, 0
  v_mov_b32 v33, 0
  v_mov_b32 v34, 0
  v_mov_b32 v35, 0
  s_mov_b32 s56, -1
  s_mov_b32 s57, 0x00ffffff
  s_mov_b32 s33, 0
  s_setprio 3
""")
if OPT['a2'] and OPT['wpos'] == 'q':
    a("  s_barrier                        ; barrier A2")
a(f"""  s_cmp_ge_u32 s38, 112
  s_cbranch_scc1 L_hskip
  s_mov_b64 exec, s[56:57]
  global_load_dwordx4 v[32:35], v85, s[26:27] sc1
  s_mov_b64 exec, -1
L_hskip:
  s_barrier                        ; barrier B
""")
stamp(6)
a(f"""  s_cmp_ge_u32 s38, 112
  s_cbranch_scc1 L_hdone
  s_mov_b64 exec, s[56:57]
  s_waitcnt vmcnt(0)
  s_branch L_hchk
L_hpoll:
  global_load_dwordx4 v[32:35], v85, s[26:27] sc1
  s_waitcnt vmcnt(0)
L_hchk:
""")
check_regs("v40", range(32, 36))
poll_end("v40", "L_hpoll", "L_hok")
a("  s_mov_b64 exec, -1")
a("  s_nop 1")
for r in range(4):
    a(f"  v_add_f32_dpp v{32+r}, v{32+r}, v{32+r} row_ror:8 row_mask:0xf bank_mask:0xf")
for r in range(4):
    a(f"  v_mov_b32 v{36+r}, v{32+r}")
a("  s_nop 1")
for r in range(4):
    a(f"  v_permlane16_swap_b32 v{32+r}, v{36+r}")
for r in range(4):
    a(f"  v_add_f32 v{32+r}, v{32+r}, v{36+r}")
for r in range(4):
    a(f"  v_mov_b32 v{36+r}, v{32+r}")
a("  s_nop 1")
for r in range(4):
    a(f"  v_permlane32_swap_b32 v{32+r}, v{36+r}")
for r in range(4):
    a(f"  v_add_f32 v{32+r}, v{32+r}, v{36+r}")
a("L_hdone:")
for r in range(4):
    a(f"  v_max_f32 v{32+r}, 0, v{32+r}")
    a(f"  v_mul_f32 v{32+r}, v{32+r}, v83")
a(f"""  v_cvt_pk_bf16_f32 v32, v32, v33
  v_cvt_pk_bf16_f32 v33, v34, v35
  s_mov_b64 exec, 0xff
  ds_write_b64 v84, v[32:33]
  s_mov_b64 exec, -1
  s_waitcnt lgkmcnt(0)
""")
stamp(7)
a("  s_barrier                        ; barrier D1")
dump_stamps()
a("L_end:")
a("  s_endpgm")
a("L_code_end:")
a(footer(vgpr=232, sgpr=100))
open(sys.argv[1], "w").write(a.text())
```

```python
import sys
from asmlib import *

OPT = dict(stamp=0, spin=400000, nt=1, qwait=3, sleep=0, fsleep=0, fast=1, tlb=0, prefetch=1,
           ops=2176, aps=3712, deadline=0, dbgts=0, wpos='q', a2=1, opre=1, fsets=1, outflag='sc1', apack=0, fdelay=0, appad=1, early=0, probe1=0, amp=-1, ampa=0, ampf=10, ampwg=37, ampwave=1)
for a_ in sys.argv[2:]:
    k, v = a_.split('=')
    assert k in OPT, k
    OPT[k] = int(v) if v.lstrip('-').isdigit() else v
STAMP = OPT['stamp']
OPS = OPT['ops']; APS = 7296 if OPT['appad'] else OPT['aps']

WS_E = 0
WS_XID = 0x400
WS_QP = 0x1000
WS_HP = 0x21000
WS_OP = 0x40000
WS_AP = 0x180000
WS_TS = 0x300000
assert WS_HP + 7*2*7168 <= WS_OP and WS_OP + 512*OPS <= WS_AP and WS_AP + 128*APS <= WS_TS

KBUF = 0
VBUF = 32768
RA = 65536
RB = 94208
RC = 108544
XB = 116736
QB = 118784
OV = 119936
HV = 120064
GT = 120128
LDS_BYTES = 120320

C_LOG2E_16 = 0x3DB8AA3B
NT = " nt" if OPT['nt'] else ""
VTAU = "v4"
VL = "v5"

a = Asm()
def stamp(k, final=False):
    if STAMP == 1 or (STAMP == 2 and (k == 0 or final)) or (STAMP == 3 and k in (0, OPT['amp'], OPT['ampa'])):
        a(f"  s_memrealtime s[{64+2*k}:{65+2*k}]")
def rec(k, sreg):
    if STAMP == 1:
        a(f"  s_mov_b32 s{64+2*k}, {sreg}")

def srd(dst, ptr, size):
    a(f"  s_mov_b32 s{dst}, s{ptr}")
    a(f"  s_mov_b32 s{dst+1}, s{ptr+1}")
    a(f"  s_mov_b32 s{dst+2}, {size}")
    a(f"  s_mov_b32 s{dst+3}, 0x20000")

def dma(voff, srdreg, soff):
    a(f"  buffer_load_dwordx4 {voff}, s[{srdreg}:{srdreg+3}], {soff} offen{NT} lds")

def tagit(dst, src):
    a(f"  v_bfi_b32 {dst}, s32, {VTAU}, {src}")

def check_regs(acc, regs, first=True):
    regs = list(regs)
    for r in regs:
        a(f"  v_xor_b32 v{r}, s31, v{r}")
    if first:
        if len(regs) >= 3:
            a(f"  v_or3_b32 {acc}, v{regs[0]}, v{regs[1]}, v{regs[2]}"); regs = regs[3:]
        else:
            a(f"  v_or_b32 {acc}, v{regs[0]}, v{regs[1]}"); regs = regs[2:]
    while len(regs) >= 2:
        a(f"  v_or3_b32 {acc}, {acc}, v{regs[0]}, v{regs[1]}"); regs = regs[2:]
    if regs:
        a(f"  v_or_b32 {acc}, {acc}, v{regs[0]}")

def poll_end(acc, lab_retry, lab_ok, cnt="s33", sleep=None, masked=False):
    sleep = OPT['sleep'] if sleep is None else sleep
    if not masked:
        a(f"  v_and_b32 {acc}, 0xff, {acc}")
    a(f"  v_cmp_ne_u32 vcc, 0, {acc}")
    a(f"  s_add_u32 {cnt}, {cnt}, 1")
    a(f"  s_cmp_gt_u32 {cnt}, {OPT['spin']}")
    a(f"  s_cbranch_scc1 {lab_ok}")
    if sleep:
        a(f"  s_cbranch_vccz {lab_ok}")
        a(f"  s_sleep {sleep}")
        a(f"  s_branch {lab_retry}")
    else:
        a(f"  s_cbranch_vccnz {lab_retry}")
    a(f"{lab_ok}:")

def dump_stamps():
    if STAMP == 3:
        lab = a.label("L_amp")
        k = OPT['amp']
        a(f"""  s_cmp_lg_u32 s2, {OPT['ampwg']}
  s_cbranch_scc1 {lab}_x
  s_cmp_lg_u32 s30, {OPT['ampwave']}
  s_cbranch_scc1 {lab}_x
  s_waitcnt lgkmcnt(0)
  s_sub_u32 s33, s{64+2*k}, s{64+2*OPT['ampa']}
  s_mul_i32 s33, s33, {OPT['ampf']}
  s_add_u32 s33, s33, 1200
{lab}:
  s_memrealtime s[56:57]
  s_waitcnt lgkmcnt(0)
  s_sub_u32 s56, s56, s64
  s_cmp_lt_u32 s56, s33
  s_cbranch_scc1 {lab}
{lab}_x:""")
        return
    if not STAMP or OPT['dbgts']:
        return
    a("  s_waitcnt lgkmcnt(0)")
    a("  s_mul_i32 s33, s2, 5")
    a("  s_add_u32 s33, s33, s30")
    a("  s_lshl_b32 s33, s33, 6")
    a(f"  s_add_u32 s33, s33, {WS_TS}")
    a("  v_mov_b32 v8, s33")
    a("  s_mov_b64 exec, 1")
    for q in range(4):
        for r in range(4):
            a(f"  v_mov_b32 v{12+r}, s{64+2*(4*q+r)}")
        a(f"  global_store_dwordx4 v8, v[12:15], s[26:27] offset:{16*q}")
        a("  s_nop 1")

def tau_setup():
    a("  s_and_b32 s31, s31, 0xff")
    a("  s_mul_i32 s31, s31, 5")
    a("  s_add_u32 s31, s31, 59")
    a("  s_and_b32 s31, s31, 0xff")
    a(f"  v_mov_b32 {VTAU}, s31")

def xid_value(dst):
    a(f"  s_getreg_b32 {dst}, hwreg(HW_REG_XCC_ID, 0, 4)")
    a(f"  s_lshl_b32 {dst}, {dst}, 24")
    a(f"  s_mul_i32 s33, s31, 0x010101")
    a(f"  s_or_b32 {dst}, {dst}, s33")

def tr_lane_setup():
    a(f"""  v_bfe_u32 v14, {VL}, 2, 2        ; r4
  v_lshl_add_u32 v15, v13, 2, v14  ; row = 4*g4+r4
  v_bfe_u32 v16, v15, 1, 2         ; f
  v_and_b32 v17, 3, {VL}           ; c
  v_lshlrev_b32 v15, 7, v15
  v_lshl_add_u32 v15, v17, 3, v15  ; row*128 + c*8""")

def h_unit_index(dst):
    a(f"""  s_lshl_b32 {dst}, s28, 4
  s_add_u32 {dst}, {dst}, s29
  s_sub_u32 {dst}, {dst}, 16       ; P: g*16 + p
  s_lshl_b32 s33, s29, 3
  s_add_u32 s33, s33, s28
  s_add_u32 s33, s33, 128          ; W: 128 + i*8 + g
  s_cmp_lt_u32 s29, 16
  s_cselect_b32 {dst}, s33, {dst}""")

a(header(256, 320, LDS_BYTES))
stamp(0)
if OPT['deadline'] or OPT['probe1']:
    a("  s_memrealtime s[96:97]")
a(f"""  s_load_dwordx16 s[4:19], s[0:1], 0
  s_load_dwordx8 s[20:27], s[0:1], 64
  s_getpc_b64 s[34:35]
L_pc:
  v_lshlrev_b32 v1, {5 if OPT['prefetch'] else 0}, v0
  v_min_u32 v1, {"L_code_end - L_pc - 4" if OPT['prefetch'] else 0}, v1
  s_cmpk_ge_u32 s2, 0x100
  s_cbranch_scc1 L_end
  global_load_dword v3, v1, s[34:35]
  v_lshrrev_b32 v2, 6, v0
  v_and_b32 {VL}, 63, v0
  v_readfirstlane_b32 s30, v2
  v_lshrrev_b32 v8, 3, {VL}
  v_bfe_u32 v9, {VL}, 4, 2         ; (row>>1)&3
  v_and_b32 v10, 7, {VL}
  v_lshlrev_b32 v11, 1, v9
  v_xor_b32 v11, v11, v10
  v_lshlrev_b32 v11, 4, v11        ; *16 bytes
  v_lshl_add_u32 v18, v8, 13, v11
  s_and_b32 s28, s2, 7             ; g
  s_cmp_eq_u32 s30, 0
  s_cbranch_scc1 L_aux0
  s_lshr_b32 s42, s2, 6            ; kp
  s_mul_i32 s42, s42, {112*8192}
  s_lshl_b32 s43, s28, 10
  s_add_u32 s42, s42, s43
  s_bfe_u32 s43, s2, 0x30003       ; j&7
  s_lshl_b32 s43, s43, 7
  s_add_u32 s42, s42, s43
  s_sub_u32 s36, s30, 1            ; v
  s_lshl_b32 s43, s36, 16          ; v*8*8192
  s_add_u32 s42, s42, s43
  v_add_u32 v18, s42, v18
  s_lshl_b32 s43, s36, 10
  s_add_u32 m0, s43, {RA}
  s_lshl_b32 s44, 1, 18
  s_movk_i32 s45, 0x1000
  s_waitcnt lgkmcnt(0)
  global_load_lds_dwordx4 v18, s[10:11]{NT}
  s_add_u32 m0, m0, s45
  v_add_u32 v18, s44, v18
  global_load_lds_dwordx4 v18, s[10:11]{NT}
  s_add_u32 m0, m0, s45
  v_add_u32 v18, s44, v18
  global_load_lds_dwordx4 v18, s[10:11]{NT}
  s_cmp_ge_u32 s36, 2
  s_cbranch_scc1 L_wq_done
  s_add_u32 m0, m0, s45
  v_add_u32 v18, s44, v18
  global_load_lds_dwordx4 v18, s[10:11]{NT}
""")
a("L_wq_done:")
if OPT['probe1']:
    a(f"""L_pr1:
  s_memrealtime s[56:57]
  s_waitcnt lgkmcnt(0)
  s_sub_u32 s33, s56, s96
  s_cmp_lt_u32 s33, {OPT['probe1']}
  s_cbranch_scc1 L_pr1""")
if STAMP in (1, 2):
    for k in range(1, 16):
        a(f"  s_mov_b32 s{64+2*k}, 0")
if STAMP == 3: stamp(15)
a(f"""  s_load_dword s31, s[26:27], {WS_E}
  s_lshr_b32 s29, s2, 3            ; j
  s_mov_b32 s32, 0xff
  v_lshrrev_b32 v13, 4, {VL}       ; g4
  s_and_b32 s37, s36, 1            ; kh
  s_lshr_b32 s38, s36, 1           ; dh""")
stamp(1)
h_unit_index("s45")
a(f"""  s_mul_i32 s46, s45, 9363
  s_lshr_b32 s46, s46, 16          ; cbh = u1/7
  s_mul_i32 s47, s46, 7
  s_sub_u32 s47, s45, s47          ; kp = u1%7
  s_min_u32 s46, s46, 27
  s_lshl_b32 s46, s46, 7
  s_mul_i32 s47, s47, {64*3584}
  s_add_u32 s46, s46, s47
  s_mul_i32 s47, s36, {8*3584}
  s_add_u32 s46, s46, s47
  s_cmp_lt_u32 s45, 196
  s_cselect_b32 s45, 0, 0x40000000
  v_mul_u32_u24 v18, 3584, v8
  v_add3_u32 v18, v18, v11, s45
  s_lshl_b32 s47, s36, 10
  s_add_u32 s47, s47, {RC}
""")
srd(52, 16, SZ['w1'])
for k in range(2):
    a(f"  s_add_u32 m0, s47, {k*4096}")
    a(f"  s_add_u32 s45, s46, {k*4*8*3584}")
    dma("v18", 52, "s45")
a(f"""  v_xor_b32 v12, v9, v10
  v_lshlrev_b32 v12, 4, v12
  s_and_b32 s39, s29, 1            ; b
  s_lshr_b32 s40, s29, 1           ; s (0..15)
  s_lshl_b32 s41, s39, 3
  s_add_u32 s41, s41, s28          ; b*8+g
  s_lshl_b32 s41, s41, 21          ; *4096*512
  s_lshl_b32 s42, s40, 15          ; s*64*512
  s_add_u32 s41, s41, s42
  s_lshl_b32 s42, s37, 14          ; kh*32*512
  s_add_u32 s41, s41, s42
  s_lshl_b32 s42, s38, 8           ; dh*256
  s_add_u32 s41, s41, s42
  s_add_u32 s41, s41, {3072*512}
  s_lshl_b32 s43, s38, 14
  s_lshl_b32 s42, s37, 12
  s_add_u32 s43, s43, s42
  v_lshlrev_b32 v18, 9, v8         ; row*512
  v_add_u32 v19, v18, v12
  v_xor_b32 v20, 64, v19
  v_add_u32 v21, v18, v11          ; V voffset
""")
srd(44, 6, SZ['k'])
srd(48, 8, SZ['v'])
for c2 in range(2):
    for jj in range(4):
        a(f"  s_add_u32 m0, s43, {KBUF + c2*8192 + jj*1024}")
        a(f"  s_add_u32 s42, s41, {c2*128 + jj*4096}")
        dma("v20" if jj & 1 else "v19", 44, "s42")
tr_lane_setup()
a(f"""  ; q projection tile nb = v : addresses
  v_xor_b32 v24, s36, v16
  v_lshl_add_u32 v24, v24, 5, v15
  v_add_u32 v24, {RA}, v24
  v_and_b32 v25, 1, {VL}
  v_mul_u32_u24 v25, 896, v25
  v_lshl_add_u32 v25, v13, 3, v25
  s_lshr_b32 s42, s29, 3           ; kp
  s_mul_i32 s45, s42, 224
  s_add_u32 s45, s45, {XB}
  v_add_u32 v25, s45, v25
  s_lshl_b32 s45, s28, 14
  s_lshl_b32 s42, s42, 12
  s_add_u32 s45, s45, s42
  s_and_b32 s42, s29, 7
  s_lshl_b32 s42, s42, 8
  s_add_u32 s45, s45, s42
  s_lshl_b32 s42, s36, 6
  s_add_u32 s45, s45, s42
  s_add_u32 s45, s45, {WS_QP}
  v_lshlrev_b32 v26, 2, {VL}
  v_add_u32 v26, s45, v26
""")
a("  s_waitcnt lgkmcnt(0)")
tau_setup()
a("  s_waitcnt vmcnt(10)")
a("  s_barrier")
for st in range(3):
    a(f"  ds_read2_b64 v[{32+4*st}:{35+4*st}], v25 offset0:{8*st} offset1:{8*st+4}")
    a(f"  ds_read_b64_tr_b16 v[{48+4*st}:{49+4*st}], v24 offset:{st*4096}")
    a(f"  ds_read_b64_tr_b16 v[{50+4*st}:{51+4*st}], v24 offset:{st*4096+2048}")
a(f"  ds_read_b64 v[44:45], v25 offset:192")
a(f"  ds_read_b64_tr_b16 v[60:61], v24 offset:{3*4096}")
for st in range(3):
    a(f"  s_waitcnt lgkmcnt({8 - 3*st})")
    c = "0" if st == 0 else "v[64:67]"
    a(f"  v_mfma_f32_16x16x32_bf16 v[64:67], v[{32+4*st}:{35+4*st}], v[{48+4*st}:{51+4*st}], {c}")
a("  s_waitcnt lgkmcnt(0)")
a("  v_mfma_f32_16x16x16_bf16 v[68:71], v[44:45], v[60:61], 0")
a("  s_mov_b64 exec, 0xffff")
a("  s_nop 6")
a("  v_add_f32 v64, v64, v68")
a("  v_add_f32 v65, v65, v69")
tagit("v64", "v64")
tagit("v65", "v65")
a(f"""  global_store_dword v26, v64, s[26:27] sc1
  global_store_dword v26, v65, s[26:27] offset:2048 sc1
  s_mov_b64 exec, -1
""")
stamp(14)
a("  s_waitcnt vmcnt(10)")
a("  s_barrier")
for c2 in range(2):
    for jj in range(4):
        a(f"  s_add_u32 m0, s43, {VBUF + c2*8192 + jj*1024}")
        a(f"  s_add_u32 s42, s41, {c2*128 + jj*4096}")
        dma("v21", 48, "s42")
stamp(2)
a(f"""  ; K operand address: key*128 + (g4 ^ ((key>>1)&7))*16 + kh*4096
  v_and_b32 v22, 15, {VL}
  v_bfe_u32 v23, {VL}, 1, 3
  v_xor_b32 v23, v23, v13
  v_lshlrev_b32 v23, 4, v23
  v_lshl_add_u32 v22, v22, 7, v23
  s_lshl_b32 s42, s37, 12
  v_add_u32 v22, s42, v22
  v_xor_b32 v23, 64, v22
  s_add_u32 s42, s43, {VBUF}
""")
for nb in range(4):
    a(f"  v_xor_b32 v{24+nb}, {nb}, v16")
    a(f"  v_lshl_add_u32 v{24+nb}, v{24+nb}, 5, v15")
    a(f"  v_add_u32 v{24+nb}, s42, v{24+nb}")
a(f"""  ; q operand address: QB + (l&1)*576 + g4*16
  v_and_b32 v28, 1, {VL}
  v_mul_u32_u24 v28, 576, v28
  v_lshl_add_u32 v28, v13, 4, v28
  v_add_u32 v28, {QB}, v28
  s_lshl_b32 s42, s28, 14
  s_lshl_b32 s45, s39, 11
  s_add_u32 s42, s42, s45
  s_lshl_b32 s45, s37, 10
  s_add_u32 s42, s42, s45
  s_lshl_b32 s45, s38, 9
  s_add_u32 s42, s42, s45
  s_add_u32 s42, s42, {WS_QP}
  v_lshrrev_b32 v29, 5, {VL}       ; kpl
  v_and_b32 v30, 31, {VL}          ; c
  v_lshlrev_b32 v31, 12, v29
  v_lshl_add_u32 v31, v30, 4, v31
  v_add_u32 v51, s42, v31
  v_add_u32 v52, 8192, v51
  s_lshl_b32 s42, s28, 7
  s_add_u32 s42, s42, {WS_XID}
  v_lshl_add_u32 v50, v30, 2, s42
  s_mul_i32 s42, s37, 576
  s_lshl_b32 s45, s38, 8
  s_add_u32 s42, s42, s45
  s_add_u32 s42, s42, {QB}
  v_lshlrev_b32 v30, 3, v30
  v_lshl_add_u32 v30, v29, 2, v30
  v_add_u32 v53, s42, v30
  s_lshl_b32 s42, s28, 1
  s_add_u32 s42, s42, s39
  s_lshl_b32 s42, s42, 5
  s_lshl_b32 s45, s40, 1
  s_add_u32 s42, s42, s45
  s_add_u32 s42, s42, s37
  s_mul_i32 s42, s42, {OPS}
  s_lshl_b32 s45, s38, 10
  s_add_u32 s42, s42, s45
  s_add_u32 s42, s42, {WS_OP}
  v_lshlrev_b32 v54, 3, {VL}
  v_add_u32 v54, s42, v54
  s_lshl_b32 s42, s28, 1
  s_add_u32 s42, s42, s38
  s_mul_i32 s33, s42, {32*OPS}
  s_lshl_b32 s56, s29, 7
  s_add_u32 s33, s33, s56
  s_lshl_b32 s56, s37, 6
  s_add_u32 s33, s33, s56
  s_add_u32 s33, s33, {WS_OP}
  v_lshrrev_b32 v6, 2, {VL}       ; s16
  v_mul_u32_u24 v7, {OPS}, v6
  v_and_b32 v62, 3, {VL}
  v_lshl_add_u32 v7, v62, 4, v7
  v_add_u32 v62, s33, v7
  v_add_u32 v63, {16*OPS}, v62        ; s16+16
  v_mov_b32 v46, 0x3f803f80
  v_mov_b32 v47, 0x3f803f80
  v_mov_b32 v48, 0x3f803f80
  v_mov_b32 v49, 0x3f803f80
  v_and_b32 v55, 1, {VL}
  v_cmp_eq_u32 s[58:59], 1, v55
""")
xid_value("s34")
a("  s_mov_b32 s35, 0xffffff")
a("  s_waitcnt vmcnt(8)")
stamp(3)
a("  s_barrier")
for tt in range(2):
    for t in range(8):
        r = 64 + (tt*8 + t)*4
        a(f"  ds_read_b128 v[{r}:{r+3}], v{23 if t & 1 else 22} offset:{KBUF + (t>>1)*8192 + tt*2048}")

def w_weight_setup():
    srd(44, 12, SZ['wo'])
    srd(52, 18, SZ['w2'])
    a(f"""  s_lshl_b32 s42, s28, 9
  s_lshl_b32 s61, s29, 4
  s_add_u32 s42, s42, s61          ; g*512 + 16j
  s_lshl_b32 s61, s38, 8
  s_add_u32 s42, s42, s61          ; + h*256
  s_lshl_b32 s61, s37, 3
  s_add_u32 s42, s42, s61          ; + half*8
  s_mul_i32 s61, s42, 896
  s_lshl_b32 s60, s36, 10
  s_add_u32 s60, s60, {RA}
  v_mul_u32_u24 v19, 896, v8
  v_add_u32 v19, v19, v11
  s_lshl_b32 s33, s28, 4
  s_add_u32 s33, s33, s29          ; u
  s_min_u32 s42, s33, 111
  s_lshl_b32 s42, s42, 4
  s_lshl_b32 s62, s37, 3
  s_add_u32 s42, s42, s62          ; 16u + q*8   (q = v&1)
  s_mul_i32 s42, s42, 896
  s_lshl_b32 s62, s38, 7
  s_add_u32 s62, s42, s62          ; + (v>>1)*128
  s_cmp_lt_u32 s33, 112
  s_cselect_b32 s33, 0, 0x40000000
  v_add_u32 v20, s33, v19
  s_lshl_b32 s63, s38, 11
  s_lshl_b32 s33, s37, 10
  s_add_u32 s63, s63, s33
  s_add_u32 s63, s63, {RB}         ; RB + (v>>1)*2048 + q*1024
""")

def w_weight_loads(tagname):
    for cb in range(7):
        a(f"  s_add_u32 m0, s60, {cb*4096}")
        a(f"  s_add_u32 s33, s61, {cb*128}")
        dma("v19", 44, "s33")
    for k in range(4):
        if k == 3:
            a("  s_cmp_lg_u32 s38, 0")
            a(f"  s_cbranch_scc1 L_w2_done{tagname}")
        a(f"  s_add_u32 m0, s63, {k*4096}")
        a(f"  s_add_u32 s33, s62, {k*256}")
        dma("v20", 52, "s33")
    a(f"L_w2_done{tagname}:")

def q_loads():
    a("  global_load_dwordx4 v[32:35], v51, s[26:27] sc1")
    a("  global_load_dwordx4 v[36:39], v52, s[26:27] sc1")
    a("  global_load_dword v41, v50, s[26:27] sc1")

a("  s_cmp_lt_u32 s29, 16")
a("  s_cbranch_scc0 L_q_p")
w_weight_setup()
if OPT['wpos'] == 'first':
    pass
if OPT['wpos'] == 'q':
    a(f"  s_waitcnt vmcnt({OPT['qwait']})")
    stamp(4)
    q_loads()
    if OPT['a2']:
        a("  s_barrier")
    w_weight_loads("a")
    if OPT['opre']:
        a("  global_load_dword v2, v62, s[26:27] sc1")
        a("  global_load_dword v3, v63, s[26:27] sc1")
    a("  s_mov_b32 s33, 0")
    NY = 12 if OPT['opre'] else 10
    a("  s_cmp_lg_u32 s38, 0")
    a("  s_cbranch_scc1 L_qw10")
    a(f"  s_waitcnt vmcnt({NY+1})")
    a("  s_branch L_qchk")
    a("L_qw10:")
    a(f"  s_waitcnt vmcnt({NY})")
    a("  s_branch L_qchk")
a(f"""L_q_p:
  s_mov_b32 s33, 0
  s_waitcnt vmcnt({OPT['qwait']})
""")
stamp(4)
a("L_qpoll:")
q_loads()
a("  s_waitcnt vmcnt(0)")
a("L_qchk:")
check_regs("v40", range(32, 40))
a("  v_xor_b32 v41, s34, v41")
a("  v_and_b32 v40, 0xff, v40")
a("  v_and_or_b32 v40, v41, s35, v40")
poll_end("v40", "L_qpoll", "L_qok", masked=True)
stamp(5)
rec(13, "s33")
if OPT['wpos'] == 'mid':
    a("  s_cmp_lt_u32 s29, 16")
    a("  s_cbranch_scc0 L_nomid")
    w_weight_loads("m")
    a("L_nomid:")
a(f"""  v_add_f32 v32, v32, v36
  v_add_f32 v33, v33, v37
  v_add_f32 v34, v34, v38
  v_add_f32 v35, v35, v39
  v_cmp_ne_u32 vcc, 0, v41
  s_nop 0
  v_permlane32_swap_b32 v32, v34
  v_permlane32_swap_b32 v33, v35
  v_add_f32 v32, v32, v34
  v_add_f32 v33, v33, v35
  v_cvt_pk_bf16_f32 v32, v32, v33
  ds_write_b32 v53, v32
  s_cmp_eq_u64 vcc, 0
  s_cselect_b32 s35, {1 if OPT['fast'] else 0}, 0
  s_waitcnt lgkmcnt(0)
  s_barrier
""")
stamp(6)
for t in range(8):
    a(f"  ds_read_b128 v[{128+4*t}:{131+4*t}], v28 offset:{64*t}")
a(f"  s_mov_b32 s42, {C_LOG2E_16:#x}")
def v_read(i):
    nbk, hf = i >> 1, i & 1
    r = 160 + 4*nbk + 2*hf
    a(f"  ds_read_b64_tr_b16 v[{r}:{r+1}], v{24 + (nbk & 3)} offset:{(nbk >> 2)*8192 + hf*2048}")
for t in range(8):
    a(f"  s_waitcnt lgkmcnt({7 + t})")
    for tt in range(2):
        kr = 64 + (tt*8 + t)*4
        c = "0" if t == 0 else f"v[{32+4*tt}:{35+4*tt}]"
        a(f"  v_mfma_f32_16x16x32_bf16 v[{32+4*tt}:{35+4*tt}], v[{kr}:{kr+3}], v[{128+4*t}:{131+4*t}], {c}")
        v_read(2*t + tt)
a(f"""  s_nop 5
  v_max3_f32 v44, v32, v33, v34
  v_max3_f32 v45, v36, v37, v38
  v_max3_f32 v44, v44, v35, v39
  v_max_f32 v44, v44, v45
  v_mov_b32 v45, v44
  s_nop 1
  v_permlane16_swap_b32 v44, v45
  v_max_f32 v44, v44, v45
  v_mov_b32 v45, v44
  s_nop 1
  v_permlane32_swap_b32 v44, v45
  v_max_f32 v44, v44, v45
  v_mul_f32 v44, s42, v44
""")
for r in range(8):
    a(f"  v_fma_f32 v{32+r}, v{32+r}, s42, -v44")
for r in range(8):
    a(f"  v_exp_f32 v{32+r}, v{32+r}")
a("  s_nop 0")
for r in range(4):
    a(f"  v_cvt_pk_bf16_f32 v{40+r}, v{32+2*r}, v{33+2*r}")
a("  s_waitcnt lgkmcnt(0)             ; V operands")
a("  s_nop 0")
a("  v_mfma_f32_16x16x32_bf16 v[224:227], v[40:43], v[46:49], 0")
for nbk in range(8):
    a(f"  v_mfma_f32_16x16x32_bf16 v[{192+4*nbk}:{195+4*nbk}], v[40:43], v[{160+4*nbk}:{163+4*nbk}], 0")
a(f"""  v_cndmask_b32 v45, v224, v225, s[58:59]
  v_rcp_f32 v56, v224
  v_rcp_f32 v57, v225
  v_log_f32 v45, v45
  s_cmp_eq_u32 s35, 1
  v_add_f32 v45, v45, v44
""")
tagit("v59", "v45")
a("  v_mov_b32 v61, v59")
for q in range(2):
    for h in range(2):
        for k in range(4):
            a(f"  v_mul_f32_dpp v{32+2*q+h}, v{192+4*(4*q+k)+h}, v{56+h} quad_perm:[0,1,2,3] row_mask:{1<<k:#x} bank_mask:0xf")
    a(f"  v_cvt_pk_bf16_f32 v{58+2*q}, v{32+2*q}, v{33+2*q}")
a(f"""  s_cbranch_scc1 L_pub_local
  global_store_dwordx2 v54, v[58:59], s[26:27] sc1
  global_store_dwordx2 v54, v[60:61], s[26:27] offset:512 sc1
  s_branch L_pub_done
L_pub_local:                       ; every reader shares this die's L2
  global_store_dwordx2 v54, v[58:59], s[26:27]
  global_store_dwordx2 v54, v[60:61], s[26:27] offset:512
L_pub_done:
""")
stamp(7)
a("  s_cmp_lt_u32 s29, 16")
a("  s_cbranch_scc1 L_wstage")
a("  s_barrier")
dump_stamps()
a("  s_endpgm")

a("L_wstage:")
if OPT['wpos'] == 'late':
    w_weight_loads("l")
a(f"""  v_xor_b32 v24, s36, v16
  v_lshl_add_u32 v24, v24, 5, v15
  v_add_u32 v25, {RB}, v24
  v_add_u32 v24, {RA}, v24
  v_and_b32 v26, 1, {VL}
  v_lshlrev_b32 v27, 5, v26
  v_lshl_add_u32 v27, v13, 3, v27
  v_add_u32 v27, {HV}, v27
  v_lshlrev_b32 v28, 6, v26
  v_lshl_add_u32 v28, v13, 3, v28
  v_add_u32 v28, {OV}, v28
  v_and_b32 v54, 3, {VL}
  v_lshlrev_b32 v54, 2, v54
  v_and_b32 v55, 1, v13
  v_lshl_add_u32 v54, v55, 5, v54
  v_lshrrev_b32 v55, 1, v13
  v_lshl_add_u32 v54, v55, 1, v54
  s_lshl_b32 s42, s38, 6
  s_lshl_b32 s45, s37, 4
  s_add_u32 s42, s42, s45
  s_add_u32 s42, s42, {OV}
  v_add_u32 v54, s42, v54
  s_lshl_b32 s42, s28, 4
  s_add_u32 s42, s42, s29
  s_mul_i32 s42, s42, {APS}
  s_lshl_b32 s45, s36, {8 if OPT['appad'] else 7}
  s_add_u32 s42, s42, s45
  s_add_u32 s42, s42, {WS_AP}
  v_lshlrev_b32 v55, 3, {VL}
  v_add_u32 v55, s42, v55
  v_and_b32 v56, 7, {VL}
  v_lshlrev_b32 v56, 3, v56
  v_bfe_u32 v57, {VL}, 3, 1
  v_lshl_add_u32 v56, v57, 7, v56
  v_lshl_add_u32 v56, v13, 10, v56
  v_add_u32 v56, s42, v56
  v_add_u32 v57, 4096, v56
  s_lshl_b32 s42, s38, 2
  s_add_u32 s42, s42, {GT}
  v_mov_b32 v29, s42
  ds_read_b32 v50, v29
  s_mov_b32 s56, 0xf000f000
  s_mov_b32 s57, 0xf000f000
  s_mov_b32 s33, 0
  s_waitcnt vmcnt(0) lgkmcnt(0)
""")
if OPT['early']:
    a("""  global_load_dwordx4 v[32:35], v62, s[26:27] sc1
  global_load_dwordx4 v[36:39], v63, s[26:27] sc1""")
a("  s_barrier")
stamp(8)
if not OPT['early']:
    a("""  global_load_dwordx4 v[32:35], v62, s[26:27] sc1
  global_load_dwordx4 v[36:39], v63, s[26:27] sc1""")
a("  s_waitcnt vmcnt(0)")
a("  s_branch L_ochk")
a(f"""L_opoll:
  global_load_dwordx4 v[32:35], v62, s[26:27] sc1
  global_load_dwordx4 v[36:39], v63, s[26:27] sc1
  s_waitcnt vmcnt(0)
L_ochk:
""")
check_regs("v48", [33, 35, 37, 39])
poll_end("v48", "L_opoll", "L_ook")
stamp(9)
rec(12, "s33")
a("""  v_max_f32 v52, v33, v37
  v_max_f32 v53, v35, v39
  v_lshlrev_b32 v40, 16, v32       ; A: d0h0
  v_and_b32 v41, 0xffff0000, v32   ;    d0h1
  v_permlane16_swap_b32 v52, v53
  v_lshlrev_b32 v42, 16, v34       ;    d1h0
  v_and_b32 v43, 0xffff0000, v34   ;    d1h1
  v_max_f32 v52, v52, v53          ; rows: h0(01) h1(01) h0(23) h1(23)
  v_mov_b32 v53, v52
  v_lshlrev_b32 v44, 16, v36       ; B
  v_and_b32 v45, 0xffff0000, v36
  v_permlane32_swap_b32 v52, v53
  v_max_f32 v52, v52, v53
  v_lshlrev_b32 v46, 16, v38
  v_and_b32 v47, 0xffff0000, v38
  v_max_f32_dpp v52, v52, v52 row_shr:4 row_mask:0xf bank_mask:0xf
  ds_read_b64 v[106:107], v27
  ds_read_b64_tr_b16 v[92:93], v25 offset:0
  v_max_f32_dpp v52, v52, v52 row_shr:8 row_mask:0xf bank_mask:0xf
  ds_read_b64_tr_b16 v[94:95], v25 offset:2048
  v_readlane_b32 s42, v52, 15
  v_readlane_b32 s45, v52, 31
  ds_read_b64_tr_b16 v[96:97], v25 offset:4096
  ds_read_b64_tr_b16 v[98:99], v25 offset:6144
  v_subrev_f32 v33, s42, v33
  v_subrev_f32 v37, s42, v37
  v_subrev_f32 v35, s45, v35
  v_subrev_f32 v39, s45, v39
  v_exp_f32 v33, v33               ; w A h0
  v_exp_f32 v37, v37               ; w B h0
  v_exp_f32 v35, v35               ; w A h1
  v_exp_f32 v39, v39               ; w B h1
  ds_read_b64_tr_b16 v[100:101], v25 offset:8192
  v_mul_f32 v40, v40, v33
  v_mul_f32 v41, v41, v35
  v_mul_f32 v42, v42, v33
  v_mul_f32 v43, v43, v35
  v_fmac_f32 v40, v44, v37
  v_fmac_f32 v41, v45, v39
  v_fmac_f32 v42, v46, v37
  v_fmac_f32 v43, v47, v39
  v_add_f32 v52, v33, v37          ; den h0
  v_add_f32 v53, v35, v39          ; den h1
  ds_read_b64_tr_b16 v[102:103], v25 offset:10240
  v_permlane16_swap_b32 v40, v41
  v_permlane16_swap_b32 v42, v43
  v_permlane16_swap_b32 v52, v53
  v_add_f32 v40, v40, v41
  v_add_f32 v42, v42, v43
  v_add_f32 v52, v52, v53
  v_mov_b32 v53, v52
  ds_read_b64_tr_b16 v[104:105], v25 offset:12288
  ds_read_b64_tr_b16 v[64:65], v24 offset:0
  v_permlane32_swap_b32 v40, v42
  v_permlane32_swap_b32 v52, v53
  v_add_f32 v40, v40, v42
  v_add_f32 v52, v52, v53          ; rows h0 h1 h0 h1
  ds_read_b64_tr_b16 v[66:67], v24 offset:2048
  v_add_f32_dpp v40, v40, v40 row_shr:4 row_mask:0xf bank_mask:0xf
  v_add_f32_dpp v52, v52, v52 row_shr:4 row_mask:0xf bank_mask:0xf
  ds_read_b64_tr_b16 v[68:69], v24 offset:4096
  v_add_f32_dpp v40, v40, v40 row_shr:8 row_mask:0xf bank_mask:0xf
  v_add_f32_dpp v52, v52, v52 row_shr:8 row_mask:0xf bank_mask:0xf
  v_mul_f32 v40, v40, v50          ; * gate
  v_rcp_f32 v52, v52
""")
if STAMP == 3: stamp(11)
a(f"""  s_mov_b64 exec, s[56:57]
  v_mul_f32 v40, v40, v52
  v_cvt_pk_bf16_f32 v40, v40, v40
  ds_write_b16 v54, v40
  s_mov_b64 exec, -1
  s_waitcnt lgkmcnt(4)
""")
LATE = ['  ds_read_b64_tr_b16 v[70:71], v24 offset:6144', '  ds_read_b64_tr_b16 v[72:73], v24 offset:8192', '  ds_read_b64_tr_b16 v[74:75], v24 offset:10240', '  ds_read_b64_tr_b16 v[76:77], v24 offset:12288', '  ds_read_b64_tr_b16 v[78:79], v24 offset:14336', '  ds_read_b64_tr_b16 v[80:81], v24 offset:16384', '  ds_read_b64_tr_b16 v[82:83], v24 offset:18432', '  ds_read_b64_tr_b16 v[84:85], v24 offset:20480', '  ds_read_b64_tr_b16 v[86:87], v24 offset:22528', '  ds_read_b64_tr_b16 v[88:89], v24 offset:24576', '  ds_read_b64_tr_b16 v[90:91], v24 offset:26624']
for cb in range(7):
    a(f"  v_mfma_f32_16x16x16_bf16 v[{110+4*cb}:{113+4*cb}], v[106:107], v[{92+2*cb}:{93+2*cb}], 0")
    for ln in LATE[cb*11//7:(cb+1)*11//7]:
        a(ln)
a(f"""  s_waitcnt lgkmcnt(11)
  s_barrier
""")
if STAMP == 3: stamp(12)
a(f"""  ds_read2_b64 v[40:43], v28 offset0:0 offset1:4
  s_waitcnt lgkmcnt(0)
""")
if STAMP == 3: stamp(13)
for cb in range(7):
    a(f"  v_mfma_f32_16x16x32_bf16 v[{110+4*cb}:{113+4*cb}], v[40:43], v[{64+4*cb}:{67+4*cb}], v[{110+4*cb}:{113+4*cb}]")
assert OPT['appad'] == 1
a("  s_mov_b32 s56, -1")
a("  s_mov_b32 s57, 0xffff")
a("  s_nop 0")
for k in (1, 2, 3):
    for h in range(2):
        a(f"  v_mov_b32_dpp v{110+h}, v{110+4*k+h} quad_perm:[0,1,2,3] row_mask:{1<<k:#x} bank_mask:0xf")
tagit("v110", "v110")
a("  global_store_dwordx2 v56, v[110:111], s[26:27] sc1")
for k in (1, 2):
    for h in range(2):
        a(f"  v_mov_b32_dpp v{126+h}, v{126+4*k+h} quad_perm:[0,1,2,3] row_mask:{1<<k:#x} bank_mask:0xf")
tagit("v126", "v126")
a("  s_mov_b64 exec, s[56:57]")
a("  global_store_dwordx2 v57, v[126:127], s[26:27] sc1")
stamp(10)
if OPT['apack']:
    a("  s_waitcnt vmcnt(0)")
    stamp(11)
a("  s_mov_b64 exec, -1")
dump_stamps()
a("  s_endpgm")

a("L_aux0:")
if STAMP in (1, 2):
    for k in range(1, 16):
        a(f"  s_mov_b32 s{64+2*k}, 0")
a(f"""  s_lshr_b32 s29, s2, 3            ; j
  s_mov_b32 s32, 0xff
  v_lshrrev_b32 v13, 4, {VL}       ; g4
  v_lshlrev_b32 v18, 4, {VL}
  v_add_u32 v21, 1024, v18
  s_waitcnt lgkmcnt(0)
  s_load_dword s31, s[26:27], {WS_E}
""")
stamp(1)
srd(52, 4, SZ['x'])
a(f"""  s_mov_b32 m0, {XB}
  s_cmp_ge_u32 s29, 16
  buffer_load_dwordx4 v18, s[52:55], 0 offen lds
  s_mov_b32 m0, {XB+1024}
  s_nop 0
  buffer_load_dwordx4 v21, s[52:55], 0 offen lds
  s_cbranch_scc1 L_aux
  s_mov_b32 s56, -1
  s_mov_b32 s57, 0x00ffffff
  s_mov_b64 exec, s[56:57]
  global_load_dwordx4 v[70:73], v18, s[4:5]
  global_load_dwordx4 v[74:77], v18, s[4:5] offset:896
  global_load_dwordx4 v[78:81], v18, s[20:21]
  s_mov_b64 exec, -1
""")
a("L_aux:")
tr_lane_setup()
for nb in range(4):
    a(f"  v_xor_b32 v{24+nb}, {nb}, v16")
    a(f"  v_lshl_add_u32 v{24+nb}, v{24+nb}, 5, v15")
    a(f"  v_add_u32 v{24+nb}, {RC}, v{24+nb}")
h_unit_index("s39")
a(f"""  s_mul_i32 s40, s39, 9363
  s_lshr_b32 s40, s40, 16          ; cbh
  s_mul_i32 s41, s40, 7
  s_sub_u32 s41, s39, s41          ; kp
  v_and_b32 v28, 1, {VL}
  v_mul_u32_u24 v28, 896, v28
  v_lshl_add_u32 v28, v13, 3, v28
  s_lshl_b32 s42, s41, 7
  s_add_u32 s42, s42, {XB}
  v_add_u32 v28, s42, v28
  s_mul_i32 s42, s41, {2*7168}
  s_lshl_b32 s43, s40, 8
  s_add_u32 s42, s42, s43
  s_add_u32 s42, s42, {WS_HP}
  v_lshlrev_b32 v31, 2, {VL}
  v_add_u32 v31, s42, v31
  v_add_u32 v30, 7168, v31
  s_waitcnt lgkmcnt(0)
""")
tau_setup()
xid_value("s34")
a(f"""  s_lshl_b32 s42, s28, 7
  s_lshl_b32 s43, s29, 2
  s_add_u32 s42, s42, s43
  s_add_u32 s42, s42, {WS_XID}
  v_mov_b32 v6, s42
  v_mov_b32 v7, s34
  s_waitcnt vmcnt(0)
  s_mov_b64 exec, 1
  global_store_dword v6, v7, s[26:27] sc1
  s_mov_b64 exec, -1
  s_barrier                        ; barrier Q
  s_barrier                        ; barrier Q2
""")
stamp(2)
if OPT['tlb']:
    a(f"""  s_lshl_b32 s42, s28, 9
  s_lshl_b32 s43, s29, 4
  s_add_u32 s42, s42, s43
  s_mul_i32 s42, s42, 896
  v_mov_b32 v6, s42
  v_mov_b32 v7, 0
  s_mov_b64 exec, 1
  global_load_dword v2, v6, s[12:13] nt
  global_load_dword v2, v7, s[18:19] offset:64 nt
  global_load_dword v2, v7, s[22:23] nt
  s_mov_b64 exec, -1
""")
a("  s_cmp_ge_u32 s39, 196")
a("  s_cbranch_scc1 L_nohpub")
for st in range(2):
    a(f"  ds_read2_b64 v[{48+4*st}:{51+4*st}], v28 offset0:{8*st} offset1:{8*st+4}")
    for nb in range(4):
        r = 96 + 16*st + 4*nb
        a(f"  ds_read_b64_tr_b16 v[{r}:{r+1}], v{24+nb} offset:{st*4096}")
        a(f"  ds_read_b64_tr_b16 v[{r+2}:{r+3}], v{24+nb} offset:{st*4096+2048}")
for st in range(2):
    a(f"  s_waitcnt lgkmcnt({9 - 9*st})")
    for nb in range(4):
        r = 96 + 16*st + 4*nb
        c = "0" if st == 0 else f"v[{32+4*nb}:{35+4*nb}]"
        a(f"  v_mfma_f32_16x16x32_bf16 v[{32+4*nb}:{35+4*nb}], v[{48+4*st}:{51+4*st}], v[{r}:{r+3}], {c}")
a("  s_nop 7")
for r in range(2):
    a(f"  v_permlane16_swap_b32 v{32+r}, v{36+r}")
    a(f"  v_permlane16_swap_b32 v{40+r}, v{44+r}")
a("  s_nop 1")
for r in range(2):
    a(f"  v_permlane32_swap_b32 v{32+r}, v{40+r}")
a("  s_nop 1")
tagit("v32", "v32")
tagit("v33", "v33")
a("""  global_store_dword v31, v32, s[26:27] sc1
  global_store_dword v30, v33, s[26:27] sc1
L_nohpub:""")
stamp(5)
a("  s_cmp_ge_u32 s29, 16")
a("  s_cbranch_scc1 L_aux_a")
a("  v_mov_b32 v44, 0")
a("  v_mov_b32 v45, 0")
for r in range(4):
    a(f"  v_lshlrev_b32 v46, 16, v{78+r}")
    a(f"  v_and_b32 v47, 0xffff0000, v{78+r}")
    for b in range(2):
        a(f"  v_lshlrev_b32 v48, 16, v{70+4*b+r}")
        a(f"  v_and_b32 v49, 0xffff0000, v{70+4*b+r}")
        a(f"  v_mul_f32 v48, v48, v46")
        a(f"  v_mul_f32 v49, v49, v47")
        a(f"  v_cvt_pk_bf16_f32 v48, v48, v49")
        a(f"  v_lshlrev_b32 v49, 16, v48")
        a(f"  v_and_b32 v48, 0xffff0000, v48")
        a(f"  v_add_f32 v{44+b}, v{44+b}, v49")
        a(f"  v_add_f32 v{44+b}, v{44+b}, v48")
a(f"""  v_cmp_gt_u32 vcc, 56, {VL}
  s_nop 1
  v_cndmask_b32 v44, 0, v44, vcc
  v_cndmask_b32 v45, 0, v45, vcc
  s_nop 1
""")
for sh in (1, 2, 4, 8):
    a(f"  v_add_f32_dpp v44, v44, v44 row_shr:{sh} row_mask:0xf bank_mask:0xf")
    a(f"  v_add_f32_dpp v45, v45, v45 row_shr:{sh} row_mask:0xf bank_mask:0xf")
    a("  s_nop 0")
a(f"""  v_add_f32_dpp v44, v44, v44 row_bcast:15 row_mask:0xa bank_mask:0xf
  v_add_f32_dpp v45, v45, v45 row_bcast:15 row_mask:0xa bank_mask:0xf
  s_nop 0
  v_add_f32_dpp v44, v44, v44 row_bcast:31 row_mask:0xc bank_mask:0xf
  v_add_f32_dpp v45, v45, v45 row_bcast:31 row_mask:0xc bank_mask:0xf
  s_nop 0
  v_readlane_b32 s42, v44, 63
  v_readlane_b32 s43, v45, 63
  s_nop 1
  v_and_b32 v46, 1, {VL}
  v_cmp_eq_u32 vcc, 0, v46
  v_mov_b32 v47, s43
  v_mov_b32 v48, s42
  v_cndmask_b32 v47, v47, v48, vcc
  v_mul_f32 v47, 0xbfb8aa3b, v47   ; -log2e * z
  v_exp_f32 v47, v47
  s_nop 0
  v_add_f32 v47, 1.0, v47
  v_rcp_f32 v47, v47               ; g[b = lane&1]
  s_nop 0
  v_sub_f32 v82, 1.0, v47          ; 1-g
  v_lshlrev_b32 v46, 2, v46
  v_add_u32 v46, {GT}, v46
  s_mov_b64 exec, 3
  ds_write_b32 v46, v47
  s_mov_b64 exec, -1
  s_waitcnt lgkmcnt(0)
""")
stamp(3)
a("L_aux_a:")
a("  s_barrier")
a("  s_cmp_lt_u32 s29, 16")
a("  s_cbranch_scc1 L_aux_w")
a("  s_cmp_lt_u32 s29, 23")
a("  s_cbranch_scc1 L_final")
dump_stamps()
a("  s_endpgm")

a(f"""L_final:
  s_sub_u32 s36, s29, 16           ; p
  s_lshl_b32 s37, s36, 3
  s_add_u32 s37, s37, s28          ; c
  v_lshrrev_b32 v29, 2, {VL}       ; u16
  v_mul_u32_u24 v30, {APS}, v29
  v_and_b32 v31, 3, {VL}
  v_lshl_add_u32 v30, v31, 4, v30
  s_lshl_b32 s42, s37, {7 if OPT['appad'] else 6}
  s_add_u32 s42, s42, {WS_AP}
  v_add_u32 v30, s42, v30
""")
for k in range(8):
    a(f"  v_add_u32 v{16+k}, {k*16*APS}, v30")
a(f"""  ; out + b*896 + (8c + 2*c4 + (r>>1))*2
  v_and_b32 v28, 1, v13
  v_mul_u32_u24 v28, 896, v28
  v_lshl_add_u32 v28, v31, 2, v28
  v_lshrrev_b32 v29, 1, v13
  v_lshl_add_u32 v28, v29, 1, v28
  s_lshl_b32 s42, s37, 4
  v_add_u32 v28, s42, v28
  s_mov_b32 s56, 0xf000f000
  s_mov_b32 s57, 0xf000f000
  v_mov_b32 v29, {WS_E}
  s_barrier                        ; barrier B
  s_barrier                        ; barrier C
  s_mov_b32 s33, 0
""")
if OPT['fdelay']:
    a(f"""L_fd:
  s_memrealtime s[60:61]
  s_waitcnt lgkmcnt(0)
  s_sub_u32 s62, s60, s64
  s_cmp_lt_u32 s62, {OPT['fdelay']}
  s_cbranch_scc1 L_fd""")
stamp(8)
NS = OPT['fsets']
def fbase(i): return 32 + 32*i
def fissue(i):
    for k in range(8):
        a(f"  global_load_dwordx4 v[{fbase(i)+4*k}:{fbase(i)+4*k+3}], v{16+k}, s[26:27] sc1")
for i in range(NS):
    fissue(i)
a("L_fpoll:")
for i in range(NS):
    a(f"  s_waitcnt vmcnt({8*(NS-1)})")
    check_regs("v14", [fbase(i)+4*k+q for k in range(8) for q in (0, 2)])
    a("  v_and_b32 v14, 0xff, v14")
    a("  v_cmp_ne_u32 vcc, 0, v14")
    a("  s_add_u32 s33, s33, 1")
    a(f"  s_cmp_gt_u32 s33, {OPT['spin']}")
    a(f"  s_cbranch_scc1 L_fok{i}")
    a(f"  s_cbranch_vccz L_fok{i}")
    if OPT['fsleep']:
        a(f"  s_sleep {OPT['fsleep']}")
    fissue(i)
a("  s_branch L_fpoll")
TB = 144
for i in range(NS):
    a(f"L_fok{i}:")
    for k in range(4):
        for h in range(2):
            x = fbase(i) + 8*k + 2*h
            a(f"  v_pk_add_f32 v[{TB+4*k+2*h}:{TB+4*k+2*h+1}], v[{x}:{x+1}], v[{x+4}:{x+5}]")
    if i < NS-1:
        a("  s_branch L_fsum")
a("L_fsum:")
stamp(9)
rec(12, "s33")
for h in range(2):
    a(f"  v_pk_add_f32 v[{TB+2*h}:{TB+2*h+1}], v[{TB+2*h}:{TB+2*h+1}], v[{TB+4+2*h}:{TB+5+2*h}]")
    a(f"  v_pk_add_f32 v[{TB+8+2*h}:{TB+9+2*h}], v[{TB+8+2*h}:{TB+9+2*h}], v[{TB+12+2*h}:{TB+13+2*h}]")
for h in range(2):
    a(f"  v_pk_add_f32 v[{160+2*h}:{161+2*h}], v[{TB+2*h}:{TB+2*h+1}], v[{TB+8+2*h}:{TB+9+2*h}]")
a(f"""  s_nop 1
  v_permlane16_swap_b32 v160, v161
  v_permlane16_swap_b32 v162, v163
  v_add_f32 v160, v160, v161
  v_add_f32 v162, v162, v163
  s_nop 1
  v_permlane32_swap_b32 v160, v162
  v_add_f32 v160, v160, v162
  s_nop 1
  v_add_f32_dpp v160, v160, v160 row_shr:4 row_mask:0xf bank_mask:0xf
  s_nop 1
  v_add_f32_dpp v160, v160, v160 row_shr:8 row_mask:0xf bank_mask:0xf
  s_mov_b64 exec, s[56:57]
  v_cvt_pk_bf16_f32 v160, v160, v160
  global_store_short v28, v160, s[22:23]{' ' + OPT['outflag'].replace('_', ' ') if OPT['outflag'] != 'none' else ''}
  s_cmp_lg_u32 s37, 0
  s_cbranch_scc1 L_noE
  s_mov_b64 exec, 1
  global_store_dword v29, {VTAU}, s[26:27] sc1
L_noE:
  s_mov_b64 exec, -1
""")
if OPT['deadline']:
    a(f"""L_dl:
  s_memrealtime s[56:57]
  s_waitcnt lgkmcnt(0)
  s_sub_u32 s33, s56, s96
  s_cmp_lt_u32 s33, {OPT['deadline']}
  s_cbranch_scc1 L_dl""")
stamp(10, final=True)
if OPT['dbgts']:
    a("  s_waitcnt lgkmcnt(0)")
    a("  s_cmp_lg_u32 s37, 0")
    a("  s_cbranch_scc1 L_nodbg")
    a("  s_mov_b64 exec, 1")
    a("  v_mov_b32 v8, 0")
    for q in range(4):
        for r in range(4):
            k = 4*q + r
            a(f"  s_sub_u32 s33, s{64+2*k}, s64")
            a(f"  v_mov_b32 v{12+r}, s33")
        a(f"  global_store_dwordx4 v8, v[12:15], s[24:25] offset:{16*q}")
        a("  s_nop 1")
    a("L_nodbg:")
else:
    dump_stamps()
a("  s_endpgm")

a("L_aux_w:")
a(f"""  ; h gather set-up: lanes (kp = l>>3 (0..6), b = (l>>2)&1, q4 = l&3) ; HP + (kp*2+b)*7168 + (16u + 4*q4)*4
  s_lshl_b32 s38, s28, 4
  s_add_u32 s38, s38, s29          ; u = g*16 + j
  v_lshrrev_b32 v85, 3, {VL}
  v_bfe_u32 v86, {VL}, 2, 1
  v_lshl_add_u32 v85, v85, 1, v86
  v_mul_u32_u24 v85, 7168, v85
  v_and_b32 v87, 3, {VL}
  v_lshl_add_u32 v85, v87, 4, v85
  s_lshl_b32 s42, s38, 6
  s_add_u32 s42, s42, {WS_HP}
  v_add_u32 v85, s42, v85
  v_readlane_b32 s42, v82, 0
  v_readlane_b32 s43, v82, 1
  v_cmp_eq_u32 vcc, 0, v86
  s_nop 0
  v_mov_b32 v36, s43
  v_mov_b32 v37, s42
  v_cndmask_b32 v83, v36, v37, vcc
  v_lshlrev_b32 v84, 5, v86
  v_lshl_add_u32 v84, v87, 3, v84
  v_add_u32 v84, {HV}, v84          ; HV + b*32 + q4*8
""")
a(f"""  v_mov_b32 v32, 0
  v_mov_b32 v33, 0
  v_mov_b32 v34, 0
  v_mov_b32 v35, 0
  s_mov_b32 s56, -1
  s_mov_b32 s57, 0x00ffffff
  s_mov_b32 s33, 0
  s_setprio 3
""")
if OPT['a2'] and OPT['wpos'] == 'q':
    a("  s_barrier                        ; barrier A2")
a(f"""  s_cmp_ge_u32 s38, 112
  s_cbranch_scc1 L_hskip
  s_mov_b64 exec, s[56:57]
  global_load_dwordx4 v[32:35], v85, s[26:27] sc1
  s_mov_b64 exec, -1
L_hskip:
  s_barrier                        ; barrier B
""")
stamp(6)
a(f"""  s_cmp_ge_u32 s38, 112
  s_cbranch_scc1 L_hdone
  s_mov_b64 exec, s[56:57]
  s_waitcnt vmcnt(0)
  s_branch L_hchk
L_hpoll:
  global_load_dwordx4 v[32:35], v85, s[26:27] sc1
  s_waitcnt vmcnt(0)
L_hchk:
""")
check_regs("v40", range(32, 36))
poll_end("v40", "L_hpoll", "L_hok")
a("  s_mov_b64 exec, -1")
a("  s_nop 1")
for r in range(4):
    a(f"  v_add_f32_dpp v{32+r}, v{32+r}, v{32+r} row_ror:8 row_mask:0xf bank_mask:0xf")
for r in range(4):
    a(f"  v_mov_b32 v{36+r}, v{32+r}")
a("  s_nop 1")
for r in range(4):
    a(f"  v_permlane16_swap_b32 v{32+r}, v{36+r}")
for r in range(4):
    a(f"  v_add_f32 v{32+r}, v{32+r}, v{36+r}")
for r in range(4):
    a(f"  v_mov_b32 v{36+r}, v{32+r}")
a("  s_nop 1")
for r in range(4):
    a(f"  v_permlane32_swap_b32 v{32+r}, v{36+r}")
for r in range(4):
    a(f"  v_add_f32 v{32+r}, v{32+r}, v{36+r}")
a("L_hdone:")
for r in range(4):
    a(f"  v_max_f32 v{32+r}, 0, v{32+r}")
    a(f"  v_mul_f32 v{32+r}, v{32+r}, v83")
a(f"""  v_cvt_pk_bf16_f32 v32, v32, v33
  v_cvt_pk_bf16_f32 v33, v34, v35
  s_mov_b64 exec, 0xff
  ds_write_b64 v84, v[32:33]
  s_mov_b64 exec, -1
  s_waitcnt lgkmcnt(0)
""")
stamp(7)
a("  s_barrier                        ; barrier D1")
dump_stamps()
a("L_end:")
a("  s_endpgm")
a("L_code_end:")
a(footer(vgpr=232, sgpr=100))
open(sys.argv[1], "w").write(a.text())
```

```python
import sys
from asmlib import *

OPT = dict(stamp=0, spin=400000, nt=1, qwait=3, sleep=0, fsleep=0, fast=1, tlb=0, prefetch=1,
           ops=2176, aps=3712, deadline=0, dbgts=0, wpos='q', a2=1, opre=1, fsets=1, outflag='sc1', apack=0, fdelay=0, appad=1, early=0, probe1=0, amp=-1, ampa=0, ampf=10, ampwg=37, ampwave=1, fgate=2, ffn_early=1)
for a_ in sys.argv[2:]:
    k, v = a_.split('=')
    assert k in OPT, k
    OPT[k] = int(v) if v.lstrip('-').isdigit() else v
STAMP = OPT['stamp']
OPS = OPT['ops']; APS = 7296 if OPT['appad'] else OPT['aps']

WS_E = 0
WS_XID = 0x400
WS_QP = 0x1000
WS_HP = 0x21000
WS_OP = 0x40000
WS_AP = 0x180000
WS_TS = 0x300000
assert WS_HP + 7*2*7168 <= WS_OP and WS_OP + 512*OPS <= WS_AP and WS_AP + 128*APS <= WS_TS

KBUF = 0
VBUF = 32768
RA = 65536
RB = 94208
RC = 108544
XB = 116736
QB = 118784
OV = 119936
HV = 120064
GT = 120128
LDS_BYTES = 120320

C_LOG2E_16 = 0x3DB8AA3B
NT = " nt" if OPT['nt'] else ""
VTAU = "v4"
VL = "v5"

a = Asm()
def stamp(k, final=False):
    if STAMP == 1 or (STAMP == 2 and (k == 0 or final)) or (STAMP == 3 and k in (0, OPT['amp'], OPT['ampa'])):
        a(f"  s_memrealtime s[{64+2*k}:{65+2*k}]")
def rec(k, sreg):
    if STAMP == 1:
        a(f"  s_mov_b32 s{64+2*k}, {sreg}")

def srd(dst, ptr, size):
    a(f"  s_mov_b32 s{dst}, s{ptr}")
    a(f"  s_mov_b32 s{dst+1}, s{ptr+1}")
    a(f"  s_mov_b32 s{dst+2}, {size}")
    a(f"  s_mov_b32 s{dst+3}, 0x20000")

def dma(voff, srdreg, soff):
    a(f"  buffer_load_dwordx4 {voff}, s[{srdreg}:{srdreg+3}], {soff} offen{NT} lds")

def tagit(dst, src):
    a(f"  v_bfi_b32 {dst}, s32, {VTAU}, {src}")

def check_regs(acc, regs, first=True):
    regs = list(regs)
    for r in regs:
        a(f"  v_xor_b32 v{r}, s31, v{r}")
    if first:
        if len(regs) >= 3:
            a(f"  v_or3_b32 {acc}, v{regs[0]}, v{regs[1]}, v{regs[2]}"); regs = regs[3:]
        else:
            a(f"  v_or_b32 {acc}, v{regs[0]}, v{regs[1]}"); regs = regs[2:]
    while len(regs) >= 2:
        a(f"  v_or3_b32 {acc}, {acc}, v{regs[0]}, v{regs[1]}"); regs = regs[2:]
    if regs:
        a(f"  v_or_b32 {acc}, {acc}, v{regs[0]}")

def poll_end(acc, lab_retry, lab_ok, cnt="s33", sleep=None, masked=False):
    sleep = OPT['sleep'] if sleep is None else sleep
    if not masked:
        a(f"  v_and_b32 {acc}, 0xff, {acc}")
    a(f"  v_cmp_ne_u32 vcc, 0, {acc}")
    a(f"  s_add_u32 {cnt}, {cnt}, 1")
    a(f"  s_cmp_gt_u32 {cnt}, {OPT['spin']}")
    a(f"  s_cbranch_scc1 {lab_ok}")
    if sleep:
        a(f"  s_cbranch_vccz {lab_ok}")
        a(f"  s_sleep {sleep}")
        a(f"  s_branch {lab_retry}")
    else:
        a(f"  s_cbranch_vccnz {lab_retry}")
    a(f"{lab_ok}:")

def dump_stamps():
    if STAMP == 3:
        lab = a.label("L_amp")
        k = OPT['amp']
        a(f"""  s_cmp_lg_u32 s2, {OPT['ampwg']}
  s_cbranch_scc1 {lab}_x
  s_cmp_lg_u32 s30, {OPT['ampwave']}
  s_cbranch_scc1 {lab}_x
  s_waitcnt lgkmcnt(0)
  s_sub_u32 s33, s{64+2*k}, s{64+2*OPT['ampa']}
  s_mul_i32 s33, s33, {OPT['ampf']}
  s_add_u32 s33, s33, 1200
{lab}:
  s_memrealtime s[56:57]
  s_waitcnt lgkmcnt(0)
  s_sub_u32 s56, s56, s64
  s_cmp_lt_u32 s56, s33
  s_cbranch_scc1 {lab}
{lab}_x:""")
        return
    if not STAMP or OPT['dbgts']:
        return
    a("  s_waitcnt lgkmcnt(0)")
    a("  s_mul_i32 s33, s2, 5")
    a("  s_add_u32 s33, s33, s30")
    a("  s_lshl_b32 s33, s33, 6")
    a(f"  s_add_u32 s33, s33, {WS_TS}")
    a("  v_mov_b32 v8, s33")
    a("  s_mov_b64 exec, 1")
    for q in range(4):
        for r in range(4):
            a(f"  v_mov_b32 v{12+r}, s{64+2*(4*q+r)}")
        a(f"  global_store_dwordx4 v8, v[12:15], s[26:27] offset:{16*q}")
        a("  s_nop 1")

def tau_setup():
    a("  s_and_b32 s31, s31, 0xff")
    a("  s_mul_i32 s31, s31, 5")
    a("  s_add_u32 s31, s31, 59")
    a("  s_and_b32 s31, s31, 0xff")
    a(f"  v_mov_b32 {VTAU}, s31")

def xid_value(dst):
    a(f"  s_getreg_b32 {dst}, hwreg(HW_REG_XCC_ID, 0, 4)")
    a(f"  s_lshl_b32 {dst}, {dst}, 24")
    a(f"  s_mul_i32 s33, s31, 0x010101")
    a(f"  s_or_b32 {dst}, {dst}, s33")

def tr_lane_setup():
    a(f"""  v_bfe_u32 v14, {VL}, 2, 2        ; r4
  v_lshl_add_u32 v15, v13, 2, v14  ; row = 4*g4+r4
  v_bfe_u32 v16, v15, 1, 2         ; f
  v_and_b32 v17, 3, {VL}           ; c
  v_lshlrev_b32 v15, 7, v15
  v_lshl_add_u32 v15, v17, 3, v15  ; row*128 + c*8""")

def h_unit_index(dst):
    a(f"""  s_lshl_b32 {dst}, s28, 4
  s_add_u32 {dst}, {dst}, s29
  s_sub_u32 {dst}, {dst}, 16       ; P: g*16 + p
  s_lshl_b32 s33, s29, 3
  s_add_u32 s33, s33, s28
  s_add_u32 s33, s33, 128          ; W: 128 + i*8 + g
  s_cmp_lt_u32 s29, 16
  s_cselect_b32 {dst}, s33, {dst}""")

a(header(256, 320, LDS_BYTES))
stamp(0)
if OPT['deadline'] or OPT['probe1']:
    a("  s_memrealtime s[96:97]")
a(f"""  s_load_dwordx16 s[4:19], s[0:1], 0
  s_load_dwordx8 s[20:27], s[0:1], 64
  s_getpc_b64 s[34:35]
L_pc:
  v_lshlrev_b32 v1, {5 if OPT['prefetch'] else 0}, v0
  v_min_u32 v1, {"L_code_end - L_pc - 4" if OPT['prefetch'] else 0}, v1
  s_cmpk_ge_u32 s2, 0x100
  s_cbranch_scc1 L_end
  global_load_dword v3, v1, s[34:35]
  v_lshrrev_b32 v2, 6, v0
  v_and_b32 {VL}, 63, v0
  v_readfirstlane_b32 s30, v2
  v_lshrrev_b32 v8, 3, {VL}
  v_bfe_u32 v9, {VL}, 4, 2         ; (row>>1)&3
  v_and_b32 v10, 7, {VL}
  v_lshlrev_b32 v11, 1, v9
  v_xor_b32 v11, v11, v10
  v_lshlrev_b32 v11, 4, v11        ; *16 bytes
  v_lshl_add_u32 v18, v8, 13, v11
  s_and_b32 s28, s2, 7             ; g
  s_cmp_eq_u32 s30, 0
  s_cbranch_scc1 L_aux0
  s_lshr_b32 s42, s2, 6            ; kp
  s_mul_i32 s42, s42, {112*8192}
  s_lshl_b32 s43, s28, 10
  s_add_u32 s42, s42, s43
  s_bfe_u32 s43, s2, 0x30003       ; j&7
  s_lshl_b32 s43, s43, 7
  s_add_u32 s42, s42, s43
  s_sub_u32 s36, s30, 1            ; v
  s_lshl_b32 s43, s36, 16          ; v*8*8192
  s_add_u32 s42, s42, s43
  v_add_u32 v18, s42, v18
  s_lshl_b32 s43, s36, 10
  s_add_u32 m0, s43, {RA}
  s_lshl_b32 s44, 1, 18
  s_movk_i32 s45, 0x1000
  s_waitcnt lgkmcnt(0)
  global_load_lds_dwordx4 v18, s[10:11]{NT}
  s_add_u32 m0, m0, s45
  v_add_u32 v18, s44, v18
  global_load_lds_dwordx4 v18, s[10:11]{NT}
  s_add_u32 m0, m0, s45
  v_add_u32 v18, s44, v18
  global_load_lds_dwordx4 v18, s[10:11]{NT}
  s_cmp_ge_u32 s36, 2
  s_cbranch_scc1 L_wq_done
  s_add_u32 m0, m0, s45
  v_add_u32 v18, s44, v18
  global_load_lds_dwordx4 v18, s[10:11]{NT}
""")
a("L_wq_done:")
if OPT['probe1']:
    a(f"""L_pr1:
  s_memrealtime s[56:57]
  s_waitcnt lgkmcnt(0)
  s_sub_u32 s33, s56, s96
  s_cmp_lt_u32 s33, {OPT['probe1']}
  s_cbranch_scc1 L_pr1""")
if STAMP in (1, 2):
    for k in range(1, 16):
        a(f"  s_mov_b32 s{64+2*k}, 0")
if STAMP == 3: stamp(15)
a(f"""  s_load_dword s31, s[26:27], {WS_E}
  s_lshr_b32 s29, s2, 3            ; j
  s_mov_b32 s32, 0xff
  v_lshrrev_b32 v13, 4, {VL}       ; g4
  s_and_b32 s37, s36, 1            ; kh
  s_lshr_b32 s38, s36, 1           ; dh""")
stamp(1)
h_unit_index("s45")
a(f"""  s_mul_i32 s46, s45, 9363
  s_lshr_b32 s46, s46, 16          ; cbh = u1/7
  s_mul_i32 s47, s46, 7
  s_sub_u32 s47, s45, s47          ; kp = u1%7
  s_min_u32 s46, s46, 27
  s_lshl_b32 s46, s46, 7
  s_mul_i32 s47, s47, {64*3584}
  s_add_u32 s46, s46, s47
  s_mul_i32 s47, s36, {8*3584}
  s_add_u32 s46, s46, s47
  s_cmp_lt_u32 s45, 196
  s_cselect_b32 s45, 0, 0x40000000
  v_mul_u32_u24 v18, 3584, v8
  v_add3_u32 v18, v18, v11, s45
  s_lshl_b32 s47, s36, 10
  s_add_u32 s47, s47, {RC}
""")
srd(52, 16, SZ['w1'])
for k in range(2):
    a(f"  s_add_u32 m0, s47, {k*4096}")
    a(f"  s_add_u32 s45, s46, {k*4*8*3584}")
    dma("v18", 52, "s45")
a(f"""  v_xor_b32 v12, v9, v10
  v_lshlrev_b32 v12, 4, v12
  s_and_b32 s39, s29, 1            ; b
  s_lshr_b32 s40, s29, 1           ; s (0..15)
  s_lshl_b32 s41, s39, 3
  s_add_u32 s41, s41, s28          ; b*8+g
  s_lshl_b32 s41, s41, 21          ; *4096*512
  s_lshl_b32 s42, s40, 15          ; s*64*512
  s_add_u32 s41, s41, s42
  s_lshl_b32 s42, s37, 14          ; kh*32*512
  s_add_u32 s41, s41, s42
  s_lshl_b32 s42, s38, 8           ; dh*256
  s_add_u32 s41, s41, s42
  s_add_u32 s41, s41, {3072*512}
  s_lshl_b32 s43, s38, 14
  s_lshl_b32 s42, s37, 12
  s_add_u32 s43, s43, s42
  v_lshlrev_b32 v18, 9, v8         ; row*512
  v_add_u32 v19, v18, v12
  v_xor_b32 v20, 64, v19
  v_add_u32 v21, v18, v11          ; V voffset
""")
srd(44, 6, SZ['k'])
srd(48, 8, SZ['v'])
for c2 in range(2):
    for jj in range(4):
        a(f"  s_add_u32 m0, s43, {KBUF + c2*8192 + jj*1024}")
        a(f"  s_add_u32 s42, s41, {c2*128 + jj*4096}")
        dma("v20" if jj & 1 else "v19", 44, "s42")
tr_lane_setup()
a(f"""  ; q projection tile nb = v : addresses
  v_xor_b32 v24, s36, v16
  v_lshl_add_u32 v24, v24, 5, v15
  v_add_u32 v24, {RA}, v24
  v_and_b32 v25, 1, {VL}
  v_mul_u32_u24 v25, 896, v25
  v_lshl_add_u32 v25, v13, 3, v25
  s_lshr_b32 s42, s29, 3           ; kp
  s_mul_i32 s45, s42, 224
  s_add_u32 s45, s45, {XB}
  v_add_u32 v25, s45, v25
  s_lshl_b32 s45, s28, 14
  s_lshl_b32 s42, s42, 12
  s_add_u32 s45, s45, s42
  s_and_b32 s42, s29, 7
  s_lshl_b32 s42, s42, 8
  s_add_u32 s45, s45, s42
  s_lshl_b32 s42, s36, 6
  s_add_u32 s45, s45, s42
  s_add_u32 s45, s45, {WS_QP}
  v_lshlrev_b32 v26, 2, {VL}
  v_add_u32 v26, s45, v26
""")
a("  s_waitcnt lgkmcnt(0)")
tau_setup()
a("  s_waitcnt vmcnt(10)")
a("  s_barrier")
for st in range(3):
    a(f"  ds_read2_b64 v[{32+4*st}:{35+4*st}], v25 offset0:{8*st} offset1:{8*st+4}")
    a(f"  ds_read_b64_tr_b16 v[{48+4*st}:{49+4*st}], v24 offset:{st*4096}")
    a(f"  ds_read_b64_tr_b16 v[{50+4*st}:{51+4*st}], v24 offset:{st*4096+2048}")
a(f"  ds_read_b64 v[44:45], v25 offset:192")
a(f"  ds_read_b64_tr_b16 v[60:61], v24 offset:{3*4096}")
for st in range(3):
    a(f"  s_waitcnt lgkmcnt({8 - 3*st})")
    c = "0" if st == 0 else "v[64:67]"
    a(f"  v_mfma_f32_16x16x32_bf16 v[64:67], v[{32+4*st}:{35+4*st}], v[{48+4*st}:{51+4*st}], {c}")
a("  s_waitcnt lgkmcnt(0)")
a("  v_mfma_f32_16x16x16_bf16 v[68:71], v[44:45], v[60:61], 0")
a("  s_mov_b64 exec, 0xffff")
a("  s_nop 6")
a("  v_add_f32 v64, v64, v68")
a("  v_add_f32 v65, v65, v69")
tagit("v64", "v64")
tagit("v65", "v65")
a(f"""  global_store_dword v26, v64, s[26:27] sc1
  global_store_dword v26, v65, s[26:27] offset:2048 sc1
  s_mov_b64 exec, -1
""")
stamp(14)
a("  s_waitcnt vmcnt(10)")
a("  s_barrier")
for c2 in range(2):
    for jj in range(4):
        a(f"  s_add_u32 m0, s43, {VBUF + c2*8192 + jj*1024}")
        a(f"  s_add_u32 s42, s41, {c2*128 + jj*4096}")
        dma("v21", 48, "s42")
stamp(2)
a(f"""  ; K operand address: key*128 + (g4 ^ ((key>>1)&7))*16 + kh*4096
  v_and_b32 v22, 15, {VL}
  v_bfe_u32 v23, {VL}, 1, 3
  v_xor_b32 v23, v23, v13
  v_lshlrev_b32 v23, 4, v23
  v_lshl_add_u32 v22, v22, 7, v23
  s_lshl_b32 s42, s37, 12
  v_add_u32 v22, s42, v22
  v_xor_b32 v23, 64, v22
  s_add_u32 s42, s43, {VBUF}
""")
for nb in range(4):
    a(f"  v_xor_b32 v{24+nb}, {nb}, v16")
    a(f"  v_lshl_add_u32 v{24+nb}, v{24+nb}, 5, v15")
    a(f"  v_add_u32 v{24+nb}, s42, v{24+nb}")
a(f"""  ; q operand address: QB + (l&1)*576 + g4*16
  v_and_b32 v28, 1, {VL}
  v_mul_u32_u24 v28, 576, v28
  v_lshl_add_u32 v28, v13, 4, v28
  v_add_u32 v28, {QB}, v28
  s_lshl_b32 s42, s28, 14
  s_lshl_b32 s45, s39, 11
  s_add_u32 s42, s42, s45
  s_lshl_b32 s45, s37, 10
  s_add_u32 s42, s42, s45
  s_lshl_b32 s45, s38, 9
  s_add_u32 s42, s42, s45
  s_add_u32 s42, s42, {WS_QP}
  v_lshrrev_b32 v29, 5, {VL}       ; kpl
  v_and_b32 v30, 31, {VL}          ; c
  v_lshlrev_b32 v31, 12, v29
  v_lshl_add_u32 v31, v30, 4, v31
  v_add_u32 v51, s42, v31
  v_add_u32 v52, 8192, v51
  s_lshl_b32 s42, s28, 7
  s_add_u32 s42, s42, {WS_XID}
  v_lshl_add_u32 v50, v30, 2, s42
  s_mul_i32 s42, s37, 576
  s_lshl_b32 s45, s38, 8
  s_add_u32 s42, s42, s45
  s_add_u32 s42, s42, {QB}
  v_lshlrev_b32 v30, 3, v30
  v_lshl_add_u32 v30, v29, 2, v30
  v_add_u32 v53, s42, v30
  s_lshl_b32 s42, s28, 1
  s_add_u32 s42, s42, s39
  s_lshl_b32 s42, s42, 5
  s_lshl_b32 s45, s40, 1
  s_add_u32 s42, s42, s45
  s_add_u32 s42, s42, s37
  s_mul_i32 s42, s42, {OPS}
  s_lshl_b32 s45, s38, 10
  s_add_u32 s42, s42, s45
  s_add_u32 s42, s42, {WS_OP}
  v_lshlrev_b32 v54, 3, {VL}
  v_add_u32 v54, s42, v54
  s_lshl_b32 s42, s28, 1
  s_add_u32 s42, s42, s38
  s_mul_i32 s33, s42, {32*OPS}
  s_lshl_b32 s56, s29, 7
  s_add_u32 s33, s33, s56
  s_lshl_b32 s56, s37, 6
  s_add_u32 s33, s33, s56
  s_add_u32 s33, s33, {WS_OP}
  v_lshrrev_b32 v6, 2, {VL}       ; s16
  v_mul_u32_u24 v7, {OPS}, v6
  v_and_b32 v62, 3, {VL}
  v_lshl_add_u32 v7, v62, 4, v7
  v_add_u32 v62, s33, v7
  v_add_u32 v63, {16*OPS}, v62        ; s16+16
  v_mov_b32 v46, 0x3f803f80
  v_mov_b32 v47, 0x3f803f80
  v_mov_b32 v48, 0x3f803f80
  v_mov_b32 v49, 0x3f803f80
  v_and_b32 v55, 1, {VL}
  v_cmp_eq_u32 s[58:59], 1, v55
""")
xid_value("s34")
a("  s_mov_b32 s35, 0xffffff")
a("  s_waitcnt vmcnt(8)")
stamp(3)
a("  s_barrier")
for tt in range(2):
    for t in range(8):
        r = 64 + (tt*8 + t)*4
        a(f"  ds_read_b128 v[{r}:{r+3}], v{23 if t & 1 else 22} offset:{KBUF + (t>>1)*8192 + tt*2048}")

def w_weight_setup():
    srd(44, 12, SZ['wo'])
    srd(52, 18, SZ['w2'])
    a(f"""  s_lshl_b32 s42, s28, 9
  s_lshl_b32 s61, s29, 4
  s_add_u32 s42, s42, s61          ; g*512 + 16j
  s_lshl_b32 s61, s38, 8
  s_add_u32 s42, s42, s61          ; + h*256
  s_lshl_b32 s61, s37, 3
  s_add_u32 s42, s42, s61          ; + half*8
  s_mul_i32 s61, s42, 896
  s_lshl_b32 s60, s36, 10
  s_add_u32 s60, s60, {RA}
  v_mul_u32_u24 v19, 896, v8
  v_add_u32 v19, v19, v11
  s_lshl_b32 s33, s28, 4
  s_add_u32 s33, s33, s29          ; u
  s_min_u32 s42, s33, 111
  s_lshl_b32 s42, s42, 4
  s_lshl_b32 s62, s37, 3
  s_add_u32 s42, s42, s62          ; 16u + q*8   (q = v&1)
  s_mul_i32 s42, s42, 896
  s_lshl_b32 s62, s38, 7
  s_add_u32 s62, s42, s62          ; + (v>>1)*128
  s_cmp_lt_u32 s33, 112
  s_cselect_b32 s33, 0, 0x40000000
  v_add_u32 v20, s33, v19
  s_lshl_b32 s63, s38, 11
  s_lshl_b32 s33, s37, 10
  s_add_u32 s63, s63, s33
  s_add_u32 s63, s63, {RB}         ; RB + (v>>1)*2048 + q*1024
""")

def w_weight_loads(tagname):
    for cb in range(7):
        a(f"  s_add_u32 m0, s60, {cb*4096}")
        a(f"  s_add_u32 s33, s61, {cb*128}")
        dma("v19", 44, "s33")
    for k in range(4):
        if k == 3:
            a("  s_cmp_lg_u32 s38, 0")
            a(f"  s_cbranch_scc1 L_w2_done{tagname}")
        a(f"  s_add_u32 m0, s63, {k*4096}")
        a(f"  s_add_u32 s33, s62, {k*256}")
        dma("v20", 52, "s33")
    a(f"L_w2_done{tagname}:")

def q_loads():
    a("  global_load_dwordx4 v[32:35], v51, s[26:27] sc1")
    a("  global_load_dwordx4 v[36:39], v52, s[26:27] sc1")
    a("  global_load_dword v41, v50, s[26:27] sc1")

a("  s_cmp_lt_u32 s29, 16")
a("  s_cbranch_scc0 L_q_p")
w_weight_setup()
if OPT['wpos'] == 'first':
    pass
if OPT['wpos'] == 'q':
    a(f"  s_waitcnt vmcnt({OPT['qwait']})")
    stamp(4)
    q_loads()
    if OPT['a2']:
        a("  s_barrier")
    w_weight_loads("a")
    if OPT['opre']:
        a("  global_load_dword v2, v62, s[26:27] sc1")
        a("  global_load_dword v3, v63, s[26:27] sc1")
    a("  s_mov_b32 s33, 0")
    NY = 12 if OPT['opre'] else 10
    a("  s_cmp_lg_u32 s38, 0")
    a("  s_cbranch_scc1 L_qw10")
    a(f"  s_waitcnt vmcnt({NY+1})")
    a("  s_branch L_qchk")
    a("L_qw10:")
    a(f"  s_waitcnt vmcnt({NY})")
    a("  s_branch L_qchk")
a(f"""L_q_p:
  s_mov_b32 s33, 0
  s_waitcnt vmcnt({OPT['qwait']})
""")
stamp(4)
a("L_qpoll:")
q_loads()
a("  s_waitcnt vmcnt(0)")
a("L_qchk:")
check_regs("v40", range(32, 40))
a("  v_xor_b32 v41, s34, v41")
a("  v_and_b32 v40, 0xff, v40")
a("  v_and_or_b32 v40, v41, s35, v40")
poll_end("v40", "L_qpoll", "L_qok", masked=True)
stamp(5)
rec(13, "s33")
if OPT['wpos'] == 'mid':
    a("  s_cmp_lt_u32 s29, 16")
    a("  s_cbranch_scc0 L_nomid")
    w_weight_loads("m")
    a("L_nomid:")
a(f"""  v_add_f32 v32, v32, v36
  v_add_f32 v33, v33, v37
  v_add_f32 v34, v34, v38
  v_add_f32 v35, v35, v39
  v_cmp_ne_u32 vcc, 0, v41
  s_nop 0
  v_permlane32_swap_b32 v32, v34
  v_permlane32_swap_b32 v33, v35
  v_add_f32 v32, v32, v34
  v_add_f32 v33, v33, v35
  v_cvt_pk_bf16_f32 v32, v32, v33
  ds_write_b32 v53, v32
  s_cmp_eq_u64 vcc, 0
  s_cselect_b32 s35, {1 if OPT['fast'] else 0}, 0
  s_waitcnt lgkmcnt(0)
  s_barrier
""")
stamp(6)
for t in range(8):
    a(f"  ds_read_b128 v[{128+4*t}:{131+4*t}], v28 offset:{64*t}")
a(f"  s_mov_b32 s42, {C_LOG2E_16:#x}")
def v_read(i):
    nbk, hf = i >> 1, i & 1
    r = 160 + 4*nbk + 2*hf
    a(f"  ds_read_b64_tr_b16 v[{r}:{r+1}], v{24 + (nbk & 3)} offset:{(nbk >> 2)*8192 + hf*2048}")
for t in range(8):
    a(f"  s_waitcnt lgkmcnt({7 + t})")
    for tt in range(2):
        kr = 64 + (tt*8 + t)*4
        c = "0" if t == 0 else f"v[{32+4*tt}:{35+4*tt}]"
        a(f"  v_mfma_f32_16x16x32_bf16 v[{32+4*tt}:{35+4*tt}], v[{kr}:{kr+3}], v[{128+4*t}:{131+4*t}], {c}")
        v_read(2*t + tt)
a(f"""  s_nop 5
  v_max3_f32 v44, v32, v33, v34
  v_max3_f32 v45, v36, v37, v38
  v_max3_f32 v44, v44, v35, v39
  v_max_f32 v44, v44, v45
  v_mov_b32 v45, v44
  s_nop 1
  v_permlane16_swap_b32 v44, v45
  v_max_f32 v44, v44, v45
  v_mov_b32 v45, v44
  s_nop 1
  v_permlane32_swap_b32 v44, v45
  v_max_f32 v44, v44, v45
  v_mul_f32 v44, s42, v44
""")
for r in range(8):
    a(f"  v_fma_f32 v{32+r}, v{32+r}, s42, -v44")
for r in range(8):
    a(f"  v_exp_f32 v{32+r}, v{32+r}")
a("  s_nop 0")
for r in range(4):
    a(f"  v_cvt_pk_bf16_f32 v{40+r}, v{32+2*r}, v{33+2*r}")
a("  s_waitcnt lgkmcnt(0)             ; V operands")
a("  s_nop 0")
a("  v_mfma_f32_16x16x32_bf16 v[224:227], v[40:43], v[46:49], 0")
for nbk in range(8):
    a(f"  v_mfma_f32_16x16x32_bf16 v[{192+4*nbk}:{195+4*nbk}], v[40:43], v[{160+4*nbk}:{163+4*nbk}], 0")
a(f"""  v_cndmask_b32 v45, v224, v225, s[58:59]
  v_rcp_f32 v56, v224
  v_rcp_f32 v57, v225
  v_log_f32 v45, v45
  s_cmp_eq_u32 s35, 1
  v_add_f32 v45, v45, v44
""")
tagit("v59", "v45")
a("  v_mov_b32 v61, v59")
for q in range(2):
    for h in range(2):
        for k in range(4):
            a(f"  v_mul_f32_dpp v{32+2*q+h}, v{192+4*(4*q+k)+h}, v{56+h} quad_perm:[0,1,2,3] row_mask:{1<<k:#x} bank_mask:0xf")
    a(f"  v_cvt_pk_bf16_f32 v{58+2*q}, v{32+2*q}, v{33+2*q}")
a(f"""  s_cbranch_scc1 L_pub_local
  global_store_dwordx2 v54, v[58:59], s[26:27] sc1
  global_store_dwordx2 v54, v[60:61], s[26:27] offset:512 sc1
  s_branch L_pub_done
L_pub_local:                       ; every reader shares this die's L2
  global_store_dwordx2 v54, v[58:59], s[26:27]
  global_store_dwordx2 v54, v[60:61], s[26:27] offset:512
L_pub_done:
""")
stamp(7)
a("  s_cmp_lt_u32 s29, 16")
a("  s_cbranch_scc1 L_wstage")
a("  s_barrier")
dump_stamps()
a("  s_endpgm")

a("L_wstage:")
if OPT['wpos'] == 'late':
    w_weight_loads("l")
a(f"""  v_xor_b32 v24, s36, v16
  v_lshl_add_u32 v24, v24, 5, v15
  v_add_u32 v25, {RB}, v24
  v_add_u32 v24, {RA}, v24
  v_and_b32 v26, 1, {VL}
  v_lshlrev_b32 v27, 5, v26
  v_lshl_add_u32 v27, v13, 3, v27
  v_add_u32 v27, {HV}, v27
  v_lshlrev_b32 v28, 6, v26
  v_lshl_add_u32 v28, v13, 3, v28
  v_add_u32 v28, {OV}, v28
  v_and_b32 v54, 3, {VL}
  v_lshlrev_b32 v54, 2, v54
  v_and_b32 v55, 1, v13
  v_lshl_add_u32 v54, v55, 5, v54
  v_lshrrev_b32 v55, 1, v13
  v_lshl_add_u32 v54, v55, 1, v54
  s_lshl_b32 s42, s38, 6
  s_lshl_b32 s45, s37, 4
  s_add_u32 s42, s42, s45
  s_add_u32 s42, s42, {OV}
  v_add_u32 v54, s42, v54
  s_lshl_b32 s42, s28, 4
  s_add_u32 s42, s42, s29
  s_mul_i32 s42, s42, {APS}
  s_lshl_b32 s45, s36, {8 if OPT['appad'] else 7}
  s_add_u32 s42, s42, s45
  s_add_u32 s42, s42, {WS_AP}
  v_lshlrev_b32 v55, 3, {VL}
  v_add_u32 v55, s42, v55
  v_and_b32 v56, 7, {VL}
  v_lshlrev_b32 v56, 3, v56
  v_bfe_u32 v57, {VL}, 3, 1
  v_lshl_add_u32 v56, v57, 7, v56
  v_lshl_add_u32 v56, v13, 10, v56
  v_add_u32 v56, s42, v56
  v_add_u32 v57, 4096, v56
  s_lshl_b32 s42, s38, 2
  s_add_u32 s42, s42, {GT}
  v_mov_b32 v29, s42
  ds_read_b32 v50, v29
  s_mov_b32 s56, 0xf000f000
  s_mov_b32 s57, 0xf000f000
  s_mov_b32 s33, 0
  s_waitcnt vmcnt(0) lgkmcnt(0)
""")
if OPT['early']:
    a("""  global_load_dwordx4 v[32:35], v62, s[26:27] sc1
  global_load_dwordx4 v[36:39], v63, s[26:27] sc1""")
a("  s_barrier")
stamp(8)
if not OPT['early']:
    a("""  global_load_dwordx4 v[32:35], v62, s[26:27] sc1
  global_load_dwordx4 v[36:39], v63, s[26:27] sc1""")
if OPT['ffn_early']:
    a("  ds_read_b64 v[106:107], v27")
    for cb in range(7):
        a(f"  ds_read_b64_tr_b16 v[{92+2*cb}:{93+2*cb}], v25 offset:{cb*2048}")
    a("  s_waitcnt lgkmcnt(0)")
    for cb in range(7):
        a(f"  v_mfma_f32_16x16x16_bf16 v[{110+4*cb}:{113+4*cb}], v[106:107], v[{92+2*cb}:{93+2*cb}], 0")
a("  s_waitcnt vmcnt(0)")
a("  s_branch L_ochk")
a(f"""L_opoll:
  global_load_dwordx4 v[32:35], v62, s[26:27] sc1
  global_load_dwordx4 v[36:39], v63, s[26:27] sc1
  s_waitcnt vmcnt(0)
L_ochk:
""")
check_regs("v48", [33, 35, 37, 39])
poll_end("v48", "L_opoll", "L_ook")
stamp(9)
rec(12, "s33")
CHAIN = """  v_max_f32 v52, v33, v37
  v_max_f32 v53, v35, v39
  v_lshlrev_b32 v40, 16, v32       ; A: d0h0
  v_and_b32 v41, 0xffff0000, v32   ;    d0h1
  v_permlane16_swap_b32 v52, v53
  v_lshlrev_b32 v42, 16, v34       ;    d1h0
  v_and_b32 v43, 0xffff0000, v34   ;    d1h1
  v_max_f32 v52, v52, v53          ; rows: h0(01) h1(01) h0(23) h1(23)
  v_mov_b32 v53, v52
  v_lshlrev_b32 v44, 16, v36       ; B
  v_and_b32 v45, 0xffff0000, v36
  v_permlane32_swap_b32 v52, v53
  v_max_f32 v52, v52, v53
  v_lshlrev_b32 v46, 16, v38
  v_and_b32 v47, 0xffff0000, v38
  v_max_f32_dpp v52, v52, v52 row_shr:4 row_mask:0xf bank_mask:0xf
  SLOT
  SLOT
  v_max_f32_dpp v52, v52, v52 row_shr:8 row_mask:0xf bank_mask:0xf
  SLOT
  v_readlane_b32 s42, v52, 15
  v_readlane_b32 s45, v52, 31
  SLOT
  SLOT
  v_subrev_f32 v33, s42, v33
  v_subrev_f32 v37, s42, v37
  v_subrev_f32 v35, s45, v35
  v_subrev_f32 v39, s45, v39
  v_exp_f32 v33, v33               ; w A h0
  v_exp_f32 v37, v37               ; w B h0
  v_exp_f32 v35, v35               ; w A h1
  v_exp_f32 v39, v39               ; w B h1
  SLOT
  v_mul_f32 v40, v40, v33
  v_mul_f32 v41, v41, v35
  v_mul_f32 v42, v42, v33
  v_mul_f32 v43, v43, v35
  v_fmac_f32 v40, v44, v37
  v_fmac_f32 v41, v45, v39
  v_fmac_f32 v42, v46, v37
  v_fmac_f32 v43, v47, v39
  v_add_f32 v52, v33, v37          ; den h0
  v_add_f32 v53, v35, v39          ; den h1
  SLOT
  v_permlane16_swap_b32 v40, v41
  v_permlane16_swap_b32 v42, v43
  v_permlane16_swap_b32 v52, v53
  v_add_f32 v40, v40, v41
  v_add_f32 v42, v42, v43
  v_add_f32 v52, v52, v53
  v_mov_b32 v53, v52
  SLOT
  SLOT
  v_permlane32_swap_b32 v40, v42
  v_permlane32_swap_b32 v52, v53
  v_add_f32 v40, v40, v42
  v_add_f32 v52, v52, v53          ; rows h0 h1 h0 h1
  SLOT
  v_add_f32_dpp v40, v40, v40 row_shr:4 row_mask:0xf bank_mask:0xf
  v_add_f32_dpp v52, v52, v52 row_shr:4 row_mask:0xf bank_mask:0xf
  SLOT
  v_add_f32_dpp v40, v40, v40 row_shr:8 row_mask:0xf bank_mask:0xf
  v_add_f32_dpp v52, v52, v52 row_shr:8 row_mask:0xf bank_mask:0xf
  v_mul_f32 v40, v40, v50          ; * gate
  v_rcp_f32 v52, v52"""
W2R = ["  ds_read_b64 v[106:107], v27"] + [f"  ds_read_b64_tr_b16 v[{92+2*cb}:{93+2*cb}], v25 offset:{cb*2048}" for cb in range(7)]
WOR = []
for cb in range(7):
    WOR.append(f"  ds_read_b64_tr_b16 v[{64+4*cb}:{65+4*cb}], v24 offset:{cb*4096}")
    WOR.append(f"  ds_read_b64_tr_b16 v[{66+4*cb}:{67+4*cb}], v24 offset:{cb*4096+2048}")
queue = (WOR if OPT['ffn_early'] else W2R + WOR)[:]
nslot = 0
for ln in CHAIN.split("\n"):
    if ln.strip() == "SLOT":
        a(queue.pop(0)); nslot += 1
    else:
        a(ln)
if STAMP == 3: stamp(11)
if OPT['ffn_early']:
    a(f"""  s_mov_b64 exec, s[56:57]
  v_mul_f32 v40, v40, v52
  v_cvt_pk_bf16_f32 v40, v40, v40
  ds_write_b16 v54, v40
  s_mov_b64 exec, -1""")
    for ln in queue: a(ln)
    a(f"  s_waitcnt lgkmcnt({len(queue)})")
else:
    a(f"""  s_mov_b64 exec, s[56:57]
  v_mul_f32 v40, v40, v52
  v_cvt_pk_bf16_f32 v40, v40, v40
  ds_write_b16 v54, v40
  s_mov_b64 exec, -1
  s_waitcnt lgkmcnt(4)""")
    for cb in range(7):
        a(f"  v_mfma_f32_16x16x16_bf16 v[{110+4*cb}:{113+4*cb}], v[106:107], v[{92+2*cb}:{93+2*cb}], 0")
        for ln in queue[cb*11//7:(cb+1)*11//7]:
            a(ln)
    a("  s_waitcnt lgkmcnt(11)")
a(f"""  s_barrier
""")
if STAMP == 3: stamp(12)
a(f"""  ds_read2_b64 v[40:43], v28 offset0:0 offset1:4
  s_waitcnt lgkmcnt(0)
""")
if STAMP == 3: stamp(13)
for cb in range(7):
    a(f"  v_mfma_f32_16x16x32_bf16 v[{110+4*cb}:{113+4*cb}], v[40:43], v[{64+4*cb}:{67+4*cb}], v[{110+4*cb}:{113+4*cb}]")
assert OPT['appad'] == 1
a("  s_mov_b32 s56, -1")
a("  s_mov_b32 s57, 0xffff")
a("  s_nop 0")
for k in (1, 2, 3):
    for h in range(2):
        a(f"  v_mov_b32_dpp v{110+h}, v{110+4*k+h} quad_perm:[0,1,2,3] row_mask:{1<<k:#x} bank_mask:0xf")
tagit("v110", "v110")
a("  global_store_dwordx2 v56, v[110:111], s[26:27] sc1")
for k in (1, 2):
    for h in range(2):
        a(f"  v_mov_b32_dpp v{126+h}, v{126+4*k+h} quad_perm:[0,1,2,3] row_mask:{1<<k:#x} bank_mask:0xf")
tagit("v126", "v126")
a("  s_mov_b64 exec, s[56:57]")
a("  global_store_dwordx2 v57, v[126:127], s[26:27] sc1")
stamp(10)
if OPT['apack']:
    a("  s_waitcnt vmcnt(0)")
    stamp(11)
a("  s_mov_b64 exec, -1")
dump_stamps()
a("  s_endpgm")

a("L_aux0:")
if STAMP in (1, 2):
    for k in range(1, 16):
        a(f"  s_mov_b32 s{64+2*k}, 0")
a(f"""  s_lshr_b32 s29, s2, 3            ; j
  s_mov_b32 s32, 0xff
  v_lshrrev_b32 v13, 4, {VL}       ; g4
  v_lshlrev_b32 v18, 4, {VL}
  v_add_u32 v21, 1024, v18
  s_waitcnt lgkmcnt(0)
  s_load_dword s31, s[26:27], {WS_E}
""")
stamp(1)
srd(52, 4, SZ['x'])
a(f"""  s_mov_b32 m0, {XB}
  s_cmp_ge_u32 s29, 16
  buffer_load_dwordx4 v18, s[52:55], 0 offen lds
  s_mov_b32 m0, {XB+1024}
  s_nop 0
  buffer_load_dwordx4 v21, s[52:55], 0 offen lds
  s_cbranch_scc1 L_aux
  s_mov_b32 s56, -1
  s_mov_b32 s57, 0x00ffffff
  s_mov_b64 exec, s[56:57]
  global_load_dwordx4 v[70:73], v18, s[4:5]
  global_load_dwordx4 v[74:77], v18, s[4:5] offset:896
  global_load_dwordx4 v[78:81], v18, s[20:21]
  s_mov_b64 exec, -1
""")
a("L_aux:")
tr_lane_setup()
for nb in range(4):
    a(f"  v_xor_b32 v{24+nb}, {nb}, v16")
    a(f"  v_lshl_add_u32 v{24+nb}, v{24+nb}, 5, v15")
    a(f"  v_add_u32 v{24+nb}, {RC}, v{24+nb}")
h_unit_index("s39")
a(f"""  s_mul_i32 s40, s39, 9363
  s_lshr_b32 s40, s40, 16          ; cbh
  s_mul_i32 s41, s40, 7
  s_sub_u32 s41, s39, s41          ; kp
  v_and_b32 v28, 1, {VL}
  v_mul_u32_u24 v28, 896, v28
  v_lshl_add_u32 v28, v13, 3, v28
  s_lshl_b32 s42, s41, 7
  s_add_u32 s42, s42, {XB}
  v_add_u32 v28, s42, v28
  s_mul_i32 s42, s41, {2*7168}
  s_lshl_b32 s43, s40, 8
  s_add_u32 s42, s42, s43
  s_add_u32 s42, s42, {WS_HP}
  v_lshlrev_b32 v31, 2, {VL}
  v_add_u32 v31, s42, v31
  v_add_u32 v30, 7168, v31
  s_waitcnt lgkmcnt(0)
""")
tau_setup()
xid_value("s34")
a(f"""  s_lshl_b32 s42, s28, 7
  s_lshl_b32 s43, s29, 2
  s_add_u32 s42, s42, s43
  s_add_u32 s42, s42, {WS_XID}
  v_mov_b32 v6, s42
  v_mov_b32 v7, s34
  s_waitcnt vmcnt(0)
  s_mov_b64 exec, 1
  global_store_dword v6, v7, s[26:27] sc1
  s_mov_b64 exec, -1
  s_barrier                        ; barrier Q
  s_barrier                        ; barrier Q2
""")
stamp(2)
if OPT['tlb']:
    a(f"""  s_lshl_b32 s42, s28, 9
  s_lshl_b32 s43, s29, 4
  s_add_u32 s42, s42, s43
  s_mul_i32 s42, s42, 896
  v_mov_b32 v6, s42
  v_mov_b32 v7, 0
  s_mov_b64 exec, 1
  global_load_dword v2, v6, s[12:13] nt
  global_load_dword v2, v7, s[18:19] offset:64 nt
  global_load_dword v2, v7, s[22:23] nt
  s_mov_b64 exec, -1
""")
a("  s_cmp_ge_u32 s39, 196")
a("  s_cbranch_scc1 L_nohpub")
for st in range(2):
    a(f"  ds_read2_b64 v[{48+4*st}:{51+4*st}], v28 offset0:{8*st} offset1:{8*st+4}")
    for nb in range(4):
        r = 96 + 16*st + 4*nb
        a(f"  ds_read_b64_tr_b16 v[{r}:{r+1}], v{24+nb} offset:{st*4096}")
        a(f"  ds_read_b64_tr_b16 v[{r+2}:{r+3}], v{24+nb} offset:{st*4096+2048}")
for st in range(2):
    a(f"  s_waitcnt lgkmcnt({9 - 9*st})")
    for nb in range(4):
        r = 96 + 16*st + 4*nb
        c = "0" if st == 0 else f"v[{32+4*nb}:{35+4*nb}]"
        a(f"  v_mfma_f32_16x16x32_bf16 v[{32+4*nb}:{35+4*nb}], v[{48+4*st}:{51+4*st}], v[{r}:{r+3}], {c}")
a("  s_nop 7")
for r in range(2):
    a(f"  v_permlane16_swap_b32 v{32+r}, v{36+r}")
    a(f"  v_permlane16_swap_b32 v{40+r}, v{44+r}")
a("  s_nop 1")
for r in range(2):
    a(f"  v_permlane32_swap_b32 v{32+r}, v{40+r}")
a("  s_nop 1")
tagit("v32", "v32")
tagit("v33", "v33")
a("""  global_store_dword v31, v32, s[26:27] sc1
  global_store_dword v30, v33, s[26:27] sc1
L_nohpub:""")
stamp(5)
a("  s_cmp_ge_u32 s29, 16")
a("  s_cbranch_scc1 L_aux_a")
a("  v_mov_b32 v44, 0")
a("  v_mov_b32 v45, 0")
for r in range(4):
    a(f"  v_lshlrev_b32 v46, 16, v{78+r}")
    a(f"  v_and_b32 v47, 0xffff0000, v{78+r}")
    for b in range(2):
        a(f"  v_lshlrev_b32 v48, 16, v{70+4*b+r}")
        a(f"  v_and_b32 v49, 0xffff0000, v{70+4*b+r}")
        a(f"  v_mul_f32 v48, v48, v46")
        a(f"  v_mul_f32 v49, v49, v47")
        a(f"  v_cvt_pk_bf16_f32 v48, v48, v49")
        a(f"  v_lshlrev_b32 v49, 16, v48")
        a(f"  v_and_b32 v48, 0xffff0000, v48")
        a(f"  v_add_f32 v{44+b}, v{44+b}, v49")
        a(f"  v_add_f32 v{44+b}, v{44+b}, v48")
a(f"""  v_cmp_gt_u32 vcc, 56, {VL}
  s_nop 1
  v_cndmask_b32 v44, 0, v44, vcc
  v_cndmask_b32 v45, 0, v45, vcc
  s_nop 1
""")
for sh in (1, 2, 4, 8):
    a(f"  v_add_f32_dpp v44, v44, v44 row_shr:{sh} row_mask:0xf bank_mask:0xf")
    a(f"  v_add_f32_dpp v45, v45, v45 row_shr:{sh} row_mask:0xf bank_mask:0xf")
    a("  s_nop 0")
a(f"""  v_add_f32_dpp v44, v44, v44 row_bcast:15 row_mask:0xa bank_mask:0xf
  v_add_f32_dpp v45, v45, v45 row_bcast:15 row_mask:0xa bank_mask:0xf
  s_nop 0
  v_add_f32_dpp v44, v44, v44 row_bcast:31 row_mask:0xc bank_mask:0xf
  v_add_f32_dpp v45, v45, v45 row_bcast:31 row_mask:0xc bank_mask:0xf
  s_nop 0
  v_readlane_b32 s42, v44, 63
  v_readlane_b32 s43, v45, 63
  s_nop 1
  v_and_b32 v46, 1, {VL}
  v_cmp_eq_u32 vcc, 0, v46
  v_mov_b32 v47, s43
  v_mov_b32 v48, s42
  v_cndmask_b32 v47, v47, v48, vcc
  v_mul_f32 v47, 0xbfb8aa3b, v47   ; -log2e * z
  v_exp_f32 v47, v47
  s_nop 0
  v_add_f32 v47, 1.0, v47
  v_rcp_f32 v47, v47               ; g[b = lane&1]
  s_nop 0
  v_sub_f32 v82, 1.0, v47          ; 1-g
  v_lshlrev_b32 v46, 2, v46
  v_add_u32 v46, {GT}, v46
  s_mov_b64 exec, 3
  ds_write_b32 v46, v47
  s_mov_b64 exec, -1
  s_waitcnt lgkmcnt(0)
""")
stamp(3)
a("L_aux_a:")
a("  s_barrier")
a("  s_cmp_lt_u32 s29, 16")
a("  s_cbranch_scc1 L_aux_w")
a("  s_cmp_lt_u32 s29, 23")
a("  s_cbranch_scc1 L_final")
dump_stamps()
a("  s_endpgm")

a(f"""L_final:
  s_sub_u32 s36, s29, 16           ; p
  s_lshl_b32 s37, s36, 3
  s_add_u32 s37, s37, s28          ; c
  v_lshrrev_b32 v29, 2, {VL}       ; u16
  v_mul_u32_u24 v30, {APS}, v29
  v_and_b32 v31, 3, {VL}
  v_lshl_add_u32 v30, v31, 4, v30
  s_lshl_b32 s42, s37, {7 if OPT['appad'] else 6}
  s_add_u32 s42, s42, {WS_AP}
  v_add_u32 v30, s42, v30
""")
for k in range(8):
    a(f"  v_add_u32 v{16+k}, {k*16*APS}, v30")
a(f"""  ; out + b*896 + (8c + 2*c4 + (r>>1))*2
  v_and_b32 v28, 1, v13
  v_mul_u32_u24 v28, 896, v28
  v_lshl_add_u32 v28, v31, 2, v28
  v_lshrrev_b32 v29, 1, v13
  v_lshl_add_u32 v28, v29, 1, v28
  s_lshl_b32 s42, s37, 4
  v_add_u32 v28, s42, v28
  s_mov_b32 s56, 0xf000f000
  s_mov_b32 s57, 0xf000f000
  v_mov_b32 v29, {WS_E}
  s_barrier                        ; barrier B
  s_barrier                        ; barrier C
  s_mov_b32 s33, 0
""")
if OPT['fdelay']:
    a(f"""L_fd:
  s_memrealtime s[60:61]
  s_waitcnt lgkmcnt(0)
  s_sub_u32 s62, s60, s64
  s_cmp_lt_u32 s62, {OPT['fdelay']}
  s_cbranch_scc1 L_fd""")
stamp(8)
if OPT['fgate'] == 2:
    a(f"""  s_mul_i32 s42, s28, {64*OPS}
  s_add_u32 s42, s42, {WS_OP}
  v_and_b32 v24, 31, {VL}
  v_mul_u32_u24 v24, {OPS}, v24
  v_add_u32 v24, s42, v24
L_fgate:
  global_load_dwordx4 v[32:35], v24, s[26:27] sc1
  s_waitcnt vmcnt(0)
""")
    check_regs("v14", [33, 35])
    poll_end("v14", "L_fgate", "L_fgate_ok")
if OPT['fgate'] == 1:
    a(f"""  s_mul_i32 s42, s28, {16*APS}
  v_add_u32 v24, s42, v30
L_fgate:
  global_load_dwordx4 v[32:35], v24, s[26:27] sc1
  s_waitcnt vmcnt(0)
""")
    check_regs("v14", [32, 34])
    poll_end("v14", "L_fgate", "L_fgate_ok")
NS = OPT['fsets']
def fbase(i): return 32 + 32*i
def fissue(i):
    for k in range(8):
        a(f"  global_load_dwordx4 v[{fbase(i)+4*k}:{fbase(i)+4*k+3}], v{16+k}, s[26:27] sc1")
for i in range(NS):
    fissue(i)
a("L_fpoll:")
for i in range(NS):
    a(f"  s_waitcnt vmcnt({8*(NS-1)})")
    check_regs("v14", [fbase(i)+4*k+q for k in range(8) for q in (0, 2)])
    a("  v_and_b32 v14, 0xff, v14")
    a("  v_cmp_ne_u32 vcc, 0, v14")
    a("  s_add_u32 s33, s33, 1")
    a(f"  s_cmp_gt_u32 s33, {OPT['spin']}")
    a(f"  s_cbranch_scc1 L_fok{i}")
    a(f"  s_cbranch_vccz L_fok{i}")
    if OPT['fsleep']:
        a(f"  s_sleep {OPT['fsleep']}")
    fissue(i)
a("  s_branch L_fpoll")
TB = 144
for i in range(NS):
    a(f"L_fok{i}:")
    for k in range(4):
        for h in range(2):
            x = fbase(i) + 8*k + 2*h
            a(f"  v_pk_add_f32 v[{TB+4*k+2*h}:{TB+4*k+2*h+1}], v[{x}:{x+1}], v[{x+4}:{x+5}]")
    if i < NS-1:
        a("  s_branch L_fsum")
a("L_fsum:")
stamp(9)
rec(12, "s33")
for h in range(2):
    a(f"  v_pk_add_f32 v[{TB+2*h}:{TB+2*h+1}], v[{TB+2*h}:{TB+2*h+1}], v[{TB+4+2*h}:{TB+5+2*h}]")
    a(f"  v_pk_add_f32 v[{TB+8+2*h}:{TB+9+2*h}], v[{TB+8+2*h}:{TB+9+2*h}], v[{TB+12+2*h}:{TB+13+2*h}]")
for h in range(2):
    a(f"  v_pk_add_f32 v[{160+2*h}:{161+2*h}], v[{TB+2*h}:{TB+2*h+1}], v[{TB+8+2*h}:{TB+9+2*h}]")
a(f"""  s_nop 1
  v_permlane16_swap_b32 v160, v161
  v_permlane16_swap_b32 v162, v163
  v_add_f32 v160, v160, v161
  v_add_f32 v162, v162, v163
  s_nop 1
  v_permlane32_swap_b32 v160, v162
  v_add_f32 v160, v160, v162
  s_nop 1
  v_add_f32_dpp v160, v160, v160 row_shr:4 row_mask:0xf bank_mask:0xf
  s_nop 1
  v_add_f32_dpp v160, v160, v160 row_shr:8 row_mask:0xf bank_mask:0xf
  s_mov_b64 exec, s[56:57]
  v_cvt_pk_bf16_f32 v160, v160, v160
  global_store_short v28, v160, s[22:23]{' ' + OPT['outflag'].replace('_', ' ') if OPT['outflag'] != 'none' else ''}
  s_cmp_lg_u32 s37, 0
  s_cbranch_scc1 L_noE
  s_mov_b64 exec, 1
  global_store_dword v29, {VTAU}, s[26:27]{' ' + OPT['outflag'].replace('_', ' ') if OPT['outflag'] != 'none' else ''}
L_noE:
  s_mov_b64 exec, -1
""")
if OPT['deadline']:
    a(f"""L_dl:
  s_memrealtime s[56:57]
  s_waitcnt lgkmcnt(0)
  s_sub_u32 s33, s56, s96
  s_cmp_lt_u32 s33, {OPT['deadline']}
  s_cbranch_scc1 L_dl""")
stamp(10, final=True)
if OPT['dbgts']:
    a("  s_waitcnt lgkmcnt(0)")
    a("  s_cmp_lg_u32 s37, 0")
    a("  s_cbranch_scc1 L_nodbg")
    a("  s_mov_b64 exec, 1")
    a("  v_mov_b32 v8, 0")
    for q in range(4):
        for r in range(4):
            k = 4*q + r
            a(f"  s_sub_u32 s33, s{64+2*k}, s64")
            a(f"  v_mov_b32 v{12+r}, s33")
        a(f"  global_store_dwordx4 v8, v[12:15], s[24:25] offset:{16*q}")
        a("  s_nop 1")
    a("L_nodbg:")
else:
    dump_stamps()
a("  s_endpgm")

a("L_aux_w:")
a(f"""  ; h gather set-up: lanes (kp = l>>3 (0..6), b = (l>>2)&1, q4 = l&3) ; HP + (kp*2+b)*7168 + (16u + 4*q4)*4
  s_lshl_b32 s38, s28, 4
  s_add_u32 s38, s38, s29          ; u = g*16 + j
  v_lshrrev_b32 v85, 3, {VL}
  v_bfe_u32 v86, {VL}, 2, 1
  v_lshl_add_u32 v85, v85, 1, v86
  v_mul_u32_u24 v85, 7168, v85
  v_and_b32 v87, 3, {VL}
  v_lshl_add_u32 v85, v87, 4, v85
  s_lshl_b32 s42, s38, 6
  s_add_u32 s42, s42, {WS_HP}
  v_add_u32 v85, s42, v85
  v_readlane_b32 s42, v82, 0
  v_readlane_b32 s43, v82, 1
  v_cmp_eq_u32 vcc, 0, v86
  s_nop 0
  v_mov_b32 v36, s43
  v_mov_b32 v37, s42
  v_cndmask_b32 v83, v36, v37, vcc
  v_lshlrev_b32 v84, 5, v86
  v_lshl_add_u32 v84, v87, 3, v84
  v_add_u32 v84, {HV}, v84          ; HV + b*32 + q4*8
""")
a(f"""  v_mov_b32 v32, 0
  v_mov_b32 v33, 0
  v_mov_b32 v34, 0
  v_mov_b32 v35, 0
  s_mov_b32 s56, -1
  s_mov_b32 s57, 0x00ffffff
  s_mov_b32 s33, 0
  s_setprio 3
""")
if OPT['a2'] and OPT['wpos'] == 'q':
    a("  s_barrier                        ; barrier A2")
a(f"""  s_cmp_ge_u32 s38, 112
  s_cbranch_scc1 L_hskip
  s_mov_b64 exec, s[56:57]
  global_load_dwordx4 v[32:35], v85, s[26:27] sc1
  s_mov_b64 exec, -1
L_hskip:
  s_barrier                        ; barrier B
""")
stamp(6)
a(f"""  s_cmp_ge_u32 s38, 112
  s_cbranch_scc1 L_hdone
  s_mov_b64 exec, s[56:57]
  s_waitcnt vmcnt(0)
  s_branch L_hchk
L_hpoll:
  global_load_dwordx4 v[32:35], v85, s[26:27] sc1
  s_waitcnt vmcnt(0)
L_hchk:
""")
check_regs("v40", range(32, 36))
poll_end("v40", "L_hpoll", "L_hok")
a("  s_mov_b64 exec, -1")
a("  s_nop 1")
for r in range(4):
    a(f"  v_add_f32_dpp v{32+r}, v{32+r}, v{32+r} row_ror:8 row_mask:0xf bank_mask:0xf")
for r in range(4):
    a(f"  v_mov_b32 v{36+r}, v{32+r}")
a("  s_nop 1")
for r in range(4):
    a(f"  v_permlane16_swap_b32 v{32+r}, v{36+r}")
for r in range(4):
    a(f"  v_add_f32 v{32+r}, v{32+r}, v{36+r}")
for r in range(4):
    a(f"  v_mov_b32 v{36+r}, v{32+r}")
a("  s_nop 1")
for r in range(4):
    a(f"  v_permlane32_swap_b32 v{32+r}, v{36+r}")
for r in range(4):
    a(f"  v_add_f32 v{32+r}, v{32+r}, v{36+r}")
a("L_hdone:")
for r in range(4):
    a(f"  v_max_f32 v{32+r}, 0, v{32+r}")
    a(f"  v_mul_f32 v{32+r}, v{32+r}, v83")
a(f"""  v_cvt_pk_bf16_f32 v32, v32, v33
  v_cvt_pk_bf16_f32 v33, v34, v35
  s_mov_b64 exec, 0xff
  ds_write_b64 v84, v[32:33]
  s_mov_b64 exec, -1
  s_waitcnt lgkmcnt(0)
""")
stamp(7)
a("  s_barrier                        ; barrier D1")
dump_stamps()
a("L_end:")
a("  s_endpgm")
a("L_code_end:")
a(footer(vgpr=232, sgpr=100))
open(sys.argv[1], "w").write(a.text())
```

```python
import sys
from asmlib import *

OPT = dict(stamp=0, spin=400000, nt=1, qwait=3, sleep=0, fsleep=0, fast=1, tlb=0, prefetch=1,
           ops=2176, aps=3712, deadline=0, dbgts=0, wpos='q', a2=1, opre=1, fsets=1, outflag='sc1', apack=0, fdelay=0, appad=1, early=0, probe1=0, amp=-1, ampa=0, ampf=10, ampwg=37, ampwave=1, fgate=2, ffn_early=1, oflag='sc1')
for a_ in sys.argv[2:]:
    k, v = a_.split('=')
    assert k in OPT, k
    OPT[k] = int(v) if v.lstrip('-').isdigit() else v
STAMP = OPT['stamp']
OPS = OPT['ops']; APS = 7296 if OPT['appad'] else OPT['aps']

WS_E = 0
WS_XID = 0x400
WS_QP = 0x1000
WS_HP = 0x21000
WS_OP = 0x40000
WS_AP = 0x180000
WS_TS = 0x300000
assert WS_HP + 7*2*7168 <= WS_OP and WS_OP + 512*OPS <= WS_AP and WS_AP + 128*APS <= WS_TS

KBUF = 0
VBUF = 32768
RA = 65536
RB = 94208
RC = 108544
XB = 116736
QB = 118784
OV = 119936
HV = 120064
GT = 120128
LDS_BYTES = 120320

C_LOG2E_16 = 0x3DB8AA3B
NT = " nt" if OPT['nt'] else ""
VTAU = "v4"
VL = "v5"

a = Asm()
def stamp(k, final=False):
    if STAMP == 1 or (STAMP == 2 and (k == 0 or final)) or (STAMP == 3 and k in (0, OPT['amp'], OPT['ampa'])):
        a(f"  s_memrealtime s[{64+2*k}:{65+2*k}]")
def rec(k, sreg):
    if STAMP == 1:
        a(f"  s_mov_b32 s{64+2*k}, {sreg}")

def srd(dst, ptr, size):
    a(f"  s_mov_b32 s{dst}, s{ptr}")
    a(f"  s_mov_b32 s{dst+1}, s{ptr+1}")
    a(f"  s_mov_b32 s{dst+2}, {size}")
    a(f"  s_mov_b32 s{dst+3}, 0x20000")

def dma(voff, srdreg, soff):
    a(f"  buffer_load_dwordx4 {voff}, s[{srdreg}:{srdreg+3}], {soff} offen{NT} lds")

def tagit(dst, src):
    a(f"  v_bfi_b32 {dst}, s32, {VTAU}, {src}")

def check_regs(acc, regs, first=True):
    regs = list(regs)
    for r in regs:
        a(f"  v_xor_b32 v{r}, s31, v{r}")
    if first:
        if len(regs) >= 3:
            a(f"  v_or3_b32 {acc}, v{regs[0]}, v{regs[1]}, v{regs[2]}"); regs = regs[3:]
        else:
            a(f"  v_or_b32 {acc}, v{regs[0]}, v{regs[1]}"); regs = regs[2:]
    while len(regs) >= 2:
        a(f"  v_or3_b32 {acc}, {acc}, v{regs[0]}, v{regs[1]}"); regs = regs[2:]
    if regs:
        a(f"  v_or_b32 {acc}, {acc}, v{regs[0]}")

def poll_end(acc, lab_retry, lab_ok, cnt="s33", sleep=None, masked=False):
    sleep = OPT['sleep'] if sleep is None else sleep
    if not masked:
        a(f"  v_and_b32 {acc}, 0xff, {acc}")
    a(f"  v_cmp_ne_u32 vcc, 0, {acc}")
    a(f"  s_add_u32 {cnt}, {cnt}, 1")
    a(f"  s_cmp_gt_u32 {cnt}, {OPT['spin']}")
    a(f"  s_cbranch_scc1 {lab_ok}")
    if sleep:
        a(f"  s_cbranch_vccz {lab_ok}")
        a(f"  s_sleep {sleep}")
        a(f"  s_branch {lab_retry}")
    else:
        a(f"  s_cbranch_vccnz {lab_retry}")
    a(f"{lab_ok}:")

def dump_stamps():
    if STAMP == 3:
        lab = a.label("L_amp")
        k = OPT['amp']
        a(f"""  s_cmp_lg_u32 s2, {OPT['ampwg']}
  s_cbranch_scc1 {lab}_x
  s_cmp_lg_u32 s30, {OPT['ampwave']}
  s_cbranch_scc1 {lab}_x
  s_waitcnt lgkmcnt(0)
  s_sub_u32 s33, s{64+2*k}, s{64+2*OPT['ampa']}
  s_mul_i32 s33, s33, {OPT['ampf']}
  s_add_u32 s33, s33, 1200
{lab}:
  s_memrealtime s[56:57]
  s_waitcnt lgkmcnt(0)
  s_sub_u32 s56, s56, s64
  s_cmp_lt_u32 s56, s33
  s_cbranch_scc1 {lab}
{lab}_x:""")
        return
    if not STAMP or OPT['dbgts']:
        return
    a("  s_waitcnt lgkmcnt(0)")
    a("  s_mul_i32 s33, s2, 5")
    a("  s_add_u32 s33, s33, s30")
    a("  s_lshl_b32 s33, s33, 6")
    a(f"  s_add_u32 s33, s33, {WS_TS}")
    a("  v_mov_b32 v8, s33")
    a("  s_mov_b64 exec, 1")
    for q in range(4):
        for r in range(4):
            a(f"  v_mov_b32 v{12+r}, s{64+2*(4*q+r)}")
        a(f"  global_store_dwordx4 v8, v[12:15], s[26:27] offset:{16*q}")
        a("  s_nop 1")

def tau_setup():
    a("  s_and_b32 s31, s31, 0xff")
    a("  s_mul_i32 s31, s31, 5")
    a("  s_add_u32 s31, s31, 59")
    a("  s_and_b32 s31, s31, 0xff")
    a(f"  v_mov_b32 {VTAU}, s31")

def xid_value(dst):
    a(f"  s_getreg_b32 {dst}, hwreg(HW_REG_XCC_ID, 0, 4)")
    a(f"  s_lshl_b32 {dst}, {dst}, 24")
    a(f"  s_mul_i32 s33, s31, 0x010101")
    a(f"  s_or_b32 {dst}, {dst}, s33")

def tr_lane_setup():
    a(f"""  v_bfe_u32 v14, {VL}, 2, 2        ; r4
  v_lshl_add_u32 v15, v13, 2, v14  ; row = 4*g4+r4
  v_bfe_u32 v16, v15, 1, 2         ; f
  v_and_b32 v17, 3, {VL}           ; c
  v_lshlrev_b32 v15, 7, v15
  v_lshl_add_u32 v15, v17, 3, v15  ; row*128 + c*8""")

def h_unit_index(dst):
    a(f"""  s_lshl_b32 {dst}, s28, 4
  s_add_u32 {dst}, {dst}, s29
  s_sub_u32 {dst}, {dst}, 16       ; P: g*16 + p
  s_lshl_b32 s33, s29, 3
  s_add_u32 s33, s33, s28
  s_add_u32 s33, s33, 128          ; W: 128 + i*8 + g
  s_cmp_lt_u32 s29, 16
  s_cselect_b32 {dst}, s33, {dst}""")

a(header(256, 320, LDS_BYTES))
stamp(0)
if OPT['deadline'] or OPT['probe1']:
    a("  s_memrealtime s[96:97]")
a(f"""  s_load_dwordx16 s[4:19], s[0:1], 0
  s_load_dwordx8 s[20:27], s[0:1], 64
  s_getpc_b64 s[34:35]
L_pc:
  v_lshlrev_b32 v1, {5 if OPT['prefetch'] else 0}, v0
  v_min_u32 v1, {"L_code_end - L_pc - 4" if OPT['prefetch'] else 0}, v1
  s_cmpk_ge_u32 s2, 0x100
  s_cbranch_scc1 L_end
  global_load_dword v3, v1, s[34:35]
  v_lshrrev_b32 v2, 6, v0
  v_and_b32 {VL}, 63, v0
  v_readfirstlane_b32 s30, v2
  v_lshrrev_b32 v8, 3, {VL}
  v_bfe_u32 v9, {VL}, 4, 2         ; (row>>1)&3
  v_and_b32 v10, 7, {VL}
  v_lshlrev_b32 v11, 1, v9
  v_xor_b32 v11, v11, v10
  v_lshlrev_b32 v11, 4, v11        ; *16 bytes
  v_lshl_add_u32 v18, v8, 13, v11
  s_and_b32 s28, s2, 7             ; g
  s_cmp_eq_u32 s30, 0
  s_cbranch_scc1 L_aux0
  s_lshr_b32 s42, s2, 6            ; kp
  s_mul_i32 s42, s42, {112*8192}
  s_lshl_b32 s43, s28, 10
  s_add_u32 s42, s42, s43
  s_bfe_u32 s43, s2, 0x30003       ; j&7
  s_lshl_b32 s43, s43, 7
  s_add_u32 s42, s42, s43
  s_sub_u32 s36, s30, 1            ; v
  s_lshl_b32 s43, s36, 16          ; v*8*8192
  s_add_u32 s42, s42, s43
  v_add_u32 v18, s42, v18
  s_lshl_b32 s43, s36, 10
  s_add_u32 m0, s43, {RA}
  s_lshl_b32 s44, 1, 18
  s_movk_i32 s45, 0x1000
  s_waitcnt lgkmcnt(0)
  global_load_lds_dwordx4 v18, s[10:11]{NT}
  s_add_u32 m0, m0, s45
  v_add_u32 v18, s44, v18
  global_load_lds_dwordx4 v18, s[10:11]{NT}
  s_add_u32 m0, m0, s45
  v_add_u32 v18, s44, v18
  global_load_lds_dwordx4 v18, s[10:11]{NT}
  s_cmp_ge_u32 s36, 2
  s_cbranch_scc1 L_wq_done
  s_add_u32 m0, m0, s45
  v_add_u32 v18, s44, v18
  global_load_lds_dwordx4 v18, s[10:11]{NT}
""")
a("L_wq_done:")
if OPT['probe1']:
    a(f"""L_pr1:
  s_memrealtime s[56:57]
  s_waitcnt lgkmcnt(0)
  s_sub_u32 s33, s56, s96
  s_cmp_lt_u32 s33, {OPT['probe1']}
  s_cbranch_scc1 L_pr1""")
if STAMP in (1, 2):
    for k in range(1, 16):
        a(f"  s_mov_b32 s{64+2*k}, 0")
if STAMP == 3: stamp(15)
a(f"""  s_load_dword s31, s[26:27], {WS_E}
  s_lshr_b32 s29, s2, 3            ; j
  s_mov_b32 s32, 0xff
  v_lshrrev_b32 v13, 4, {VL}       ; g4
  s_and_b32 s37, s36, 1            ; kh
  s_lshr_b32 s38, s36, 1           ; dh""")
stamp(1)
h_unit_index("s45")
a(f"""  s_mul_i32 s46, s45, 9363
  s_lshr_b32 s46, s46, 16          ; cbh = u1/7
  s_mul_i32 s47, s46, 7
  s_sub_u32 s47, s45, s47          ; kp = u1%7
  s_min_u32 s46, s46, 27
  s_lshl_b32 s46, s46, 7
  s_mul_i32 s47, s47, {64*3584}
  s_add_u32 s46, s46, s47
  s_mul_i32 s47, s36, {8*3584}
  s_add_u32 s46, s46, s47
  s_cmp_lt_u32 s45, 196
  s_cselect_b32 s45, 0, 0x40000000
  v_mul_u32_u24 v18, 3584, v8
  v_add3_u32 v18, v18, v11, s45
  s_lshl_b32 s47, s36, 10
  s_add_u32 s47, s47, {RC}
""")
srd(52, 16, SZ['w1'])
for k in range(2):
    a(f"  s_add_u32 m0, s47, {k*4096}")
    a(f"  s_add_u32 s45, s46, {k*4*8*3584}")
    dma("v18", 52, "s45")
a(f"""  v_xor_b32 v12, v9, v10
  v_lshlrev_b32 v12, 4, v12
  s_and_b32 s39, s29, 1            ; b
  s_lshr_b32 s40, s29, 1           ; s (0..15)
  s_lshl_b32 s41, s39, 3
  s_add_u32 s41, s41, s28          ; b*8+g
  s_lshl_b32 s41, s41, 21          ; *4096*512
  s_lshl_b32 s42, s40, 15          ; s*64*512
  s_add_u32 s41, s41, s42
  s_lshl_b32 s42, s37, 14          ; kh*32*512
  s_add_u32 s41, s41, s42
  s_lshl_b32 s42, s38, 8           ; dh*256
  s_add_u32 s41, s41, s42
  s_add_u32 s41, s41, {3072*512}
  s_lshl_b32 s43, s38, 14
  s_lshl_b32 s42, s37, 12
  s_add_u32 s43, s43, s42
  v_lshlrev_b32 v18, 9, v8         ; row*512
  v_add_u32 v19, v18, v12
  v_xor_b32 v20, 64, v19
  v_add_u32 v21, v18, v11          ; V voffset
""")
srd(44, 6, SZ['k'])
srd(48, 8, SZ['v'])
for c2 in range(2):
    for jj in range(4):
        a(f"  s_add_u32 m0, s43, {KBUF + c2*8192 + jj*1024}")
        a(f"  s_add_u32 s42, s41, {c2*128 + jj*4096}")
        dma("v20" if jj & 1 else "v19", 44, "s42")
tr_lane_setup()
a(f"""  ; q projection tile nb = v : addresses
  v_xor_b32 v24, s36, v16
  v_lshl_add_u32 v24, v24, 5, v15
  v_add_u32 v24, {RA}, v24
  v_and_b32 v25, 1, {VL}
  v_mul_u32_u24 v25, 896, v25
  v_lshl_add_u32 v25, v13, 3, v25
  s_lshr_b32 s42, s29, 3           ; kp
  s_mul_i32 s45, s42, 224
  s_add_u32 s45, s45, {XB}
  v_add_u32 v25, s45, v25
  s_lshl_b32 s45, s28, 14
  s_lshl_b32 s42, s42, 12
  s_add_u32 s45, s45, s42
  s_and_b32 s42, s29, 7
  s_lshl_b32 s42, s42, 8
  s_add_u32 s45, s45, s42
  s_lshl_b32 s42, s36, 6
  s_add_u32 s45, s45, s42
  s_add_u32 s45, s45, {WS_QP}
  v_lshlrev_b32 v26, 2, {VL}
  v_add_u32 v26, s45, v26
""")
a("  s_waitcnt lgkmcnt(0)")
tau_setup()
a("  s_waitcnt vmcnt(10)")
a("  s_barrier")
for st in range(3):
    a(f"  ds_read2_b64 v[{32+4*st}:{35+4*st}], v25 offset0:{8*st} offset1:{8*st+4}")
    a(f"  ds_read_b64_tr_b16 v[{48+4*st}:{49+4*st}], v24 offset:{st*4096}")
    a(f"  ds_read_b64_tr_b16 v[{50+4*st}:{51+4*st}], v24 offset:{st*4096+2048}")
a(f"  ds_read_b64 v[44:45], v25 offset:192")
a(f"  ds_read_b64_tr_b16 v[60:61], v24 offset:{3*4096}")
for st in range(3):
    a(f"  s_waitcnt lgkmcnt({8 - 3*st})")
    c = "0" if st == 0 else "v[64:67]"
    a(f"  v_mfma_f32_16x16x32_bf16 v[64:67], v[{32+4*st}:{35+4*st}], v[{48+4*st}:{51+4*st}], {c}")
a("  s_waitcnt lgkmcnt(0)")
a("  v_mfma_f32_16x16x16_bf16 v[68:71], v[44:45], v[60:61], 0")
a("  s_mov_b64 exec, 0xffff")
a("  s_nop 6")
a("  v_add_f32 v64, v64, v68")
a("  v_add_f32 v65, v65, v69")
tagit("v64", "v64")
tagit("v65", "v65")
a(f"""  global_store_dword v26, v64, s[26:27] sc1
  global_store_dword v26, v65, s[26:27] offset:2048 sc1
  s_mov_b64 exec, -1
""")
stamp(14)
a("  s_waitcnt vmcnt(10)")
a("  s_barrier")
for c2 in range(2):
    for jj in range(4):
        a(f"  s_add_u32 m0, s43, {VBUF + c2*8192 + jj*1024}")
        a(f"  s_add_u32 s42, s41, {c2*128 + jj*4096}")
        dma("v21", 48, "s42")
stamp(2)
a(f"""  ; K operand address: key*128 + (g4 ^ ((key>>1)&7))*16 + kh*4096
  v_and_b32 v22, 15, {VL}
  v_bfe_u32 v23, {VL}, 1, 3
  v_xor_b32 v23, v23, v13
  v_lshlrev_b32 v23, 4, v23
  v_lshl_add_u32 v22, v22, 7, v23
  s_lshl_b32 s42, s37, 12
  v_add_u32 v22, s42, v22
  v_xor_b32 v23, 64, v22
  s_add_u32 s42, s43, {VBUF}
""")
for nb in range(4):
    a(f"  v_xor_b32 v{24+nb}, {nb}, v16")
    a(f"  v_lshl_add_u32 v{24+nb}, v{24+nb}, 5, v15")
    a(f"  v_add_u32 v{24+nb}, s42, v{24+nb}")
a(f"""  ; q operand address: QB + (l&1)*576 + g4*16
  v_and_b32 v28, 1, {VL}
  v_mul_u32_u24 v28, 576, v28
  v_lshl_add_u32 v28, v13, 4, v28
  v_add_u32 v28, {QB}, v28
  s_lshl_b32 s42, s28, 14
  s_lshl_b32 s45, s39, 11
  s_add_u32 s42, s42, s45
  s_lshl_b32 s45, s37, 10
  s_add_u32 s42, s42, s45
  s_lshl_b32 s45, s38, 9
  s_add_u32 s42, s42, s45
  s_add_u32 s42, s42, {WS_QP}
  v_lshrrev_b32 v29, 5, {VL}       ; kpl
  v_and_b32 v30, 31, {VL}          ; c
  v_lshlrev_b32 v31, 12, v29
  v_lshl_add_u32 v31, v30, 4, v31
  v_add_u32 v51, s42, v31
  v_add_u32 v52, 8192, v51
  s_lshl_b32 s42, s28, 7
  s_add_u32 s42, s42, {WS_XID}
  v_lshl_add_u32 v50, v30, 2, s42
  s_mul_i32 s42, s37, 576
  s_lshl_b32 s45, s38, 8
  s_add_u32 s42, s42, s45
  s_add_u32 s42, s42, {QB}
  v_lshlrev_b32 v30, 3, v30
  v_lshl_add_u32 v30, v29, 2, v30
  v_add_u32 v53, s42, v30
  s_lshl_b32 s42, s28, 1
  s_add_u32 s42, s42, s39
  s_lshl_b32 s42, s42, 5
  s_lshl_b32 s45, s40, 1
  s_add_u32 s42, s42, s45
  s_add_u32 s42, s42, s37
  s_mul_i32 s42, s42, {OPS}
  s_lshl_b32 s45, s38, 10
  s_add_u32 s42, s42, s45
  s_add_u32 s42, s42, {WS_OP}
  v_lshlrev_b32 v54, 3, {VL}
  v_add_u32 v54, s42, v54
  s_lshl_b32 s42, s28, 1
  s_add_u32 s42, s42, s38
  s_mul_i32 s33, s42, {32*OPS}
  s_lshl_b32 s56, s29, 7
  s_add_u32 s33, s33, s56
  s_lshl_b32 s56, s37, 6
  s_add_u32 s33, s33, s56
  s_add_u32 s33, s33, {WS_OP}
  v_lshrrev_b32 v6, 2, {VL}       ; s16
  v_mul_u32_u24 v7, {OPS}, v6
  v_and_b32 v62, 3, {VL}
  v_lshl_add_u32 v7, v62, 4, v7
  v_add_u32 v62, s33, v7
  v_add_u32 v63, {16*OPS}, v62        ; s16+16
  v_mov_b32 v46, 0x3f803f80
  v_mov_b32 v47, 0x3f803f80
  v_mov_b32 v48, 0x3f803f80
  v_mov_b32 v49, 0x3f803f80
  v_and_b32 v55, 1, {VL}
  v_cmp_eq_u32 s[58:59], 1, v55
""")
xid_value("s34")
a("  s_mov_b32 s35, 0xffffff")
a("  s_waitcnt vmcnt(8)")
stamp(3)
a("  s_barrier")
for tt in range(2):
    for t in range(8):
        r = 64 + (tt*8 + t)*4
        a(f"  ds_read_b128 v[{r}:{r+3}], v{23 if t & 1 else 22} offset:{KBUF + (t>>1)*8192 + tt*2048}")

def w_weight_setup():
    srd(44, 12, SZ['wo'])
    srd(52, 18, SZ['w2'])
    a(f"""  s_lshl_b32 s42, s28, 9
  s_lshl_b32 s61, s29, 4
  s_add_u32 s42, s42, s61          ; g*512 + 16j
  s_lshl_b32 s61, s38, 8
  s_add_u32 s42, s42, s61          ; + h*256
  s_lshl_b32 s61, s37, 3
  s_add_u32 s42, s42, s61          ; + half*8
  s_mul_i32 s61, s42, 896
  s_lshl_b32 s60, s36, 10
  s_add_u32 s60, s60, {RA}
  v_mul_u32_u24 v19, 896, v8
  v_add_u32 v19, v19, v11
  s_lshl_b32 s33, s28, 4
  s_add_u32 s33, s33, s29          ; u
  s_min_u32 s42, s33, 111
  s_lshl_b32 s42, s42, 4
  s_lshl_b32 s62, s37, 3
  s_add_u32 s42, s42, s62          ; 16u + q*8   (q = v&1)
  s_mul_i32 s42, s42, 896
  s_lshl_b32 s62, s38, 7
  s_add_u32 s62, s42, s62          ; + (v>>1)*128
  s_cmp_lt_u32 s33, 112
  s_cselect_b32 s33, 0, 0x40000000
  v_add_u32 v20, s33, v19
  s_lshl_b32 s63, s38, 11
  s_lshl_b32 s33, s37, 10
  s_add_u32 s63, s63, s33
  s_add_u32 s63, s63, {RB}         ; RB + (v>>1)*2048 + q*1024
""")

def w_weight_loads(tagname):
    for cb in range(7):
        a(f"  s_add_u32 m0, s60, {cb*4096}")
        a(f"  s_add_u32 s33, s61, {cb*128}")
        dma("v19", 44, "s33")
    for k in range(4):
        if k == 3:
            a("  s_cmp_lg_u32 s38, 0")
            a(f"  s_cbranch_scc1 L_w2_done{tagname}")
        a(f"  s_add_u32 m0, s63, {k*4096}")
        a(f"  s_add_u32 s33, s62, {k*256}")
        dma("v20", 52, "s33")
    a(f"L_w2_done{tagname}:")

def q_loads():
    a("  global_load_dwordx4 v[32:35], v51, s[26:27] sc1")
    a("  global_load_dwordx4 v[36:39], v52, s[26:27] sc1")
    a("  global_load_dword v41, v50, s[26:27] sc1")

a("  s_cmp_lt_u32 s29, 16")
a("  s_cbranch_scc0 L_q_p")
w_weight_setup()
if OPT['wpos'] == 'first':
    pass
if OPT['wpos'] == 'q':
    a(f"  s_waitcnt vmcnt({OPT['qwait']})")
    stamp(4)
    q_loads()
    if OPT['a2']:
        a("  s_barrier")
    w_weight_loads("a")
    if OPT['opre']:
        fl = OPT['oflag'].replace('_', ' ') if OPT['oflag'] != 'none' else ''
        a(f"  global_load_dword v2, v62, s[26:27] {fl}")
        a(f"  global_load_dword v3, v63, s[26:27] {fl}")
    a("  s_mov_b32 s33, 0")
    NY = 12 if OPT['opre'] else 10
    a("  s_cmp_lg_u32 s38, 0")
    a("  s_cbranch_scc1 L_qw10")
    a(f"  s_waitcnt vmcnt({NY+1})")
    a("  s_branch L_qchk")
    a("L_qw10:")
    a(f"  s_waitcnt vmcnt({NY})")
    a("  s_branch L_qchk")
a(f"""L_q_p:
  s_mov_b32 s33, 0
  s_waitcnt vmcnt({OPT['qwait']})
""")
stamp(4)
a("L_qpoll:")
q_loads()
a("  s_waitcnt vmcnt(0)")
a("L_qchk:")
check_regs("v40", range(32, 40))
a("  v_xor_b32 v41, s34, v41")
a("  v_and_b32 v40, 0xff, v40")
a("  v_and_or_b32 v40, v41, s35, v40")
poll_end("v40", "L_qpoll", "L_qok", masked=True)
stamp(5)
rec(13, "s33")
if OPT['wpos'] == 'mid':
    a("  s_cmp_lt_u32 s29, 16")
    a("  s_cbranch_scc0 L_nomid")
    w_weight_loads("m")
    a("L_nomid:")
a(f"""  v_add_f32 v32, v32, v36
  v_add_f32 v33, v33, v37
  v_add_f32 v34, v34, v38
  v_add_f32 v35, v35, v39
  v_cmp_ne_u32 vcc, 0, v41
  s_nop 0
  v_permlane32_swap_b32 v32, v34
  v_permlane32_swap_b32 v33, v35
  v_add_f32 v32, v32, v34
  v_add_f32 v33, v33, v35
  v_cvt_pk_bf16_f32 v32, v32, v33
  ds_write_b32 v53, v32
  s_cmp_eq_u64 vcc, 0
  s_cselect_b32 s35, {1 if OPT['fast'] else 0}, 0
  s_waitcnt lgkmcnt(0)
  s_barrier
""")
stamp(6)
for t in range(8):
    a(f"  ds_read_b128 v[{128+4*t}:{131+4*t}], v28 offset:{64*t}")
a(f"  s_mov_b32 s42, {C_LOG2E_16:#x}")
def v_read(i):
    nbk, hf = i >> 1, i & 1
    r = 160 + 4*nbk + 2*hf
    a(f"  ds_read_b64_tr_b16 v[{r}:{r+1}], v{24 + (nbk & 3)} offset:{(nbk >> 2)*8192 + hf*2048}")
for t in range(8):
    a(f"  s_waitcnt lgkmcnt({7 + t})")
    for tt in range(2):
        kr = 64 + (tt*8 + t)*4
        c = "0" if t == 0 else f"v[{32+4*tt}:{35+4*tt}]"
        a(f"  v_mfma_f32_16x16x32_bf16 v[{32+4*tt}:{35+4*tt}], v[{kr}:{kr+3}], v[{128+4*t}:{131+4*t}], {c}")
        v_read(2*t + tt)
a(f"""  s_nop 5
  v_max3_f32 v44, v32, v33, v34
  v_max3_f32 v45, v36, v37, v38
  v_max3_f32 v44, v44, v35, v39
  v_max_f32 v44, v44, v45
  v_mov_b32 v45, v44
  s_nop 1
  v_permlane16_swap_b32 v44, v45
  v_max_f32 v44, v44, v45
  v_mov_b32 v45, v44
  s_nop 1
  v_permlane32_swap_b32 v44, v45
  v_max_f32 v44, v44, v45
  v_mul_f32 v44, s42, v44
""")
for r in range(8):
    a(f"  v_fma_f32 v{32+r}, v{32+r}, s42, -v44")
for r in range(8):
    a(f"  v_exp_f32 v{32+r}, v{32+r}")
a("  s_nop 0")
for r in range(4):
    a(f"  v_cvt_pk_bf16_f32 v{40+r}, v{32+2*r}, v{33+2*r}")
a("  s_waitcnt lgkmcnt(0)             ; V operands")
a("  s_nop 0")
a("  v_mfma_f32_16x16x32_bf16 v[224:227], v[40:43], v[46:49], 0")
for nbk in range(8):
    a(f"  v_mfma_f32_16x16x32_bf16 v[{192+4*nbk}:{195+4*nbk}], v[40:43], v[{160+4*nbk}:{163+4*nbk}], 0")
a(f"""  v_cndmask_b32 v45, v224, v225, s[58:59]
  v_rcp_f32 v56, v224
  v_rcp_f32 v57, v225
  v_log_f32 v45, v45
  s_cmp_eq_u32 s35, 1
  v_add_f32 v45, v45, v44
""")
tagit("v59", "v45")
a("  v_mov_b32 v61, v59")
for q in range(2):
    for h in range(2):
        for k in range(4):
            a(f"  v_mul_f32_dpp v{32+2*q+h}, v{192+4*(4*q+k)+h}, v{56+h} quad_perm:[0,1,2,3] row_mask:{1<<k:#x} bank_mask:0xf")
    a(f"  v_cvt_pk_bf16_f32 v{58+2*q}, v{32+2*q}, v{33+2*q}")
a(f"""  s_cbranch_scc1 L_pub_local
  global_store_dwordx2 v54, v[58:59], s[26:27] sc1
  global_store_dwordx2 v54, v[60:61], s[26:27] offset:512 sc1
  s_branch L_pub_done
L_pub_local:                       ; every reader shares this die's L2
  global_store_dwordx2 v54, v[58:59], s[26:27]
  global_store_dwordx2 v54, v[60:61], s[26:27] offset:512
L_pub_done:
""")
stamp(7)
a("  s_cmp_lt_u32 s29, 16")
a("  s_cbranch_scc1 L_wstage")
a("  s_barrier")
dump_stamps()
a("  s_endpgm")

a("L_wstage:")
if OPT['wpos'] == 'late':
    w_weight_loads("l")
a(f"""  v_xor_b32 v24, s36, v16
  v_lshl_add_u32 v24, v24, 5, v15
  v_add_u32 v25, {RB}, v24
  v_add_u32 v24, {RA}, v24
  v_and_b32 v26, 1, {VL}
  v_lshlrev_b32 v27, 5, v26
  v_lshl_add_u32 v27, v13, 3, v27
  v_add_u32 v27, {HV}, v27
  v_lshlrev_b32 v28, 6, v26
  v_lshl_add_u32 v28, v13, 3, v28
  v_add_u32 v28, {OV}, v28
  v_and_b32 v54, 3, {VL}
  v_lshlrev_b32 v54, 2, v54
  v_and_b32 v55, 1, v13
  v_lshl_add_u32 v54, v55, 5, v54
  v_lshrrev_b32 v55, 1, v13
  v_lshl_add_u32 v54, v55, 1, v54
  s_lshl_b32 s42, s38, 6
  s_lshl_b32 s45, s37, 4
  s_add_u32 s42, s42, s45
  s_add_u32 s42, s42, {OV}
  v_add_u32 v54, s42, v54
  s_lshl_b32 s42, s28, 4
  s_add_u32 s42, s42, s29
  s_mul_i32 s42, s42, {APS}
  s_lshl_b32 s45, s36, {8 if OPT['appad'] else 7}
  s_add_u32 s42, s42, s45
  s_add_u32 s42, s42, {WS_AP}
  v_lshlrev_b32 v55, 3, {VL}
  v_add_u32 v55, s42, v55
  v_and_b32 v56, 7, {VL}
  v_lshlrev_b32 v56, 3, v56
  v_bfe_u32 v57, {VL}, 3, 1
  v_lshl_add_u32 v56, v57, 7, v56
  v_lshl_add_u32 v56, v13, 10, v56
  v_add_u32 v56, s42, v56
  v_add_u32 v57, 4096, v56
  s_lshl_b32 s42, s38, 2
  s_add_u32 s42, s42, {GT}
  v_mov_b32 v29, s42
  ds_read_b32 v50, v29
  s_mov_b32 s56, 0xf000f000
  s_mov_b32 s57, 0xf000f000
  s_mov_b32 s33, 0
  s_waitcnt vmcnt(0) lgkmcnt(0)
""")
if OPT['early']:
    a("""  global_load_dwordx4 v[32:35], v62, s[26:27] sc1
  global_load_dwordx4 v[36:39], v63, s[26:27] sc1""")
a("  s_barrier")
stamp(8)
if not OPT['early']:
    a("""  global_load_dwordx4 v[32:35], v62, s[26:27] sc1
  global_load_dwordx4 v[36:39], v63, s[26:27] sc1""")
if OPT['ffn_early']:
    a("  ds_read_b64 v[106:107], v27")
    for cb in range(7):
        a(f"  ds_read_b64_tr_b16 v[{92+2*cb}:{93+2*cb}], v25 offset:{cb*2048}")
    a("  s_waitcnt lgkmcnt(0)")
    for cb in range(7):
        a(f"  v_mfma_f32_16x16x16_bf16 v[{110+4*cb}:{113+4*cb}], v[106:107], v[{92+2*cb}:{93+2*cb}], 0")
a("  s_waitcnt vmcnt(0)")
a("  s_branch L_ochk")
a(f"""L_opoll:
  global_load_dwordx4 v[32:35], v62, s[26:27] sc1
  global_load_dwordx4 v[36:39], v63, s[26:27] sc1
  s_waitcnt vmcnt(0)
L_ochk:
""")
check_regs("v48", [33, 35, 37, 39])
poll_end("v48", "L_opoll", "L_ook")
stamp(9)
rec(12, "s33")
CHAIN = """  v_max_f32 v52, v33, v37
  v_max_f32 v53, v35, v39
  v_lshlrev_b32 v40, 16, v32       ; A: d0h0
  v_and_b32 v41, 0xffff0000, v32   ;    d0h1
  v_permlane16_swap_b32 v52, v53
  v_lshlrev_b32 v42, 16, v34       ;    d1h0
  v_and_b32 v43, 0xffff0000, v34   ;    d1h1
  v_max_f32 v52, v52, v53          ; rows: h0(01) h1(01) h0(23) h1(23)
  v_mov_b32 v53, v52
  v_lshlrev_b32 v44, 16, v36       ; B
  v_and_b32 v45, 0xffff0000, v36
  v_permlane32_swap_b32 v52, v53
  v_max_f32 v52, v52, v53
  v_lshlrev_b32 v46, 16, v38
  v_and_b32 v47, 0xffff0000, v38
  v_max_f32_dpp v52, v52, v52 row_shr:4 row_mask:0xf bank_mask:0xf
  SLOT
  SLOT
  v_max_f32_dpp v52, v52, v52 row_shr:8 row_mask:0xf bank_mask:0xf
  SLOT
  v_readlane_b32 s42, v52, 15
  v_readlane_b32 s45, v52, 31
  SLOT
  SLOT
  v_subrev_f32 v33, s42, v33
  v_subrev_f32 v37, s42, v37
  v_subrev_f32 v35, s45, v35
  v_subrev_f32 v39, s45, v39
  v_exp_f32 v33, v33               ; w A h0
  v_exp_f32 v37, v37               ; w B h0
  v_exp_f32 v35, v35               ; w A h1
  v_exp_f32 v39, v39               ; w B h1
  SLOT
  v_mul_f32 v40, v40, v33
  v_mul_f32 v41, v41, v35
  v_mul_f32 v42, v42, v33
  v_mul_f32 v43, v43, v35
  v_fmac_f32 v40, v44, v37
  v_fmac_f32 v41, v45, v39
  v_fmac_f32 v42, v46, v37
  v_fmac_f32 v43, v47, v39
  v_add_f32 v52, v33, v37          ; den h0
  v_add_f32 v53, v35, v39          ; den h1
  SLOT
  v_permlane16_swap_b32 v40, v41
  v_permlane16_swap_b32 v42, v43
  v_permlane16_swap_b32 v52, v53
  v_add_f32 v40, v40, v41
  v_add_f32 v42, v42, v43
  v_add_f32 v52, v52, v53
  v_mov_b32 v53, v52
  SLOT
  SLOT
  v_permlane32_swap_b32 v40, v42
  v_permlane32_swap_b32 v52, v53
  v_add_f32 v40, v40, v42
  v_add_f32 v52, v52, v53          ; rows h0 h1 h0 h1
  SLOT
  v_add_f32_dpp v40, v40, v40 row_shr:4 row_mask:0xf bank_mask:0xf
  v_add_f32_dpp v52, v52, v52 row_shr:4 row_mask:0xf bank_mask:0xf
  SLOT
  v_add_f32_dpp v40, v40, v40 row_shr:8 row_mask:0xf bank_mask:0xf
  v_add_f32_dpp v52, v52, v52 row_shr:8 row_mask:0xf bank_mask:0xf
  v_mul_f32 v40, v40, v50          ; * gate
  v_rcp_f32 v52, v52"""
W2R = ["  ds_read_b64 v[106:107], v27"] + [f"  ds_read_b64_tr_b16 v[{92+2*cb}:{93+2*cb}], v25 offset:{cb*2048}" for cb in range(7)]
WOR = []
for cb in range(7):
    WOR.append(f"  ds_read_b64_tr_b16 v[{64+4*cb}:{65+4*cb}], v24 offset:{cb*4096}")
    WOR.append(f"  ds_read_b64_tr_b16 v[{66+4*cb}:{67+4*cb}], v24 offset:{cb*4096+2048}")
queue = (WOR if OPT['ffn_early'] else W2R + WOR)[:]
nslot = 0
for ln in CHAIN.split("\n"):
    if ln.strip() == "SLOT":
        a(queue.pop(0)); nslot += 1
    else:
        a(ln)
if STAMP == 3: stamp(11)
if OPT['ffn_early']:
    a(f"""  s_mov_b64 exec, s[56:57]
  v_mul_f32 v40, v40, v52
  v_cvt_pk_bf16_f32 v40, v40, v40
  ds_write_b16 v54, v40
  s_mov_b64 exec, -1""")
    for ln in queue: a(ln)
    a(f"  s_waitcnt lgkmcnt({len(queue)})")
else:
    a(f"""  s_mov_b64 exec, s[56:57]
  v_mul_f32 v40, v40, v52
  v_cvt_pk_bf16_f32 v40, v40, v40
  ds_write_b16 v54, v40
  s_mov_b64 exec, -1
  s_waitcnt lgkmcnt(4)""")
    for cb in range(7):
        a(f"  v_mfma_f32_16x16x16_bf16 v[{110+4*cb}:{113+4*cb}], v[106:107], v[{92+2*cb}:{93+2*cb}], 0")
        for ln in queue[cb*11//7:(cb+1)*11//7]:
            a(ln)
    a("  s_waitcnt lgkmcnt(11)")
a(f"""  s_barrier
""")
if STAMP == 3: stamp(12)
a(f"""  ds_read2_b64 v[40:43], v28 offset0:0 offset1:4
  s_waitcnt lgkmcnt(0)
""")
if STAMP == 3: stamp(13)
for cb in range(7):
    a(f"  v_mfma_f32_16x16x32_bf16 v[{110+4*cb}:{113+4*cb}], v[40:43], v[{64+4*cb}:{67+4*cb}], v[{110+4*cb}:{113+4*cb}]")
assert OPT['appad'] == 1
a("  s_mov_b32 s56, -1")
a("  s_mov_b32 s57, 0xffff")
a("  s_nop 0")
for k in (1, 2, 3):
    for h in range(2):
        a(f"  v_mov_b32_dpp v{110+h}, v{110+4*k+h} quad_perm:[0,1,2,3] row_mask:{1<<k:#x} bank_mask:0xf")
tagit("v110", "v110")
a("  global_store_dwordx2 v56, v[110:111], s[26:27] sc1")
for k in (1, 2):
    for h in range(2):
        a(f"  v_mov_b32_dpp v{126+h}, v{126+4*k+h} quad_perm:[0,1,2,3] row_mask:{1<<k:#x} bank_mask:0xf")
tagit("v126", "v126")
a("  s_mov_b64 exec, s[56:57]")
a("  global_store_dwordx2 v57, v[126:127], s[26:27] sc1")
stamp(10)
if OPT['apack']:
    a("  s_waitcnt vmcnt(0)")
    stamp(11)
a("  s_mov_b64 exec, -1")
dump_stamps()
a("  s_endpgm")

a("L_aux0:")
if STAMP in (1, 2):
    for k in range(1, 16):
        a(f"  s_mov_b32 s{64+2*k}, 0")
a(f"""  s_lshr_b32 s29, s2, 3            ; j
  s_mov_b32 s32, 0xff
  v_lshrrev_b32 v13, 4, {VL}       ; g4
  v_lshlrev_b32 v18, 4, {VL}
  v_add_u32 v21, 1024, v18
  s_waitcnt lgkmcnt(0)
  s_load_dword s31, s[26:27], {WS_E}
""")
stamp(1)
srd(52, 4, SZ['x'])
a(f"""  s_mov_b32 m0, {XB}
  s_cmp_ge_u32 s29, 16
  buffer_load_dwordx4 v18, s[52:55], 0 offen lds
  s_mov_b32 m0, {XB+1024}
  s_nop 0
  buffer_load_dwordx4 v21, s[52:55], 0 offen lds
  s_cbranch_scc1 L_aux
  s_mov_b32 s56, -1
  s_mov_b32 s57, 0x00ffffff
  s_mov_b64 exec, s[56:57]
  global_load_dwordx4 v[70:73], v18, s[4:5]
  global_load_dwordx4 v[74:77], v18, s[4:5] offset:896
  global_load_dwordx4 v[78:81], v18, s[20:21]
  s_mov_b64 exec, -1
""")
a("L_aux:")
tr_lane_setup()
for nb in range(4):
    a(f"  v_xor_b32 v{24+nb}, {nb}, v16")
    a(f"  v_lshl_add_u32 v{24+nb}, v{24+nb}, 5, v15")
    a(f"  v_add_u32 v{24+nb}, {RC}, v{24+nb}")
h_unit_index("s39")
a(f"""  s_mul_i32 s40, s39, 9363
  s_lshr_b32 s40, s40, 16          ; cbh
  s_mul_i32 s41, s40, 7
  s_sub_u32 s41, s39, s41          ; kp
  v_and_b32 v28, 1, {VL}
  v_mul_u32_u24 v28, 896, v28
  v_lshl_add_u32 v28, v13, 3, v28
  s_lshl_b32 s42, s41, 7
  s_add_u32 s42, s42, {XB}
  v_add_u32 v28, s42, v28
  s_mul_i32 s42, s41, {2*7168}
  s_lshl_b32 s43, s40, 8
  s_add_u32 s42, s42, s43
  s_add_u32 s42, s42, {WS_HP}
  v_lshlrev_b32 v31, 2, {VL}
  v_add_u32 v31, s42, v31
  v_add_u32 v30, 7168, v31
  s_waitcnt lgkmcnt(0)
""")
tau_setup()
xid_value("s34")
a(f"""  s_lshl_b32 s42, s28, 7
  s_lshl_b32 s43, s29, 2
  s_add_u32 s42, s42, s43
  s_add_u32 s42, s42, {WS_XID}
  v_mov_b32 v6, s42
  v_mov_b32 v7, s34
  s_waitcnt vmcnt(0)
  s_mov_b64 exec, 1
  global_store_dword v6, v7, s[26:27] sc1
  s_mov_b64 exec, -1
  s_barrier                        ; barrier Q
  s_barrier                        ; barrier Q2
""")
stamp(2)
if OPT['tlb']:
    a(f"""  s_lshl_b32 s42, s28, 9
  s_lshl_b32 s43, s29, 4
  s_add_u32 s42, s42, s43
  s_mul_i32 s42, s42, 896
  v_mov_b32 v6, s42
  v_mov_b32 v7, 0
  s_mov_b64 exec, 1
  global_load_dword v2, v6, s[12:13] nt
  global_load_dword v2, v7, s[18:19] offset:64 nt
  global_load_dword v2, v7, s[22:23] nt
  s_mov_b64 exec, -1
""")
a("  s_cmp_ge_u32 s39, 196")
a("  s_cbranch_scc1 L_nohpub")
for st in range(2):
    a(f"  ds_read2_b64 v[{48+4*st}:{51+4*st}], v28 offset0:{8*st} offset1:{8*st+4}")
    for nb in range(4):
        r = 96 + 16*st + 4*nb
        a(f"  ds_read_b64_tr_b16 v[{r}:{r+1}], v{24+nb} offset:{st*4096}")
        a(f"  ds_read_b64_tr_b16 v[{r+2}:{r+3}], v{24+nb} offset:{st*4096+2048}")
for st in range(2):
    a(f"  s_waitcnt lgkmcnt({9 - 9*st})")
    for nb in range(4):
        r = 96 + 16*st + 4*nb
        c = "0" if st == 0 else f"v[{32+4*nb}:{35+4*nb}]"
        a(f"  v_mfma_f32_16x16x32_bf16 v[{32+4*nb}:{35+4*nb}], v[{48+4*st}:{51+4*st}], v[{r}:{r+3}], {c}")
a("  s_nop 7")
for r in range(2):
    a(f"  v_permlane16_swap_b32 v{32+r}, v{36+r}")
    a(f"  v_permlane16_swap_b32 v{40+r}, v{44+r}")
a("  s_nop 1")
for r in range(2):
    a(f"  v_permlane32_swap_b32 v{32+r}, v{40+r}")
a("  s_nop 1")
tagit("v32", "v32")
tagit("v33", "v33")
a("""  global_store_dword v31, v32, s[26:27] sc1
  global_store_dword v30, v33, s[26:27] sc1
L_nohpub:""")
stamp(5)
a("  s_cmp_ge_u32 s29, 16")
a("  s_cbranch_scc1 L_aux_a")
a("  v_mov_b32 v44, 0")
a("  v_mov_b32 v45, 0")
for r in range(4):
    a(f"  v_lshlrev_b32 v46, 16, v{78+r}")
    a(f"  v_and_b32 v47, 0xffff0000, v{78+r}")
    for b in range(2):
        a(f"  v_lshlrev_b32 v48, 16, v{70+4*b+r}")
        a(f"  v_and_b32 v49, 0xffff0000, v{70+4*b+r}")
        a(f"  v_mul_f32 v48, v48, v46")
        a(f"  v_mul_f32 v49, v49, v47")
        a(f"  v_cvt_pk_bf16_f32 v48, v48, v49")
        a(f"  v_lshlrev_b32 v49, 16, v48")
        a(f"  v_and_b32 v48, 0xffff0000, v48")
        a(f"  v_add_f32 v{44+b}, v{44+b}, v49")
        a(f"  v_add_f32 v{44+b}, v{44+b}, v48")
a(f"""  v_cmp_gt_u32 vcc, 56, {VL}
  s_nop 1
  v_cndmask_b32 v44, 0, v44, vcc
  v_cndmask_b32 v45, 0, v45, vcc
  s_nop 1
""")
for sh in (1, 2, 4, 8):
    a(f"  v_add_f32_dpp v44, v44, v44 row_shr:{sh} row_mask:0xf bank_mask:0xf")
    a(f"  v_add_f32_dpp v45, v45, v45 row_shr:{sh} row_mask:0xf bank_mask:0xf")
    a("  s_nop 0")
a(f"""  v_add_f32_dpp v44, v44, v44 row_bcast:15 row_mask:0xa bank_mask:0xf
  v_add_f32_dpp v45, v45, v45 row_bcast:15 row_mask:0xa bank_mask:0xf
  s_nop 0
  v_add_f32_dpp v44, v44, v44 row_bcast:31 row_mask:0xc bank_mask:0xf
  v_add_f32_dpp v45, v45, v45 row_bcast:31 row_mask:0xc bank_mask:0xf
  s_nop 0
  v_readlane_b32 s42, v44, 63
  v_readlane_b32 s43, v45, 63
  s_nop 1
  v_and_b32 v46, 1, {VL}
  v_cmp_eq_u32 vcc, 0, v46
  v_mov_b32 v47, s43
  v_mov_b32 v48, s42
  v_cndmask_b32 v47, v47, v48, vcc
  v_mul_f32 v47, 0xbfb8aa3b, v47   ; -log2e * z
  v_exp_f32 v47, v47
  s_nop 0
  v_add_f32 v47, 1.0, v47
  v_rcp_f32 v47, v47               ; g[b = lane&1]
  s_nop 0
  v_sub_f32 v82, 1.0, v47          ; 1-g
  v_lshlrev_b32 v46, 2, v46
  v_add_u32 v46, {GT}, v46
  s_mov_b64 exec, 3
  ds_write_b32 v46, v47
  s_mov_b64 exec, -1
  s_waitcnt lgkmcnt(0)
""")
stamp(3)
a("L_aux_a:")
a("  s_barrier")
a("  s_cmp_lt_u32 s29, 16")
a("  s_cbranch_scc1 L_aux_w")
a("  s_cmp_lt_u32 s29, 23")
a("  s_cbranch_scc1 L_final")
dump_stamps()
a("  s_endpgm")

a(f"""L_final:
  s_sub_u32 s36, s29, 16           ; p
  s_lshl_b32 s37, s36, 3
  s_add_u32 s37, s37, s28          ; c
  v_lshrrev_b32 v29, 2, {VL}       ; u16
  v_mul_u32_u24 v30, {APS}, v29
  v_and_b32 v31, 3, {VL}
  v_lshl_add_u32 v30, v31, 4, v30
  s_lshl_b32 s42, s37, {7 if OPT['appad'] else 6}
  s_add_u32 s42, s42, {WS_AP}
  v_add_u32 v30, s42, v30
""")
for k in range(8):
    a(f"  v_add_u32 v{16+k}, {k*16*APS}, v30")
a(f"""  ; out + b*896 + (8c + 2*c4 + (r>>1))*2
  v_and_b32 v28, 1, v13
  v_mul_u32_u24 v28, 896, v28
  v_lshl_add_u32 v28, v31, 2, v28
  v_lshrrev_b32 v29, 1, v13
  v_lshl_add_u32 v28, v29, 1, v28
  s_lshl_b32 s42, s37, 4
  v_add_u32 v28, s42, v28
  s_mov_b32 s56, 0xf000f000
  s_mov_b32 s57, 0xf000f000
  v_mov_b32 v29, {WS_E}
  s_barrier                        ; barrier B
  s_barrier                        ; barrier C
  s_mov_b32 s33, 0
""")
if OPT['fdelay']:
    a(f"""L_fd:
  s_memrealtime s[60:61]
  s_waitcnt lgkmcnt(0)
  s_sub_u32 s62, s60, s64
  s_cmp_lt_u32 s62, {OPT['fdelay']}
  s_cbranch_scc1 L_fd""")
stamp(8)
if OPT['fgate'] == 2:
    a(f"""  s_mul_i32 s42, s28, {64*OPS}
  s_add_u32 s42, s42, {WS_OP}
  v_and_b32 v24, 31, {VL}
  v_mul_u32_u24 v24, {OPS}, v24
  v_add_u32 v24, s42, v24
L_fgate:
  global_load_dwordx4 v[32:35], v24, s[26:27] sc1
  s_waitcnt vmcnt(0)
""")
    check_regs("v14", [33, 35])
    poll_end("v14", "L_fgate", "L_fgate_ok")
if OPT['fgate'] == 1:
    a(f"""  s_mul_i32 s42, s28, {16*APS}
  v_add_u32 v24, s42, v30
L_fgate:
  global_load_dwordx4 v[32:35], v24, s[26:27] sc1
  s_waitcnt vmcnt(0)
""")
    check_regs("v14", [32, 34])
    poll_end("v14", "L_fgate", "L_fgate_ok")
NS = OPT['fsets']
def fbase(i): return 32 + 32*i
def fissue(i):
    for k in range(8):
        a(f"  global_load_dwordx4 v[{fbase(i)+4*k}:{fbase(i)+4*k+3}], v{16+k}, s[26:27] sc1")
for i in range(NS):
    fissue(i)
a("L_fpoll:")
for i in range(NS):
    a(f"  s_waitcnt vmcnt({8*(NS-1)})")
    check_regs("v14", [fbase(i)+4*k+q for k in range(8) for q in (0, 2)])
    a("  v_and_b32 v14, 0xff, v14")
    a("  v_cmp_ne_u32 vcc, 0, v14")
    a("  s_add_u32 s33, s33, 1")
    a(f"  s_cmp_gt_u32 s33, {OPT['spin']}")
    a(f"  s_cbranch_scc1 L_fok{i}")
    a(f"  s_cbranch_vccz L_fok{i}")
    if OPT['fsleep']:
        a(f"  s_sleep {OPT['fsleep']}")
    fissue(i)
a("  s_branch L_fpoll")
TB = 144
for i in range(NS):
    a(f"L_fok{i}:")
    for k in range(4):
        for h in range(2):
            x = fbase(i) + 8*k + 2*h
            a(f"  v_pk_add_f32 v[{TB+4*k+2*h}:{TB+4*k+2*h+1}], v[{x}:{x+1}], v[{x+4}:{x+5}]")
    if i < NS-1:
        a("  s_branch L_fsum")
a("L_fsum:")
stamp(9)
rec(12, "s33")
for h in range(2):
    a(f"  v_pk_add_f32 v[{TB+2*h}:{TB+2*h+1}], v[{TB+2*h}:{TB+2*h+1}], v[{TB+4+2*h}:{TB+5+2*h}]")
    a(f"  v_pk_add_f32 v[{TB+8+2*h}:{TB+9+2*h}], v[{TB+8+2*h}:{TB+9+2*h}], v[{TB+12+2*h}:{TB+13+2*h}]")
for h in range(2):
    a(f"  v_pk_add_f32 v[{160+2*h}:{161+2*h}], v[{TB+2*h}:{TB+2*h+1}], v[{TB+8+2*h}:{TB+9+2*h}]")
a(f"""  s_nop 1
  v_permlane16_swap_b32 v160, v161
  v_permlane16_swap_b32 v162, v163
  v_add_f32 v160, v160, v161
  v_add_f32 v162, v162, v163
  s_nop 1
  v_permlane32_swap_b32 v160, v162
  v_add_f32 v160, v160, v162
  s_nop 1
  v_add_f32_dpp v160, v160, v160 row_shr:4 row_mask:0xf bank_mask:0xf
  s_nop 1
  v_add_f32_dpp v160, v160, v160 row_shr:8 row_mask:0xf bank_mask:0xf
  s_mov_b64 exec, s[56:57]
  v_cvt_pk_bf16_f32 v160, v160, v160
  global_store_short v28, v160, s[22:23]{' ' + OPT['outflag'].replace('_', ' ') if OPT['outflag'] != 'none' else ''}
  s_cmp_lg_u32 s37, 0
  s_cbranch_scc1 L_noE
  s_mov_b64 exec, 1
  global_store_dword v29, {VTAU}, s[26:27]{' ' + OPT['outflag'].replace('_', ' ') if OPT['outflag'] != 'none' else ''}
L_noE:
  s_mov_b64 exec, -1
""")
if OPT['deadline']:
    a(f"""L_dl:
  s_memrealtime s[56:57]
  s_waitcnt lgkmcnt(0)
  s_sub_u32 s33, s56, s96
  s_cmp_lt_u32 s33, {OPT['deadline']}
  s_cbranch_scc1 L_dl""")
stamp(10, final=True)
if OPT['dbgts']:
    a("  s_waitcnt lgkmcnt(0)")
    a("  s_cmp_lg_u32 s37, 0")
    a("  s_cbranch_scc1 L_nodbg")
    a("  s_mov_b64 exec, 1")
    a("  v_mov_b32 v8, 0")
    for q in range(4):
        for r in range(4):
            k = 4*q + r
            a(f"  s_sub_u32 s33, s{64+2*k}, s64")
            a(f"  v_mov_b32 v{12+r}, s33")
        a(f"  global_store_dwordx4 v8, v[12:15], s[24:25] offset:{16*q}")
        a("  s_nop 1")
    a("L_nodbg:")
else:
    dump_stamps()
a("  s_endpgm")

a("L_aux_w:")
a(f"""  ; h gather set-up: lanes (kp = l>>3 (0..6), b = (l>>2)&1, q4 = l&3) ; HP + (kp*2+b)*7168 + (16u + 4*q4)*4
  s_lshl_b32 s38, s28, 4
  s_add_u32 s38, s38, s29          ; u = g*16 + j
  v_lshrrev_b32 v85, 3, {VL}
  v_bfe_u32 v86, {VL}, 2, 1
  v_lshl_add_u32 v85, v85, 1, v86
  v_mul_u32_u24 v85, 7168, v85
  v_and_b32 v87, 3, {VL}
  v_lshl_add_u32 v85, v87, 4, v85
  s_lshl_b32 s42, s38, 6
  s_add_u32 s42, s42, {WS_HP}
  v_add_u32 v85, s42, v85
  v_readlane_b32 s42, v82, 0
  v_readlane_b32 s43, v82, 1
  v_cmp_eq_u32 vcc, 0, v86
  s_nop 0
  v_mov_b32 v36, s43
  v_mov_b32 v37, s42
  v_cndmask_b32 v83, v36, v37, vcc
  v_lshlrev_b32 v84, 5, v86
  v_lshl_add_u32 v84, v87, 3, v84
  v_add_u32 v84, {HV}, v84          ; HV + b*32 + q4*8
""")
a(f"""  v_mov_b32 v32, 0
  v_mov_b32 v33, 0
  v_mov_b32 v34, 0
  v_mov_b32 v35, 0
  s_mov_b32 s56, -1
  s_mov_b32 s57, 0x00ffffff
  s_mov_b32 s33, 0
  s_setprio 3
""")
if OPT['a2'] and OPT['wpos'] == 'q':
    a("  s_barrier                        ; barrier A2")
a(f"""  s_cmp_ge_u32 s38, 112
  s_cbranch_scc1 L_hskip
  s_mov_b64 exec, s[56:57]
  global_load_dwordx4 v[32:35], v85, s[26:27] sc1
  s_mov_b64 exec, -1
L_hskip:
  s_barrier                        ; barrier B
""")
stamp(6)
a(f"""  s_cmp_ge_u32 s38, 112
  s_cbranch_scc1 L_hdone
  s_mov_b64 exec, s[56:57]
  s_waitcnt vmcnt(0)
  s_branch L_hchk
L_hpoll:
  global_load_dwordx4 v[32:35], v85, s[26:27] sc1
  s_waitcnt vmcnt(0)
L_hchk:
""")
check_regs("v40", range(32, 36))
poll_end("v40", "L_hpoll", "L_hok")
a("  s_mov_b64 exec, -1")
a("  s_nop 1")
for r in range(4):
    a(f"  v_add_f32_dpp v{32+r}, v{32+r}, v{32+r} row_ror:8 row_mask:0xf bank_mask:0xf")
for r in range(4):
    a(f"  v_mov_b32 v{36+r}, v{32+r}")
a("  s_nop 1")
for r in range(4):
    a(f"  v_permlane16_swap_b32 v{32+r}, v{36+r}")
for r in range(4):
    a(f"  v_add_f32 v{32+r}, v{32+r}, v{36+r}")
for r in range(4):
    a(f"  v_mov_b32 v{36+r}, v{32+r}")
a("  s_nop 1")
for r in range(4):
    a(f"  v_permlane32_swap_b32 v{32+r}, v{36+r}")
for r in range(4):
    a(f"  v_add_f32 v{32+r}, v{32+r}, v{36+r}")
a("L_hdone:")
for r in range(4):
    a(f"  v_max_f32 v{32+r}, 0, v{32+r}")
    a(f"  v_mul_f32 v{32+r}, v{32+r}, v83")
a(f"""  v_cvt_pk_bf16_f32 v32, v32, v33
  v_cvt_pk_bf16_f32 v33, v34, v35
  s_mov_b64 exec, 0xff
  ds_write_b64 v84, v[32:33]
  s_mov_b64 exec, -1
  s_waitcnt lgkmcnt(0)
""")
stamp(7)
a("  s_barrier                        ; barrier D1")
dump_stamps()
a("L_end:")
a("  s_endpgm")
a("L_code_end:")
a(footer(vgpr=232, sgpr=100))
open(sys.argv[1], "w").write(a.text())
```

```python
import sys
from asmlib import *

OPT = dict(stamp=0, spin=400000, nt=1, qwait=3, sleep=0, fsleep=0, fast=1, tlb=0, prefetch=1,
           ops=2176, aps=3712, deadline=0, dbgts=0, wpos='q', a2=1, opre=2, fsets=1, outflag='sc1', apack=0, fdelay=0, appad=1, early=0, probe1=0, amp=-1, ampa=0, ampf=10, ampwg=37, ampwave=1, fgate=2, ffn_early=1, oflag='sc1')
for a_ in sys.argv[2:]:
    k, v = a_.split('=')
    assert k in OPT, k
    OPT[k] = int(v) if v.lstrip('-').isdigit() else v
STAMP = OPT['stamp']
OPS = OPT['ops']; APS = 7296 if OPT['appad'] else OPT['aps']

WS_E = 0
WS_XID = 0x400
WS_QP = 0x1000
WS_HP = 0x21000
WS_OP = 0x40000
WS_AP = 0x180000
WS_TS = 0x300000
assert WS_HP + 7*2*7168 <= WS_OP and WS_OP + 512*OPS <= WS_AP and WS_AP + 128*APS <= WS_TS

KBUF = 0
VBUF = 32768
RA = 65536
RB = 94208
RC = 108544
XB = 116736
QB = 118784
OV = 119936
HV = 120064
GT = 120128
LDS_BYTES = 120320

C_LOG2E_16 = 0x3DB8AA3B
NT = " nt" if OPT['nt'] else ""
VTAU = "v4"
VL = "v5"

a = Asm()
def stamp(k, final=False):
    if STAMP == 1 or (STAMP == 2 and (k == 0 or final)) or (STAMP == 3 and k in (0, OPT['amp'], OPT['ampa'])):
        a(f"  s_memrealtime s[{64+2*k}:{65+2*k}]")
def rec(k, sreg):
    if STAMP == 1:
        a(f"  s_mov_b32 s{64+2*k}, {sreg}")

def srd(dst, ptr, size):
    a(f"  s_mov_b32 s{dst}, s{ptr}")
    a(f"  s_mov_b32 s{dst+1}, s{ptr+1}")
    a(f"  s_mov_b32 s{dst+2}, {size}")
    a(f"  s_mov_b32 s{dst+3}, 0x20000")

def dma(voff, srdreg, soff):
    a(f"  buffer_load_dwordx4 {voff}, s[{srdreg}:{srdreg+3}], {soff} offen{NT} lds")

def tagit(dst, src):
    a(f"  v_bfi_b32 {dst}, s32, {VTAU}, {src}")

def check_regs(acc, regs, first=True):
    regs = list(regs)
    for r in regs:
        a(f"  v_xor_b32 v{r}, s31, v{r}")
    if first:
        if len(regs) >= 3:
            a(f"  v_or3_b32 {acc}, v{regs[0]}, v{regs[1]}, v{regs[2]}"); regs = regs[3:]
        else:
            a(f"  v_or_b32 {acc}, v{regs[0]}, v{regs[1]}"); regs = regs[2:]
    while len(regs) >= 2:
        a(f"  v_or3_b32 {acc}, {acc}, v{regs[0]}, v{regs[1]}"); regs = regs[2:]
    if regs:
        a(f"  v_or_b32 {acc}, {acc}, v{regs[0]}")

def poll_end(acc, lab_retry, lab_ok, cnt="s33", sleep=None, masked=False):
    sleep = OPT['sleep'] if sleep is None else sleep
    if not masked:
        a(f"  v_and_b32 {acc}, 0xff, {acc}")
    a(f"  v_cmp_ne_u32 vcc, 0, {acc}")
    a(f"  s_add_u32 {cnt}, {cnt}, 1")
    a(f"  s_cmp_gt_u32 {cnt}, {OPT['spin']}")
    a(f"  s_cbranch_scc1 {lab_ok}")
    if sleep:
        a(f"  s_cbranch_vccz {lab_ok}")
        a(f"  s_sleep {sleep}")
        a(f"  s_branch {lab_retry}")
    else:
        a(f"  s_cbranch_vccnz {lab_retry}")
    a(f"{lab_ok}:")

def dump_stamps():
    if STAMP == 3:
        lab = a.label("L_amp")
        k = OPT['amp']
        a(f"""  s_cmp_lg_u32 s2, {OPT['ampwg']}
  s_cbranch_scc1 {lab}_x
  s_cmp_lg_u32 s30, {OPT['ampwave']}
  s_cbranch_scc1 {lab}_x
  s_waitcnt lgkmcnt(0)
  s_sub_u32 s33, s{64+2*k}, s{64+2*OPT['ampa']}
  s_mul_i32 s33, s33, {OPT['ampf']}
  s_add_u32 s33, s33, 1200
{lab}:
  s_memrealtime s[56:57]
  s_waitcnt lgkmcnt(0)
  s_sub_u32 s56, s56, s64
  s_cmp_lt_u32 s56, s33
  s_cbranch_scc1 {lab}
{lab}_x:""")
        return
    if not STAMP or OPT['dbgts']:
        return
    a("  s_waitcnt lgkmcnt(0)")
    a("  s_mul_i32 s33, s2, 5")
    a("  s_add_u32 s33, s33, s30")
    a("  s_lshl_b32 s33, s33, 6")
    a(f"  s_add_u32 s33, s33, {WS_TS}")
    a("  v_mov_b32 v8, s33")
    a("  s_mov_b64 exec, 1")
    for q in range(4):
        for r in range(4):
            a(f"  v_mov_b32 v{12+r}, s{64+2*(4*q+r)}")
        a(f"  global_store_dwordx4 v8, v[12:15], s[26:27] offset:{16*q}")
        a("  s_nop 1")

def tau_setup():
    a("  s_and_b32 s31, s31, 0xff")
    a("  s_mul_i32 s31, s31, 5")
    a("  s_add_u32 s31, s31, 59")
    a("  s_and_b32 s31, s31, 0xff")
    a(f"  v_mov_b32 {VTAU}, s31")

def xid_value(dst):
    a(f"  s_getreg_b32 {dst}, hwreg(HW_REG_XCC_ID, 0, 4)")
    a(f"  s_lshl_b32 {dst}, {dst}, 24")
    a(f"  s_mul_i32 s33, s31, 0x010101")
    a(f"  s_or_b32 {dst}, {dst}, s33")

def tr_lane_setup():
    a(f"""  v_bfe_u32 v14, {VL}, 2, 2        ; r4
  v_lshl_add_u32 v15, v13, 2, v14  ; row = 4*g4+r4
  v_bfe_u32 v16, v15, 1, 2         ; f
  v_and_b32 v17, 3, {VL}           ; c
  v_lshlrev_b32 v15, 7, v15
  v_lshl_add_u32 v15, v17, 3, v15  ; row*128 + c*8""")

def h_unit_index(dst):
    a(f"""  s_lshl_b32 {dst}, s28, 4
  s_add_u32 {dst}, {dst}, s29
  s_sub_u32 {dst}, {dst}, 16       ; P: g*16 + p
  s_lshl_b32 s33, s29, 3
  s_add_u32 s33, s33, s28
  s_add_u32 s33, s33, 128          ; W: 128 + i*8 + g
  s_cmp_lt_u32 s29, 16
  s_cselect_b32 {dst}, s33, {dst}""")

a(header(256, 320, LDS_BYTES))
stamp(0)
if OPT['deadline'] or OPT['probe1']:
    a("  s_memrealtime s[96:97]")
a(f"""  s_load_dwordx16 s[4:19], s[0:1], 0
  s_load_dwordx8 s[20:27], s[0:1], 64
  s_getpc_b64 s[34:35]
L_pc:
  v_lshlrev_b32 v1, {5 if OPT['prefetch'] else 0}, v0
  v_min_u32 v1, {"L_code_end - L_pc - 4" if OPT['prefetch'] else 0}, v1
  s_cmpk_ge_u32 s2, 0x100
  s_cbranch_scc1 L_end
  global_load_dword v3, v1, s[34:35]
  v_lshrrev_b32 v2, 6, v0
  v_and_b32 {VL}, 63, v0
  v_readfirstlane_b32 s30, v2
  v_lshrrev_b32 v8, 3, {VL}
  v_bfe_u32 v9, {VL}, 4, 2         ; (row>>1)&3
  v_and_b32 v10, 7, {VL}
  v_lshlrev_b32 v11, 1, v9
  v_xor_b32 v11, v11, v10
  v_lshlrev_b32 v11, 4, v11        ; *16 bytes
  v_lshl_add_u32 v18, v8, 13, v11
  s_and_b32 s28, s2, 7             ; g
  s_cmp_eq_u32 s30, 0
  s_cbranch_scc1 L_aux0
  s_lshr_b32 s42, s2, 6            ; kp
  s_mul_i32 s42, s42, {112*8192}
  s_lshl_b32 s43, s28, 10
  s_add_u32 s42, s42, s43
  s_bfe_u32 s43, s2, 0x30003       ; j&7
  s_lshl_b32 s43, s43, 7
  s_add_u32 s42, s42, s43
  s_sub_u32 s36, s30, 1            ; v
  s_lshl_b32 s43, s36, 16          ; v*8*8192
  s_add_u32 s42, s42, s43
  v_add_u32 v18, s42, v18
  s_lshl_b32 s43, s36, 10
  s_add_u32 m0, s43, {RA}
  s_lshl_b32 s44, 1, 18
  s_movk_i32 s45, 0x1000
  s_waitcnt lgkmcnt(0)
  global_load_lds_dwordx4 v18, s[10:11]{NT}
  s_add_u32 m0, m0, s45
  v_add_u32 v18, s44, v18
  global_load_lds_dwordx4 v18, s[10:11]{NT}
  s_add_u32 m0, m0, s45
  v_add_u32 v18, s44, v18
  global_load_lds_dwordx4 v18, s[10:11]{NT}
  s_cmp_ge_u32 s36, 2
  s_cbranch_scc1 L_wq_done
  s_add_u32 m0, m0, s45
  v_add_u32 v18, s44, v18
  global_load_lds_dwordx4 v18, s[10:11]{NT}
""")
a("L_wq_done:")
if OPT['probe1']:
    a(f"""L_pr1:
  s_memrealtime s[56:57]
  s_waitcnt lgkmcnt(0)
  s_sub_u32 s33, s56, s96
  s_cmp_lt_u32 s33, {OPT['probe1']}
  s_cbranch_scc1 L_pr1""")
if STAMP in (1, 2):
    for k in range(1, 16):
        a(f"  s_mov_b32 s{64+2*k}, 0")
if STAMP == 3: stamp(15)
a(f"""  s_load_dword s31, s[26:27], {WS_E}
  s_lshr_b32 s29, s2, 3            ; j
  s_mov_b32 s32, 0xff
  v_lshrrev_b32 v13, 4, {VL}       ; g4
  s_and_b32 s37, s36, 1            ; kh
  s_lshr_b32 s38, s36, 1           ; dh""")
stamp(1)
h_unit_index("s45")
a(f"""  s_mul_i32 s46, s45, 9363
  s_lshr_b32 s46, s46, 16          ; cbh = u1/7
  s_mul_i32 s47, s46, 7
  s_sub_u32 s47, s45, s47          ; kp = u1%7
  s_min_u32 s46, s46, 27
  s_lshl_b32 s46, s46, 7
  s_mul_i32 s47, s47, {64*3584}
  s_add_u32 s46, s46, s47
  s_mul_i32 s47, s36, {8*3584}
  s_add_u32 s46, s46, s47
  s_cmp_lt_u32 s45, 196
  s_cselect_b32 s45, 0, 0x40000000
  v_mul_u32_u24 v18, 3584, v8
  v_add3_u32 v18, v18, v11, s45
  s_lshl_b32 s47, s36, 10
  s_add_u32 s47, s47, {RC}
""")
srd(52, 16, SZ['w1'])
for k in range(2):
    a(f"  s_add_u32 m0, s47, {k*4096}")
    a(f"  s_add_u32 s45, s46, {k*4*8*3584}")
    dma("v18", 52, "s45")
a(f"""  v_xor_b32 v12, v9, v10
  v_lshlrev_b32 v12, 4, v12
  s_and_b32 s39, s29, 1            ; b
  s_lshr_b32 s40, s29, 1           ; s (0..15)
  s_lshl_b32 s41, s39, 3
  s_add_u32 s41, s41, s28          ; b*8+g
  s_lshl_b32 s41, s41, 21          ; *4096*512
  s_lshl_b32 s42, s40, 15          ; s*64*512
  s_add_u32 s41, s41, s42
  s_lshl_b32 s42, s37, 14          ; kh*32*512
  s_add_u32 s41, s41, s42
  s_lshl_b32 s42, s38, 8           ; dh*256
  s_add_u32 s41, s41, s42
  s_add_u32 s41, s41, {3072*512}
  s_lshl_b32 s43, s38, 14
  s_lshl_b32 s42, s37, 12
  s_add_u32 s43, s43, s42
  v_lshlrev_b32 v18, 9, v8         ; row*512
  v_add_u32 v19, v18, v12
  v_xor_b32 v20, 64, v19
  v_add_u32 v21, v18, v11          ; V voffset
""")
srd(44, 6, SZ['k'])
srd(48, 8, SZ['v'])
for c2 in range(2):
    for jj in range(4):
        a(f"  s_add_u32 m0, s43, {KBUF + c2*8192 + jj*1024}")
        a(f"  s_add_u32 s42, s41, {c2*128 + jj*4096}")
        dma("v20" if jj & 1 else "v19", 44, "s42")
tr_lane_setup()
a(f"""  ; q projection tile nb = v : addresses
  v_xor_b32 v24, s36, v16
  v_lshl_add_u32 v24, v24, 5, v15
  v_add_u32 v24, {RA}, v24
  v_and_b32 v25, 1, {VL}
  v_mul_u32_u24 v25, 896, v25
  v_lshl_add_u32 v25, v13, 3, v25
  s_lshr_b32 s42, s29, 3           ; kp
  s_mul_i32 s45, s42, 224
  s_add_u32 s45, s45, {XB}
  v_add_u32 v25, s45, v25
  s_lshl_b32 s45, s28, 14
  s_lshl_b32 s42, s42, 12
  s_add_u32 s45, s45, s42
  s_and_b32 s42, s29, 7
  s_lshl_b32 s42, s42, 8
  s_add_u32 s45, s45, s42
  s_lshl_b32 s42, s36, 6
  s_add_u32 s45, s45, s42
  s_add_u32 s45, s45, {WS_QP}
  v_lshlrev_b32 v26, 2, {VL}
  v_add_u32 v26, s45, v26
""")
a("  s_waitcnt lgkmcnt(0)")
tau_setup()
a("  s_waitcnt vmcnt(10)")
a("  s_barrier")
for st in range(3):
    a(f"  ds_read2_b64 v[{32+4*st}:{35+4*st}], v25 offset0:{8*st} offset1:{8*st+4}")
    a(f"  ds_read_b64_tr_b16 v[{48+4*st}:{49+4*st}], v24 offset:{st*4096}")
    a(f"  ds_read_b64_tr_b16 v[{50+4*st}:{51+4*st}], v24 offset:{st*4096+2048}")
a(f"  ds_read_b64 v[44:45], v25 offset:192")
a(f"  ds_read_b64_tr_b16 v[60:61], v24 offset:{3*4096}")
for st in range(3):
    a(f"  s_waitcnt lgkmcnt({8 - 3*st})")
    c = "0" if st == 0 else "v[64:67]"
    a(f"  v_mfma_f32_16x16x32_bf16 v[64:67], v[{32+4*st}:{35+4*st}], v[{48+4*st}:{51+4*st}], {c}")
a("  s_waitcnt lgkmcnt(0)")
a("  v_mfma_f32_16x16x16_bf16 v[68:71], v[44:45], v[60:61], 0")
a("  s_mov_b64 exec, 0xffff")
a("  s_nop 6")
a("  v_add_f32 v64, v64, v68")
a("  v_add_f32 v65, v65, v69")
tagit("v64", "v64")
tagit("v65", "v65")
a(f"""  global_store_dword v26, v64, s[26:27] sc1
  global_store_dword v26, v65, s[26:27] offset:2048 sc1
  s_mov_b64 exec, -1
""")
stamp(14)
a("  s_waitcnt vmcnt(10)")
a("  s_barrier")
for c2 in range(2):
    for jj in range(4):
        a(f"  s_add_u32 m0, s43, {VBUF + c2*8192 + jj*1024}")
        a(f"  s_add_u32 s42, s41, {c2*128 + jj*4096}")
        dma("v21", 48, "s42")
stamp(2)
a(f"""  ; K operand address: key*128 + (g4 ^ ((key>>1)&7))*16 + kh*4096
  v_and_b32 v22, 15, {VL}
  v_bfe_u32 v23, {VL}, 1, 3
  v_xor_b32 v23, v23, v13
  v_lshlrev_b32 v23, 4, v23
  v_lshl_add_u32 v22, v22, 7, v23
  s_lshl_b32 s42, s37, 12
  v_add_u32 v22, s42, v22
  v_xor_b32 v23, 64, v22
  s_add_u32 s42, s43, {VBUF}
""")
for nb in range(4):
    a(f"  v_xor_b32 v{24+nb}, {nb}, v16")
    a(f"  v_lshl_add_u32 v{24+nb}, v{24+nb}, 5, v15")
    a(f"  v_add_u32 v{24+nb}, s42, v{24+nb}")
a(f"""  ; q operand address: QB + (l&1)*576 + g4*16
  v_and_b32 v28, 1, {VL}
  v_mul_u32_u24 v28, 576, v28
  v_lshl_add_u32 v28, v13, 4, v28
  v_add_u32 v28, {QB}, v28
  s_lshl_b32 s42, s28, 14
  s_lshl_b32 s45, s39, 11
  s_add_u32 s42, s42, s45
  s_lshl_b32 s45, s37, 10
  s_add_u32 s42, s42, s45
  s_lshl_b32 s45, s38, 9
  s_add_u32 s42, s42, s45
  s_add_u32 s42, s42, {WS_QP}
  v_lshrrev_b32 v29, 5, {VL}       ; kpl
  v_and_b32 v30, 31, {VL}          ; c
  v_lshlrev_b32 v31, 12, v29
  v_lshl_add_u32 v31, v30, 4, v31
  v_add_u32 v51, s42, v31
  v_add_u32 v52, 8192, v51
  s_lshl_b32 s42, s28, 7
  s_add_u32 s42, s42, {WS_XID}
  v_lshl_add_u32 v50, v30, 2, s42
  s_mul_i32 s42, s37, 576
  s_lshl_b32 s45, s38, 8
  s_add_u32 s42, s42, s45
  s_add_u32 s42, s42, {QB}
  v_lshlrev_b32 v30, 3, v30
  v_lshl_add_u32 v30, v29, 2, v30
  v_add_u32 v53, s42, v30
  s_lshl_b32 s42, s28, 1
  s_add_u32 s42, s42, s39
  s_lshl_b32 s42, s42, 5
  s_lshl_b32 s45, s40, 1
  s_add_u32 s42, s42, s45
  s_add_u32 s42, s42, s37
  s_mul_i32 s42, s42, {OPS}
  s_lshl_b32 s45, s38, 10
  s_add_u32 s42, s42, s45
  s_add_u32 s42, s42, {WS_OP}
  v_lshlrev_b32 v54, 3, {VL}
  v_add_u32 v54, s42, v54
  v_and_b32 v228, 7, {VL}
  v_lshlrev_b32 v228, 7, v228
  v_add_u32 v228, s42, v228
  s_lshl_b32 s42, s28, 1
  s_add_u32 s42, s42, s38
  s_mul_i32 s33, s42, {32*OPS}
  s_lshl_b32 s56, s29, 7
  s_add_u32 s33, s33, s56
  s_lshl_b32 s56, s37, 6
  s_add_u32 s33, s33, s56
  s_add_u32 s33, s33, {WS_OP}
  v_lshrrev_b32 v6, 2, {VL}       ; s16
  v_mul_u32_u24 v7, {OPS}, v6
  v_and_b32 v62, 3, {VL}
  v_lshl_add_u32 v7, v62, 4, v7
  v_add_u32 v62, s33, v7
  v_add_u32 v63, {16*OPS}, v62        ; s16+16
  v_mov_b32 v46, 0x3f803f80
  v_mov_b32 v47, 0x3f803f80
  v_mov_b32 v48, 0x3f803f80
  v_mov_b32 v49, 0x3f803f80
  v_and_b32 v55, 1, {VL}
  v_cmp_eq_u32 s[58:59], 1, v55
""")
xid_value("s34")
a("  s_mov_b32 s35, 0xffffff")
a("  s_waitcnt vmcnt(8)")
stamp(3)
a("  s_barrier")
for tt in range(2):
    for t in range(8):
        r = 64 + (tt*8 + t)*4
        a(f"  ds_read_b128 v[{r}:{r+3}], v{23 if t & 1 else 22} offset:{KBUF + (t>>1)*8192 + tt*2048}")

def w_weight_setup():
    srd(44, 12, SZ['wo'])
    srd(52, 18, SZ['w2'])
    a(f"""  s_lshl_b32 s42, s28, 9
  s_lshl_b32 s61, s29, 4
  s_add_u32 s42, s42, s61          ; g*512 + 16j
  s_lshl_b32 s61, s38, 8
  s_add_u32 s42, s42, s61          ; + h*256
  s_lshl_b32 s61, s37, 3
  s_add_u32 s42, s42, s61          ; + half*8
  s_mul_i32 s61, s42, 896
  s_lshl_b32 s60, s36, 10
  s_add_u32 s60, s60, {RA}
  v_mul_u32_u24 v19, 896, v8
  v_add_u32 v19, v19, v11
  s_lshl_b32 s33, s28, 4
  s_add_u32 s33, s33, s29          ; u
  s_min_u32 s42, s33, 111
  s_lshl_b32 s42, s42, 4
  s_lshl_b32 s62, s37, 3
  s_add_u32 s42, s42, s62          ; 16u + q*8   (q = v&1)
  s_mul_i32 s42, s42, 896
  s_lshl_b32 s62, s38, 7
  s_add_u32 s62, s42, s62          ; + (v>>1)*128
  s_cmp_lt_u32 s33, 112
  s_cselect_b32 s33, 0, 0x40000000
  v_add_u32 v20, s33, v19
  s_lshl_b32 s63, s38, 11
  s_lshl_b32 s33, s37, 10
  s_add_u32 s63, s63, s33
  s_add_u32 s63, s63, {RB}         ; RB + (v>>1)*2048 + q*1024
""")

def w_weight_loads(tagname):
    for cb in range(7):
        a(f"  s_add_u32 m0, s60, {cb*4096}")
        a(f"  s_add_u32 s33, s61, {cb*128}")
        dma("v19", 44, "s33")
    for k in range(4):
        if k == 3:
            a("  s_cmp_lg_u32 s38, 0")
            a(f"  s_cbranch_scc1 L_w2_done{tagname}")
        a(f"  s_add_u32 m0, s63, {k*4096}")
        a(f"  s_add_u32 s33, s62, {k*256}")
        dma("v20", 52, "s33")
    a(f"L_w2_done{tagname}:")

def own_pretouch():
    fl = OPT['oflag'].replace('_', ' ') if OPT['oflag'] != 'none' else ''
    a("  s_mov_b64 exec, 0xff")
    a(f"  global_load_dword v2, v228, s[26:27] {fl}")
    a("  s_mov_b64 exec, -1")

def q_loads():
    a("  global_load_dwordx4 v[32:35], v51, s[26:27] sc1")
    a("  global_load_dwordx4 v[36:39], v52, s[26:27] sc1")
    a("  global_load_dword v41, v50, s[26:27] sc1")

a("  s_cmp_lt_u32 s29, 16")
a("  s_cbranch_scc0 L_q_p")
w_weight_setup()
if OPT['wpos'] == 'first':
    pass
if OPT['wpos'] == 'q':
    a(f"  s_waitcnt vmcnt({OPT['qwait']})")
    stamp(4)
    q_loads()
    if OPT['a2']:
        a("  s_barrier")
    w_weight_loads("a")
    if OPT['opre'] == 1:
        fl = OPT['oflag'].replace('_', ' ') if OPT['oflag'] != 'none' else ''
        a(f"  global_load_dword v2, v62, s[26:27] {fl}")
        a(f"  global_load_dword v3, v63, s[26:27] {fl}")
    if OPT['opre'] == 2:
        own_pretouch()
    a("  s_mov_b32 s33, 0")
    NY = {0: 10, 1: 12, 2: 11}[OPT['opre']]
    a("  s_cmp_lg_u32 s38, 0")
    a("  s_cbranch_scc1 L_qw10")
    a(f"  s_waitcnt vmcnt({NY+1})")
    a("  s_branch L_qchk")
    a("L_qw10:")
    a(f"  s_waitcnt vmcnt({NY})")
    a("  s_branch L_qchk")
a(f"""L_q_p:
  s_mov_b32 s33, 0
  s_waitcnt vmcnt({OPT['qwait']})
""")
stamp(4)
if OPT['opre'] == 2:
    q_loads()
    own_pretouch()
    a("  s_waitcnt vmcnt(1)")
    a("  s_branch L_qchk")
a("L_qpoll:")
q_loads()
a("  s_waitcnt vmcnt(0)")
a("L_qchk:")
check_regs("v40", range(32, 40))
a("  v_xor_b32 v41, s34, v41")
a("  v_and_b32 v40, 0xff, v40")
a("  v_and_or_b32 v40, v41, s35, v40")
poll_end("v40", "L_qpoll", "L_qok", masked=True)
stamp(5)
rec(13, "s33")
if OPT['wpos'] == 'mid':
    a("  s_cmp_lt_u32 s29, 16")
    a("  s_cbranch_scc0 L_nomid")
    w_weight_loads("m")
    a("L_nomid:")
a(f"""  v_add_f32 v32, v32, v36
  v_add_f32 v33, v33, v37
  v_add_f32 v34, v34, v38
  v_add_f32 v35, v35, v39
  v_cmp_ne_u32 vcc, 0, v41
  s_nop 0
  v_permlane32_swap_b32 v32, v34
  v_permlane32_swap_b32 v33, v35
  v_add_f32 v32, v32, v34
  v_add_f32 v33, v33, v35
  v_cvt_pk_bf16_f32 v32, v32, v33
  ds_write_b32 v53, v32
  s_cmp_eq_u64 vcc, 0
  s_cselect_b32 s35, {1 if OPT['fast'] else 0}, 0
  s_waitcnt lgkmcnt(0)
  s_barrier
""")
stamp(6)
for t in range(8):
    a(f"  ds_read_b128 v[{128+4*t}:{131+4*t}], v28 offset:{64*t}")
a(f"  s_mov_b32 s42, {C_LOG2E_16:#x}")
def v_read(i):
    nbk, hf = i >> 1, i & 1
    r = 160 + 4*nbk + 2*hf
    a(f"  ds_read_b64_tr_b16 v[{r}:{r+1}], v{24 + (nbk & 3)} offset:{(nbk >> 2)*8192 + hf*2048}")
for t in range(8):
    a(f"  s_waitcnt lgkmcnt({7 + t})")
    for tt in range(2):
        kr = 64 + (tt*8 + t)*4
        c = "0" if t == 0 else f"v[{32+4*tt}:{35+4*tt}]"
        a(f"  v_mfma_f32_16x16x32_bf16 v[{32+4*tt}:{35+4*tt}], v[{kr}:{kr+3}], v[{128+4*t}:{131+4*t}], {c}")
        v_read(2*t + tt)
a(f"""  s_nop 5
  v_max3_f32 v44, v32, v33, v34
  v_max3_f32 v45, v36, v37, v38
  v_max3_f32 v44, v44, v35, v39
  v_max_f32 v44, v44, v45
  v_mov_b32 v45, v44
  s_nop 1
  v_permlane16_swap_b32 v44, v45
  v_max_f32 v44, v44, v45
  v_mov_b32 v45, v44
  s_nop 1
  v_permlane32_swap_b32 v44, v45
  v_max_f32 v44, v44, v45
  v_mul_f32 v44, s42, v44
""")
for r in range(8):
    a(f"  v_fma_f32 v{32+r}, v{32+r}, s42, -v44")
for r in range(8):
    a(f"  v_exp_f32 v{32+r}, v{32+r}")
a("  s_nop 0")
for r in range(4):
    a(f"  v_cvt_pk_bf16_f32 v{40+r}, v{32+2*r}, v{33+2*r}")
a("  s_waitcnt lgkmcnt(0)             ; V operands")
a("  s_nop 0")
a("  v_mfma_f32_16x16x32_bf16 v[224:227], v[40:43], v[46:49], 0")
for nbk in range(8):
    a(f"  v_mfma_f32_16x16x32_bf16 v[{192+4*nbk}:{195+4*nbk}], v[40:43], v[{160+4*nbk}:{163+4*nbk}], 0")
a(f"""  v_cndmask_b32 v45, v224, v225, s[58:59]
  v_rcp_f32 v56, v224
  v_rcp_f32 v57, v225
  v_log_f32 v45, v45
  s_cmp_eq_u32 s35, 1
  v_add_f32 v45, v45, v44
""")
tagit("v59", "v45")
a("  v_mov_b32 v61, v59")
for q in range(2):
    for h in range(2):
        for k in range(4):
            a(f"  v_mul_f32_dpp v{32+2*q+h}, v{192+4*(4*q+k)+h}, v{56+h} quad_perm:[0,1,2,3] row_mask:{1<<k:#x} bank_mask:0xf")
    a(f"  v_cvt_pk_bf16_f32 v{58+2*q}, v{32+2*q}, v{33+2*q}")
a(f"""  s_cbranch_scc1 L_pub_local
  global_store_dwordx2 v54, v[58:59], s[26:27] sc1
  global_store_dwordx2 v54, v[60:61], s[26:27] offset:512 sc1
  s_branch L_pub_done
L_pub_local:                       ; every reader shares this die's L2
  global_store_dwordx2 v54, v[58:59], s[26:27]
  global_store_dwordx2 v54, v[60:61], s[26:27] offset:512
L_pub_done:
""")
stamp(7)
a("  s_cmp_lt_u32 s29, 16")
a("  s_cbranch_scc1 L_wstage")
a("  s_barrier")
dump_stamps()
a("  s_endpgm")

a("L_wstage:")
if OPT['wpos'] == 'late':
    w_weight_loads("l")
a(f"""  v_xor_b32 v24, s36, v16
  v_lshl_add_u32 v24, v24, 5, v15
  v_add_u32 v25, {RB}, v24
  v_add_u32 v24, {RA}, v24
  v_and_b32 v26, 1, {VL}
  v_lshlrev_b32 v27, 5, v26
  v_lshl_add_u32 v27, v13, 3, v27
  v_add_u32 v27, {HV}, v27
  v_lshlrev_b32 v28, 6, v26
  v_lshl_add_u32 v28, v13, 3, v28
  v_add_u32 v28, {OV}, v28
  v_and_b32 v54, 3, {VL}
  v_lshlrev_b32 v54, 2, v54
  v_and_b32 v55, 1, v13
  v_lshl_add_u32 v54, v55, 5, v54
  v_lshrrev_b32 v55, 1, v13
  v_lshl_add_u32 v54, v55, 1, v54
  s_lshl_b32 s42, s38, 6
  s_lshl_b32 s45, s37, 4
  s_add_u32 s42, s42, s45
  s_add_u32 s42, s42, {OV}
  v_add_u32 v54, s42, v54
  s_lshl_b32 s42, s28, 4
  s_add_u32 s42, s42, s29
  s_mul_i32 s42, s42, {APS}
  s_lshl_b32 s45, s36, {8 if OPT['appad'] else 7}
  s_add_u32 s42, s42, s45
  s_add_u32 s42, s42, {WS_AP}
  v_lshlrev_b32 v55, 3, {VL}
  v_add_u32 v55, s42, v55
  v_and_b32 v56, 7, {VL}
  v_lshlrev_b32 v56, 3, v56
  v_bfe_u32 v57, {VL}, 3, 1
  v_lshl_add_u32 v56, v57, 7, v56
  v_lshl_add_u32 v56, v13, 10, v56
  v_add_u32 v56, s42, v56
  v_add_u32 v57, 4096, v56
  s_lshl_b32 s42, s38, 2
  s_add_u32 s42, s42, {GT}
  v_mov_b32 v29, s42
  ds_read_b32 v50, v29
  s_mov_b32 s56, 0xf000f000
  s_mov_b32 s57, 0xf000f000
  s_mov_b32 s33, 0
  s_waitcnt vmcnt(0) lgkmcnt(0)
""")
if OPT['early']:
    a("""  global_load_dwordx4 v[32:35], v62, s[26:27] sc1
  global_load_dwordx4 v[36:39], v63, s[26:27] sc1""")
a("  s_barrier")
stamp(8)
if not OPT['early']:
    a("""  global_load_dwordx4 v[32:35], v62, s[26:27] sc1
  global_load_dwordx4 v[36:39], v63, s[26:27] sc1""")
if OPT['ffn_early']:
    a("  ds_read_b64 v[106:107], v27")
    for cb in range(7):
        a(f"  ds_read_b64_tr_b16 v[{92+2*cb}:{93+2*cb}], v25 offset:{cb*2048}")
    a("  s_waitcnt lgkmcnt(0)")
    for cb in range(7):
        a(f"  v_mfma_f32_16x16x16_bf16 v[{110+4*cb}:{113+4*cb}], v[106:107], v[{92+2*cb}:{93+2*cb}], 0")
a("  s_waitcnt vmcnt(0)")
a("  s_branch L_ochk")
a(f"""L_opoll:
  global_load_dwordx4 v[32:35], v62, s[26:27] sc1
  global_load_dwordx4 v[36:39], v63, s[26:27] sc1
  s_waitcnt vmcnt(0)
L_ochk:
""")
check_regs("v48", [33, 35, 37, 39])
poll_end("v48", "L_opoll", "L_ook")
stamp(9)
rec(12, "s33")
CHAIN = """  v_max_f32 v52, v33, v37
  v_max_f32 v53, v35, v39
  v_lshlrev_b32 v40, 16, v32       ; A: d0h0
  v_and_b32 v41, 0xffff0000, v32   ;    d0h1
  v_permlane16_swap_b32 v52, v53
  v_lshlrev_b32 v42, 16, v34       ;    d1h0
  v_and_b32 v43, 0xffff0000, v34   ;    d1h1
  v_max_f32 v52, v52, v53          ; rows: h0(01) h1(01) h0(23) h1(23)
  v_mov_b32 v53, v52
  v_lshlrev_b32 v44, 16, v36       ; B
  v_and_b32 v45, 0xffff0000, v36
  v_permlane32_swap_b32 v52, v53
  v_max_f32 v52, v52, v53
  v_lshlrev_b32 v46, 16, v38
  v_and_b32 v47, 0xffff0000, v38
  v_max_f32_dpp v52, v52, v52 row_shr:4 row_mask:0xf bank_mask:0xf
  SLOT
  SLOT
  v_max_f32_dpp v52, v52, v52 row_shr:8 row_mask:0xf bank_mask:0xf
  SLOT
  v_readlane_b32 s42, v52, 15
  v_readlane_b32 s45, v52, 31
  SLOT
  SLOT
  v_subrev_f32 v33, s42, v33
  v_subrev_f32 v37, s42, v37
  v_subrev_f32 v35, s45, v35
  v_subrev_f32 v39, s45, v39
  v_exp_f32 v33, v33               ; w A h0
  v_exp_f32 v37, v37               ; w B h0
  v_exp_f32 v35, v35               ; w A h1
  v_exp_f32 v39, v39               ; w B h1
  SLOT
  v_mul_f32 v40, v40, v33
  v_mul_f32 v41, v41, v35
  v_mul_f32 v42, v42, v33
  v_mul_f32 v43, v43, v35
  v_fmac_f32 v40, v44, v37
  v_fmac_f32 v41, v45, v39
  v_fmac_f32 v42, v46, v37
  v_fmac_f32 v43, v47, v39
  v_add_f32 v52, v33, v37          ; den h0
  v_add_f32 v53, v35, v39          ; den h1
  SLOT
  v_permlane16_swap_b32 v40, v41
  v_permlane16_swap_b32 v42, v43
  v_permlane16_swap_b32 v52, v53
  v_add_f32 v40, v40, v41
  v_add_f32 v42, v42, v43
  v_add_f32 v52, v52, v53
  v_mov_b32 v53, v52
  SLOT
  SLOT
  v_permlane32_swap_b32 v40, v42
  v_permlane32_swap_b32 v52, v53
  v_add_f32 v40, v40, v42
  v_add_f32 v52, v52, v53          ; rows h0 h1 h0 h1
  SLOT
  v_add_f32_dpp v40, v40, v40 row_shr:4 row_mask:0xf bank_mask:0xf
  v_add_f32_dpp v52, v52, v52 row_shr:4 row_mask:0xf bank_mask:0xf
  SLOT
  v_add_f32_dpp v40, v40, v40 row_shr:8 row_mask:0xf bank_mask:0xf
  v_add_f32_dpp v52, v52, v52 row_shr:8 row_mask:0xf bank_mask:0xf
  v_mul_f32 v40, v40, v50          ; * gate
  v_rcp_f32 v52, v52"""
W2R = ["  ds_read_b64 v[106:107], v27"] + [f"  ds_read_b64_tr_b16 v[{92+2*cb}:{93+2*cb}], v25 offset:{cb*2048}" for cb in range(7)]
WOR = []
for cb in range(7):
    WOR.append(f"  ds_read_b64_tr_b16 v[{64+4*cb}:{65+4*cb}], v24 offset:{cb*4096}")
    WOR.append(f"  ds_read_b64_tr_b16 v[{66+4*cb}:{67+4*cb}], v24 offset:{cb*4096+2048}")
queue = (WOR if OPT['ffn_early'] else W2R + WOR)[:]
nslot = 0
for ln in CHAIN.split("\n"):
    if ln.strip() == "SLOT":
        a(queue.pop(0)); nslot += 1
    else:
        a(ln)
if STAMP == 3: stamp(11)
if OPT['ffn_early']:
    a(f"""  s_mov_b64 exec, s[56:57]
  v_mul_f32 v40, v40, v52
  v_cvt_pk_bf16_f32 v40, v40, v40
  ds_write_b16 v54, v40
  s_mov_b64 exec, -1""")
    for ln in queue: a(ln)
    a(f"  s_waitcnt lgkmcnt({len(queue)})")
else:
    a(f"""  s_mov_b64 exec, s[56:57]
  v_mul_f32 v40, v40, v52
  v_cvt_pk_bf16_f32 v40, v40, v40
  ds_write_b16 v54, v40
  s_mov_b64 exec, -1
  s_waitcnt lgkmcnt(4)""")
    for cb in range(7):
        a(f"  v_mfma_f32_16x16x16_bf16 v[{110+4*cb}:{113+4*cb}], v[106:107], v[{92+2*cb}:{93+2*cb}], 0")
        for ln in queue[cb*11//7:(cb+1)*11//7]:
            a(ln)
    a("  s_waitcnt lgkmcnt(11)")
a(f"""  s_barrier
""")
if STAMP == 3: stamp(12)
a(f"""  ds_read2_b64 v[40:43], v28 offset0:0 offset1:4
  s_waitcnt lgkmcnt(0)
""")
if STAMP == 3: stamp(13)
for cb in range(7):
    a(f"  v_mfma_f32_16x16x32_bf16 v[{110+4*cb}:{113+4*cb}], v[40:43], v[{64+4*cb}:{67+4*cb}], v[{110+4*cb}:{113+4*cb}]")
assert OPT['appad'] == 1
a("  s_mov_b32 s56, -1")
a("  s_mov_b32 s57, 0xffff")
a("  s_nop 0")
for k in (1, 2, 3):
    for h in range(2):
        a(f"  v_mov_b32_dpp v{110+h}, v{110+4*k+h} quad_perm:[0,1,2,3] row_mask:{1<<k:#x} bank_mask:0xf")
tagit("v110", "v110")
a("  global_store_dwordx2 v56, v[110:111], s[26:27] sc1")
for k in (1, 2):
    for h in range(2):
        a(f"  v_mov_b32_dpp v{126+h}, v{126+4*k+h} quad_perm:[0,1,2,3] row_mask:{1<<k:#x} bank_mask:0xf")
tagit("v126", "v126")
a("  s_mov_b64 exec, s[56:57]")
a("  global_store_dwordx2 v57, v[126:127], s[26:27] sc1")
stamp(10)
if OPT['apack']:
    a("  s_waitcnt vmcnt(0)")
    stamp(11)
a("  s_mov_b64 exec, -1")
dump_stamps()
a("  s_endpgm")

a("L_aux0:")
if STAMP in (1, 2):
    for k in range(1, 16):
        a(f"  s_mov_b32 s{64+2*k}, 0")
a(f"""  s_lshr_b32 s29, s2, 3            ; j
  s_mov_b32 s32, 0xff
  v_lshrrev_b32 v13, 4, {VL}       ; g4
  v_lshlrev_b32 v18, 4, {VL}
  v_add_u32 v21, 1024, v18
  s_waitcnt lgkmcnt(0)
  s_load_dword s31, s[26:27], {WS_E}
""")
stamp(1)
srd(52, 4, SZ['x'])
a(f"""  s_mov_b32 m0, {XB}
  s_cmp_ge_u32 s29, 16
  buffer_load_dwordx4 v18, s[52:55], 0 offen lds
  s_mov_b32 m0, {XB+1024}
  s_nop 0
  buffer_load_dwordx4 v21, s[52:55], 0 offen lds
  s_cbranch_scc1 L_aux
  s_mov_b32 s56, -1
  s_mov_b32 s57, 0x00ffffff
  s_mov_b64 exec, s[56:57]
  global_load_dwordx4 v[70:73], v18, s[4:5]
  global_load_dwordx4 v[74:77], v18, s[4:5] offset:896
  global_load_dwordx4 v[78:81], v18, s[20:21]
  s_mov_b64 exec, -1
""")
a("L_aux:")
tr_lane_setup()
for nb in range(4):
    a(f"  v_xor_b32 v{24+nb}, {nb}, v16")
    a(f"  v_lshl_add_u32 v{24+nb}, v{24+nb}, 5, v15")
    a(f"  v_add_u32 v{24+nb}, {RC}, v{24+nb}")
h_unit_index("s39")
a(f"""  s_mul_i32 s40, s39, 9363
  s_lshr_b32 s40, s40, 16          ; cbh
  s_mul_i32 s41, s40, 7
  s_sub_u32 s41, s39, s41          ; kp
  v_and_b32 v28, 1, {VL}
  v_mul_u32_u24 v28, 896, v28
  v_lshl_add_u32 v28, v13, 3, v28
  s_lshl_b32 s42, s41, 7
  s_add_u32 s42, s42, {XB}
  v_add_u32 v28, s42, v28
  s_mul_i32 s42, s41, {2*7168}
  s_lshl_b32 s43, s40, 8
  s_add_u32 s42, s42, s43
  s_add_u32 s42, s42, {WS_HP}
  v_lshlrev_b32 v31, 2, {VL}
  v_add_u32 v31, s42, v31
  v_add_u32 v30, 7168, v31
  s_waitcnt lgkmcnt(0)
""")
tau_setup()
xid_value("s34")
a(f"""  s_lshl_b32 s42, s28, 7
  s_lshl_b32 s43, s29, 2
  s_add_u32 s42, s42, s43
  s_add_u32 s42, s42, {WS_XID}
  v_mov_b32 v6, s42
  v_mov_b32 v7, s34
  s_waitcnt vmcnt(0)
  s_mov_b64 exec, 1
  global_store_dword v6, v7, s[26:27] sc1
  s_mov_b64 exec, -1
  s_barrier                        ; barrier Q
  s_barrier                        ; barrier Q2
""")
stamp(2)
if OPT['tlb']:
    a(f"""  s_lshl_b32 s42, s28, 9
  s_lshl_b32 s43, s29, 4
  s_add_u32 s42, s42, s43
  s_mul_i32 s42, s42, 896
  v_mov_b32 v6, s42
  v_mov_b32 v7, 0
  s_mov_b64 exec, 1
  global_load_dword v2, v6, s[12:13] nt
  global_load_dword v2, v7, s[18:19] offset:64 nt
  global_load_dword v2, v7, s[22:23] nt
  s_mov_b64 exec, -1
""")
a("  s_cmp_ge_u32 s39, 196")
a("  s_cbranch_scc1 L_nohpub")
for st in range(2):
    a(f"  ds_read2_b64 v[{48+4*st}:{51+4*st}], v28 offset0:{8*st} offset1:{8*st+4}")
    for nb in range(4):
        r = 96 + 16*st + 4*nb
        a(f"  ds_read_b64_tr_b16 v[{r}:{r+1}], v{24+nb} offset:{st*4096}")
        a(f"  ds_read_b64_tr_b16 v[{r+2}:{r+3}], v{24+nb} offset:{st*4096+2048}")
for st in range(2):
    a(f"  s_waitcnt lgkmcnt({9 - 9*st})")
    for nb in range(4):
        r = 96 + 16*st + 4*nb
        c = "0" if st == 0 else f"v[{32+4*nb}:{35+4*nb}]"
        a(f"  v_mfma_f32_16x16x32_bf16 v[{32+4*nb}:{35+4*nb}], v[{48+4*st}:{51+4*st}], v[{r}:{r+3}], {c}")
a("  s_nop 7")
for r in range(2):
    a(f"  v_permlane16_swap_b32 v{32+r}, v{36+r}")
    a(f"  v_permlane16_swap_b32 v{40+r}, v{44+r}")
a("  s_nop 1")
for r in range(2):
    a(f"  v_permlane32_swap_b32 v{32+r}, v{40+r}")
a("  s_nop 1")
tagit("v32", "v32")
tagit("v33", "v33")
a("""  global_store_dword v31, v32, s[26:27] sc1
  global_store_dword v30, v33, s[26:27] sc1
L_nohpub:""")
stamp(5)
a("  s_cmp_ge_u32 s29, 16")
a("  s_cbranch_scc1 L_aux_a")
a("  v_mov_b32 v44, 0")
a("  v_mov_b32 v45, 0")
for r in range(4):
    a(f"  v_lshlrev_b32 v46, 16, v{78+r}")
    a(f"  v_and_b32 v47, 0xffff0000, v{78+r}")
    for b in range(2):
        a(f"  v_lshlrev_b32 v48, 16, v{70+4*b+r}")
        a(f"  v_and_b32 v49, 0xffff0000, v{70+4*b+r}")
        a(f"  v_mul_f32 v48, v48, v46")
        a(f"  v_mul_f32 v49, v49, v47")
        a(f"  v_cvt_pk_bf16_f32 v48, v48, v49")
        a(f"  v_lshlrev_b32 v49, 16, v48")
        a(f"  v_and_b32 v48, 0xffff0000, v48")
        a(f"  v_add_f32 v{44+b}, v{44+b}, v49")
        a(f"  v_add_f32 v{44+b}, v{44+b}, v48")
a(f"""  v_cmp_gt_u32 vcc, 56, {VL}
  s_nop 1
  v_cndmask_b32 v44, 0, v44, vcc
  v_cndmask_b32 v45, 0, v45, vcc
  s_nop 1
""")
for sh in (1, 2, 4, 8):
    a(f"  v_add_f32_dpp v44, v44, v44 row_shr:{sh} row_mask:0xf bank_mask:0xf")
    a(f"  v_add_f32_dpp v45, v45, v45 row_shr:{sh} row_mask:0xf bank_mask:0xf")
    a("  s_nop 0")
a(f"""  v_add_f32_dpp v44, v44, v44 row_bcast:15 row_mask:0xa bank_mask:0xf
  v_add_f32_dpp v45, v45, v45 row_bcast:15 row_mask:0xa bank_mask:0xf
  s_nop 0
  v_add_f32_dpp v44, v44, v44 row_bcast:31 row_mask:0xc bank_mask:0xf
  v_add_f32_dpp v45, v45, v45 row_bcast:31 row_mask:0xc bank_mask:0xf
  s_nop 0
  v_readlane_b32 s42, v44, 63
  v_readlane_b32 s43, v45, 63
  s_nop 1
  v_and_b32 v46, 1, {VL}
  v_cmp_eq_u32 vcc, 0, v46
  v_mov_b32 v47, s43
  v_mov_b32 v48, s42
  v_cndmask_b32 v47, v47, v48, vcc
  v_mul_f32 v47, 0xbfb8aa3b, v47   ; -log2e * z
  v_exp_f32 v47, v47
  s_nop 0
  v_add_f32 v47, 1.0, v47
  v_rcp_f32 v47, v47               ; g[b = lane&1]
  s_nop 0
  v_sub_f32 v82, 1.0, v47          ; 1-g
  v_lshlrev_b32 v46, 2, v46
  v_add_u32 v46, {GT}, v46
  s_mov_b64 exec, 3
  ds_write_b32 v46, v47
  s_mov_b64 exec, -1
  s_waitcnt lgkmcnt(0)
""")
stamp(3)
a("L_aux_a:")
a("  s_barrier")
a("  s_cmp_lt_u32 s29, 16")
a("  s_cbranch_scc1 L_aux_w")
a("  s_cmp_lt_u32 s29, 23")
a("  s_cbranch_scc1 L_final")
dump_stamps()
a("  s_endpgm")

a(f"""L_final:
  s_sub_u32 s36, s29, 16           ; p
  s_lshl_b32 s37, s36, 3
  s_add_u32 s37, s37, s28          ; c
  v_lshrrev_b32 v29, 2, {VL}       ; u16
  v_mul_u32_u24 v30, {APS}, v29
  v_and_b32 v31, 3, {VL}
  v_lshl_add_u32 v30, v31, 4, v30
  s_lshl_b32 s42, s37, {7 if OPT['appad'] else 6}
  s_add_u32 s42, s42, {WS_AP}
  v_add_u32 v30, s42, v30
""")
for k in range(8):
    a(f"  v_add_u32 v{16+k}, {k*16*APS}, v30")
a(f"""  ; out + b*896 + (8c + 2*c4 + (r>>1))*2
  v_and_b32 v28, 1, v13
  v_mul_u32_u24 v28, 896, v28
  v_lshl_add_u32 v28, v31, 2, v28
  v_lshrrev_b32 v29, 1, v13
  v_lshl_add_u32 v28, v29, 1, v28
  s_lshl_b32 s42, s37, 4
  v_add_u32 v28, s42, v28
  s_mov_b32 s56, 0xf000f000
  s_mov_b32 s57, 0xf000f000
  v_mov_b32 v29, {WS_E}
  s_barrier                        ; barrier B
  s_barrier                        ; barrier C
  s_mov_b32 s33, 0
""")
if OPT['fdelay']:
    a(f"""L_fd:
  s_memrealtime s[60:61]
  s_waitcnt lgkmcnt(0)
  s_sub_u32 s62, s60, s64
  s_cmp_lt_u32 s62, {OPT['fdelay']}
  s_cbranch_scc1 L_fd""")
stamp(8)
if OPT['fgate'] == 2:
    a(f"""  s_mul_i32 s42, s28, {64*OPS}
  s_add_u32 s42, s42, {WS_OP}
  v_and_b32 v24, 31, {VL}
  v_mul_u32_u24 v24, {OPS}, v24
  v_add_u32 v24, s42, v24
L_fgate:
  global_load_dwordx4 v[32:35], v24, s[26:27] sc1
  s_waitcnt vmcnt(0)
""")
    check_regs("v14", [33, 35])
    poll_end("v14", "L_fgate", "L_fgate_ok")
if OPT['fgate'] == 1:
    a(f"""  s_mul_i32 s42, s28, {16*APS}
  v_add_u32 v24, s42, v30
L_fgate:
  global_load_dwordx4 v[32:35], v24, s[26:27] sc1
  s_waitcnt vmcnt(0)
""")
    check_regs("v14", [32, 34])
    poll_end("v14", "L_fgate", "L_fgate_ok")
NS = OPT['fsets']
def fbase(i): return 32 + 32*i
def fissue(i):
    for k in range(8):
        a(f"  global_load_dwordx4 v[{fbase(i)+4*k}:{fbase(i)+4*k+3}], v{16+k}, s[26:27] sc1")
for i in range(NS):
    fissue(i)
a("L_fpoll:")
for i in range(NS):
    a(f"  s_waitcnt vmcnt({8*(NS-1)})")
    check_regs("v14", [fbase(i)+4*k+q for k in range(8) for q in (0, 2)])
    a("  v_and_b32 v14, 0xff, v14")
    a("  v_cmp_ne_u32 vcc, 0, v14")
    a("  s_add_u32 s33, s33, 1")
    a(f"  s_cmp_gt_u32 s33, {OPT['spin']}")
    a(f"  s_cbranch_scc1 L_fok{i}")
    a(f"  s_cbranch_vccz L_fok{i}")
    if OPT['fsleep']:
        a(f"  s_sleep {OPT['fsleep']}")
    fissue(i)
a("  s_branch L_fpoll")
TB = 144
for i in range(NS):
    a(f"L_fok{i}:")
    for k in range(4):
        for h in range(2):
            x = fbase(i) + 8*k + 2*h
            a(f"  v_pk_add_f32 v[{TB+4*k+2*h}:{TB+4*k+2*h+1}], v[{x}:{x+1}], v[{x+4}:{x+5}]")
    if i < NS-1:
        a("  s_branch L_fsum")
a("L_fsum:")
stamp(9)
rec(12, "s33")
for h in range(2):
    a(f"  v_pk_add_f32 v[{TB+2*h}:{TB+2*h+1}], v[{TB+2*h}:{TB+2*h+1}], v[{TB+4+2*h}:{TB+5+2*h}]")
    a(f"  v_pk_add_f32 v[{TB+8+2*h}:{TB+9+2*h}], v[{TB+8+2*h}:{TB+9+2*h}], v[{TB+12+2*h}:{TB+13+2*h}]")
for h in range(2):
    a(f"  v_pk_add_f32 v[{160+2*h}:{161+2*h}], v[{TB+2*h}:{TB+2*h+1}], v[{TB+8+2*h}:{TB+9+2*h}]")
a(f"""  s_nop 1
  v_permlane16_swap_b32 v160, v161
  v_permlane16_swap_b32 v162, v163
  v_add_f32 v160, v160, v161
  v_add_f32 v162, v162, v163
  s_nop 1
  v_permlane32_swap_b32 v160, v162
  v_add_f32 v160, v160, v162
  s_nop 1
  v_add_f32_dpp v160, v160, v160 row_shr:4 row_mask:0xf bank_mask:0xf
  s_nop 1
  v_add_f32_dpp v160, v160, v160 row_shr:8 row_mask:0xf bank_mask:0xf
  s_mov_b64 exec, s[56:57]
  v_cvt_pk_bf16_f32 v160, v160, v160
  global_store_short v28, v160, s[22:23]{' ' + OPT['outflag'].replace('_', ' ') if OPT['outflag'] != 'none' else ''}
  s_cmp_lg_u32 s37, 0
  s_cbranch_scc1 L_noE
  s_mov_b64 exec, 1
  global_store_dword v29, {VTAU}, s[26:27]{' ' + OPT['outflag'].replace('_', ' ') if OPT['outflag'] != 'none' else ''}
L_noE:
  s_mov_b64 exec, -1
""")
if OPT['deadline']:
    a(f"""L_dl:
  s_memrealtime s[56:57]
  s_waitcnt lgkmcnt(0)
  s_sub_u32 s33, s56, s96
  s_cmp_lt_u32 s33, {OPT['deadline']}
  s_cbranch_scc1 L_dl""")
stamp(10, final=True)
if OPT['dbgts']:
    a("  s_waitcnt lgkmcnt(0)")
    a("  s_cmp_lg_u32 s37, 0")
    a("  s_cbranch_scc1 L_nodbg")
    a("  s_mov_b64 exec, 1")
    a("  v_mov_b32 v8, 0")
    for q in range(4):
        for r in range(4):
            k = 4*q + r
            a(f"  s_sub_u32 s33, s{64+2*k}, s64")
            a(f"  v_mov_b32 v{12+r}, s33")
        a(f"  global_store_dwordx4 v8, v[12:15], s[24:25] offset:{16*q}")
        a("  s_nop 1")
    a("L_nodbg:")
else:
    dump_stamps()
a("  s_endpgm")

a("L_aux_w:")
a(f"""  ; h gather set-up: lanes (kp = l>>3 (0..6), b = (l>>2)&1, q4 = l&3) ; HP + (kp*2+b)*7168 + (16u + 4*q4)*4
  s_lshl_b32 s38, s28, 4
  s_add_u32 s38, s38, s29          ; u = g*16 + j
  v_lshrrev_b32 v85, 3, {VL}
  v_bfe_u32 v86, {VL}, 2, 1
  v_lshl_add_u32 v85, v85, 1, v86
  v_mul_u32_u24 v85, 7168, v85
  v_and_b32 v87, 3, {VL}
  v_lshl_add_u32 v85, v87, 4, v85
  s_lshl_b32 s42, s38, 6
  s_add_u32 s42, s42, {WS_HP}
  v_add_u32 v85, s42, v85
  v_readlane_b32 s42, v82, 0
  v_readlane_b32 s43, v82, 1
  v_cmp_eq_u32 vcc, 0, v86
  s_nop 0
  v_mov_b32 v36, s43
  v_mov_b32 v37, s42
  v_cndmask_b32 v83, v36, v37, vcc
  v_lshlrev_b32 v84, 5, v86
  v_lshl_add_u32 v84, v87, 3, v84
  v_add_u32 v84, {HV}, v84          ; HV + b*32 + q4*8
""")
a(f"""  v_mov_b32 v32, 0
  v_mov_b32 v33, 0
  v_mov_b32 v34, 0
  v_mov_b32 v35, 0
  s_mov_b32 s56, -1
  s_mov_b32 s57, 0x00ffffff
  s_mov_b32 s33, 0
  s_setprio 3
""")
if OPT['a2'] and OPT['wpos'] == 'q':
    a("  s_barrier                        ; barrier A2")
a(f"""  s_cmp_ge_u32 s38, 112
  s_cbranch_scc1 L_hskip
  s_mov_b64 exec, s[56:57]
  global_load_dwordx4 v[32:35], v85, s[26:27] sc1
  s_mov_b64 exec, -1
L_hskip:
  s_barrier                        ; barrier B
""")
stamp(6)
a(f"""  s_cmp_ge_u32 s38, 112
  s_cbranch_scc1 L_hdone
  s_mov_b64 exec, s[56:57]
  s_waitcnt vmcnt(0)
  s_branch L_hchk
L_hpoll:
  global_load_dwordx4 v[32:35], v85, s[26:27] sc1
  s_waitcnt vmcnt(0)
L_hchk:
""")
check_regs("v40", range(32, 36))
poll_end("v40", "L_hpoll", "L_hok")
a("  s_mov_b64 exec, -1")
a("  s_nop 1")
for r in range(4):
    a(f"  v_add_f32_dpp v{32+r}, v{32+r}, v{32+r} row_ror:8 row_mask:0xf bank_mask:0xf")
for r in range(4):
    a(f"  v_mov_b32 v{36+r}, v{32+r}")
a("  s_nop 1")
for r in range(4):
    a(f"  v_permlane16_swap_b32 v{32+r}, v{36+r}")
for r in range(4):
    a(f"  v_add_f32 v{32+r}, v{32+r}, v{36+r}")
for r in range(4):
    a(f"  v_mov_b32 v{36+r}, v{32+r}")
a("  s_nop 1")
for r in range(4):
    a(f"  v_permlane32_swap_b32 v{32+r}, v{36+r}")
for r in range(4):
    a(f"  v_add_f32 v{32+r}, v{32+r}, v{36+r}")
a("L_hdone:")
for r in range(4):
    a(f"  v_max_f32 v{32+r}, 0, v{32+r}")
    a(f"  v_mul_f32 v{32+r}, v{32+r}, v83")
a(f"""  v_cvt_pk_bf16_f32 v32, v32, v33
  v_cvt_pk_bf16_f32 v33, v34, v35
  s_mov_b64 exec, 0xff
  ds_write_b64 v84, v[32:33]
  s_mov_b64 exec, -1
  s_waitcnt lgkmcnt(0)
""")
stamp(7)
a("  s_barrier                        ; barrier D1")
dump_stamps()
a("L_end:")
a("  s_endpgm")
a("L_code_end:")
a(footer(vgpr=232, sgpr=100))
open(sys.argv[1], "w").write(a.text())
```

```python
import sys
from asmlib import *

OPT = dict(stamp=0, spin=400000, nt=1, qwait=3, sleep=0, fsleep=0, fast=1, tlb=0, prefetch=1,
           ops=2176, aps=3712, deadline=0, dbgts=0, wpos='q', a2=1, opre=2, fsets=1, outflag='sc1', apack=0, fdelay=0, appad=1, early=0, probe1=0, amp=-1, ampa=0, ampf=10, ampwg=37, ampwave=1, fgate=2, ffn_early=1, oflag='sc1', opos=0)
for a_ in sys.argv[2:]:
    k, v = a_.split('=')
    assert k in OPT, k
    OPT[k] = int(v) if v.lstrip('-').isdigit() else v
STAMP = OPT['stamp']
OPS = OPT['ops']; APS = 7296 if OPT['appad'] else OPT['aps']

WS_E = 0
WS_XID = 0x400
WS_QP = 0x1000
WS_HP = 0x21000
WS_OP = 0x40000
WS_AP = 0x180000
WS_TS = 0x300000
assert WS_HP + 7*2*7168 <= WS_OP and WS_OP + 512*OPS <= WS_AP and WS_AP + 128*APS <= WS_TS

KBUF = 0
VBUF = 32768
RA = 65536
RB = 94208
RC = 108544
XB = 116736
QB = 118784
OV = 119936
HV = 120064
GT = 120128
LDS_BYTES = 120320

C_LOG2E_16 = 0x3DB8AA3B
NT = " nt" if OPT['nt'] else ""
VTAU = "v4"
VL = "v5"

a = Asm()
def stamp(k, final=False):
    if STAMP == 1 or (STAMP == 2 and (k == 0 or final)) or (STAMP == 3 and k in (0, OPT['amp'], OPT['ampa'])):
        a(f"  s_memrealtime s[{64+2*k}:{65+2*k}]")
def rec(k, sreg):
    if STAMP == 1:
        a(f"  s_mov_b32 s{64+2*k}, {sreg}")

def srd(dst, ptr, size):
    a(f"  s_mov_b32 s{dst}, s{ptr}")
    a(f"  s_mov_b32 s{dst+1}, s{ptr+1}")
    a(f"  s_mov_b32 s{dst+2}, {size}")
    a(f"  s_mov_b32 s{dst+3}, 0x20000")

def dma(voff, srdreg, soff):
    a(f"  buffer_load_dwordx4 {voff}, s[{srdreg}:{srdreg+3}], {soff} offen{NT} lds")

def tagit(dst, src):
    a(f"  v_bfi_b32 {dst}, s32, {VTAU}, {src}")

def check_regs(acc, regs, first=True):
    regs = list(regs)
    for r in regs:
        a(f"  v_xor_b32 v{r}, s31, v{r}")
    if first:
        if len(regs) >= 3:
            a(f"  v_or3_b32 {acc}, v{regs[0]}, v{regs[1]}, v{regs[2]}"); regs = regs[3:]
        else:
            a(f"  v_or_b32 {acc}, v{regs[0]}, v{regs[1]}"); regs = regs[2:]
    while len(regs) >= 2:
        a(f"  v_or3_b32 {acc}, {acc}, v{regs[0]}, v{regs[1]}"); regs = regs[2:]
    if regs:
        a(f"  v_or_b32 {acc}, {acc}, v{regs[0]}")

def poll_end(acc, lab_retry, lab_ok, cnt="s33", sleep=None, masked=False):
    sleep = OPT['sleep'] if sleep is None else sleep
    if not masked:
        a(f"  v_and_b32 {acc}, 0xff, {acc}")
    a(f"  v_cmp_ne_u32 vcc, 0, {acc}")
    a(f"  s_add_u32 {cnt}, {cnt}, 1")
    a(f"  s_cmp_gt_u32 {cnt}, {OPT['spin']}")
    a(f"  s_cbranch_scc1 {lab_ok}")
    if sleep:
        a(f"  s_cbranch_vccz {lab_ok}")
        a(f"  s_sleep {sleep}")
        a(f"  s_branch {lab_retry}")
    else:
        a(f"  s_cbranch_vccnz {lab_retry}")
    a(f"{lab_ok}:")

def dump_stamps():
    if STAMP == 3:
        lab = a.label("L_amp")
        k = OPT['amp']
        a(f"""  s_cmp_lg_u32 s2, {OPT['ampwg']}
  s_cbranch_scc1 {lab}_x
  s_cmp_lg_u32 s30, {OPT['ampwave']}
  s_cbranch_scc1 {lab}_x
  s_waitcnt lgkmcnt(0)
  s_sub_u32 s33, s{64+2*k}, s{64+2*OPT['ampa']}
  s_mul_i32 s33, s33, {OPT['ampf']}
  s_add_u32 s33, s33, 1200
{lab}:
  s_memrealtime s[56:57]
  s_waitcnt lgkmcnt(0)
  s_sub_u32 s56, s56, s64
  s_cmp_lt_u32 s56, s33
  s_cbranch_scc1 {lab}
{lab}_x:""")
        return
    if not STAMP or OPT['dbgts']:
        return
    a("  s_waitcnt lgkmcnt(0)")
    a("  s_mul_i32 s33, s2, 5")
    a("  s_add_u32 s33, s33, s30")
    a("  s_lshl_b32 s33, s33, 6")
    a(f"  s_add_u32 s33, s33, {WS_TS}")
    a("  v_mov_b32 v8, s33")
    a("  s_mov_b64 exec, 1")
    for q in range(4):
        for r in range(4):
            a(f"  v_mov_b32 v{12+r}, s{64+2*(4*q+r)}")
        a(f"  global_store_dwordx4 v8, v[12:15], s[26:27] offset:{16*q}")
        a("  s_nop 1")

def tau_setup():
    a("  s_and_b32 s31, s31, 0xff")
    a("  s_mul_i32 s31, s31, 5")
    a("  s_add_u32 s31, s31, 59")
    a("  s_and_b32 s31, s31, 0xff")
    a(f"  v_mov_b32 {VTAU}, s31")

def xid_value(dst):
    a(f"  s_getreg_b32 {dst}, hwreg(HW_REG_XCC_ID, 0, 4)")
    a(f"  s_lshl_b32 {dst}, {dst}, 24")
    a(f"  s_mul_i32 s33, s31, 0x010101")
    a(f"  s_or_b32 {dst}, {dst}, s33")

def tr_lane_setup():
    a(f"""  v_bfe_u32 v14, {VL}, 2, 2        ; r4
  v_lshl_add_u32 v15, v13, 2, v14  ; row = 4*g4+r4
  v_bfe_u32 v16, v15, 1, 2         ; f
  v_and_b32 v17, 3, {VL}           ; c
  v_lshlrev_b32 v15, 7, v15
  v_lshl_add_u32 v15, v17, 3, v15  ; row*128 + c*8""")

def h_unit_index(dst):
    a(f"""  s_lshl_b32 {dst}, s28, 4
  s_add_u32 {dst}, {dst}, s29
  s_sub_u32 {dst}, {dst}, 16       ; P: g*16 + p
  s_lshl_b32 s33, s29, 3
  s_add_u32 s33, s33, s28
  s_add_u32 s33, s33, 128          ; W: 128 + i*8 + g
  s_cmp_lt_u32 s29, 16
  s_cselect_b32 {dst}, s33, {dst}""")

a(header(256, 320, LDS_BYTES))
stamp(0)
if OPT['deadline'] or OPT['probe1']:
    a("  s_memrealtime s[96:97]")
a(f"""  s_load_dwordx16 s[4:19], s[0:1], 0
  s_load_dwordx8 s[20:27], s[0:1], 64
  s_getpc_b64 s[34:35]
L_pc:
  v_lshlrev_b32 v1, {5 if OPT['prefetch'] else 0}, v0
  v_min_u32 v1, {"L_code_end - L_pc - 4" if OPT['prefetch'] else 0}, v1
  s_cmpk_ge_u32 s2, 0x100
  s_cbranch_scc1 L_end
  global_load_dword v3, v1, s[34:35]
  v_lshrrev_b32 v2, 6, v0
  v_and_b32 {VL}, 63, v0
  v_readfirstlane_b32 s30, v2
  v_lshrrev_b32 v8, 3, {VL}
  v_bfe_u32 v9, {VL}, 4, 2         ; (row>>1)&3
  v_and_b32 v10, 7, {VL}
  v_lshlrev_b32 v11, 1, v9
  v_xor_b32 v11, v11, v10
  v_lshlrev_b32 v11, 4, v11        ; *16 bytes
  v_lshl_add_u32 v18, v8, 13, v11
  s_and_b32 s28, s2, 7             ; g
  s_cmp_eq_u32 s30, 0
  s_cbranch_scc1 L_aux0
  s_lshr_b32 s42, s2, 6            ; kp
  s_mul_i32 s42, s42, {112*8192}
  s_lshl_b32 s43, s28, 10
  s_add_u32 s42, s42, s43
  s_bfe_u32 s43, s2, 0x30003       ; j&7
  s_lshl_b32 s43, s43, 7
  s_add_u32 s42, s42, s43
  s_sub_u32 s36, s30, 1            ; v
  s_lshl_b32 s43, s36, 16          ; v*8*8192
  s_add_u32 s42, s42, s43
  v_add_u32 v18, s42, v18
  s_lshl_b32 s43, s36, 10
  s_add_u32 m0, s43, {RA}
  s_lshl_b32 s44, 1, 18
  s_movk_i32 s45, 0x1000
  s_waitcnt lgkmcnt(0)
  global_load_lds_dwordx4 v18, s[10:11]{NT}
  s_add_u32 m0, m0, s45
  v_add_u32 v18, s44, v18
  global_load_lds_dwordx4 v18, s[10:11]{NT}
  s_add_u32 m0, m0, s45
  v_add_u32 v18, s44, v18
  global_load_lds_dwordx4 v18, s[10:11]{NT}
  s_cmp_ge_u32 s36, 2
  s_cbranch_scc1 L_wq_done
  s_add_u32 m0, m0, s45
  v_add_u32 v18, s44, v18
  global_load_lds_dwordx4 v18, s[10:11]{NT}
""")
a("L_wq_done:")
if OPT['probe1']:
    a(f"""L_pr1:
  s_memrealtime s[56:57]
  s_waitcnt lgkmcnt(0)
  s_sub_u32 s33, s56, s96
  s_cmp_lt_u32 s33, {OPT['probe1']}
  s_cbranch_scc1 L_pr1""")
if STAMP in (1, 2):
    for k in range(1, 16):
        a(f"  s_mov_b32 s{64+2*k}, 0")
if STAMP == 3: stamp(15)
a(f"""  s_load_dword s31, s[26:27], {WS_E}
  s_lshr_b32 s29, s2, 3            ; j
  s_mov_b32 s32, 0xff
  v_lshrrev_b32 v13, 4, {VL}       ; g4
  s_and_b32 s37, s36, 1            ; kh
  s_lshr_b32 s38, s36, 1           ; dh""")
stamp(1)
h_unit_index("s45")
a(f"""  s_mul_i32 s46, s45, 9363
  s_lshr_b32 s46, s46, 16          ; cbh = u1/7
  s_mul_i32 s47, s46, 7
  s_sub_u32 s47, s45, s47          ; kp = u1%7
  s_min_u32 s46, s46, 27
  s_lshl_b32 s46, s46, 7
  s_mul_i32 s47, s47, {64*3584}
  s_add_u32 s46, s46, s47
  s_mul_i32 s47, s36, {8*3584}
  s_add_u32 s46, s46, s47
  s_cmp_lt_u32 s45, 196
  s_cselect_b32 s45, 0, 0x40000000
  v_mul_u32_u24 v18, 3584, v8
  v_add3_u32 v18, v18, v11, s45
  s_lshl_b32 s47, s36, 10
  s_add_u32 s47, s47, {RC}
""")
srd(52, 16, SZ['w1'])
for k in range(2):
    a(f"  s_add_u32 m0, s47, {k*4096}")
    a(f"  s_add_u32 s45, s46, {k*4*8*3584}")
    dma("v18", 52, "s45")
a(f"""  v_xor_b32 v12, v9, v10
  v_lshlrev_b32 v12, 4, v12
  s_and_b32 s39, s29, 1            ; b
  s_lshr_b32 s40, s29, 1           ; s (0..15)
  s_lshl_b32 s41, s39, 3
  s_add_u32 s41, s41, s28          ; b*8+g
  s_lshl_b32 s41, s41, 21          ; *4096*512
  s_lshl_b32 s42, s40, 15          ; s*64*512
  s_add_u32 s41, s41, s42
  s_lshl_b32 s42, s37, 14          ; kh*32*512
  s_add_u32 s41, s41, s42
  s_lshl_b32 s42, s38, 8           ; dh*256
  s_add_u32 s41, s41, s42
  s_add_u32 s41, s41, {3072*512}
  s_lshl_b32 s43, s38, 14
  s_lshl_b32 s42, s37, 12
  s_add_u32 s43, s43, s42
  v_lshlrev_b32 v18, 9, v8         ; row*512
  v_add_u32 v19, v18, v12
  v_xor_b32 v20, 64, v19
  v_add_u32 v21, v18, v11          ; V voffset
""")
srd(44, 6, SZ['k'])
srd(48, 8, SZ['v'])
for c2 in range(2):
    for jj in range(4):
        a(f"  s_add_u32 m0, s43, {KBUF + c2*8192 + jj*1024}")
        a(f"  s_add_u32 s42, s41, {c2*128 + jj*4096}")
        dma("v20" if jj & 1 else "v19", 44, "s42")
tr_lane_setup()
a(f"""  ; q projection tile nb = v : addresses
  v_xor_b32 v24, s36, v16
  v_lshl_add_u32 v24, v24, 5, v15
  v_add_u32 v24, {RA}, v24
  v_and_b32 v25, 1, {VL}
  v_mul_u32_u24 v25, 896, v25
  v_lshl_add_u32 v25, v13, 3, v25
  s_lshr_b32 s42, s29, 3           ; kp
  s_mul_i32 s45, s42, 224
  s_add_u32 s45, s45, {XB}
  v_add_u32 v25, s45, v25
  s_lshl_b32 s45, s28, 14
  s_lshl_b32 s42, s42, 12
  s_add_u32 s45, s45, s42
  s_and_b32 s42, s29, 7
  s_lshl_b32 s42, s42, 8
  s_add_u32 s45, s45, s42
  s_lshl_b32 s42, s36, 6
  s_add_u32 s45, s45, s42
  s_add_u32 s45, s45, {WS_QP}
  v_lshlrev_b32 v26, 2, {VL}
  v_add_u32 v26, s45, v26
""")
a("  s_waitcnt lgkmcnt(0)")
tau_setup()
a("  s_waitcnt vmcnt(10)")
a("  s_barrier")
for st in range(3):
    a(f"  ds_read2_b64 v[{32+4*st}:{35+4*st}], v25 offset0:{8*st} offset1:{8*st+4}")
    a(f"  ds_read_b64_tr_b16 v[{48+4*st}:{49+4*st}], v24 offset:{st*4096}")
    a(f"  ds_read_b64_tr_b16 v[{50+4*st}:{51+4*st}], v24 offset:{st*4096+2048}")
a(f"  ds_read_b64 v[44:45], v25 offset:192")
a(f"  ds_read_b64_tr_b16 v[60:61], v24 offset:{3*4096}")
for st in range(3):
    a(f"  s_waitcnt lgkmcnt({8 - 3*st})")
    c = "0" if st == 0 else "v[64:67]"
    a(f"  v_mfma_f32_16x16x32_bf16 v[64:67], v[{32+4*st}:{35+4*st}], v[{48+4*st}:{51+4*st}], {c}")
a("  s_waitcnt lgkmcnt(0)")
a("  v_mfma_f32_16x16x16_bf16 v[68:71], v[44:45], v[60:61], 0")
a("  s_mov_b64 exec, 0xffff")
a("  s_nop 6")
a("  v_add_f32 v64, v64, v68")
a("  v_add_f32 v65, v65, v69")
tagit("v64", "v64")
tagit("v65", "v65")
a(f"""  global_store_dword v26, v64, s[26:27] sc1
  global_store_dword v26, v65, s[26:27] offset:2048 sc1
  s_mov_b64 exec, -1
""")
stamp(14)
a("  s_waitcnt vmcnt(10)")
a("  s_barrier")
for c2 in range(2):
    for jj in range(4):
        a(f"  s_add_u32 m0, s43, {VBUF + c2*8192 + jj*1024}")
        a(f"  s_add_u32 s42, s41, {c2*128 + jj*4096}")
        dma("v21", 48, "s42")
stamp(2)
a(f"""  ; K operand address: key*128 + (g4 ^ ((key>>1)&7))*16 + kh*4096
  v_and_b32 v22, 15, {VL}
  v_bfe_u32 v23, {VL}, 1, 3
  v_xor_b32 v23, v23, v13
  v_lshlrev_b32 v23, 4, v23
  v_lshl_add_u32 v22, v22, 7, v23
  s_lshl_b32 s42, s37, 12
  v_add_u32 v22, s42, v22
  v_xor_b32 v23, 64, v22
  s_add_u32 s42, s43, {VBUF}
""")
for nb in range(4):
    a(f"  v_xor_b32 v{24+nb}, {nb}, v16")
    a(f"  v_lshl_add_u32 v{24+nb}, v{24+nb}, 5, v15")
    a(f"  v_add_u32 v{24+nb}, s42, v{24+nb}")
a(f"""  ; q operand address: QB + (l&1)*576 + g4*16
  v_and_b32 v28, 1, {VL}
  v_mul_u32_u24 v28, 576, v28
  v_lshl_add_u32 v28, v13, 4, v28
  v_add_u32 v28, {QB}, v28
  s_lshl_b32 s42, s28, 14
  s_lshl_b32 s45, s39, 11
  s_add_u32 s42, s42, s45
  s_lshl_b32 s45, s37, 10
  s_add_u32 s42, s42, s45
  s_lshl_b32 s45, s38, 9
  s_add_u32 s42, s42, s45
  s_add_u32 s42, s42, {WS_QP}
  v_lshrrev_b32 v29, 5, {VL}       ; kpl
  v_and_b32 v30, 31, {VL}          ; c
  v_lshlrev_b32 v31, 12, v29
  v_lshl_add_u32 v31, v30, 4, v31
  v_add_u32 v51, s42, v31
  v_add_u32 v52, 8192, v51
  s_lshl_b32 s42, s28, 7
  s_add_u32 s42, s42, {WS_XID}
  v_lshl_add_u32 v50, v30, 2, s42
  s_mul_i32 s42, s37, 576
  s_lshl_b32 s45, s38, 8
  s_add_u32 s42, s42, s45
  s_add_u32 s42, s42, {QB}
  v_lshlrev_b32 v30, 3, v30
  v_lshl_add_u32 v30, v29, 2, v30
  v_add_u32 v53, s42, v30
  s_lshl_b32 s42, s28, 1
  s_add_u32 s42, s42, s39
  s_lshl_b32 s42, s42, 5
  s_lshl_b32 s45, s40, 1
  s_add_u32 s42, s42, s45
  s_add_u32 s42, s42, s37
  s_mul_i32 s42, s42, {OPS}
  s_lshl_b32 s45, s38, 10
  s_add_u32 s42, s42, s45
  s_add_u32 s42, s42, {WS_OP}
  v_lshlrev_b32 v54, 3, {VL}
  v_add_u32 v54, s42, v54
  v_and_b32 v228, 7, {VL}
  v_lshlrev_b32 v228, 7, v228
  v_add_u32 v228, s42, v228
  s_lshl_b32 s42, s28, 1
  s_add_u32 s42, s42, s38
  s_mul_i32 s33, s42, {32*OPS}
  s_lshl_b32 s56, s29, 7
  s_add_u32 s33, s33, s56
  s_lshl_b32 s56, s37, 6
  s_add_u32 s33, s33, s56
  s_add_u32 s33, s33, {WS_OP}
  v_lshrrev_b32 v6, 2, {VL}       ; s16
  v_mul_u32_u24 v7, {OPS}, v6
  v_and_b32 v62, 3, {VL}
  v_lshl_add_u32 v7, v62, 4, v7
  v_add_u32 v62, s33, v7
  v_add_u32 v63, {16*OPS}, v62        ; s16+16
  v_mov_b32 v46, 0x3f803f80
  v_mov_b32 v47, 0x3f803f80
  v_mov_b32 v48, 0x3f803f80
  v_mov_b32 v49, 0x3f803f80
  v_and_b32 v55, 1, {VL}
  v_cmp_eq_u32 s[58:59], 1, v55
""")
xid_value("s34")
a("  s_mov_b32 s35, 0xffffff")
a("  s_waitcnt vmcnt(8)")
stamp(3)
a("  s_barrier")
for tt in range(2):
    for t in range(8):
        r = 64 + (tt*8 + t)*4
        a(f"  ds_read_b128 v[{r}:{r+3}], v{23 if t & 1 else 22} offset:{KBUF + (t>>1)*8192 + tt*2048}")

def w_weight_setup():
    srd(44, 12, SZ['wo'])
    srd(52, 18, SZ['w2'])
    a(f"""  s_lshl_b32 s42, s28, 9
  s_lshl_b32 s61, s29, 4
  s_add_u32 s42, s42, s61          ; g*512 + 16j
  s_lshl_b32 s61, s38, 8
  s_add_u32 s42, s42, s61          ; + h*256
  s_lshl_b32 s61, s37, 3
  s_add_u32 s42, s42, s61          ; + half*8
  s_mul_i32 s61, s42, 896
  s_lshl_b32 s60, s36, 10
  s_add_u32 s60, s60, {RA}
  v_mul_u32_u24 v19, 896, v8
  v_add_u32 v19, v19, v11
  s_lshl_b32 s33, s28, 4
  s_add_u32 s33, s33, s29          ; u
  s_min_u32 s42, s33, 111
  s_lshl_b32 s42, s42, 4
  s_lshl_b32 s62, s37, 3
  s_add_u32 s42, s42, s62          ; 16u + q*8   (q = v&1)
  s_mul_i32 s42, s42, 896
  s_lshl_b32 s62, s38, 7
  s_add_u32 s62, s42, s62          ; + (v>>1)*128
  s_cmp_lt_u32 s33, 112
  s_cselect_b32 s33, 0, 0x40000000
  v_add_u32 v20, s33, v19
  s_lshl_b32 s63, s38, 11
  s_lshl_b32 s33, s37, 10
  s_add_u32 s63, s63, s33
  s_add_u32 s63, s63, {RB}         ; RB + (v>>1)*2048 + q*1024
""")

def w_weight_loads(tagname):
    for cb in range(7):
        a(f"  s_add_u32 m0, s60, {cb*4096}")
        a(f"  s_add_u32 s33, s61, {cb*128}")
        dma("v19", 44, "s33")
    for k in range(4):
        if k == 3:
            a("  s_cmp_lg_u32 s38, 0")
            a(f"  s_cbranch_scc1 L_w2_done{tagname}")
        a(f"  s_add_u32 m0, s63, {k*4096}")
        a(f"  s_add_u32 s33, s62, {k*256}")
        dma("v20", 52, "s33")
    a(f"L_w2_done{tagname}:")

def own_pretouch():
    fl = OPT['oflag'].replace('_', ' ') if OPT['oflag'] != 'none' else ''
    a("  s_mov_b64 exec, 0xff")
    a(f"  global_load_dword v2, v228, s[26:27] {fl}")
    a("  s_mov_b64 exec, -1")

def q_loads():
    a("  global_load_dwordx4 v[32:35], v51, s[26:27] sc1")
    a("  global_load_dwordx4 v[36:39], v52, s[26:27] sc1")
    a("  global_load_dword v41, v50, s[26:27] sc1")

a("  s_cmp_lt_u32 s29, 16")
a("  s_cbranch_scc0 L_q_p")
w_weight_setup()
if OPT['wpos'] == 'first':
    pass
if OPT['wpos'] == 'q':
    a(f"  s_waitcnt vmcnt({OPT['qwait']})")
    stamp(4)
    q_loads()
    if OPT['opre'] == 2 and OPT['opos'] == 1:
        own_pretouch()
    if OPT['a2']:
        a("  s_barrier")
    w_weight_loads("a")
    if OPT['opre'] == 1:
        fl = OPT['oflag'].replace('_', ' ') if OPT['oflag'] != 'none' else ''
        a(f"  global_load_dword v2, v62, s[26:27] {fl}")
        a(f"  global_load_dword v3, v63, s[26:27] {fl}")
    if OPT['opre'] == 2 and OPT['opos'] == 0:
        own_pretouch()
    a("  s_mov_b32 s33, 0")
    NY = {0: 10, 1: 12, 2: 11}[OPT['opre']]
    a("  s_cmp_lg_u32 s38, 0")
    a("  s_cbranch_scc1 L_qw10")
    a(f"  s_waitcnt vmcnt({NY+1})")
    a("  s_branch L_qchk")
    a("L_qw10:")
    a(f"  s_waitcnt vmcnt({NY})")
    a("  s_branch L_qchk")
a(f"""L_q_p:
  s_mov_b32 s33, 0
  s_waitcnt vmcnt({OPT['qwait']})
""")
stamp(4)
if OPT['opre'] == 2:
    q_loads()
    own_pretouch()
    a("  s_waitcnt vmcnt(1)")
    a("  s_branch L_qchk")
a("L_qpoll:")
q_loads()
a("  s_waitcnt vmcnt(0)")
a("L_qchk:")
check_regs("v40", range(32, 40))
a("  v_xor_b32 v41, s34, v41")
a("  v_and_b32 v40, 0xff, v40")
a("  v_and_or_b32 v40, v41, s35, v40")
poll_end("v40", "L_qpoll", "L_qok", masked=True)
stamp(5)
rec(13, "s33")
if OPT['wpos'] == 'mid':
    a("  s_cmp_lt_u32 s29, 16")
    a("  s_cbranch_scc0 L_nomid")
    w_weight_loads("m")
    a("L_nomid:")
a(f"""  v_add_f32 v32, v32, v36
  v_add_f32 v33, v33, v37
  v_add_f32 v34, v34, v38
  v_add_f32 v35, v35, v39
  v_cmp_ne_u32 vcc, 0, v41
  s_nop 0
  v_permlane32_swap_b32 v32, v34
  v_permlane32_swap_b32 v33, v35
  v_add_f32 v32, v32, v34
  v_add_f32 v33, v33, v35
  v_cvt_pk_bf16_f32 v32, v32, v33
  ds_write_b32 v53, v32
  s_cmp_eq_u64 vcc, 0
  s_cselect_b32 s35, {1 if OPT['fast'] else 0}, 0
  s_waitcnt lgkmcnt(0)
  s_barrier
""")
stamp(6)
for t in range(8):
    a(f"  ds_read_b128 v[{128+4*t}:{131+4*t}], v28 offset:{64*t}")
a(f"  s_mov_b32 s42, {C_LOG2E_16:#x}")
def v_read(i):
    nbk, hf = i >> 1, i & 1
    r = 160 + 4*nbk + 2*hf
    a(f"  ds_read_b64_tr_b16 v[{r}:{r+1}], v{24 + (nbk & 3)} offset:{(nbk >> 2)*8192 + hf*2048}")
for t in range(8):
    a(f"  s_waitcnt lgkmcnt({7 + t})")
    for tt in range(2):
        kr = 64 + (tt*8 + t)*4
        c = "0" if t == 0 else f"v[{32+4*tt}:{35+4*tt}]"
        a(f"  v_mfma_f32_16x16x32_bf16 v[{32+4*tt}:{35+4*tt}], v[{kr}:{kr+3}], v[{128+4*t}:{131+4*t}], {c}")
        v_read(2*t + tt)
a(f"""  s_nop 5
  v_max3_f32 v44, v32, v33, v34
  v_max3_f32 v45, v36, v37, v38
  v_max3_f32 v44, v44, v35, v39
  v_max_f32 v44, v44, v45
  v_mov_b32 v45, v44
  s_nop 1
  v_permlane16_swap_b32 v44, v45
  v_max_f32 v44, v44, v45
  v_mov_b32 v45, v44
  s_nop 1
  v_permlane32_swap_b32 v44, v45
  v_max_f32 v44, v44, v45
  v_mul_f32 v44, s42, v44
""")
for r in range(8):
    a(f"  v_fma_f32 v{32+r}, v{32+r}, s42, -v44")
for r in range(8):
    a(f"  v_exp_f32 v{32+r}, v{32+r}")
a("  s_nop 0")
for r in range(4):
    a(f"  v_cvt_pk_bf16_f32 v{40+r}, v{32+2*r}, v{33+2*r}")
a("  s_waitcnt lgkmcnt(0)             ; V operands")
a("  s_nop 0")
a("  v_mfma_f32_16x16x32_bf16 v[224:227], v[40:43], v[46:49], 0")
for nbk in range(8):
    a(f"  v_mfma_f32_16x16x32_bf16 v[{192+4*nbk}:{195+4*nbk}], v[40:43], v[{160+4*nbk}:{163+4*nbk}], 0")
a(f"""  v_cndmask_b32 v45, v224, v225, s[58:59]
  v_rcp_f32 v56, v224
  v_rcp_f32 v57, v225
  v_log_f32 v45, v45
  s_cmp_eq_u32 s35, 1
  v_add_f32 v45, v45, v44
""")
tagit("v59", "v45")
a("  v_mov_b32 v61, v59")
for q in range(2):
    for h in range(2):
        for k in range(4):
            a(f"  v_mul_f32_dpp v{32+2*q+h}, v{192+4*(4*q+k)+h}, v{56+h} quad_perm:[0,1,2,3] row_mask:{1<<k:#x} bank_mask:0xf")
    a(f"  v_cvt_pk_bf16_f32 v{58+2*q}, v{32+2*q}, v{33+2*q}")
a(f"""  s_cbranch_scc1 L_pub_local
  global_store_dwordx2 v54, v[58:59], s[26:27] sc1
  global_store_dwordx2 v54, v[60:61], s[26:27] offset:512 sc1
  s_branch L_pub_done
L_pub_local:                       ; every reader shares this die's L2
  global_store_dwordx2 v54, v[58:59], s[26:27]
  global_store_dwordx2 v54, v[60:61], s[26:27] offset:512
L_pub_done:
""")
stamp(7)
a("  s_cmp_lt_u32 s29, 16")
a("  s_cbranch_scc1 L_wstage")
a("  s_barrier")
dump_stamps()
a("  s_endpgm")

a("L_wstage:")
if OPT['wpos'] == 'late':
    w_weight_loads("l")
a(f"""  v_xor_b32 v24, s36, v16
  v_lshl_add_u32 v24, v24, 5, v15
  v_add_u32 v25, {RB}, v24
  v_add_u32 v24, {RA}, v24
  v_and_b32 v26, 1, {VL}
  v_lshlrev_b32 v27, 5, v26
  v_lshl_add_u32 v27, v13, 3, v27
  v_add_u32 v27, {HV}, v27
  v_lshlrev_b32 v28, 6, v26
  v_lshl_add_u32 v28, v13, 3, v28
  v_add_u32 v28, {OV}, v28
  v_and_b32 v54, 3, {VL}
  v_lshlrev_b32 v54, 2, v54
  v_and_b32 v55, 1, v13
  v_lshl_add_u32 v54, v55, 5, v54
  v_lshrrev_b32 v55, 1, v13
  v_lshl_add_u32 v54, v55, 1, v54
  s_lshl_b32 s42, s38, 6
  s_lshl_b32 s45, s37, 4
  s_add_u32 s42, s42, s45
  s_add_u32 s42, s42, {OV}
  v_add_u32 v54, s42, v54
  s_lshl_b32 s42, s28, 4
  s_add_u32 s42, s42, s29
  s_mul_i32 s42, s42, {APS}
  s_lshl_b32 s45, s36, {8 if OPT['appad'] else 7}
  s_add_u32 s42, s42, s45
  s_add_u32 s42, s42, {WS_AP}
  v_lshlrev_b32 v55, 3, {VL}
  v_add_u32 v55, s42, v55
  v_and_b32 v56, 7, {VL}
  v_lshlrev_b32 v56, 3, v56
  v_bfe_u32 v57, {VL}, 3, 1
  v_lshl_add_u32 v56, v57, 7, v56
  v_lshl_add_u32 v56, v13, 10, v56
  v_add_u32 v56, s42, v56
  v_add_u32 v57, 4096, v56
  s_lshl_b32 s42, s38, 2
  s_add_u32 s42, s42, {GT}
  v_mov_b32 v29, s42
  ds_read_b32 v50, v29
  s_mov_b32 s56, 0xf000f000
  s_mov_b32 s57, 0xf000f000
  s_mov_b32 s33, 0
  s_waitcnt vmcnt(0) lgkmcnt(0)
""")
if OPT['early']:
    a("""  global_load_dwordx4 v[32:35], v62, s[26:27] sc1
  global_load_dwordx4 v[36:39], v63, s[26:27] sc1""")
a("  s_barrier")
stamp(8)
if not OPT['early']:
    a("""  global_load_dwordx4 v[32:35], v62, s[26:27] sc1
  global_load_dwordx4 v[36:39], v63, s[26:27] sc1""")
if OPT['ffn_early']:
    a("  ds_read_b64 v[106:107], v27")
    for cb in range(7):
        a(f"  ds_read_b64_tr_b16 v[{92+2*cb}:{93+2*cb}], v25 offset:{cb*2048}")
    a("  s_waitcnt lgkmcnt(0)")
    for cb in range(7):
        a(f"  v_mfma_f32_16x16x16_bf16 v[{110+4*cb}:{113+4*cb}], v[106:107], v[{92+2*cb}:{93+2*cb}], 0")
a("  s_waitcnt vmcnt(0)")
a("  s_branch L_ochk")
a(f"""L_opoll:
  global_load_dwordx4 v[32:35], v62, s[26:27] sc1
  global_load_dwordx4 v[36:39], v63, s[26:27] sc1
  s_waitcnt vmcnt(0)
L_ochk:
""")
check_regs("v48", [33, 35, 37, 39])
poll_end("v48", "L_opoll", "L_ook")
stamp(9)
rec(12, "s33")
CHAIN = """  v_max_f32 v52, v33, v37
  v_max_f32 v53, v35, v39
  v_lshlrev_b32 v40, 16, v32       ; A: d0h0
  v_and_b32 v41, 0xffff0000, v32   ;    d0h1
  v_permlane16_swap_b32 v52, v53
  v_lshlrev_b32 v42, 16, v34       ;    d1h0
  v_and_b32 v43, 0xffff0000, v34   ;    d1h1
  v_max_f32 v52, v52, v53          ; rows: h0(01) h1(01) h0(23) h1(23)
  v_mov_b32 v53, v52
  v_lshlrev_b32 v44, 16, v36       ; B
  v_and_b32 v45, 0xffff0000, v36
  v_permlane32_swap_b32 v52, v53
  v_max_f32 v52, v52, v53
  v_lshlrev_b32 v46, 16, v38
  v_and_b32 v47, 0xffff0000, v38
  v_max_f32_dpp v52, v52, v52 row_shr:4 row_mask:0xf bank_mask:0xf
  SLOT
  SLOT
  v_max_f32_dpp v52, v52, v52 row_shr:8 row_mask:0xf bank_mask:0xf
  SLOT
  v_readlane_b32 s42, v52, 15
  v_readlane_b32 s45, v52, 31
  SLOT
  SLOT
  v_subrev_f32 v33, s42, v33
  v_subrev_f32 v37, s42, v37
  v_subrev_f32 v35, s45, v35
  v_subrev_f32 v39, s45, v39
  v_exp_f32 v33, v33               ; w A h0
  v_exp_f32 v37, v37               ; w B h0
  v_exp_f32 v35, v35               ; w A h1
  v_exp_f32 v39, v39               ; w B h1
  SLOT
  v_mul_f32 v40, v40, v33
  v_mul_f32 v41, v41, v35
  v_mul_f32 v42, v42, v33
  v_mul_f32 v43, v43, v35
  v_fmac_f32 v40, v44, v37
  v_fmac_f32 v41, v45, v39
  v_fmac_f32 v42, v46, v37
  v_fmac_f32 v43, v47, v39
  v_add_f32 v52, v33, v37          ; den h0
  v_add_f32 v53, v35, v39          ; den h1
  SLOT
  v_permlane16_swap_b32 v40, v41
  v_permlane16_swap_b32 v42, v43
  v_permlane16_swap_b32 v52, v53
  v_add_f32 v40, v40, v41
  v_add_f32 v42, v42, v43
  v_add_f32 v52, v52, v53
  v_mov_b32 v53, v52
  SLOT
  SLOT
  v_permlane32_swap_b32 v40, v42
  v_permlane32_swap_b32 v52, v53
  v_add_f32 v40, v40, v42
  v_add_f32 v52, v52, v53          ; rows h0 h1 h0 h1
  SLOT
  v_add_f32_dpp v40, v40, v40 row_shr:4 row_mask:0xf bank_mask:0xf
  v_add_f32_dpp v52, v52, v52 row_shr:4 row_mask:0xf bank_mask:0xf
  SLOT
  v_add_f32_dpp v40, v40, v40 row_shr:8 row_mask:0xf bank_mask:0xf
  v_add_f32_dpp v52, v52, v52 row_shr:8 row_mask:0xf bank_mask:0xf
  v_mul_f32 v40, v40, v50          ; * gate
  v_rcp_f32 v52, v52"""
W2R = ["  ds_read_b64 v[106:107], v27"] + [f"  ds_read_b64_tr_b16 v[{92+2*cb}:{93+2*cb}], v25 offset:{cb*2048}" for cb in range(7)]
WOR = []
for cb in range(7):
    WOR.append(f"  ds_read_b64_tr_b16 v[{64+4*cb}:{65+4*cb}], v24 offset:{cb*4096}")
    WOR.append(f"  ds_read_b64_tr_b16 v[{66+4*cb}:{67+4*cb}], v24 offset:{cb*4096+2048}")
queue = (WOR if OPT['ffn_early'] else W2R + WOR)[:]
nslot = 0
for ln in CHAIN.split("\n"):
    if ln.strip() == "SLOT":
        a(queue.pop(0)); nslot += 1
    else:
        a(ln)
if STAMP == 3: stamp(11)
if OPT['ffn_early']:
    a(f"""  s_mov_b64 exec, s[56:57]
  v_mul_f32 v40, v40, v52
  v_cvt_pk_bf16_f32 v40, v40, v40
  ds_write_b16 v54, v40
  s_mov_b64 exec, -1""")
    for ln in queue: a(ln)
    a(f"  s_waitcnt lgkmcnt({len(queue)})")
else:
    a(f"""  s_mov_b64 exec, s[56:57]
  v_mul_f32 v40, v40, v52
  v_cvt_pk_bf16_f32 v40, v40, v40
  ds_write_b16 v54, v40
  s_mov_b64 exec, -1
  s_waitcnt lgkmcnt(4)""")
    for cb in range(7):
        a(f"  v_mfma_f32_16x16x16_bf16 v[{110+4*cb}:{113+4*cb}], v[106:107], v[{92+2*cb}:{93+2*cb}], 0")
        for ln in queue[cb*11//7:(cb+1)*11//7]:
            a(ln)
    a("  s_waitcnt lgkmcnt(11)")
a(f"""  s_barrier
""")
if STAMP == 3: stamp(12)
a(f"""  ds_read2_b64 v[40:43], v28 offset0:0 offset1:4
  s_waitcnt lgkmcnt(0)
""")
if STAMP == 3: stamp(13)
for cb in range(7):
    a(f"  v_mfma_f32_16x16x32_bf16 v[{110+4*cb}:{113+4*cb}], v[40:43], v[{64+4*cb}:{67+4*cb}], v[{110+4*cb}:{113+4*cb}]")
assert OPT['appad'] == 1
a("  s_mov_b32 s56, -1")
a("  s_mov_b32 s57, 0xffff")
a("  s_nop 0")
for k in (1, 2, 3):
    for h in range(2):
        a(f"  v_mov_b32_dpp v{110+h}, v{110+4*k+h} quad_perm:[0,1,2,3] row_mask:{1<<k:#x} bank_mask:0xf")
tagit("v110", "v110")
a("  global_store_dwordx2 v56, v[110:111], s[26:27] sc1")
for k in (1, 2):
    for h in range(2):
        a(f"  v_mov_b32_dpp v{126+h}, v{126+4*k+h} quad_perm:[0,1,2,3] row_mask:{1<<k:#x} bank_mask:0xf")
tagit("v126", "v126")
a("  s_mov_b64 exec, s[56:57]")
a("  global_store_dwordx2 v57, v[126:127], s[26:27] sc1")
stamp(10)
if OPT['apack']:
    a("  s_waitcnt vmcnt(0)")
    stamp(11)
a("  s_mov_b64 exec, -1")
dump_stamps()
a("  s_endpgm")

a("L_aux0:")
if STAMP in (1, 2):
    for k in range(1, 16):
        a(f"  s_mov_b32 s{64+2*k}, 0")
a(f"""  s_lshr_b32 s29, s2, 3            ; j
  s_mov_b32 s32, 0xff
  v_lshrrev_b32 v13, 4, {VL}       ; g4
  v_lshlrev_b32 v18, 4, {VL}
  v_add_u32 v21, 1024, v18
  s_waitcnt lgkmcnt(0)
  s_load_dword s31, s[26:27], {WS_E}
""")
stamp(1)
srd(52, 4, SZ['x'])
a(f"""  s_mov_b32 m0, {XB}
  s_cmp_ge_u32 s29, 16
  buffer_load_dwordx4 v18, s[52:55], 0 offen lds
  s_mov_b32 m0, {XB+1024}
  s_nop 0
  buffer_load_dwordx4 v21, s[52:55], 0 offen lds
  s_cbranch_scc1 L_aux
  s_mov_b32 s56, -1
  s_mov_b32 s57, 0x00ffffff
  s_mov_b64 exec, s[56:57]
  global_load_dwordx4 v[70:73], v18, s[4:5]
  global_load_dwordx4 v[74:77], v18, s[4:5] offset:896
  global_load_dwordx4 v[78:81], v18, s[20:21]
  s_mov_b64 exec, -1
""")
a("L_aux:")
tr_lane_setup()
for nb in range(4):
    a(f"  v_xor_b32 v{24+nb}, {nb}, v16")
    a(f"  v_lshl_add_u32 v{24+nb}, v{24+nb}, 5, v15")
    a(f"  v_add_u32 v{24+nb}, {RC}, v{24+nb}")
h_unit_index("s39")
a(f"""  s_mul_i32 s40, s39, 9363
  s_lshr_b32 s40, s40, 16          ; cbh
  s_mul_i32 s41, s40, 7
  s_sub_u32 s41, s39, s41          ; kp
  v_and_b32 v28, 1, {VL}
  v_mul_u32_u24 v28, 896, v28
  v_lshl_add_u32 v28, v13, 3, v28
  s_lshl_b32 s42, s41, 7
  s_add_u32 s42, s42, {XB}
  v_add_u32 v28, s42, v28
  s_mul_i32 s42, s41, {2*7168}
  s_lshl_b32 s43, s40, 8
  s_add_u32 s42, s42, s43
  s_add_u32 s42, s42, {WS_HP}
  v_lshlrev_b32 v31, 2, {VL}
  v_add_u32 v31, s42, v31
  v_add_u32 v30, 7168, v31
  s_waitcnt lgkmcnt(0)
""")
tau_setup()
xid_value("s34")
a(f"""  s_lshl_b32 s42, s28, 7
  s_lshl_b32 s43, s29, 2
  s_add_u32 s42, s42, s43
  s_add_u32 s42, s42, {WS_XID}
  v_mov_b32 v6, s42
  v_mov_b32 v7, s34
  s_waitcnt vmcnt(0)
  s_mov_b64 exec, 1
  global_store_dword v6, v7, s[26:27] sc1
  s_mov_b64 exec, -1
  s_barrier                        ; barrier Q
  s_barrier                        ; barrier Q2
""")
stamp(2)
if OPT['tlb']:
    a(f"""  s_lshl_b32 s42, s28, 9
  s_lshl_b32 s43, s29, 4
  s_add_u32 s42, s42, s43
  s_mul_i32 s42, s42, 896
  v_mov_b32 v6, s42
  v_mov_b32 v7, 0
  s_mov_b64 exec, 1
  global_load_dword v2, v6, s[12:13] nt
  global_load_dword v2, v7, s[18:19] offset:64 nt
  global_load_dword v2, v7, s[22:23] nt
  s_mov_b64 exec, -1
""")
a("  s_cmp_ge_u32 s39, 196")
a("  s_cbranch_scc1 L_nohpub")
for st in range(2):
    a(f"  ds_read2_b64 v[{48+4*st}:{51+4*st}], v28 offset0:{8*st} offset1:{8*st+4}")
    for nb in range(4):
        r = 96 + 16*st + 4*nb
        a(f"  ds_read_b64_tr_b16 v[{r}:{r+1}], v{24+nb} offset:{st*4096}")
        a(f"  ds_read_b64_tr_b16 v[{r+2}:{r+3}], v{24+nb} offset:{st*4096+2048}")
for st in range(2):
    a(f"  s_waitcnt lgkmcnt({9 - 9*st})")
    for nb in range(4):
        r = 96 + 16*st + 4*nb
        c = "0" if st == 0 else f"v[{32+4*nb}:{35+4*nb}]"
        a(f"  v_mfma_f32_16x16x32_bf16 v[{32+4*nb}:{35+4*nb}], v[{48+4*st}:{51+4*st}], v[{r}:{r+3}], {c}")
a("  s_nop 7")
for r in range(2):
    a(f"  v_permlane16_swap_b32 v{32+r}, v{36+r}")
    a(f"  v_permlane16_swap_b32 v{40+r}, v{44+r}")
a("  s_nop 1")
for r in range(2):
    a(f"  v_permlane32_swap_b32 v{32+r}, v{40+r}")
a("  s_nop 1")
tagit("v32", "v32")
tagit("v33", "v33")
a("""  global_store_dword v31, v32, s[26:27] sc1
  global_store_dword v30, v33, s[26:27] sc1
L_nohpub:""")
stamp(5)
a("  s_cmp_ge_u32 s29, 16")
a("  s_cbranch_scc1 L_aux_a")
a("  v_mov_b32 v44, 0")
a("  v_mov_b32 v45, 0")
for r in range(4):
    a(f"  v_lshlrev_b32 v46, 16, v{78+r}")
    a(f"  v_and_b32 v47, 0xffff0000, v{78+r}")
    for b in range(2):
        a(f"  v_lshlrev_b32 v48, 16, v{70+4*b+r}")
        a(f"  v_and_b32 v49, 0xffff0000, v{70+4*b+r}")
        a(f"  v_mul_f32 v48, v48, v46")
        a(f"  v_mul_f32 v49, v49, v47")
        a(f"  v_cvt_pk_bf16_f32 v48, v48, v49")
        a(f"  v_lshlrev_b32 v49, 16, v48")
        a(f"  v_and_b32 v48, 0xffff0000, v48")
        a(f"  v_add_f32 v{44+b}, v{44+b}, v49")
        a(f"  v_add_f32 v{44+b}, v{44+b}, v48")
a(f"""  v_cmp_gt_u32 vcc, 56, {VL}
  s_nop 1
  v_cndmask_b32 v44, 0, v44, vcc
  v_cndmask_b32 v45, 0, v45, vcc
  s_nop 1
""")
for sh in (1, 2, 4, 8):
    a(f"  v_add_f32_dpp v44, v44, v44 row_shr:{sh} row_mask:0xf bank_mask:0xf")
    a(f"  v_add_f32_dpp v45, v45, v45 row_shr:{sh} row_mask:0xf bank_mask:0xf")
    a("  s_nop 0")
a(f"""  v_add_f32_dpp v44, v44, v44 row_bcast:15 row_mask:0xa bank_mask:0xf
  v_add_f32_dpp v45, v45, v45 row_bcast:15 row_mask:0xa bank_mask:0xf
  s_nop 0
  v_add_f32_dpp v44, v44, v44 row_bcast:31 row_mask:0xc bank_mask:0xf
  v_add_f32_dpp v45, v45, v45 row_bcast:31 row_mask:0xc bank_mask:0xf
  s_nop 0
  v_readlane_b32 s42, v44, 63
  v_readlane_b32 s43, v45, 63
  s_nop 1
  v_and_b32 v46, 1, {VL}
  v_cmp_eq_u32 vcc, 0, v46
  v_mov_b32 v47, s43
  v_mov_b32 v48, s42
  v_cndmask_b32 v47, v47, v48, vcc
  v_mul_f32 v47, 0xbfb8aa3b, v47   ; -log2e * z
  v_exp_f32 v47, v47
  s_nop 0
  v_add_f32 v47, 1.0, v47
  v_rcp_f32 v47, v47               ; g[b = lane&1]
  s_nop 0
  v_sub_f32 v82, 1.0, v47          ; 1-g
  v_lshlrev_b32 v46, 2, v46
  v_add_u32 v46, {GT}, v46
  s_mov_b64 exec, 3
  ds_write_b32 v46, v47
  s_mov_b64 exec, -1
  s_waitcnt lgkmcnt(0)
""")
stamp(3)
a("L_aux_a:")
a("  s_barrier")
a("  s_cmp_lt_u32 s29, 16")
a("  s_cbranch_scc1 L_aux_w")
a("  s_cmp_lt_u32 s29, 23")
a("  s_cbranch_scc1 L_final")
dump_stamps()
a("  s_endpgm")

a(f"""L_final:
  s_sub_u32 s36, s29, 16           ; p
  s_lshl_b32 s37, s36, 3
  s_add_u32 s37, s37, s28          ; c
  v_lshrrev_b32 v29, 2, {VL}       ; u16
  v_mul_u32_u24 v30, {APS}, v29
  v_and_b32 v31, 3, {VL}
  v_lshl_add_u32 v30, v31, 4, v30
  s_lshl_b32 s42, s37, {7 if OPT['appad'] else 6}
  s_add_u32 s42, s42, {WS_AP}
  v_add_u32 v30, s42, v30
""")
for k in range(8):
    a(f"  v_add_u32 v{16+k}, {k*16*APS}, v30")
a(f"""  ; out + b*896 + (8c + 2*c4 + (r>>1))*2
  v_and_b32 v28, 1, v13
  v_mul_u32_u24 v28, 896, v28
  v_lshl_add_u32 v28, v31, 2, v28
  v_lshrrev_b32 v29, 1, v13
  v_lshl_add_u32 v28, v29, 1, v28
  s_lshl_b32 s42, s37, 4
  v_add_u32 v28, s42, v28
  s_mov_b32 s56, 0xf000f000
  s_mov_b32 s57, 0xf000f000
  v_mov_b32 v29, {WS_E}
  s_barrier                        ; barrier B
  s_barrier                        ; barrier C
  s_mov_b32 s33, 0
""")
if OPT['fdelay']:
    a(f"""L_fd:
  s_memrealtime s[60:61]
  s_waitcnt lgkmcnt(0)
  s_sub_u32 s62, s60, s64
  s_cmp_lt_u32 s62, {OPT['fdelay']}
  s_cbranch_scc1 L_fd""")
stamp(8)
if OPT['fgate'] == 2:
    a(f"""  s_mul_i32 s42, s28, {64*OPS}
  s_add_u32 s42, s42, {WS_OP}
  v_and_b32 v24, 31, {VL}
  v_mul_u32_u24 v24, {OPS}, v24
  v_add_u32 v24, s42, v24
L_fgate:
  global_load_dwordx4 v[32:35], v24, s[26:27] sc1
  s_waitcnt vmcnt(0)
""")
    check_regs("v14", [33, 35])
    poll_end("v14", "L_fgate", "L_fgate_ok")
if OPT['fgate'] == 1:
    a(f"""  s_mul_i32 s42, s28, {16*APS}
  v_add_u32 v24, s42, v30
L_fgate:
  global_load_dwordx4 v[32:35], v24, s[26:27] sc1
  s_waitcnt vmcnt(0)
""")
    check_regs("v14", [32, 34])
    poll_end("v14", "L_fgate", "L_fgate_ok")
NS = OPT['fsets']
def fbase(i): return 32 + 32*i
def fissue(i):
    for k in range(8):
        a(f"  global_load_dwordx4 v[{fbase(i)+4*k}:{fbase(i)+4*k+3}], v{16+k}, s[26:27] sc1")
for i in range(NS):
    fissue(i)
a("L_fpoll:")
for i in range(NS):
    a(f"  s_waitcnt vmcnt({8*(NS-1)})")
    check_regs("v14", [fbase(i)+4*k+q for k in range(8) for q in (0, 2)])
    a("  v_and_b32 v14, 0xff, v14")
    a("  v_cmp_ne_u32 vcc, 0, v14")
    a("  s_add_u32 s33, s33, 1")
    a(f"  s_cmp_gt_u32 s33, {OPT['spin']}")
    a(f"  s_cbranch_scc1 L_fok{i}")
    a(f"  s_cbranch_vccz L_fok{i}")
    if OPT['fsleep']:
        a(f"  s_sleep {OPT['fsleep']}")
    fissue(i)
a("  s_branch L_fpoll")
TB = 144
for i in range(NS):
    a(f"L_fok{i}:")
    for k in range(4):
        for h in range(2):
            x = fbase(i) + 8*k + 2*h
            a(f"  v_pk_add_f32 v[{TB+4*k+2*h}:{TB+4*k+2*h+1}], v[{x}:{x+1}], v[{x+4}:{x+5}]")
    if i < NS-1:
        a("  s_branch L_fsum")
a("L_fsum:")
stamp(9)
rec(12, "s33")
for h in range(2):
    a(f"  v_pk_add_f32 v[{TB+2*h}:{TB+2*h+1}], v[{TB+2*h}:{TB+2*h+1}], v[{TB+4+2*h}:{TB+5+2*h}]")
    a(f"  v_pk_add_f32 v[{TB+8+2*h}:{TB+9+2*h}], v[{TB+8+2*h}:{TB+9+2*h}], v[{TB+12+2*h}:{TB+13+2*h}]")
for h in range(2):
    a(f"  v_pk_add_f32 v[{160+2*h}:{161+2*h}], v[{TB+2*h}:{TB+2*h+1}], v[{TB+8+2*h}:{TB+9+2*h}]")
a(f"""  s_nop 1
  v_permlane16_swap_b32 v160, v161
  v_permlane16_swap_b32 v162, v163
  v_add_f32 v160, v160, v161
  v_add_f32 v162, v162, v163
  s_nop 1
  v_permlane32_swap_b32 v160, v162
  v_add_f32 v160, v160, v162
  s_nop 1
  v_add_f32_dpp v160, v160, v160 row_shr:4 row_mask:0xf bank_mask:0xf
  s_nop 1
  v_add_f32_dpp v160, v160, v160 row_shr:8 row_mask:0xf bank_mask:0xf
  s_mov_b64 exec, s[56:57]
  v_cvt_pk_bf16_f32 v160, v160, v160
  global_store_short v28, v160, s[22:23]{' ' + OPT['outflag'].replace('_', ' ') if OPT['outflag'] != 'none' else ''}
  s_cmp_lg_u32 s37, 0
  s_cbranch_scc1 L_noE
  s_mov_b64 exec, 1
  global_store_dword v29, {VTAU}, s[26:27]{' ' + OPT['outflag'].replace('_', ' ') if OPT['outflag'] != 'none' else ''}
L_noE:
  s_mov_b64 exec, -1
""")
if OPT['deadline']:
    a(f"""L_dl:
  s_memrealtime s[56:57]
  s_waitcnt lgkmcnt(0)
  s_sub_u32 s33, s56, s96
  s_cmp_lt_u32 s33, {OPT['deadline']}
  s_cbranch_scc1 L_dl""")
stamp(10, final=True)
if OPT['dbgts']:
    a("  s_waitcnt lgkmcnt(0)")
    a("  s_cmp_lg_u32 s37, 0")
    a("  s_cbranch_scc1 L_nodbg")
    a("  s_mov_b64 exec, 1")
    a("  v_mov_b32 v8, 0")
    for q in range(4):
        for r in range(4):
            k = 4*q + r
            a(f"  s_sub_u32 s33, s{64+2*k}, s64")
            a(f"  v_mov_b32 v{12+r}, s33")
        a(f"  global_store_dwordx4 v8, v[12:15], s[24:25] offset:{16*q}")
        a("  s_nop 1")
    a("L_nodbg:")
else:
    dump_stamps()
a("  s_endpgm")

a("L_aux_w:")
a(f"""  ; h gather set-up: lanes (kp = l>>3 (0..6), b = (l>>2)&1, q4 = l&3) ; HP + (kp*2+b)*7168 + (16u + 4*q4)*4
  s_lshl_b32 s38, s28, 4
  s_add_u32 s38, s38, s29          ; u = g*16 + j
  v_lshrrev_b32 v85, 3, {VL}
  v_bfe_u32 v86, {VL}, 2, 1
  v_lshl_add_u32 v85, v85, 1, v86
  v_mul_u32_u24 v85, 7168, v85
  v_and_b32 v87, 3, {VL}
  v_lshl_add_u32 v85, v87, 4, v85
  s_lshl_b32 s42, s38, 6
  s_add_u32 s42, s42, {WS_HP}
  v_add_u32 v85, s42, v85
  v_readlane_b32 s42, v82, 0
  v_readlane_b32 s43, v82, 1
  v_cmp_eq_u32 vcc, 0, v86
  s_nop 0
  v_mov_b32 v36, s43
  v_mov_b32 v37, s42
  v_cndmask_b32 v83, v36, v37, vcc
  v_lshlrev_b32 v84, 5, v86
  v_lshl_add_u32 v84, v87, 3, v84
  v_add_u32 v84, {HV}, v84          ; HV + b*32 + q4*8
""")
a(f"""  v_mov_b32 v32, 0
  v_mov_b32 v33, 0
  v_mov_b32 v34, 0
  v_mov_b32 v35, 0
  s_mov_b32 s56, -1
  s_mov_b32 s57, 0x00ffffff
  s_mov_b32 s33, 0
  s_setprio 3
""")
if OPT['a2'] and OPT['wpos'] == 'q':
    a("  s_barrier                        ; barrier A2")
a(f"""  s_cmp_ge_u32 s38, 112
  s_cbranch_scc1 L_hskip
  s_mov_b64 exec, s[56:57]
  global_load_dwordx4 v[32:35], v85, s[26:27] sc1
  s_mov_b64 exec, -1
L_hskip:
  s_barrier                        ; barrier B
""")
stamp(6)
a(f"""  s_cmp_ge_u32 s38, 112
  s_cbranch_scc1 L_hdone
  s_mov_b64 exec, s[56:57]
  s_waitcnt vmcnt(0)
  s_branch L_hchk
L_hpoll:
  global_load_dwordx4 v[32:35], v85, s[26:27] sc1
  s_waitcnt vmcnt(0)
L_hchk:
""")
check_regs("v40", range(32, 36))
poll_end("v40", "L_hpoll", "L_hok")
a("  s_mov_b64 exec, -1")
a("  s_nop 1")
for r in range(4):
    a(f"  v_add_f32_dpp v{32+r}, v{32+r}, v{32+r} row_ror:8 row_mask:0xf bank_mask:0xf")
for r in range(4):
    a(f"  v_mov_b32 v{36+r}, v{32+r}")
a("  s_nop 1")
for r in range(4):
    a(f"  v_permlane16_swap_b32 v{32+r}, v{36+r}")
for r in range(4):
    a(f"  v_add_f32 v{32+r}, v{32+r}, v{36+r}")
for r in range(4):
    a(f"  v_mov_b32 v{36+r}, v{32+r}")
a("  s_nop 1")
for r in range(4):
    a(f"  v_permlane32_swap_b32 v{32+r}, v{36+r}")
for r in range(4):
    a(f"  v_add_f32 v{32+r}, v{32+r}, v{36+r}")
a("L_hdone:")
for r in range(4):
    a(f"  v_max_f32 v{32+r}, 0, v{32+r}")
    a(f"  v_mul_f32 v{32+r}, v{32+r}, v83")
a(f"""  v_cvt_pk_bf16_f32 v32, v32, v33
  v_cvt_pk_bf16_f32 v33, v34, v35
  s_mov_b64 exec, 0xff
  ds_write_b64 v84, v[32:33]
  s_mov_b64 exec, -1
  s_waitcnt lgkmcnt(0)
""")
stamp(7)
a("  s_barrier                        ; barrier D1")
dump_stamps()
a("L_end:")
a("  s_endpgm")
a("L_code_end:")
a(footer(vgpr=232, sgpr=100))
open(sys.argv[1], "w").write(a.text())
```

```python
import sys
from asmlib import *

OPT = dict(stamp=0, spin=400000, nt=1, qwait=3, sleep=0, fsleep=0, fast=1, tlb=0, prefetch=1,
           ops=2176, aps=3712, deadline=0, dbgts=0, wpos='q', a2=1, opre=2, fsets=1, outflag='sc1', apack=0, fdelay=0, appad=1, early=0, probe1=0, amp=-1, ampa=0, ampf=10, ampwg=37, ampwave=1, fgate=2, ffn_early=1, oflag='sc1', opos=1)
for a_ in sys.argv[2:]:
    k, v = a_.split('=')
    assert k in OPT, k
    OPT[k] = int(v) if v.lstrip('-').isdigit() else v
STAMP = OPT['stamp']
OPS = OPT['ops']; APS = 7296 if OPT['appad'] else OPT['aps']

WS_E = 0
WS_XID = 0x400
WS_QP = 0x1000
WS_HP = 0x21000
WS_OP = 0x40000
WS_AP = 0x180000
WS_TS = 0x300000
assert WS_HP + 7*2*7168 <= WS_OP and WS_OP + 512*OPS <= WS_AP and WS_AP + 128*APS <= WS_TS

KBUF = 0
VBUF = 32768
RA = 65536
RB = 94208
RC = 108544
XB = 116736
QB = 118784
OV = 119936
HV = 120064
GT = 120128
LDS_BYTES = 120320

C_LOG2E_16 = 0x3DB8AA3B
NT = " nt" if OPT['nt'] else ""
VTAU = "v4"
VL = "v5"

a = Asm()
def stamp(k, final=False):
    if STAMP == 1 or (STAMP == 2 and (k == 0 or final)) or (STAMP == 3 and k in (0, OPT['amp'], OPT['ampa'])):
        a(f"  s_memrealtime s[{64+2*k}:{65+2*k}]")
def rec(k, sreg):
    if STAMP == 1:
        a(f"  s_mov_b32 s{64+2*k}, {sreg}")

def srd(dst, ptr, size):
    a(f"  s_mov_b32 s{dst}, s{ptr}")
    a(f"  s_mov_b32 s{dst+1}, s{ptr+1}")
    a(f"  s_mov_b32 s{dst+2}, {size}")
    a(f"  s_mov_b32 s{dst+3}, 0x20000")

def dma(voff, srdreg, soff):
    a(f"  buffer_load_dwordx4 {voff}, s[{srdreg}:{srdreg+3}], {soff} offen{NT} lds")

def tagit(dst, src):
    a(f"  v_bfi_b32 {dst}, s32, {VTAU}, {src}")

def check_regs(acc, regs, first=True):
    regs = list(regs)
    for r in regs:
        a(f"  v_xor_b32 v{r}, s31, v{r}")
    if first:
        if len(regs) >= 3:
            a(f"  v_or3_b32 {acc}, v{regs[0]}, v{regs[1]}, v{regs[2]}"); regs = regs[3:]
        else:
            a(f"  v_or_b32 {acc}, v{regs[0]}, v{regs[1]}"); regs = regs[2:]
    while len(regs) >= 2:
        a(f"  v_or3_b32 {acc}, {acc}, v{regs[0]}, v{regs[1]}"); regs = regs[2:]
    if regs:
        a(f"  v_or_b32 {acc}, {acc}, v{regs[0]}")

def poll_end(acc, lab_retry, lab_ok, cnt="s33", sleep=None, masked=False):
    sleep = OPT['sleep'] if sleep is None else sleep
    if not masked:
        a(f"  v_and_b32 {acc}, 0xff, {acc}")
    a(f"  v_cmp_ne_u32 vcc, 0, {acc}")
    a(f"  s_add_u32 {cnt}, {cnt}, 1")
    a(f"  s_cmp_gt_u32 {cnt}, {OPT['spin']}")
    a(f"  s_cbranch_scc1 {lab_ok}")
    if sleep:
        a(f"  s_cbranch_vccz {lab_ok}")
        a(f"  s_sleep {sleep}")
        a(f"  s_branch {lab_retry}")
    else:
        a(f"  s_cbranch_vccnz {lab_retry}")
    a(f"{lab_ok}:")

def dump_stamps():
    if STAMP == 3:
        lab = a.label("L_amp")
        k = OPT['amp']
        a(f"""  s_cmp_lg_u32 s2, {OPT['ampwg']}
  s_cbranch_scc1 {lab}_x
  s_cmp_lg_u32 s30, {OPT['ampwave']}
  s_cbranch_scc1 {lab}_x
  s_waitcnt lgkmcnt(0)
  s_sub_u32 s33, s{64+2*k}, s{64+2*OPT['ampa']}
  s_mul_i32 s33, s33, {OPT['ampf']}
  s_add_u32 s33, s33, 1200
{lab}:
  s_memrealtime s[56:57]
  s_waitcnt lgkmcnt(0)
  s_sub_u32 s56, s56, s64
  s_cmp_lt_u32 s56, s33
  s_cbranch_scc1 {lab}
{lab}_x:""")
        return
    if not STAMP or OPT['dbgts']:
        return
    a("  s_waitcnt lgkmcnt(0)")
    a("  s_mul_i32 s33, s2, 5")
    a("  s_add_u32 s33, s33, s30")
    a("  s_lshl_b32 s33, s33, 6")
    a(f"  s_add_u32 s33, s33, {WS_TS}")
    a("  v_mov_b32 v8, s33")
    a("  s_mov_b64 exec, 1")
    for q in range(4):
        for r in range(4):
            a(f"  v_mov_b32 v{12+r}, s{64+2*(4*q+r)}")
        a(f"  global_store_dwordx4 v8, v[12:15], s[26:27] offset:{16*q}")
        a("  s_nop 1")

def tau_setup():
    a("  s_and_b32 s31, s31, 0xff")
    a("  s_mul_i32 s31, s31, 5")
    a("  s_add_u32 s31, s31, 59")
    a("  s_and_b32 s31, s31, 0xff")
    a(f"  v_mov_b32 {VTAU}, s31")

def xid_value(dst):
    a(f"  s_getreg_b32 {dst}, hwreg(HW_REG_XCC_ID, 0, 4)")
    a(f"  s_lshl_b32 {dst}, {dst}, 24")
    a(f"  s_mul_i32 s33, s31, 0x010101")
    a(f"  s_or_b32 {dst}, {dst}, s33")

def tr_lane_setup():
    a(f"""  v_bfe_u32 v14, {VL}, 2, 2        ; r4
  v_lshl_add_u32 v15, v13, 2, v14  ; row = 4*g4+r4
  v_bfe_u32 v16, v15, 1, 2         ; f
  v_and_b32 v17, 3, {VL}           ; c
  v_lshlrev_b32 v15, 7, v15
  v_lshl_add_u32 v15, v17, 3, v15  ; row*128 + c*8""")

def h_unit_index(dst):
    a(f"""  s_lshl_b32 {dst}, s28, 4
  s_add_u32 {dst}, {dst}, s29
  s_sub_u32 {dst}, {dst}, 16       ; P: g*16 + p
  s_lshl_b32 s33, s29, 3
  s_add_u32 s33, s33, s28
  s_add_u32 s33, s33, 128          ; W: 128 + i*8 + g
  s_cmp_lt_u32 s29, 16
  s_cselect_b32 {dst}, s33, {dst}""")

a(header(256, 320, LDS_BYTES))
stamp(0)
if OPT['deadline'] or OPT['probe1']:
    a("  s_memrealtime s[96:97]")
a(f"""  s_load_dwordx16 s[4:19], s[0:1], 0
  s_load_dwordx8 s[20:27], s[0:1], 64
  s_getpc_b64 s[34:35]
L_pc:
  v_lshlrev_b32 v1, {5 if OPT['prefetch'] else 0}, v0
  v_min_u32 v1, {"L_code_end - L_pc - 4" if OPT['prefetch'] else 0}, v1
  s_cmpk_ge_u32 s2, 0x100
  s_cbranch_scc1 L_end
  global_load_dword v3, v1, s[34:35]
  v_lshrrev_b32 v2, 6, v0
  v_and_b32 {VL}, 63, v0
  v_readfirstlane_b32 s30, v2
  v_lshrrev_b32 v8, 3, {VL}
  v_bfe_u32 v9, {VL}, 4, 2         ; (row>>1)&3
  v_and_b32 v10, 7, {VL}
  v_lshlrev_b32 v11, 1, v9
  v_xor_b32 v11, v11, v10
  v_lshlrev_b32 v11, 4, v11        ; *16 bytes
  v_lshl_add_u32 v18, v8, 13, v11
  s_and_b32 s28, s2, 7             ; g
  s_cmp_eq_u32 s30, 0
  s_cbranch_scc1 L_aux0
  s_lshr_b32 s42, s2, 6            ; kp
  s_mul_i32 s42, s42, {112*8192}
  s_lshl_b32 s43, s28, 10
  s_add_u32 s42, s42, s43
  s_bfe_u32 s43, s2, 0x30003       ; j&7
  s_lshl_b32 s43, s43, 7
  s_add_u32 s42, s42, s43
  s_sub_u32 s36, s30, 1            ; v
  s_lshl_b32 s43, s36, 16          ; v*8*8192
  s_add_u32 s42, s42, s43
  v_add_u32 v18, s42, v18
  s_lshl_b32 s43, s36, 10
  s_add_u32 m0, s43, {RA}
  s_lshl_b32 s44, 1, 18
  s_movk_i32 s45, 0x1000
  s_waitcnt lgkmcnt(0)
  global_load_lds_dwordx4 v18, s[10:11]{NT}
  s_add_u32 m0, m0, s45
  v_add_u32 v18, s44, v18
  global_load_lds_dwordx4 v18, s[10:11]{NT}
  s_add_u32 m0, m0, s45
  v_add_u32 v18, s44, v18
  global_load_lds_dwordx4 v18, s[10:11]{NT}
  s_cmp_ge_u32 s36, 2
  s_cbranch_scc1 L_wq_done
  s_add_u32 m0, m0, s45
  v_add_u32 v18, s44, v18
  global_load_lds_dwordx4 v18, s[10:11]{NT}
""")
a("L_wq_done:")
if OPT['probe1']:
    a(f"""L_pr1:
  s_memrealtime s[56:57]
  s_waitcnt lgkmcnt(0)
  s_sub_u32 s33, s56, s96
  s_cmp_lt_u32 s33, {OPT['probe1']}
  s_cbranch_scc1 L_pr1""")
if STAMP in (1, 2):
    for k in range(1, 16):
        a(f"  s_mov_b32 s{64+2*k}, 0")
if STAMP == 3: stamp(15)
a(f"""  s_load_dword s31, s[26:27], {WS_E}
  s_lshr_b32 s29, s2, 3            ; j
  s_mov_b32 s32, 0xff
  v_lshrrev_b32 v13, 4, {VL}       ; g4
  s_and_b32 s37, s36, 1            ; kh
  s_lshr_b32 s38, s36, 1           ; dh""")
stamp(1)
h_unit_index("s45")
a(f"""  s_mul_i32 s46, s45, 9363
  s_lshr_b32 s46, s46, 16          ; cbh = u1/7
  s_mul_i32 s47, s46, 7
  s_sub_u32 s47, s45, s47          ; kp = u1%7
  s_min_u32 s46, s46, 27
  s_lshl_b32 s46, s46, 7
  s_mul_i32 s47, s47, {64*3584}
  s_add_u32 s46, s46, s47
  s_mul_i32 s47, s36, {8*3584}
  s_add_u32 s46, s46, s47
  s_cmp_lt_u32 s45, 196
  s_cselect_b32 s45, 0, 0x40000000
  v_mul_u32_u24 v18, 3584, v8
  v_add3_u32 v18, v18, v11, s45
  s_lshl_b32 s47, s36, 10
  s_add_u32 s47, s47, {RC}
""")
srd(52, 16, SZ['w1'])
for k in range(2):
    a(f"  s_add_u32 m0, s47, {k*4096}")
    a(f"  s_add_u32 s45, s46, {k*4*8*3584}")
    dma("v18", 52, "s45")
a(f"""  v_xor_b32 v12, v9, v10
  v_lshlrev_b32 v12, 4, v12
  s_and_b32 s39, s29, 1            ; b
  s_lshr_b32 s40, s29, 1           ; s (0..15)
  s_lshl_b32 s41, s39, 3
  s_add_u32 s41, s41, s28          ; b*8+g
  s_lshl_b32 s41, s41, 21          ; *4096*512
  s_lshl_b32 s42, s40, 15          ; s*64*512
  s_add_u32 s41, s41, s42
  s_lshl_b32 s42, s37, 14          ; kh*32*512
  s_add_u32 s41, s41, s42
  s_lshl_b32 s42, s38, 8           ; dh*256
  s_add_u32 s41, s41, s42
  s_add_u32 s41, s41, {3072*512}
  s_lshl_b32 s43, s38, 14
  s_lshl_b32 s42, s37, 12
  s_add_u32 s43, s43, s42
  v_lshlrev_b32 v18, 9, v8         ; row*512
  v_add_u32 v19, v18, v12
  v_xor_b32 v20, 64, v19
  v_add_u32 v21, v18, v11          ; V voffset
""")
srd(44, 6, SZ['k'])
srd(48, 8, SZ['v'])
for c2 in range(2):
    for jj in range(4):
        a(f"  s_add_u32 m0, s43, {KBUF + c2*8192 + jj*1024}")
        a(f"  s_add_u32 s42, s41, {c2*128 + jj*4096}")
        dma("v20" if jj & 1 else "v19", 44, "s42")
tr_lane_setup()
a(f"""  ; q projection tile nb = v : addresses
  v_xor_b32 v24, s36, v16
  v_lshl_add_u32 v24, v24, 5, v15
  v_add_u32 v24, {RA}, v24
  v_and_b32 v25, 1, {VL}
  v_mul_u32_u24 v25, 896, v25
  v_lshl_add_u32 v25, v13, 3, v25
  s_lshr_b32 s42, s29, 3           ; kp
  s_mul_i32 s45, s42, 224
  s_add_u32 s45, s45, {XB}
  v_add_u32 v25, s45, v25
  s_lshl_b32 s45, s28, 14
  s_lshl_b32 s42, s42, 12
  s_add_u32 s45, s45, s42
  s_and_b32 s42, s29, 7
  s_lshl_b32 s42, s42, 8
  s_add_u32 s45, s45, s42
  s_lshl_b32 s42, s36, 6
  s_add_u32 s45, s45, s42
  s_add_u32 s45, s45, {WS_QP}
  v_lshlrev_b32 v26, 2, {VL}
  v_add_u32 v26, s45, v26
""")
a("  s_waitcnt lgkmcnt(0)")
tau_setup()
a("  s_waitcnt vmcnt(10)")
a("  s_barrier")
for st in range(3):
    a(f"  ds_read2_b64 v[{32+4*st}:{35+4*st}], v25 offset0:{8*st} offset1:{8*st+4}")
    a(f"  ds_read_b64_tr_b16 v[{48+4*st}:{49+4*st}], v24 offset:{st*4096}")
    a(f"  ds_read_b64_tr_b16 v[{50+4*st}:{51+4*st}], v24 offset:{st*4096+2048}")
a(f"  ds_read_b64 v[44:45], v25 offset:192")
a(f"  ds_read_b64_tr_b16 v[60:61], v24 offset:{3*4096}")
for st in range(3):
    a(f"  s_waitcnt lgkmcnt({8 - 3*st})")
    c = "0" if st == 0 else "v[64:67]"
    a(f"  v_mfma_f32_16x16x32_bf16 v[64:67], v[{32+4*st}:{35+4*st}], v[{48+4*st}:{51+4*st}], {c}")
a("  s_waitcnt lgkmcnt(0)")
a("  v_mfma_f32_16x16x16_bf16 v[68:71], v[44:45], v[60:61], 0")
a("  s_mov_b64 exec, 0xffff")
a("  s_nop 6")
a("  v_add_f32 v64, v64, v68")
a("  v_add_f32 v65, v65, v69")
tagit("v64", "v64")
tagit("v65", "v65")
a(f"""  global_store_dword v26, v64, s[26:27] sc1
  global_store_dword v26, v65, s[26:27] offset:2048 sc1
  s_mov_b64 exec, -1
""")
stamp(14)
a("  s_waitcnt vmcnt(10)")
a("  s_barrier")
for c2 in range(2):
    for jj in range(4):
        a(f"  s_add_u32 m0, s43, {VBUF + c2*8192 + jj*1024}")
        a(f"  s_add_u32 s42, s41, {c2*128 + jj*4096}")
        dma("v21", 48, "s42")
stamp(2)
a(f"""  ; K operand address: key*128 + (g4 ^ ((key>>1)&7))*16 + kh*4096
  v_and_b32 v22, 15, {VL}
  v_bfe_u32 v23, {VL}, 1, 3
  v_xor_b32 v23, v23, v13
  v_lshlrev_b32 v23, 4, v23
  v_lshl_add_u32 v22, v22, 7, v23
  s_lshl_b32 s42, s37, 12
  v_add_u32 v22, s42, v22
  v_xor_b32 v23, 64, v22
  s_add_u32 s42, s43, {VBUF}
""")
for nb in range(4):
    a(f"  v_xor_b32 v{24+nb}, {nb}, v16")
    a(f"  v_lshl_add_u32 v{24+nb}, v{24+nb}, 5, v15")
    a(f"  v_add_u32 v{24+nb}, s42, v{24+nb}")
a(f"""  ; q operand address: QB + (l&1)*576 + g4*16
  v_and_b32 v28, 1, {VL}
  v_mul_u32_u24 v28, 576, v28
  v_lshl_add_u32 v28, v13, 4, v28
  v_add_u32 v28, {QB}, v28
  s_lshl_b32 s42, s28, 14
  s_lshl_b32 s45, s39, 11
  s_add_u32 s42, s42, s45
  s_lshl_b32 s45, s37, 10
  s_add_u32 s42, s42, s45
  s_lshl_b32 s45, s38, 9
  s_add_u32 s42, s42, s45
  s_add_u32 s42, s42, {WS_QP}
  v_lshrrev_b32 v29, 5, {VL}       ; kpl
  v_and_b32 v30, 31, {VL}          ; c
  v_lshlrev_b32 v31, 12, v29
  v_lshl_add_u32 v31, v30, 4, v31
  v_add_u32 v51, s42, v31
  v_add_u32 v52, 8192, v51
  s_lshl_b32 s42, s28, 7
  s_add_u32 s42, s42, {WS_XID}
  v_lshl_add_u32 v50, v30, 2, s42
  s_mul_i32 s42, s37, 576
  s_lshl_b32 s45, s38, 8
  s_add_u32 s42, s42, s45
  s_add_u32 s42, s42, {QB}
  v_lshlrev_b32 v30, 3, v30
  v_lshl_add_u32 v30, v29, 2, v30
  v_add_u32 v53, s42, v30
  s_lshl_b32 s42, s28, 1
  s_add_u32 s42, s42, s39
  s_lshl_b32 s42, s42, 5
  s_lshl_b32 s45, s40, 1
  s_add_u32 s42, s42, s45
  s_add_u32 s42, s42, s37
  s_mul_i32 s42, s42, {OPS}
  s_lshl_b32 s45, s38, 10
  s_add_u32 s42, s42, s45
  s_add_u32 s42, s42, {WS_OP}
  v_lshlrev_b32 v54, 3, {VL}
  v_add_u32 v54, s42, v54
  v_and_b32 v228, 7, {VL}
  v_lshlrev_b32 v228, 7, v228
  v_add_u32 v228, s42, v228
  s_lshl_b32 s42, s28, 1
  s_add_u32 s42, s42, s38
  s_mul_i32 s33, s42, {32*OPS}
  s_lshl_b32 s56, s29, 7
  s_add_u32 s33, s33, s56
  s_lshl_b32 s56, s37, 6
  s_add_u32 s33, s33, s56
  s_add_u32 s33, s33, {WS_OP}
  v_lshrrev_b32 v6, 2, {VL}       ; s16
  v_mul_u32_u24 v7, {OPS}, v6
  v_and_b32 v62, 3, {VL}
  v_lshl_add_u32 v7, v62, 4, v7
  v_add_u32 v62, s33, v7
  v_add_u32 v63, {16*OPS}, v62        ; s16+16
  v_mov_b32 v46, 0x3f803f80
  v_mov_b32 v47, 0x3f803f80
  v_mov_b32 v48, 0x3f803f80
  v_mov_b32 v49, 0x3f803f80
  v_and_b32 v55, 1, {VL}
  v_cmp_eq_u32 s[58:59], 1, v55
""")
xid_value("s34")
a("  s_mov_b32 s35, 0xffffff")
a("  s_waitcnt vmcnt(8)")
stamp(3)
a("  s_barrier")
if OPT['opre'] == 2 and OPT['opos'] == 2:
    a("  s_mov_b64 exec, 0xff")
    a("  global_load_dword v2, v228, s[26:27] sc1")
    a("  s_mov_b64 exec, -1")
for tt in range(2):
    for t in range(8):
        r = 64 + (tt*8 + t)*4
        a(f"  ds_read_b128 v[{r}:{r+3}], v{23 if t & 1 else 22} offset:{KBUF + (t>>1)*8192 + tt*2048}")

def w_weight_setup():
    srd(44, 12, SZ['wo'])
    srd(52, 18, SZ['w2'])
    a(f"""  s_lshl_b32 s42, s28, 9
  s_lshl_b32 s61, s29, 4
  s_add_u32 s42, s42, s61          ; g*512 + 16j
  s_lshl_b32 s61, s38, 8
  s_add_u32 s42, s42, s61          ; + h*256
  s_lshl_b32 s61, s37, 3
  s_add_u32 s42, s42, s61          ; + half*8
  s_mul_i32 s61, s42, 896
  s_lshl_b32 s60, s36, 10
  s_add_u32 s60, s60, {RA}
  v_mul_u32_u24 v19, 896, v8
  v_add_u32 v19, v19, v11
  s_lshl_b32 s33, s28, 4
  s_add_u32 s33, s33, s29          ; u
  s_min_u32 s42, s33, 111
  s_lshl_b32 s42, s42, 4
  s_lshl_b32 s62, s37, 3
  s_add_u32 s42, s42, s62          ; 16u + q*8   (q = v&1)
  s_mul_i32 s42, s42, 896
  s_lshl_b32 s62, s38, 7
  s_add_u32 s62, s42, s62          ; + (v>>1)*128
  s_cmp_lt_u32 s33, 112
  s_cselect_b32 s33, 0, 0x40000000
  v_add_u32 v20, s33, v19
  s_lshl_b32 s63, s38, 11
  s_lshl_b32 s33, s37, 10
  s_add_u32 s63, s63, s33
  s_add_u32 s63, s63, {RB}         ; RB + (v>>1)*2048 + q*1024
""")

def w_weight_loads(tagname):
    for cb in range(7):
        a(f"  s_add_u32 m0, s60, {cb*4096}")
        a(f"  s_add_u32 s33, s61, {cb*128}")
        dma("v19", 44, "s33")
    for k in range(4):
        if k == 3:
            a("  s_cmp_lg_u32 s38, 0")
            a(f"  s_cbranch_scc1 L_w2_done{tagname}")
        a(f"  s_add_u32 m0, s63, {k*4096}")
        a(f"  s_add_u32 s33, s62, {k*256}")
        dma("v20", 52, "s33")
    a(f"L_w2_done{tagname}:")

def own_pretouch():
    fl = OPT['oflag'].replace('_', ' ') if OPT['oflag'] != 'none' else ''
    a("  s_mov_b64 exec, 0xff")
    a(f"  global_load_dword v2, v228, s[26:27] {fl}")
    a("  s_mov_b64 exec, -1")

def q_loads():
    a("  global_load_dwordx4 v[32:35], v51, s[26:27] sc1")
    a("  global_load_dwordx4 v[36:39], v52, s[26:27] sc1")
    a("  global_load_dword v41, v50, s[26:27] sc1")

a("  s_cmp_lt_u32 s29, 16")
a("  s_cbranch_scc0 L_q_p")
w_weight_setup()
if OPT['wpos'] == 'first':
    pass
if OPT['wpos'] == 'q':
    a(f"  s_waitcnt vmcnt({OPT['qwait'] + (1 if OPT['opre'] == 2 and OPT['opos'] == 2 else 0)})")
    stamp(4)
    q_loads()
    if OPT['opre'] == 2 and OPT['opos'] == 1:
        own_pretouch()
    if OPT['a2']:
        a("  s_barrier")
    w_weight_loads("a")
    if OPT['opre'] == 1:
        fl = OPT['oflag'].replace('_', ' ') if OPT['oflag'] != 'none' else ''
        a(f"  global_load_dword v2, v62, s[26:27] {fl}")
        a(f"  global_load_dword v3, v63, s[26:27] {fl}")
    if OPT['opre'] == 2 and OPT['opos'] == 0:
        own_pretouch()
    a("  s_mov_b32 s33, 0")
    NY = {0: 10, 1: 12, 2: 11}[OPT['opre']]
    if OPT['opre'] == 2 and OPT['opos'] == 2: NY = 10
    a("  s_cmp_lg_u32 s38, 0")
    a("  s_cbranch_scc1 L_qw10")
    a(f"  s_waitcnt vmcnt({NY+1})")
    a("  s_branch L_qchk")
    a("L_qw10:")
    a(f"  s_waitcnt vmcnt({NY})")
    a("  s_branch L_qchk")
a(f"""L_q_p:
  s_mov_b32 s33, 0
  s_waitcnt vmcnt({OPT['qwait'] + (1 if OPT['opre'] == 2 and OPT['opos'] == 2 else 0)})
""")
stamp(4)
if OPT['opre'] == 2 and OPT['opos'] != 2:
    q_loads()
    own_pretouch()
    a("  s_waitcnt vmcnt(1)")
    a("  s_branch L_qchk")
a("L_qpoll:")
q_loads()
a("  s_waitcnt vmcnt(0)")
a("L_qchk:")
check_regs("v40", range(32, 40))
a("  v_xor_b32 v41, s34, v41")
a("  v_and_b32 v40, 0xff, v40")
a("  v_and_or_b32 v40, v41, s35, v40")
poll_end("v40", "L_qpoll", "L_qok", masked=True)
stamp(5)
rec(13, "s33")
if OPT['wpos'] == 'mid':
    a("  s_cmp_lt_u32 s29, 16")
    a("  s_cbranch_scc0 L_nomid")
    w_weight_loads("m")
    a("L_nomid:")
a(f"""  v_add_f32 v32, v32, v36
  v_add_f32 v33, v33, v37
  v_add_f32 v34, v34, v38
  v_add_f32 v35, v35, v39
  v_cmp_ne_u32 vcc, 0, v41
  s_nop 0
  v_permlane32_swap_b32 v32, v34
  v_permlane32_swap_b32 v33, v35
  v_add_f32 v32, v32, v34
  v_add_f32 v33, v33, v35
  v_cvt_pk_bf16_f32 v32, v32, v33
  ds_write_b32 v53, v32
  s_cmp_eq_u64 vcc, 0
  s_cselect_b32 s35, {1 if OPT['fast'] else 0}, 0
  s_waitcnt lgkmcnt(0)
  s_barrier
""")
stamp(6)
for t in range(8):
    a(f"  ds_read_b128 v[{128+4*t}:{131+4*t}], v28 offset:{64*t}")
a(f"  s_mov_b32 s42, {C_LOG2E_16:#x}")
def v_read(i):
    nbk, hf = i >> 1, i & 1
    r = 160 + 4*nbk + 2*hf
    a(f"  ds_read_b64_tr_b16 v[{r}:{r+1}], v{24 + (nbk & 3)} offset:{(nbk >> 2)*8192 + hf*2048}")
for t in range(8):
    a(f"  s_waitcnt lgkmcnt({7 + t})")
    for tt in range(2):
        kr = 64 + (tt*8 + t)*4
        c = "0" if t == 0 else f"v[{32+4*tt}:{35+4*tt}]"
        a(f"  v_mfma_f32_16x16x32_bf16 v[{32+4*tt}:{35+4*tt}], v[{kr}:{kr+3}], v[{128+4*t}:{131+4*t}], {c}")
        v_read(2*t + tt)
a(f"""  s_nop 5
  v_max3_f32 v44, v32, v33, v34
  v_max3_f32 v45, v36, v37, v38
  v_max3_f32 v44, v44, v35, v39
  v_max_f32 v44, v44, v45
  v_mov_b32 v45, v44
  s_nop 1
  v_permlane16_swap_b32 v44, v45
  v_max_f32 v44, v44, v45
  v_mov_b32 v45, v44
  s_nop 1
  v_permlane32_swap_b32 v44, v45
  v_max_f32 v44, v44, v45
  v_mul_f32 v44, s42, v44
""")
for r in range(8):
    a(f"  v_fma_f32 v{32+r}, v{32+r}, s42, -v44")
for r in range(8):
    a(f"  v_exp_f32 v{32+r}, v{32+r}")
a("  s_nop 0")
for r in range(4):
    a(f"  v_cvt_pk_bf16_f32 v{40+r}, v{32+2*r}, v{33+2*r}")
a("  s_waitcnt lgkmcnt(0)             ; V operands")
a("  s_nop 0")
a("  v_mfma_f32_16x16x32_bf16 v[224:227], v[40:43], v[46:49], 0")
for nbk in range(8):
    a(f"  v_mfma_f32_16x16x32_bf16 v[{192+4*nbk}:{195+4*nbk}], v[40:43], v[{160+4*nbk}:{163+4*nbk}], 0")
a(f"""  v_cndmask_b32 v45, v224, v225, s[58:59]
  v_rcp_f32 v56, v224
  v_rcp_f32 v57, v225
  v_log_f32 v45, v45
  s_cmp_eq_u32 s35, 1
  v_add_f32 v45, v45, v44
""")
tagit("v59", "v45")
a("  v_mov_b32 v61, v59")
for q in range(2):
    for h in range(2):
        for k in range(4):
            a(f"  v_mul_f32_dpp v{32+2*q+h}, v{192+4*(4*q+k)+h}, v{56+h} quad_perm:[0,1,2,3] row_mask:{1<<k:#x} bank_mask:0xf")
    a(f"  v_cvt_pk_bf16_f32 v{58+2*q}, v{32+2*q}, v{33+2*q}")
a(f"""  s_cbranch_scc1 L_pub_local
  global_store_dwordx2 v54, v[58:59], s[26:27] sc1
  global_store_dwordx2 v54, v[60:61], s[26:27] offset:512 sc1
  s_branch L_pub_done
L_pub_local:                       ; every reader shares this die's L2
  global_store_dwordx2 v54, v[58:59], s[26:27]
  global_store_dwordx2 v54, v[60:61], s[26:27] offset:512
L_pub_done:
""")
stamp(7)
a("  s_cmp_lt_u32 s29, 16")
a("  s_cbranch_scc1 L_wstage")
a("  s_barrier")
dump_stamps()
a("  s_endpgm")

a("L_wstage:")
if OPT['wpos'] == 'late':
    w_weight_loads("l")
a(f"""  v_xor_b32 v24, s36, v16
  v_lshl_add_u32 v24, v24, 5, v15
  v_add_u32 v25, {RB}, v24
  v_add_u32 v24, {RA}, v24
  v_and_b32 v26, 1, {VL}
  v_lshlrev_b32 v27, 5, v26
  v_lshl_add_u32 v27, v13, 3, v27
  v_add_u32 v27, {HV}, v27
  v_lshlrev_b32 v28, 6, v26
  v_lshl_add_u32 v28, v13, 3, v28
  v_add_u32 v28, {OV}, v28
  v_and_b32 v54, 3, {VL}
  v_lshlrev_b32 v54, 2, v54
  v_and_b32 v55, 1, v13
  v_lshl_add_u32 v54, v55, 5, v54
  v_lshrrev_b32 v55, 1, v13
  v_lshl_add_u32 v54, v55, 1, v54
  s_lshl_b32 s42, s38, 6
  s_lshl_b32 s45, s37, 4
  s_add_u32 s42, s42, s45
  s_add_u32 s42, s42, {OV}
  v_add_u32 v54, s42, v54
  s_lshl_b32 s42, s28, 4
  s_add_u32 s42, s42, s29
  s_mul_i32 s42, s42, {APS}
  s_lshl_b32 s45, s36, {8 if OPT['appad'] else 7}
  s_add_u32 s42, s42, s45
  s_add_u32 s42, s42, {WS_AP}
  v_lshlrev_b32 v55, 3, {VL}
  v_add_u32 v55, s42, v55
  v_and_b32 v56, 7, {VL}
  v_lshlrev_b32 v56, 3, v56
  v_bfe_u32 v57, {VL}, 3, 1
  v_lshl_add_u32 v56, v57, 7, v56
  v_lshl_add_u32 v56, v13, 10, v56
  v_add_u32 v56, s42, v56
  v_add_u32 v57, 4096, v56
  s_lshl_b32 s42, s38, 2
  s_add_u32 s42, s42, {GT}
  v_mov_b32 v29, s42
  ds_read_b32 v50, v29
  s_mov_b32 s56, 0xf000f000
  s_mov_b32 s57, 0xf000f000
  s_mov_b32 s33, 0
  s_waitcnt vmcnt(0) lgkmcnt(0)
""")
if OPT['early']:
    a("""  global_load_dwordx4 v[32:35], v62, s[26:27] sc1
  global_load_dwordx4 v[36:39], v63, s[26:27] sc1""")
a("  s_barrier")
stamp(8)
if not OPT['early']:
    a("""  global_load_dwordx4 v[32:35], v62, s[26:27] sc1
  global_load_dwordx4 v[36:39], v63, s[26:27] sc1""")
if OPT['ffn_early']:
    a("  ds_read_b64 v[106:107], v27")
    for cb in range(7):
        a(f"  ds_read_b64_tr_b16 v[{92+2*cb}:{93+2*cb}], v25 offset:{cb*2048}")
    a("  s_waitcnt lgkmcnt(0)")
    for cb in range(7):
        a(f"  v_mfma_f32_16x16x16_bf16 v[{110+4*cb}:{113+4*cb}], v[106:107], v[{92+2*cb}:{93+2*cb}], 0")
a("  s_waitcnt vmcnt(0)")
a("  s_branch L_ochk")
a(f"""L_opoll:
  global_load_dwordx4 v[32:35], v62, s[26:27] sc1
  global_load_dwordx4 v[36:39], v63, s[26:27] sc1
  s_waitcnt vmcnt(0)
L_ochk:
""")
check_regs("v48", [33, 35, 37, 39])
poll_end("v48", "L_opoll", "L_ook")
stamp(9)
rec(12, "s33")
CHAIN = """  v_max_f32 v52, v33, v37
  v_max_f32 v53, v35, v39
  v_lshlrev_b32 v40, 16, v32       ; A: d0h0
  v_and_b32 v41, 0xffff0000, v32   ;    d0h1
  v_permlane16_swap_b32 v52, v53
  v_lshlrev_b32 v42, 16, v34       ;    d1h0
  v_and_b32 v43, 0xffff0000, v34   ;    d1h1
  v_max_f32 v52, v52, v53          ; rows: h0(01) h1(01) h0(23) h1(23)
  v_mov_b32 v53, v52
  v_lshlrev_b32 v44, 16, v36       ; B
  v_and_b32 v45, 0xffff0000, v36
  v_permlane32_swap_b32 v52, v53
  v_max_f32 v52, v52, v53
  v_lshlrev_b32 v46, 16, v38
  v_and_b32 v47, 0xffff0000, v38
  v_max_f32_dpp v52, v52, v52 row_shr:4 row_mask:0xf bank_mask:0xf
  SLOT
  SLOT
  v_max_f32_dpp v52, v52, v52 row_shr:8 row_mask:0xf bank_mask:0xf
  SLOT
  v_readlane_b32 s42, v52, 15
  v_readlane_b32 s45, v52, 31
  SLOT
  SLOT
  v_subrev_f32 v33, s42, v33
  v_subrev_f32 v37, s42, v37
  v_subrev_f32 v35, s45, v35
  v_subrev_f32 v39, s45, v39
  v_exp_f32 v33, v33               ; w A h0
  v_exp_f32 v37, v37               ; w B h0
  v_exp_f32 v35, v35               ; w A h1
  v_exp_f32 v39, v39               ; w B h1
  SLOT
  v_mul_f32 v40, v40, v33
  v_mul_f32 v41, v41, v35
  v_mul_f32 v42, v42, v33
  v_mul_f32 v43, v43, v35
  v_fmac_f32 v40, v44, v37
  v_fmac_f32 v41, v45, v39
  v_fmac_f32 v42, v46, v37
  v_fmac_f32 v43, v47, v39
  v_add_f32 v52, v33, v37          ; den h0
  v_add_f32 v53, v35, v39          ; den h1
  SLOT
  v_permlane16_swap_b32 v40, v41
  v_permlane16_swap_b32 v42, v43
  v_permlane16_swap_b32 v52, v53
  v_add_f32 v40, v40, v41
  v_add_f32 v42, v42, v43
  v_add_f32 v52, v52, v53
  v_mov_b32 v53, v52
  SLOT
  SLOT
  v_permlane32_swap_b32 v40, v42
  v_permlane32_swap_b32 v52, v53
  v_add_f32 v40, v40, v42
  v_add_f32 v52, v52, v53          ; rows h0 h1 h0 h1
  SLOT
  v_add_f32_dpp v40, v40, v40 row_shr:4 row_mask:0xf bank_mask:0xf
  v_add_f32_dpp v52, v52, v52 row_shr:4 row_mask:0xf bank_mask:0xf
  SLOT
  v_add_f32_dpp v40, v40, v40 row_shr:8 row_mask:0xf bank_mask:0xf
  v_add_f32_dpp v52, v52, v52 row_shr:8 row_mask:0xf bank_mask:0xf
  v_mul_f32 v40, v40, v50          ; * gate
  v_rcp_f32 v52, v52"""
W2R = ["  ds_read_b64 v[106:107], v27"] + [f"  ds_read_b64_tr_b16 v[{92+2*cb}:{93+2*cb}], v25 offset:{cb*2048}" for cb in range(7)]
WOR = []
for cb in range(7):
    WOR.append(f"  ds_read_b64_tr_b16 v[{64+4*cb}:{65+4*cb}], v24 offset:{cb*4096}")
    WOR.append(f"  ds_read_b64_tr_b16 v[{66+4*cb}:{67+4*cb}], v24 offset:{cb*4096+2048}")
queue = (WOR if OPT['ffn_early'] else W2R + WOR)[:]
nslot = 0
for ln in CHAIN.split("\n"):
    if ln.strip() == "SLOT":
        a(queue.pop(0)); nslot += 1
    else:
        a(ln)
if STAMP == 3: stamp(11)
if OPT['ffn_early']:
    a(f"""  s_mov_b64 exec, s[56:57]
  v_mul_f32 v40, v40, v52
  v_cvt_pk_bf16_f32 v40, v40, v40
  ds_write_b16 v54, v40
  s_mov_b64 exec, -1""")
    for ln in queue: a(ln)
    a(f"  s_waitcnt lgkmcnt({len(queue)})")
else:
    a(f"""  s_mov_b64 exec, s[56:57]
  v_mul_f32 v40, v40, v52
  v_cvt_pk_bf16_f32 v40, v40, v40
  ds_write_b16 v54, v40
  s_mov_b64 exec, -1
  s_waitcnt lgkmcnt(4)""")
    for cb in range(7):
        a(f"  v_mfma_f32_16x16x16_bf16 v[{110+4*cb}:{113+4*cb}], v[106:107], v[{92+2*cb}:{93+2*cb}], 0")
        for ln in queue[cb*11//7:(cb+1)*11//7]:
            a(ln)
    a("  s_waitcnt lgkmcnt(11)")
a(f"""  s_barrier
""")
if STAMP == 3: stamp(12)
a(f"""  ds_read2_b64 v[40:43], v28 offset0:0 offset1:4
  s_waitcnt lgkmcnt(0)
""")
if STAMP == 3: stamp(13)
for cb in range(7):
    a(f"  v_mfma_f32_16x16x32_bf16 v[{110+4*cb}:{113+4*cb}], v[40:43], v[{64+4*cb}:{67+4*cb}], v[{110+4*cb}:{113+4*cb}]")
assert OPT['appad'] == 1
a("  s_mov_b32 s56, -1")
a("  s_mov_b32 s57, 0xffff")
a("  s_nop 0")
for k in (1, 2, 3):
    for h in range(2):
        a(f"  v_mov_b32_dpp v{110+h}, v{110+4*k+h} quad_perm:[0,1,2,3] row_mask:{1<<k:#x} bank_mask:0xf")
tagit("v110", "v110")
a("  global_store_dwordx2 v56, v[110:111], s[26:27] sc1")
for k in (1, 2):
    for h in range(2):
        a(f"  v_mov_b32_dpp v{126+h}, v{126+4*k+h} quad_perm:[0,1,2,3] row_mask:{1<<k:#x} bank_mask:0xf")
tagit("v126", "v126")
a("  s_mov_b64 exec, s[56:57]")
a("  global_store_dwordx2 v57, v[126:127], s[26:27] sc1")
stamp(10)
if OPT['apack']:
    a("  s_waitcnt vmcnt(0)")
    stamp(11)
a("  s_mov_b64 exec, -1")
dump_stamps()
a("  s_endpgm")

a("L_aux0:")
if STAMP in (1, 2):
    for k in range(1, 16):
        a(f"  s_mov_b32 s{64+2*k}, 0")
a(f"""  s_lshr_b32 s29, s2, 3            ; j
  s_mov_b32 s32, 0xff
  v_lshrrev_b32 v13, 4, {VL}       ; g4
  v_lshlrev_b32 v18, 4, {VL}
  v_add_u32 v21, 1024, v18
  s_waitcnt lgkmcnt(0)
  s_load_dword s31, s[26:27], {WS_E}
""")
stamp(1)
srd(52, 4, SZ['x'])
a(f"""  s_mov_b32 m0, {XB}
  s_cmp_ge_u32 s29, 16
  buffer_load_dwordx4 v18, s[52:55], 0 offen lds
  s_mov_b32 m0, {XB+1024}
  s_nop 0
  buffer_load_dwordx4 v21, s[52:55], 0 offen lds
  s_cbranch_scc1 L_aux
  s_mov_b32 s56, -1
  s_mov_b32 s57, 0x00ffffff
  s_mov_b64 exec, s[56:57]
  global_load_dwordx4 v[70:73], v18, s[4:5]
  global_load_dwordx4 v[74:77], v18, s[4:5] offset:896
  global_load_dwordx4 v[78:81], v18, s[20:21]
  s_mov_b64 exec, -1
""")
a("L_aux:")
tr_lane_setup()
for nb in range(4):
    a(f"  v_xor_b32 v{24+nb}, {nb}, v16")
    a(f"  v_lshl_add_u32 v{24+nb}, v{24+nb}, 5, v15")
    a(f"  v_add_u32 v{24+nb}, {RC}, v{24+nb}")
h_unit_index("s39")
a(f"""  s_mul_i32 s40, s39, 9363
  s_lshr_b32 s40, s40, 16          ; cbh
  s_mul_i32 s41, s40, 7
  s_sub_u32 s41, s39, s41          ; kp
  v_and_b32 v28, 1, {VL}
  v_mul_u32_u24 v28, 896, v28
  v_lshl_add_u32 v28, v13, 3, v28
  s_lshl_b32 s42, s41, 7
  s_add_u32 s42, s42, {XB}
  v_add_u32 v28, s42, v28
  s_mul_i32 s42, s41, {2*7168}
  s_lshl_b32 s43, s40, 8
  s_add_u32 s42, s42, s43
  s_add_u32 s42, s42, {WS_HP}
  v_lshlrev_b32 v31, 2, {VL}
  v_add_u32 v31, s42, v31
  v_add_u32 v30, 7168, v31
  s_waitcnt lgkmcnt(0)
""")
tau_setup()
xid_value("s34")
a(f"""  s_lshl_b32 s42, s28, 7
  s_lshl_b32 s43, s29, 2
  s_add_u32 s42, s42, s43
  s_add_u32 s42, s42, {WS_XID}
  v_mov_b32 v6, s42
  v_mov_b32 v7, s34
  s_waitcnt vmcnt(0)
  s_mov_b64 exec, 1
  global_store_dword v6, v7, s[26:27] sc1
  s_mov_b64 exec, -1
  s_barrier                        ; barrier Q
  s_barrier                        ; barrier Q2
""")
stamp(2)
if OPT['tlb']:
    a(f"""  s_lshl_b32 s42, s28, 9
  s_lshl_b32 s43, s29, 4
  s_add_u32 s42, s42, s43
  s_mul_i32 s42, s42, 896
  v_mov_b32 v6, s42
  v_mov_b32 v7, 0
  s_mov_b64 exec, 1
  global_load_dword v2, v6, s[12:13] nt
  global_load_dword v2, v7, s[18:19] offset:64 nt
  global_load_dword v2, v7, s[22:23] nt
  s_mov_b64 exec, -1
""")
a("  s_cmp_ge_u32 s39, 196")
a("  s_cbranch_scc1 L_nohpub")
for st in range(2):
    a(f"  ds_read2_b64 v[{48+4*st}:{51+4*st}], v28 offset0:{8*st} offset1:{8*st+4}")
    for nb in range(4):
        r = 96 + 16*st + 4*nb
        a(f"  ds_read_b64_tr_b16 v[{r}:{r+1}], v{24+nb} offset:{st*4096}")
        a(f"  ds_read_b64_tr_b16 v[{r+2}:{r+3}], v{24+nb} offset:{st*4096+2048}")
for st in range(2):
    a(f"  s_waitcnt lgkmcnt({9 - 9*st})")
    for nb in range(4):
        r = 96 + 16*st + 4*nb
        c = "0" if st == 0 else f"v[{32+4*nb}:{35+4*nb}]"
        a(f"  v_mfma_f32_16x16x32_bf16 v[{32+4*nb}:{35+4*nb}], v[{48+4*st}:{51+4*st}], v[{r}:{r+3}], {c}")
a("  s_nop 7")
for r in range(2):
    a(f"  v_permlane16_swap_b32 v{32+r}, v{36+r}")
    a(f"  v_permlane16_swap_b32 v{40+r}, v{44+r}")
a("  s_nop 1")
for r in range(2):
    a(f"  v_permlane32_swap_b32 v{32+r}, v{40+r}")
a("  s_nop 1")
tagit("v32", "v32")
tagit("v33", "v33")
a("""  global_store_dword v31, v32, s[26:27] sc1
  global_store_dword v30, v33, s[26:27] sc1
L_nohpub:""")
stamp(5)
a("  s_cmp_ge_u32 s29, 16")
a("  s_cbranch_scc1 L_aux_a")
a("  v_mov_b32 v44, 0")
a("  v_mov_b32 v45, 0")
for r in range(4):
    a(f"  v_lshlrev_b32 v46, 16, v{78+r}")
    a(f"  v_and_b32 v47, 0xffff0000, v{78+r}")
    for b in range(2):
        a(f"  v_lshlrev_b32 v48, 16, v{70+4*b+r}")
        a(f"  v_and_b32 v49, 0xffff0000, v{70+4*b+r}")
        a(f"  v_mul_f32 v48, v48, v46")
        a(f"  v_mul_f32 v49, v49, v47")
        a(f"  v_cvt_pk_bf16_f32 v48, v48, v49")
        a(f"  v_lshlrev_b32 v49, 16, v48")
        a(f"  v_and_b32 v48, 0xffff0000, v48")
        a(f"  v_add_f32 v{44+b}, v{44+b}, v49")
        a(f"  v_add_f32 v{44+b}, v{44+b}, v48")
a(f"""  v_cmp_gt_u32 vcc, 56, {VL}
  s_nop 1
  v_cndmask_b32 v44, 0, v44, vcc
  v_cndmask_b32 v45, 0, v45, vcc
  s_nop 1
""")
for sh in (1, 2, 4, 8):
    a(f"  v_add_f32_dpp v44, v44, v44 row_shr:{sh} row_mask:0xf bank_mask:0xf")
    a(f"  v_add_f32_dpp v45, v45, v45 row_shr:{sh} row_mask:0xf bank_mask:0xf")
    a("  s_nop 0")
a(f"""  v_add_f32_dpp v44, v44, v44 row_bcast:15 row_mask:0xa bank_mask:0xf
  v_add_f32_dpp v45, v45, v45 row_bcast:15 row_mask:0xa bank_mask:0xf
  s_nop 0
  v_add_f32_dpp v44, v44, v44 row_bcast:31 row_mask:0xc bank_mask:0xf
  v_add_f32_dpp v45, v45, v45 row_bcast:31 row_mask:0xc bank_mask:0xf
  s_nop 0
  v_readlane_b32 s42, v44, 63
  v_readlane_b32 s43, v45, 63
  s_nop 1
  v_and_b32 v46, 1, {VL}
  v_cmp_eq_u32 vcc, 0, v46
  v_mov_b32 v47, s43
  v_mov_b32 v48, s42
  v_cndmask_b32 v47, v47, v48, vcc
  v_mul_f32 v47, 0xbfb8aa3b, v47   ; -log2e * z
  v_exp_f32 v47, v47
  s_nop 0
  v_add_f32 v47, 1.0, v47
  v_rcp_f32 v47, v47               ; g[b = lane&1]
  s_nop 0
  v_sub_f32 v82, 1.0, v47          ; 1-g
  v_lshlrev_b32 v46, 2, v46
  v_add_u32 v46, {GT}, v46
  s_mov_b64 exec, 3
  ds_write_b32 v46, v47
  s_mov_b64 exec, -1
  s_waitcnt lgkmcnt(0)
""")
stamp(3)
a("L_aux_a:")
a("  s_barrier")
a("  s_cmp_lt_u32 s29, 16")
a("  s_cbranch_scc1 L_aux_w")
a("  s_cmp_lt_u32 s29, 23")
a("  s_cbranch_scc1 L_final")
dump_stamps()
a("  s_endpgm")

a(f"""L_final:
  s_sub_u32 s36, s29, 16           ; p
  s_lshl_b32 s37, s36, 3
  s_add_u32 s37, s37, s28          ; c
  v_lshrrev_b32 v29, 2, {VL}       ; u16
  v_mul_u32_u24 v30, {APS}, v29
  v_and_b32 v31, 3, {VL}
  v_lshl_add_u32 v30, v31, 4, v30
  s_lshl_b32 s42, s37, {7 if OPT['appad'] else 6}
  s_add_u32 s42, s42, {WS_AP}
  v_add_u32 v30, s42, v30
""")
for k in range(8):
    a(f"  v_add_u32 v{16+k}, {k*16*APS}, v30")
a(f"""  ; out + b*896 + (8c + 2*c4 + (r>>1))*2
  v_and_b32 v28, 1, v13
  v_mul_u32_u24 v28, 896, v28
  v_lshl_add_u32 v28, v31, 2, v28
  v_lshrrev_b32 v29, 1, v13
  v_lshl_add_u32 v28, v29, 1, v28
  s_lshl_b32 s42, s37, 4
  v_add_u32 v28, s42, v28
  s_mov_b32 s56, 0xf000f000
  s_mov_b32 s57, 0xf000f000
  v_mov_b32 v29, {WS_E}
  s_barrier                        ; barrier B
  s_barrier                        ; barrier C
  s_mov_b32 s33, 0
""")
if OPT['fdelay']:
    a(f"""L_fd:
  s_memrealtime s[60:61]
  s_waitcnt lgkmcnt(0)
  s_sub_u32 s62, s60, s64
  s_cmp_lt_u32 s62, {OPT['fdelay']}
  s_cbranch_scc1 L_fd""")
stamp(8)
if OPT['fgate'] == 2:
    a(f"""  s_mul_i32 s42, s28, {64*OPS}
  s_add_u32 s42, s42, {WS_OP}
  v_and_b32 v24, 31, {VL}
  v_mul_u32_u24 v24, {OPS}, v24
  v_add_u32 v24, s42, v24
L_fgate:
  global_load_dwordx4 v[32:35], v24, s[26:27] sc1
  s_waitcnt vmcnt(0)
""")
    check_regs("v14", [33, 35])
    poll_end("v14", "L_fgate", "L_fgate_ok")
if OPT['fgate'] == 1:
    a(f"""  s_mul_i32 s42, s28, {16*APS}
  v_add_u32 v24, s42, v30
L_fgate:
  global_load_dwordx4 v[32:35], v24, s[26:27] sc1
  s_waitcnt vmcnt(0)
""")
    check_regs("v14", [32, 34])
    poll_end("v14", "L_fgate", "L_fgate_ok")
NS = OPT['fsets']
def fbase(i): return 32 + 32*i
def fissue(i):
    for k in range(8):
        a(f"  global_load_dwordx4 v[{fbase(i)+4*k}:{fbase(i)+4*k+3}], v{16+k}, s[26:27] sc1")
for i in range(NS):
    fissue(i)
a("L_fpoll:")
for i in range(NS):
    a(f"  s_waitcnt vmcnt({8*(NS-1)})")
    check_regs("v14", [fbase(i)+4*k+q for k in range(8) for q in (0, 2)])
    a("  v_and_b32 v14, 0xff, v14")
    a("  v_cmp_ne_u32 vcc, 0, v14")
    a("  s_add_u32 s33, s33, 1")
    a(f"  s_cmp_gt_u32 s33, {OPT['spin']}")
    a(f"  s_cbranch_scc1 L_fok{i}")
    a(f"  s_cbranch_vccz L_fok{i}")
    if OPT['fsleep']:
        a(f"  s_sleep {OPT['fsleep']}")
    fissue(i)
a("  s_branch L_fpoll")
TB = 144
for i in range(NS):
    a(f"L_fok{i}:")
    for k in range(4):
        for h in range(2):
            x = fbase(i) + 8*k + 2*h
            a(f"  v_pk_add_f32 v[{TB+4*k+2*h}:{TB+4*k+2*h+1}], v[{x}:{x+1}], v[{x+4}:{x+5}]")
    if i < NS-1:
        a("  s_branch L_fsum")
a("L_fsum:")
stamp(9)
rec(12, "s33")
for h in range(2):
    a(f"  v_pk_add_f32 v[{TB+2*h}:{TB+2*h+1}], v[{TB+2*h}:{TB+2*h+1}], v[{TB+4+2*h}:{TB+5+2*h}]")
    a(f"  v_pk_add_f32 v[{TB+8+2*h}:{TB+9+2*h}], v[{TB+8+2*h}:{TB+9+2*h}], v[{TB+12+2*h}:{TB+13+2*h}]")
for h in range(2):
    a(f"  v_pk_add_f32 v[{160+2*h}:{161+2*h}], v[{TB+2*h}:{TB+2*h+1}], v[{TB+8+2*h}:{TB+9+2*h}]")
a(f"""  s_nop 1
  v_permlane16_swap_b32 v160, v161
  v_permlane16_swap_b32 v162, v163
  v_add_f32 v160, v160, v161
  v_add_f32 v162, v162, v163
  s_nop 1
  v_permlane32_swap_b32 v160, v162
  v_add_f32 v160, v160, v162
  s_nop 1
  v_add_f32_dpp v160, v160, v160 row_shr:4 row_mask:0xf bank_mask:0xf
  s_nop 1
  v_add_f32_dpp v160, v160, v160 row_shr:8 row_mask:0xf bank_mask:0xf
  s_mov_b64 exec, s[56:57]
  v_cvt_pk_bf16_f32 v160, v160, v160
  global_store_short v28, v160, s[22:23]{' ' + OPT['outflag'].replace('_', ' ') if OPT['outflag'] != 'none' else ''}
  s_cmp_lg_u32 s37, 0
  s_cbranch_scc1 L_noE
  s_mov_b64 exec, 1
  global_store_dword v29, {VTAU}, s[26:27]{' ' + OPT['outflag'].replace('_', ' ') if OPT['outflag'] != 'none' else ''}
L_noE:
  s_mov_b64 exec, -1
""")
if OPT['deadline']:
    a(f"""L_dl:
  s_memrealtime s[56:57]
  s_waitcnt lgkmcnt(0)
  s_sub_u32 s33, s56, s96
  s_cmp_lt_u32 s33, {OPT['deadline']}
  s_cbranch_scc1 L_dl""")
stamp(10, final=True)
if OPT['dbgts']:
    a("  s_waitcnt lgkmcnt(0)")
    a("  s_cmp_lg_u32 s37, 0")
    a("  s_cbranch_scc1 L_nodbg")
    a("  s_mov_b64 exec, 1")
    a("  v_mov_b32 v8, 0")
    for q in range(4):
        for r in range(4):
            k = 4*q + r
            a(f"  s_sub_u32 s33, s{64+2*k}, s64")
            a(f"  v_mov_b32 v{12+r}, s33")
        a(f"  global_store_dwordx4 v8, v[12:15], s[24:25] offset:{16*q}")
        a("  s_nop 1")
    a("L_nodbg:")
else:
    dump_stamps()
a("  s_endpgm")

a("L_aux_w:")
a(f"""  ; h gather set-up: lanes (kp = l>>3 (0..6), b = (l>>2)&1, q4 = l&3) ; HP + (kp*2+b)*7168 + (16u + 4*q4)*4
  s_lshl_b32 s38, s28, 4
  s_add_u32 s38, s38, s29          ; u = g*16 + j
  v_lshrrev_b32 v85, 3, {VL}
  v_bfe_u32 v86, {VL}, 2, 1
  v_lshl_add_u32 v85, v85, 1, v86
  v_mul_u32_u24 v85, 7168, v85
  v_and_b32 v87, 3, {VL}
  v_lshl_add_u32 v85, v87, 4, v85
  s_lshl_b32 s42, s38, 6
  s_add_u32 s42, s42, {WS_HP}
  v_add_u32 v85, s42, v85
  v_readlane_b32 s42, v82, 0
  v_readlane_b32 s43, v82, 1
  v_cmp_eq_u32 vcc, 0, v86
  s_nop 0
  v_mov_b32 v36, s43
  v_mov_b32 v37, s42
  v_cndmask_b32 v83, v36, v37, vcc
  v_lshlrev_b32 v84, 5, v86
  v_lshl_add_u32 v84, v87, 3, v84
  v_add_u32 v84, {HV}, v84          ; HV + b*32 + q4*8
""")
a(f"""  v_mov_b32 v32, 0
  v_mov_b32 v33, 0
  v_mov_b32 v34, 0
  v_mov_b32 v35, 0
  s_mov_b32 s56, -1
  s_mov_b32 s57, 0x00ffffff
  s_mov_b32 s33, 0
  s_setprio 3
""")
if OPT['a2'] and OPT['wpos'] == 'q':
    a("  s_barrier                        ; barrier A2")
a(f"""  s_cmp_ge_u32 s38, 112
  s_cbranch_scc1 L_hskip
  s_mov_b64 exec, s[56:57]
  global_load_dwordx4 v[32:35], v85, s[26:27] sc1
  s_mov_b64 exec, -1
L_hskip:
  s_barrier                        ; barrier B
""")
stamp(6)
a(f"""  s_cmp_ge_u32 s38, 112
  s_cbranch_scc1 L_hdone
  s_mov_b64 exec, s[56:57]
  s_waitcnt vmcnt(0)
  s_branch L_hchk
L_hpoll:
  global_load_dwordx4 v[32:35], v85, s[26:27] sc1
  s_waitcnt vmcnt(0)
L_hchk:
""")
check_regs("v40", range(32, 36))
poll_end("v40", "L_hpoll", "L_hok")
a("  s_mov_b64 exec, -1")
a("  s_nop 1")
for r in range(4):
    a(f"  v_add_f32_dpp v{32+r}, v{32+r}, v{32+r} row_ror:8 row_mask:0xf bank_mask:0xf")
for r in range(4):
    a(f"  v_mov_b32 v{36+r}, v{32+r}")
a("  s_nop 1")
for r in range(4):
    a(f"  v_permlane16_swap_b32 v{32+r}, v{36+r}")
for r in range(4):
    a(f"  v_add_f32 v{32+r}, v{32+r}, v{36+r}")
for r in range(4):
    a(f"  v_mov_b32 v{36+r}, v{32+r}")
a("  s_nop 1")
for r in range(4):
    a(f"  v_permlane32_swap_b32 v{32+r}, v{36+r}")
for r in range(4):
    a(f"  v_add_f32 v{32+r}, v{32+r}, v{36+r}")
a("L_hdone:")
for r in range(4):
    a(f"  v_max_f32 v{32+r}, 0, v{32+r}")
    a(f"  v_mul_f32 v{32+r}, v{32+r}, v83")
a(f"""  v_cvt_pk_bf16_f32 v32, v32, v33
  v_cvt_pk_bf16_f32 v33, v34, v35
  s_mov_b64 exec, 0xff
  ds_write_b64 v84, v[32:33]
  s_mov_b64 exec, -1
  s_waitcnt lgkmcnt(0)
""")
stamp(7)
a("  s_barrier                        ; barrier D1")
dump_stamps()
a("L_end:")
a("  s_endpgm")
a("L_code_end:")
a(footer(vgpr=232, sgpr=100))
open(sys.argv[1], "w").write(a.text())
```

```python
import sys
from asmlib import *

OPT = dict(stamp=0, spin=400000, nt=1, qwait=3, sleep=0, fsleep=0, fast=1, tlb=0, prefetch=1,
           ops=2176, aps=3712, deadline=0, dbgts=0, wpos='q', a2=1, opre=2, fsets=1, outflag='sc1', apack=0, fdelay=0, appad=1, early=0, probe1=0, amp=-1, ampa=0, ampf=10, ampwg=37, ampwave=1, fgate=2, ffn_early=1, oflag='sc1', opos=1, wb=0, prio=0, kvfar=1)
for a_ in sys.argv[2:]:
    k, v = a_.split('=')
    assert k in OPT, k
    OPT[k] = int(v) if v.lstrip('-').isdigit() else v
STAMP = OPT['stamp']
OPS = OPT['ops']; APS = 7296 if OPT['appad'] else OPT['aps']

WS_E = 0
WS_XID = 0x400
WS_QP = 0x1000
WS_HP = 0x21000
WS_OP = 0x40000
WS_AP = 0x180000
WS_TS = 0x300000
assert WS_HP + 7*2*7168 <= WS_OP and WS_OP + 512*OPS <= WS_AP and WS_AP + 128*APS <= WS_TS

KBUF = 0
VBUF = 32768
RA = 65536
RB = 94208
RC = 108544
XB = 116736
QB = 118784
OV = 119936
HV = 120064
GT = 120128
LDS_BYTES = 120320

C_LOG2E_16 = 0x3DB8AA3B
NT = " nt" if OPT['nt'] else ""
VTAU = "v4"
VL = "v5"

a = Asm()
def stamp(k, final=False):
    if STAMP == 1 or (STAMP == 2 and (k == 0 or final)) or (STAMP == 3 and k in (0, OPT['amp'], OPT['ampa'])):
        a(f"  s_memrealtime s[{64+2*k}:{65+2*k}]")
def rec(k, sreg):
    if STAMP == 1:
        a(f"  s_mov_b32 s{64+2*k}, {sreg}")

def srd(dst, ptr, size):
    a(f"  s_mov_b32 s{dst}, s{ptr}")
    a(f"  s_mov_b32 s{dst+1}, s{ptr+1}")
    a(f"  s_mov_b32 s{dst+2}, {size}")
    a(f"  s_mov_b32 s{dst+3}, 0x20000")

def dma(voff, srdreg, soff):
    a(f"  buffer_load_dwordx4 {voff}, s[{srdreg}:{srdreg+3}], {soff} offen{NT} lds")

def tagit(dst, src):
    a(f"  v_bfi_b32 {dst}, s32, {VTAU}, {src}")

def check_regs(acc, regs, first=True):
    regs = list(regs)
    for r in regs:
        a(f"  v_xor_b32 v{r}, s31, v{r}")
    if first:
        if len(regs) >= 3:
            a(f"  v_or3_b32 {acc}, v{regs[0]}, v{regs[1]}, v{regs[2]}"); regs = regs[3:]
        else:
            a(f"  v_or_b32 {acc}, v{regs[0]}, v{regs[1]}"); regs = regs[2:]
    while len(regs) >= 2:
        a(f"  v_or3_b32 {acc}, {acc}, v{regs[0]}, v{regs[1]}"); regs = regs[2:]
    if regs:
        a(f"  v_or_b32 {acc}, {acc}, v{regs[0]}")

def poll_end(acc, lab_retry, lab_ok, cnt="s33", sleep=None, masked=False):
    sleep = OPT['sleep'] if sleep is None else sleep
    if not masked:
        a(f"  v_and_b32 {acc}, 0xff, {acc}")
    a(f"  v_cmp_ne_u32 vcc, 0, {acc}")
    a(f"  s_add_u32 {cnt}, {cnt}, 1")
    a(f"  s_cmp_gt_u32 {cnt}, {OPT['spin']}")
    a(f"  s_cbranch_scc1 {lab_ok}")
    if sleep:
        a(f"  s_cbranch_vccz {lab_ok}")
        a(f"  s_sleep {sleep}")
        a(f"  s_branch {lab_retry}")
    else:
        a(f"  s_cbranch_vccnz {lab_retry}")
    a(f"{lab_ok}:")

def dump_stamps():
    if STAMP == 3:
        lab = a.label("L_amp")
        k = OPT['amp']
        a(f"""  s_cmp_lg_u32 s2, {OPT['ampwg']}
  s_cbranch_scc1 {lab}_x
  s_cmp_lg_u32 s30, {OPT['ampwave']}
  s_cbranch_scc1 {lab}_x
  s_waitcnt lgkmcnt(0)
  s_sub_u32 s33, s{64+2*k}, s{64+2*OPT['ampa']}
  s_mul_i32 s33, s33, {OPT['ampf']}
  s_add_u32 s33, s33, 1200
{lab}:
  s_memrealtime s[56:57]
  s_waitcnt lgkmcnt(0)
  s_sub_u32 s56, s56, s64
  s_cmp_lt_u32 s56, s33
  s_cbranch_scc1 {lab}
{lab}_x:""")
        return
    if not STAMP or OPT['dbgts']:
        return
    a("  s_waitcnt lgkmcnt(0)")
    a("  s_mul_i32 s33, s2, 5")
    a("  s_add_u32 s33, s33, s30")
    a("  s_lshl_b32 s33, s33, 6")
    a(f"  s_add_u32 s33, s33, {WS_TS}")
    a("  v_mov_b32 v8, s33")
    a("  s_mov_b64 exec, 1")
    for q in range(4):
        for r in range(4):
            a(f"  v_mov_b32 v{12+r}, s{64+2*(4*q+r)}")
        a(f"  global_store_dwordx4 v8, v[12:15], s[26:27] offset:{16*q}")
        a("  s_nop 1")

def tau_setup():
    a("  s_and_b32 s31, s31, 0xff")
    a("  s_mul_i32 s31, s31, 5")
    a("  s_add_u32 s31, s31, 59")
    a("  s_and_b32 s31, s31, 0xff")
    a(f"  v_mov_b32 {VTAU}, s31")

def xid_value(dst):
    a(f"  s_getreg_b32 {dst}, hwreg(HW_REG_XCC_ID, 0, 4)")
    a(f"  s_lshl_b32 {dst}, {dst}, 24")
    a(f"  s_mul_i32 s33, s31, 0x010101")
    a(f"  s_or_b32 {dst}, {dst}, s33")

def tr_lane_setup():
    a(f"""  v_bfe_u32 v14, {VL}, 2, 2        ; r4
  v_lshl_add_u32 v15, v13, 2, v14  ; row = 4*g4+r4
  v_bfe_u32 v16, v15, 1, 2         ; f
  v_and_b32 v17, 3, {VL}           ; c
  v_lshlrev_b32 v15, 7, v15
  v_lshl_add_u32 v15, v17, 3, v15  ; row*128 + c*8""")

def h_unit_index(dst):
    a(f"""  s_lshl_b32 {dst}, s28, 4
  s_add_u32 {dst}, {dst}, s29
  s_sub_u32 {dst}, {dst}, 16       ; P: g*16 + p
  s_lshl_b32 s33, s29, 3
  s_add_u32 s33, s33, s28
  s_add_u32 s33, s33, 128          ; W: 128 + i*8 + g
  s_cmp_lt_u32 s29, 16
  s_cselect_b32 {dst}, s33, {dst}""")

a(header(256, 320, LDS_BYTES))
stamp(0)
if OPT['deadline'] or OPT['probe1']:
    a("  s_memrealtime s[96:97]")
a(f"""  s_load_dwordx16 s[4:19], s[0:1], 0
  s_load_dwordx8 s[20:27], s[0:1], 64
  s_getpc_b64 s[34:35]
L_pc:
  v_lshlrev_b32 v1, {5 if OPT['prefetch'] else 0}, v0
  v_min_u32 v1, {"L_code_end - L_pc - 4" if OPT['prefetch'] else 0}, v1
  s_cmpk_ge_u32 s2, 0x100
  s_cbranch_scc1 L_end
  global_load_dword v3, v1, s[34:35]
  v_lshrrev_b32 v2, 6, v0
  v_and_b32 {VL}, 63, v0
  v_readfirstlane_b32 s30, v2
  v_lshrrev_b32 v8, 3, {VL}
  v_bfe_u32 v9, {VL}, 4, 2         ; (row>>1)&3
  v_and_b32 v10, 7, {VL}
  v_lshlrev_b32 v11, 1, v9
  v_xor_b32 v11, v11, v10
  v_lshlrev_b32 v11, 4, v11        ; *16 bytes
  v_lshl_add_u32 v18, v8, 13, v11
  s_and_b32 s28, s2, 7             ; g
  s_cmp_eq_u32 s30, 0
  s_cbranch_scc1 L_aux0
  s_lshr_b32 s42, s2, 6            ; kp
  s_mul_i32 s42, s42, {112*8192}
  s_lshl_b32 s43, s28, 10
  s_add_u32 s42, s42, s43
  s_bfe_u32 s43, s2, 0x30003       ; j&7
  s_lshl_b32 s43, s43, 7
  s_add_u32 s42, s42, s43
  s_sub_u32 s36, s30, 1            ; v
  s_lshl_b32 s43, s36, 16          ; v*8*8192
  s_add_u32 s42, s42, s43
  v_add_u32 v18, s42, v18
  s_lshl_b32 s43, s36, 10
  s_add_u32 m0, s43, {RA}
  s_lshl_b32 s44, 1, 18
  s_movk_i32 s45, 0x1000
  s_waitcnt lgkmcnt(0)
  global_load_lds_dwordx4 v18, s[10:11]{NT}
  s_add_u32 m0, m0, s45
  v_add_u32 v18, s44, v18
  global_load_lds_dwordx4 v18, s[10:11]{NT}
  s_add_u32 m0, m0, s45
  v_add_u32 v18, s44, v18
  global_load_lds_dwordx4 v18, s[10:11]{NT}
  s_cmp_ge_u32 s36, 2
  s_cbranch_scc1 L_wq_done
  s_add_u32 m0, m0, s45
  v_add_u32 v18, s44, v18
  global_load_lds_dwordx4 v18, s[10:11]{NT}
""")
a("L_wq_done:")
if OPT['probe1']:
    a(f"""L_pr1:
  s_memrealtime s[56:57]
  s_waitcnt lgkmcnt(0)
  s_sub_u32 s33, s56, s96
  s_cmp_lt_u32 s33, {OPT['probe1']}
  s_cbranch_scc1 L_pr1""")
if STAMP in (1, 2):
    for k in range(1, 16):
        a(f"  s_mov_b32 s{64+2*k}, 0")
if STAMP == 3: stamp(15)
a(f"""  s_load_dword s31, s[26:27], {WS_E}
  s_lshr_b32 s29, s2, 3            ; j
  s_mov_b32 s32, 0xff
  v_lshrrev_b32 v13, 4, {VL}       ; g4
  s_and_b32 s37, s36, 1            ; kh
  s_lshr_b32 s38, s36, 1           ; dh""")
stamp(1)
h_unit_index("s45")
a(f"""  s_mul_i32 s46, s45, 9363
  s_lshr_b32 s46, s46, 16          ; cbh = u1/7
  s_mul_i32 s47, s46, 7
  s_sub_u32 s47, s45, s47          ; kp = u1%7
  s_min_u32 s46, s46, 27
  s_lshl_b32 s46, s46, 7
  s_mul_i32 s47, s47, {64*3584}
  s_add_u32 s46, s46, s47
  s_mul_i32 s47, s36, {8*3584}
  s_add_u32 s46, s46, s47
  s_cmp_lt_u32 s45, 196
  s_cselect_b32 s45, 0, 0x40000000
  v_mul_u32_u24 v18, 3584, v8
  v_add3_u32 v18, v18, v11, s45
  s_lshl_b32 s47, s36, 10
  s_add_u32 s47, s47, {RC}
""")
srd(52, 16, SZ['w1'])
for k in range(2):
    a(f"  s_add_u32 m0, s47, {k*4096}")
    a(f"  s_add_u32 s45, s46, {k*4*8*3584}")
    dma("v18", 52, "s45")
a(f"""  v_xor_b32 v12, v9, v10
  v_lshlrev_b32 v12, 4, v12
  s_and_b32 s39, s29, 1            ; b
  s_lshr_b32 s40, s29, 1           ; s (0..15)
  s_lshl_b32 s41, s39, 3
  s_add_u32 s41, s41, s28          ; b*8+g
  s_lshl_b32 s41, s41, 21          ; *4096*512
  s_lshl_b32 s42, s40, 15          ; s*64*512
  s_add_u32 s41, s41, s42
  s_lshl_b32 s42, s37, {11 if OPT['kvfar'] else 14}
  s_add_u32 s41, s41, s42
  s_lshl_b32 s42, s38, 8           ; dh*256
  s_add_u32 s41, s41, s42
  s_add_u32 s41, s41, {3072*512}
  s_lshl_b32 s43, s38, 14
  s_lshl_b32 s42, s37, 12
  s_add_u32 s43, s43, s42
  v_lshlrev_b32 v18, {12 if OPT['kvfar'] else 9}, v8
  v_add_u32 v19, v18, v12
  v_xor_b32 v20, 64, v19
  v_add_u32 v21, v18, v11          ; V voffset
""")
srd(44, 6, SZ['k'])
srd(48, 8, SZ['v'])
for c2 in range(2):
    for jj in range(4):
        a(f"  s_add_u32 m0, s43, {KBUF + c2*8192 + jj*1024}")
        a(f"  s_add_u32 s42, s41, {c2*128 + jj*(512 if OPT['kvfar'] else 4096)}")
        dma("v20" if jj & 1 else "v19", 44, "s42")
tr_lane_setup()
a(f"""  ; q projection tile nb = v : addresses
  v_xor_b32 v24, s36, v16
  v_lshl_add_u32 v24, v24, 5, v15
  v_add_u32 v24, {RA}, v24
  v_and_b32 v25, 1, {VL}
  v_mul_u32_u24 v25, 896, v25
  v_lshl_add_u32 v25, v13, 3, v25
  s_lshr_b32 s42, s29, 3           ; kp
  s_mul_i32 s45, s42, 224
  s_add_u32 s45, s45, {XB}
  v_add_u32 v25, s45, v25
  s_lshl_b32 s45, s28, 14
  s_lshl_b32 s42, s42, 12
  s_add_u32 s45, s45, s42
  s_and_b32 s42, s29, 7
  s_lshl_b32 s42, s42, 8
  s_add_u32 s45, s45, s42
  s_lshl_b32 s42, s36, 6
  s_add_u32 s45, s45, s42
  s_add_u32 s45, s45, {WS_QP}
  v_lshlrev_b32 v26, 2, {VL}
  v_add_u32 v26, s45, v26
""")
a("  s_waitcnt lgkmcnt(0)")
tau_setup()
a("  s_waitcnt vmcnt(10)")
a("  s_barrier")
for st in range(3):
    a(f"  ds_read2_b64 v[{32+4*st}:{35+4*st}], v25 offset0:{8*st} offset1:{8*st+4}")
    a(f"  ds_read_b64_tr_b16 v[{48+4*st}:{49+4*st}], v24 offset:{st*4096}")
    a(f"  ds_read_b64_tr_b16 v[{50+4*st}:{51+4*st}], v24 offset:{st*4096+2048}")
a(f"  ds_read_b64 v[44:45], v25 offset:192")
a(f"  ds_read_b64_tr_b16 v[60:61], v24 offset:{3*4096}")
for st in range(3):
    a(f"  s_waitcnt lgkmcnt({8 - 3*st})")
    c = "0" if st == 0 else "v[64:67]"
    a(f"  v_mfma_f32_16x16x32_bf16 v[64:67], v[{32+4*st}:{35+4*st}], v[{48+4*st}:{51+4*st}], {c}")
a("  s_waitcnt lgkmcnt(0)")
a("  v_mfma_f32_16x16x16_bf16 v[68:71], v[44:45], v[60:61], 0")
a("  s_mov_b64 exec, 0xffff")
a("  s_nop 6")
a("  v_add_f32 v64, v64, v68")
a("  v_add_f32 v65, v65, v69")
tagit("v64", "v64")
tagit("v65", "v65")
a(f"""  global_store_dword v26, v64, s[26:27] sc1
  global_store_dword v26, v65, s[26:27] offset:2048 sc1
  s_mov_b64 exec, -1
""")
stamp(14)
a("  s_waitcnt vmcnt(10)")
a("  s_barrier")
for c2 in range(2):
    for jj in range(4):
        a(f"  s_add_u32 m0, s43, {VBUF + c2*8192 + jj*1024}")
        a(f"  s_add_u32 s42, s41, {c2*128 + jj*(512 if OPT['kvfar'] else 4096)}")
        dma("v21", 48, "s42")
stamp(2)
a(f"""  ; K operand address: key*128 + (g4 ^ ((key>>1)&7))*16 + kh*4096
  v_and_b32 v22, 15, {VL}
  v_bfe_u32 v23, {VL}, 1, 3
  v_xor_b32 v23, v23, v13
  v_lshlrev_b32 v23, 4, v23
  v_lshl_add_u32 v22, v22, 7, v23
  s_lshl_b32 s42, s37, 12
  v_add_u32 v22, s42, v22
  v_xor_b32 v23, 64, v22
  s_add_u32 s42, s43, {VBUF}
""")
for nb in range(4):
    a(f"  v_xor_b32 v{24+nb}, {nb}, v16")
    a(f"  v_lshl_add_u32 v{24+nb}, v{24+nb}, 5, v15")
    a(f"  v_add_u32 v{24+nb}, s42, v{24+nb}")
a(f"""  ; q operand address: QB + (l&1)*576 + g4*16
  v_and_b32 v28, 1, {VL}
  v_mul_u32_u24 v28, 576, v28
  v_lshl_add_u32 v28, v13, 4, v28
  v_add_u32 v28, {QB}, v28
  s_lshl_b32 s42, s28, 14
  s_lshl_b32 s45, s39, 11
  s_add_u32 s42, s42, s45
  s_lshl_b32 s45, s37, 10
  s_add_u32 s42, s42, s45
  s_lshl_b32 s45, s38, 9
  s_add_u32 s42, s42, s45
  s_add_u32 s42, s42, {WS_QP}
  v_lshrrev_b32 v29, 5, {VL}       ; kpl
  v_and_b32 v30, 31, {VL}          ; c
  v_lshlrev_b32 v31, 12, v29
  v_lshl_add_u32 v31, v30, 4, v31
  v_add_u32 v51, s42, v31
  v_add_u32 v52, 8192, v51
  s_lshl_b32 s42, s28, 7
  s_add_u32 s42, s42, {WS_XID}
  v_lshl_add_u32 v50, v30, 2, s42
  s_mul_i32 s42, s37, 576
  s_lshl_b32 s45, s38, 8
  s_add_u32 s42, s42, s45
  s_add_u32 s42, s42, {QB}
  v_lshlrev_b32 v30, 3, v30
  v_lshl_add_u32 v30, v29, 2, v30
  v_add_u32 v53, s42, v30
  s_lshl_b32 s42, s28, 1
  s_add_u32 s42, s42, s39
  s_lshl_b32 s42, s42, 5
  s_lshl_b32 s45, s40, 1
  s_add_u32 s42, s42, s45
  s_add_u32 s42, s42, s37
  s_mul_i32 s42, s42, {OPS}
  s_lshl_b32 s45, s38, 10
  s_add_u32 s42, s42, s45
  s_add_u32 s42, s42, {WS_OP}
  v_lshlrev_b32 v54, 3, {VL}
  v_add_u32 v54, s42, v54
  v_and_b32 v228, 7, {VL}
  v_lshlrev_b32 v228, 7, v228
  v_add_u32 v228, s42, v228
  s_lshl_b32 s42, s28, 1
  s_add_u32 s42, s42, s38
  s_mul_i32 s33, s42, {32*OPS}
  s_lshl_b32 s56, s29, 7
  s_add_u32 s33, s33, s56
  s_lshl_b32 s56, s37, 6
  s_add_u32 s33, s33, s56
  s_add_u32 s33, s33, {WS_OP}
  v_lshrrev_b32 v6, 2, {VL}       ; s16
  v_mul_u32_u24 v7, {OPS}, v6
  v_and_b32 v62, 3, {VL}
  v_lshl_add_u32 v7, v62, 4, v7
  v_add_u32 v62, s33, v7
  v_add_u32 v63, {16*OPS}, v62        ; s16+16
  v_mov_b32 v46, 0x3f803f80
  v_mov_b32 v47, 0x3f803f80
  v_mov_b32 v48, 0x3f803f80
  v_mov_b32 v49, 0x3f803f80
  v_and_b32 v55, 1, {VL}
  v_cmp_eq_u32 s[58:59], 1, v55
""")
xid_value("s34")
a("  s_mov_b32 s35, 0xffffff")
if OPT['prio']: a("  s_setprio 2")
a("  s_waitcnt vmcnt(8)")
stamp(3)
a("  s_barrier")
if OPT['opre'] == 2 and OPT['opos'] == 2:
    a("  s_mov_b64 exec, 0xff")
    a("  global_load_dword v2, v228, s[26:27] sc1")
    a("  s_mov_b64 exec, -1")
for tt in range(2):
    for t in range(8):
        r = 64 + (tt*8 + t)*4
        a(f"  ds_read_b128 v[{r}:{r+3}], v{23 if t & 1 else 22} offset:{KBUF + (t>>1)*8192 + tt*2048}")

def w_weight_setup():
    srd(44, 12, SZ['wo'])
    srd(52, 18, SZ['w2'])
    a(f"""  s_lshl_b32 s42, s28, 9
  s_lshl_b32 s61, s29, 4
  s_add_u32 s42, s42, s61          ; g*512 + 16j
  s_lshl_b32 s61, s38, 8
  s_add_u32 s42, s42, s61          ; + h*256
  s_lshl_b32 s61, s37, 3
  s_add_u32 s42, s42, s61          ; + half*8
  s_mul_i32 s61, s42, 896
  s_lshl_b32 s60, s36, 10
  s_add_u32 s60, s60, {RA}
  v_mul_u32_u24 v19, 896, v8
  v_add_u32 v19, v19, v11
  s_lshl_b32 s33, s28, 4
  s_add_u32 s33, s33, s29          ; u
  s_min_u32 s42, s33, 111
  s_lshl_b32 s42, s42, 4
  s_lshl_b32 s62, s37, 3
  s_add_u32 s42, s42, s62          ; 16u + q*8   (q = v&1)
  s_mul_i32 s42, s42, 896
  s_lshl_b32 s62, s38, 7
  s_add_u32 s62, s42, s62          ; + (v>>1)*128
  s_cmp_lt_u32 s33, 112
  s_cselect_b32 s33, 0, 0x40000000
  v_add_u32 v20, s33, v19
  s_lshl_b32 s63, s38, 11
  s_lshl_b32 s33, s37, 10
  s_add_u32 s63, s63, s33
  s_add_u32 s63, s63, {RB}         ; RB + (v>>1)*2048 + q*1024
""")

def w_weight_loads(tagname):
    for cb in range(7):
        a(f"  s_add_u32 m0, s60, {cb*4096}")
        a(f"  s_add_u32 s33, s61, {cb*128}")
        dma("v19", 44, "s33")
    for k in range(4):
        if k == 3:
            a("  s_cmp_lg_u32 s38, 0")
            a(f"  s_cbranch_scc1 L_w2_done{tagname}")
        a(f"  s_add_u32 m0, s63, {k*4096}")
        a(f"  s_add_u32 s33, s62, {k*256}")
        dma("v20", 52, "s33")
    a(f"L_w2_done{tagname}:")

def own_pretouch():
    fl = OPT['oflag'].replace('_', ' ') if OPT['oflag'] != 'none' else ''
    a("  s_mov_b64 exec, 0xff")
    a(f"  global_load_dword v2, v228, s[26:27] {fl}")
    a("  s_mov_b64 exec, -1")

def q_loads():
    a("  global_load_dwordx4 v[32:35], v51, s[26:27] sc1")
    a("  global_load_dwordx4 v[36:39], v52, s[26:27] sc1")
    a("  global_load_dword v41, v50, s[26:27] sc1")

a("  s_cmp_lt_u32 s29, 16")
a("  s_cbranch_scc0 L_q_p")
w_weight_setup()
if OPT['wpos'] == 'first':
    pass
if OPT['wpos'] == 'q':
    a(f"  s_waitcnt vmcnt({OPT['qwait'] + (1 if OPT['opre'] == 2 and OPT['opos'] == 2 else 0)})")
    stamp(4)
    q_loads()
    if OPT['opre'] == 2 and OPT['opos'] == 1:
        own_pretouch()
    if OPT['a2']:
        a("  s_barrier")
    w_weight_loads("a")
    if OPT['opre'] == 1:
        fl = OPT['oflag'].replace('_', ' ') if OPT['oflag'] != 'none' else ''
        a(f"  global_load_dword v2, v62, s[26:27] {fl}")
        a(f"  global_load_dword v3, v63, s[26:27] {fl}")
    if OPT['opre'] == 2 and OPT['opos'] == 0:
        own_pretouch()
    a("  s_mov_b32 s33, 0")
    NY = {0: 10, 1: 12, 2: 11}[OPT['opre']]
    if OPT['opre'] == 2 and OPT['opos'] == 2: NY = 10
    a("  s_cmp_lg_u32 s38, 0")
    a("  s_cbranch_scc1 L_qw10")
    a(f"  s_waitcnt vmcnt({NY+1})")
    a("  s_branch L_qchk")
    a("L_qw10:")
    a(f"  s_waitcnt vmcnt({NY})")
    a("  s_branch L_qchk")
a(f"""L_q_p:
  s_mov_b32 s33, 0
  s_waitcnt vmcnt({OPT['qwait'] + (1 if OPT['opre'] == 2 and OPT['opos'] == 2 else 0)})
""")
stamp(4)
if OPT['opre'] == 2 and OPT['opos'] != 2:
    q_loads()
    own_pretouch()
    a("  s_waitcnt vmcnt(1)")
    a("  s_branch L_qchk")
a("L_qpoll:")
q_loads()
a("  s_waitcnt vmcnt(0)")
a("L_qchk:")
check_regs("v40", range(32, 40))
a("  v_xor_b32 v41, s34, v41")
a("  v_and_b32 v40, 0xff, v40")
a("  v_and_or_b32 v40, v41, s35, v40")
poll_end("v40", "L_qpoll", "L_qok", masked=True)
stamp(5)
rec(13, "s33")
if OPT['wpos'] == 'mid':
    a("  s_cmp_lt_u32 s29, 16")
    a("  s_cbranch_scc0 L_nomid")
    w_weight_loads("m")
    a("L_nomid:")
a(f"""  v_add_f32 v32, v32, v36
  v_add_f32 v33, v33, v37
  v_add_f32 v34, v34, v38
  v_add_f32 v35, v35, v39
  v_cmp_ne_u32 vcc, 0, v41
  s_nop 0
  v_permlane32_swap_b32 v32, v34
  v_permlane32_swap_b32 v33, v35
  v_add_f32 v32, v32, v34
  v_add_f32 v33, v33, v35
  v_cvt_pk_bf16_f32 v32, v32, v33
  ds_write_b32 v53, v32
  s_cmp_eq_u64 vcc, 0
  s_cselect_b32 s35, {1 if OPT['fast'] else 0}, 0
  s_waitcnt lgkmcnt(0)
  s_barrier
""")
stamp(6)
for t in range(8):
    a(f"  ds_read_b128 v[{128+4*t}:{131+4*t}], v28 offset:{64*t}")
a(f"  s_mov_b32 s42, {C_LOG2E_16:#x}")
def v_read(i):
    nbk, hf = i >> 1, i & 1
    r = 160 + 4*nbk + 2*hf
    a(f"  ds_read_b64_tr_b16 v[{r}:{r+1}], v{24 + (nbk & 3)} offset:{(nbk >> 2)*8192 + hf*2048}")
for t in range(8):
    a(f"  s_waitcnt lgkmcnt({7 + t})")
    for tt in range(2):
        kr = 64 + (tt*8 + t)*4
        c = "0" if t == 0 else f"v[{32+4*tt}:{35+4*tt}]"
        a(f"  v_mfma_f32_16x16x32_bf16 v[{32+4*tt}:{35+4*tt}], v[{kr}:{kr+3}], v[{128+4*t}:{131+4*t}], {c}")
        v_read(2*t + tt)
a(f"""  s_nop 5
  v_max3_f32 v44, v32, v33, v34
  v_max3_f32 v45, v36, v37, v38
  v_max3_f32 v44, v44, v35, v39
  v_max_f32 v44, v44, v45
  v_mov_b32 v45, v44
  s_nop 1
  v_permlane16_swap_b32 v44, v45
  v_max_f32 v44, v44, v45
  v_mov_b32 v45, v44
  s_nop 1
  v_permlane32_swap_b32 v44, v45
  v_max_f32 v44, v44, v45
  v_mul_f32 v44, s42, v44
""")
for r in range(8):
    a(f"  v_fma_f32 v{32+r}, v{32+r}, s42, -v44")
for r in range(8):
    a(f"  v_exp_f32 v{32+r}, v{32+r}")
a("  s_nop 0")
for r in range(4):
    a(f"  v_cvt_pk_bf16_f32 v{40+r}, v{32+2*r}, v{33+2*r}")
a("  s_waitcnt lgkmcnt(0)             ; V operands")
a("  s_nop 0")
a("  v_mfma_f32_16x16x32_bf16 v[224:227], v[40:43], v[46:49], 0")
for nbk in range(8):
    a(f"  v_mfma_f32_16x16x32_bf16 v[{192+4*nbk}:{195+4*nbk}], v[40:43], v[{160+4*nbk}:{163+4*nbk}], 0")
a(f"""  v_cndmask_b32 v45, v224, v225, s[58:59]
  v_rcp_f32 v56, v224
  v_rcp_f32 v57, v225
  v_log_f32 v45, v45
  s_cmp_eq_u32 s35, 1
  v_add_f32 v45, v45, v44
""")
tagit("v59", "v45")
a("  v_mov_b32 v61, v59")
for q in range(2):
    for h in range(2):
        for k in range(4):
            a(f"  v_mul_f32_dpp v{32+2*q+h}, v{192+4*(4*q+k)+h}, v{56+h} quad_perm:[0,1,2,3] row_mask:{1<<k:#x} bank_mask:0xf")
    a(f"  v_cvt_pk_bf16_f32 v{58+2*q}, v{32+2*q}, v{33+2*q}")
a(f"""  s_cbranch_scc1 L_pub_local
  global_store_dwordx2 v54, v[58:59], s[26:27] sc1
  global_store_dwordx2 v54, v[60:61], s[26:27] offset:512 sc1
  s_branch L_pub_done
L_pub_local:                       ; every reader shares this die's L2
  global_store_dwordx2 v54, v[58:59], s[26:27]
  global_store_dwordx2 v54, v[60:61], s[26:27] offset:512
L_pub_done:
""")
stamp(7)
a("  s_cmp_lt_u32 s29, 16")
a("  s_cbranch_scc1 L_wstage")
a("  s_barrier")
dump_stamps()
a("  s_endpgm")

a("L_wstage:")
if OPT['wpos'] == 'late':
    w_weight_loads("l")
a(f"""  v_xor_b32 v24, s36, v16
  v_lshl_add_u32 v24, v24, 5, v15
  v_add_u32 v25, {RB}, v24
  v_add_u32 v24, {RA}, v24
  v_and_b32 v26, 1, {VL}
  v_lshlrev_b32 v27, 5, v26
  v_lshl_add_u32 v27, v13, 3, v27
  v_add_u32 v27, {HV}, v27
  v_lshlrev_b32 v28, 6, v26
  v_lshl_add_u32 v28, v13, 3, v28
  v_add_u32 v28, {OV}, v28
  v_and_b32 v54, 3, {VL}
  v_lshlrev_b32 v54, 2, v54
  v_and_b32 v55, 1, v13
  v_lshl_add_u32 v54, v55, 5, v54
  v_lshrrev_b32 v55, 1, v13
  v_lshl_add_u32 v54, v55, 1, v54
  s_lshl_b32 s42, s38, 6
  s_lshl_b32 s45, s37, 4
  s_add_u32 s42, s42, s45
  s_add_u32 s42, s42, {OV}
  v_add_u32 v54, s42, v54
  s_lshl_b32 s42, s28, 4
  s_add_u32 s42, s42, s29
  s_mul_i32 s42, s42, {APS}
  s_lshl_b32 s45, s36, {8 if OPT['appad'] else 7}
  s_add_u32 s42, s42, s45
  s_add_u32 s42, s42, {WS_AP}
  v_lshlrev_b32 v55, 3, {VL}
  v_add_u32 v55, s42, v55
  v_and_b32 v56, 7, {VL}
  v_lshlrev_b32 v56, 3, v56
  v_bfe_u32 v57, {VL}, 3, 1
  v_lshl_add_u32 v56, v57, 7, v56
  v_lshl_add_u32 v56, v13, 10, v56
  v_add_u32 v56, s42, v56
  v_add_u32 v57, 4096, v56
  s_lshl_b32 s42, s38, 2
  s_add_u32 s42, s42, {GT}
  v_mov_b32 v29, s42
  ds_read_b32 v50, v29
  s_mov_b32 s56, 0xf000f000
  s_mov_b32 s57, 0xf000f000
  s_mov_b32 s33, 0
  s_waitcnt vmcnt(0) lgkmcnt(0)
""")
if OPT['early']:
    a("""  global_load_dwordx4 v[32:35], v62, s[26:27] sc1
  global_load_dwordx4 v[36:39], v63, s[26:27] sc1""")
a("  s_barrier")
stamp(8)
if not OPT['early']:
    a("""  global_load_dwordx4 v[32:35], v62, s[26:27] sc1
  global_load_dwordx4 v[36:39], v63, s[26:27] sc1""")
if OPT['ffn_early']:
    a("  ds_read_b64 v[106:107], v27")
    for cb in range(7):
        a(f"  ds_read_b64_tr_b16 v[{92+2*cb}:{93+2*cb}], v25 offset:{cb*2048}")
    a("  s_waitcnt lgkmcnt(0)")
    for cb in range(7):
        a(f"  v_mfma_f32_16x16x16_bf16 v[{110+4*cb}:{113+4*cb}], v[106:107], v[{92+2*cb}:{93+2*cb}], 0")
a("  s_waitcnt vmcnt(0)")
a("  s_branch L_ochk")
a(f"""L_opoll:
  global_load_dwordx4 v[32:35], v62, s[26:27] sc1
  global_load_dwordx4 v[36:39], v63, s[26:27] sc1
  s_waitcnt vmcnt(0)
L_ochk:
""")
check_regs("v48", [33, 35, 37, 39])
poll_end("v48", "L_opoll", "L_ook")
stamp(9)
rec(12, "s33")
CHAIN = """  v_max_f32 v52, v33, v37
  v_max_f32 v53, v35, v39
  v_lshlrev_b32 v40, 16, v32       ; A: d0h0
  v_and_b32 v41, 0xffff0000, v32   ;    d0h1
  v_permlane16_swap_b32 v52, v53
  v_lshlrev_b32 v42, 16, v34       ;    d1h0
  v_and_b32 v43, 0xffff0000, v34   ;    d1h1
  v_max_f32 v52, v52, v53          ; rows: h0(01) h1(01) h0(23) h1(23)
  v_mov_b32 v53, v52
  v_lshlrev_b32 v44, 16, v36       ; B
  v_and_b32 v45, 0xffff0000, v36
  v_permlane32_swap_b32 v52, v53
  v_max_f32 v52, v52, v53
  v_lshlrev_b32 v46, 16, v38
  v_and_b32 v47, 0xffff0000, v38
  v_max_f32_dpp v52, v52, v52 row_shr:4 row_mask:0xf bank_mask:0xf
  SLOT
  SLOT
  v_max_f32_dpp v52, v52, v52 row_shr:8 row_mask:0xf bank_mask:0xf
  SLOT
  v_readlane_b32 s42, v52, 15
  v_readlane_b32 s45, v52, 31
  SLOT
  SLOT
  v_subrev_f32 v33, s42, v33
  v_subrev_f32 v37, s42, v37
  v_subrev_f32 v35, s45, v35
  v_subrev_f32 v39, s45, v39
  v_exp_f32 v33, v33               ; w A h0
  v_exp_f32 v37, v37               ; w B h0
  v_exp_f32 v35, v35               ; w A h1
  v_exp_f32 v39, v39               ; w B h1
  SLOT
  v_mul_f32 v40, v40, v33
  v_mul_f32 v41, v41, v35
  v_mul_f32 v42, v42, v33
  v_mul_f32 v43, v43, v35
  v_fmac_f32 v40, v44, v37
  v_fmac_f32 v41, v45, v39
  v_fmac_f32 v42, v46, v37
  v_fmac_f32 v43, v47, v39
  v_add_f32 v52, v33, v37          ; den h0
  v_add_f32 v53, v35, v39          ; den h1
  SLOT
  v_permlane16_swap_b32 v40, v41
  v_permlane16_swap_b32 v42, v43
  v_permlane16_swap_b32 v52, v53
  v_add_f32 v40, v40, v41
  v_add_f32 v42, v42, v43
  v_add_f32 v52, v52, v53
  v_mov_b32 v53, v52
  SLOT
  SLOT
  v_permlane32_swap_b32 v40, v42
  v_permlane32_swap_b32 v52, v53
  v_add_f32 v40, v40, v42
  v_add_f32 v52, v52, v53          ; rows h0 h1 h0 h1
  SLOT
  v_add_f32_dpp v40, v40, v40 row_shr:4 row_mask:0xf bank_mask:0xf
  v_add_f32_dpp v52, v52, v52 row_shr:4 row_mask:0xf bank_mask:0xf
  SLOT
  v_add_f32_dpp v40, v40, v40 row_shr:8 row_mask:0xf bank_mask:0xf
  v_add_f32_dpp v52, v52, v52 row_shr:8 row_mask:0xf bank_mask:0xf
  v_mul_f32 v40, v40, v50          ; * gate
  v_rcp_f32 v52, v52"""
W2R = ["  ds_read_b64 v[106:107], v27"] + [f"  ds_read_b64_tr_b16 v[{92+2*cb}:{93+2*cb}], v25 offset:{cb*2048}" for cb in range(7)]
WOR = []
for cb in range(7):
    WOR.append(f"  ds_read_b64_tr_b16 v[{64+4*cb}:{65+4*cb}], v24 offset:{cb*4096}")
    WOR.append(f"  ds_read_b64_tr_b16 v[{66+4*cb}:{67+4*cb}], v24 offset:{cb*4096+2048}")
queue = (WOR if OPT['ffn_early'] else W2R + WOR)[:]
nslot = 0
for ln in CHAIN.split("\n"):
    if ln.strip() == "SLOT":
        a(queue.pop(0)); nslot += 1
    else:
        a(ln)
if STAMP == 3: stamp(11)
if OPT['ffn_early']:
    a(f"""  s_mov_b64 exec, s[56:57]
  v_mul_f32 v40, v40, v52
  v_cvt_pk_bf16_f32 v40, v40, v40
  ds_write_b16 v54, v40
  s_mov_b64 exec, -1""")
    for ln in queue: a(ln)
    a(f"  s_waitcnt lgkmcnt({len(queue)})")
else:
    a(f"""  s_mov_b64 exec, s[56:57]
  v_mul_f32 v40, v40, v52
  v_cvt_pk_bf16_f32 v40, v40, v40
  ds_write_b16 v54, v40
  s_mov_b64 exec, -1
  s_waitcnt lgkmcnt(4)""")
    for cb in range(7):
        a(f"  v_mfma_f32_16x16x16_bf16 v[{110+4*cb}:{113+4*cb}], v[106:107], v[{92+2*cb}:{93+2*cb}], 0")
        for ln in queue[cb*11//7:(cb+1)*11//7]:
            a(ln)
    a("  s_waitcnt lgkmcnt(11)")
a(f"""  s_barrier
""")
if STAMP == 3: stamp(12)
a(f"""  ds_read2_b64 v[40:43], v28 offset0:0 offset1:4
  s_waitcnt lgkmcnt(0)
""")
if STAMP == 3: stamp(13)
for cb in range(7):
    a(f"  v_mfma_f32_16x16x32_bf16 v[{110+4*cb}:{113+4*cb}], v[40:43], v[{64+4*cb}:{67+4*cb}], v[{110+4*cb}:{113+4*cb}]")
assert OPT['appad'] == 1
a("  s_mov_b32 s56, -1")
a("  s_mov_b32 s57, 0xffff")
a("  s_nop 0")
for k in (1, 2, 3):
    for h in range(2):
        a(f"  v_mov_b32_dpp v{110+h}, v{110+4*k+h} quad_perm:[0,1,2,3] row_mask:{1<<k:#x} bank_mask:0xf")
tagit("v110", "v110")
a("  global_store_dwordx2 v56, v[110:111], s[26:27] sc1")
for k in (1, 2):
    for h in range(2):
        a(f"  v_mov_b32_dpp v{126+h}, v{126+4*k+h} quad_perm:[0,1,2,3] row_mask:{1<<k:#x} bank_mask:0xf")
tagit("v126", "v126")
a("  s_mov_b64 exec, s[56:57]")
a("  global_store_dwordx2 v57, v[126:127], s[26:27] sc1")
stamp(10)
if OPT['apack']:
    a("  s_waitcnt vmcnt(0)")
    stamp(11)
a("  s_mov_b64 exec, -1")
dump_stamps()
a("  s_endpgm")

a("L_aux0:")
if STAMP in (1, 2):
    for k in range(1, 16):
        a(f"  s_mov_b32 s{64+2*k}, 0")
a(f"""  s_lshr_b32 s29, s2, 3            ; j
  s_mov_b32 s32, 0xff
  v_lshrrev_b32 v13, 4, {VL}       ; g4
  v_lshlrev_b32 v18, 4, {VL}
  v_add_u32 v21, 1024, v18
  s_waitcnt lgkmcnt(0)
  s_load_dword s31, s[26:27], {WS_E}
""")
stamp(1)
srd(52, 4, SZ['x'])
a(f"""  s_mov_b32 m0, {XB}
  s_cmp_ge_u32 s29, 16
  buffer_load_dwordx4 v18, s[52:55], 0 offen lds
  s_mov_b32 m0, {XB+1024}
  s_nop 0
  buffer_load_dwordx4 v21, s[52:55], 0 offen lds
  s_cbranch_scc1 L_aux
  s_mov_b32 s56, -1
  s_mov_b32 s57, 0x00ffffff
  s_mov_b64 exec, s[56:57]
  global_load_dwordx4 v[70:73], v18, s[4:5]
  global_load_dwordx4 v[74:77], v18, s[4:5] offset:896
  global_load_dwordx4 v[78:81], v18, s[20:21]
  s_mov_b64 exec, -1
""")
a("L_aux:")
tr_lane_setup()
for nb in range(4):
    a(f"  v_xor_b32 v{24+nb}, {nb}, v16")
    a(f"  v_lshl_add_u32 v{24+nb}, v{24+nb}, 5, v15")
    a(f"  v_add_u32 v{24+nb}, {RC}, v{24+nb}")
h_unit_index("s39")
a(f"""  s_mul_i32 s40, s39, 9363
  s_lshr_b32 s40, s40, 16          ; cbh
  s_mul_i32 s41, s40, 7
  s_sub_u32 s41, s39, s41          ; kp
  v_and_b32 v28, 1, {VL}
  v_mul_u32_u24 v28, 896, v28
  v_lshl_add_u32 v28, v13, 3, v28
  s_lshl_b32 s42, s41, 7
  s_add_u32 s42, s42, {XB}
  v_add_u32 v28, s42, v28
  s_mul_i32 s42, s41, {2*7168}
  s_lshl_b32 s43, s40, 8
  s_add_u32 s42, s42, s43
  s_add_u32 s42, s42, {WS_HP}
  v_lshlrev_b32 v31, 2, {VL}
  v_add_u32 v31, s42, v31
  v_add_u32 v30, 7168, v31
  s_waitcnt lgkmcnt(0)
""")
tau_setup()
xid_value("s34")
a(f"""  s_lshl_b32 s42, s28, 7
  s_lshl_b32 s43, s29, 2
  s_add_u32 s42, s42, s43
  s_add_u32 s42, s42, {WS_XID}
  v_mov_b32 v6, s42
  v_mov_b32 v7, s34
  s_waitcnt vmcnt(0)
  s_mov_b64 exec, 1
  global_store_dword v6, v7, s[26:27] sc1
  s_mov_b64 exec, -1
  s_barrier                        ; barrier Q
  s_barrier                        ; barrier Q2
""")
stamp(2)
if OPT['tlb']:
    a(f"""  s_lshl_b32 s42, s28, 9
  s_lshl_b32 s43, s29, 4
  s_add_u32 s42, s42, s43
  s_mul_i32 s42, s42, 896
  v_mov_b32 v6, s42
  v_mov_b32 v7, 0
  s_mov_b64 exec, 1
  global_load_dword v2, v6, s[12:13] nt
  global_load_dword v2, v7, s[18:19] offset:64 nt
  global_load_dword v2, v7, s[22:23] nt
  s_mov_b64 exec, -1
""")
a("  s_cmp_ge_u32 s39, 196")
a("  s_cbranch_scc1 L_nohpub")
for st in range(2):
    a(f"  ds_read2_b64 v[{48+4*st}:{51+4*st}], v28 offset0:{8*st} offset1:{8*st+4}")
    for nb in range(4):
        r = 96 + 16*st + 4*nb
        a(f"  ds_read_b64_tr_b16 v[{r}:{r+1}], v{24+nb} offset:{st*4096}")
        a(f"  ds_read_b64_tr_b16 v[{r+2}:{r+3}], v{24+nb} offset:{st*4096+2048}")
for st in range(2):
    a(f"  s_waitcnt lgkmcnt({9 - 9*st})")
    for nb in range(4):
        r = 96 + 16*st + 4*nb
        c = "0" if st == 0 else f"v[{32+4*nb}:{35+4*nb}]"
        a(f"  v_mfma_f32_16x16x32_bf16 v[{32+4*nb}:{35+4*nb}], v[{48+4*st}:{51+4*st}], v[{r}:{r+3}], {c}")
a("  s_nop 7")
for r in range(2):
    a(f"  v_permlane16_swap_b32 v{32+r}, v{36+r}")
    a(f"  v_permlane16_swap_b32 v{40+r}, v{44+r}")
a("  s_nop 1")
for r in range(2):
    a(f"  v_permlane32_swap_b32 v{32+r}, v{40+r}")
a("  s_nop 1")
tagit("v32", "v32")
tagit("v33", "v33")
a("""  global_store_dword v31, v32, s[26:27] sc1
  global_store_dword v30, v33, s[26:27] sc1
L_nohpub:""")
stamp(5)
a("  s_cmp_ge_u32 s29, 16")
a("  s_cbranch_scc1 L_aux_a")
a("  v_mov_b32 v44, 0")
a("  v_mov_b32 v45, 0")
for r in range(4):
    a(f"  v_lshlrev_b32 v46, 16, v{78+r}")
    a(f"  v_and_b32 v47, 0xffff0000, v{78+r}")
    for b in range(2):
        a(f"  v_lshlrev_b32 v48, 16, v{70+4*b+r}")
        a(f"  v_and_b32 v49, 0xffff0000, v{70+4*b+r}")
        a(f"  v_mul_f32 v48, v48, v46")
        a(f"  v_mul_f32 v49, v49, v47")
        a(f"  v_cvt_pk_bf16_f32 v48, v48, v49")
        a(f"  v_lshlrev_b32 v49, 16, v48")
        a(f"  v_and_b32 v48, 0xffff0000, v48")
        a(f"  v_add_f32 v{44+b}, v{44+b}, v49")
        a(f"  v_add_f32 v{44+b}, v{44+b}, v48")
a(f"""  v_cmp_gt_u32 vcc, 56, {VL}
  s_nop 1
  v_cndmask_b32 v44, 0, v44, vcc
  v_cndmask_b32 v45, 0, v45, vcc
  s_nop 1
""")
for sh in (1, 2, 4, 8):
    a(f"  v_add_f32_dpp v44, v44, v44 row_shr:{sh} row_mask:0xf bank_mask:0xf")
    a(f"  v_add_f32_dpp v45, v45, v45 row_shr:{sh} row_mask:0xf bank_mask:0xf")
    a("  s_nop 0")
a(f"""  v_add_f32_dpp v44, v44, v44 row_bcast:15 row_mask:0xa bank_mask:0xf
  v_add_f32_dpp v45, v45, v45 row_bcast:15 row_mask:0xa bank_mask:0xf
  s_nop 0
  v_add_f32_dpp v44, v44, v44 row_bcast:31 row_mask:0xc bank_mask:0xf
  v_add_f32_dpp v45, v45, v45 row_bcast:31 row_mask:0xc bank_mask:0xf
  s_nop 0
  v_readlane_b32 s42, v44, 63
  v_readlane_b32 s43, v45, 63
  s_nop 1
  v_and_b32 v46, 1, {VL}
  v_cmp_eq_u32 vcc, 0, v46
  v_mov_b32 v47, s43
  v_mov_b32 v48, s42
  v_cndmask_b32 v47, v47, v48, vcc
  v_mul_f32 v47, 0xbfb8aa3b, v47   ; -log2e * z
  v_exp_f32 v47, v47
  s_nop 0
  v_add_f32 v47, 1.0, v47
  v_rcp_f32 v47, v47               ; g[b = lane&1]
  s_nop 0
  v_sub_f32 v82, 1.0, v47          ; 1-g
  v_lshlrev_b32 v46, 2, v46
  v_add_u32 v46, {GT}, v46
  s_mov_b64 exec, 3
  ds_write_b32 v46, v47
  s_mov_b64 exec, -1
  s_waitcnt lgkmcnt(0)
""")
stamp(3)
a("L_aux_a:")
a("  s_barrier")
a("  s_cmp_lt_u32 s29, 16")
a("  s_cbranch_scc1 L_aux_w")
a("  s_cmp_lt_u32 s29, 23")
a("  s_cbranch_scc1 L_final")
if OPT['wb']:
    a(f"""  s_cmp_lg_u32 s29, 31
  s_cbranch_scc1 L_nowb
  s_mul_i32 s42, s28, {64*OPS}
  s_add_u32 s42, s42, {WS_OP}
  v_mul_u32_u24 v24, {OPS}, {VL}
  v_add_u32 v24, s42, v24
  s_barrier                        ; barrier B
  s_barrier                        ; barrier C
  s_mov_b32 s33, 0
L_wbgate:
  global_load_dwordx4 v[32:35], v24, s[26:27] sc1
  s_waitcnt vmcnt(0)
""")
    check_regs("v14", [33, 35])
    poll_end("v14", "L_wbgate", "L_wbgate_ok")
    a("  buffer_wbl2 sc1")
    a("L_nowb:")
dump_stamps()
a("  s_endpgm")

a(f"""L_final:
  s_sub_u32 s36, s29, 16           ; p
  s_lshl_b32 s37, s36, 3
  s_add_u32 s37, s37, s28          ; c
  v_lshrrev_b32 v29, 2, {VL}       ; u16
  v_mul_u32_u24 v30, {APS}, v29
  v_and_b32 v31, 3, {VL}
  v_lshl_add_u32 v30, v31, 4, v30
  s_lshl_b32 s42, s37, {7 if OPT['appad'] else 6}
  s_add_u32 s42, s42, {WS_AP}
  v_add_u32 v30, s42, v30
""")
for k in range(8):
    a(f"  v_add_u32 v{16+k}, {k*16*APS}, v30")
a(f"""  ; out + b*896 + (8c + 2*c4 + (r>>1))*2
  v_and_b32 v28, 1, v13
  v_mul_u32_u24 v28, 896, v28
  v_lshl_add_u32 v28, v31, 2, v28
  v_lshrrev_b32 v29, 1, v13
  v_lshl_add_u32 v28, v29, 1, v28
  s_lshl_b32 s42, s37, 4
  v_add_u32 v28, s42, v28
  s_mov_b32 s56, 0xf000f000
  s_mov_b32 s57, 0xf000f000
  v_mov_b32 v29, {WS_E}
  s_barrier                        ; barrier B
  s_barrier                        ; barrier C
  s_mov_b32 s33, 0
""")
if OPT['fdelay']:
    a(f"""L_fd:
  s_memrealtime s[60:61]
  s_waitcnt lgkmcnt(0)
  s_sub_u32 s62, s60, s64
  s_cmp_lt_u32 s62, {OPT['fdelay']}
  s_cbranch_scc1 L_fd""")
stamp(8)
if OPT['fgate'] == 2:
    a(f"""  s_mul_i32 s42, s28, {64*OPS}
  s_add_u32 s42, s42, {WS_OP}
  v_and_b32 v24, 31, {VL}
  v_mul_u32_u24 v24, {OPS}, v24
  v_add_u32 v24, s42, v24
L_fgate:
  global_load_dwordx4 v[32:35], v24, s[26:27] sc1
  s_waitcnt vmcnt(0)
""")
    check_regs("v14", [33, 35])
    poll_end("v14", "L_fgate", "L_fgate_ok")
if OPT['fgate'] == 1:
    a(f"""  s_mul_i32 s42, s28, {16*APS}
  v_add_u32 v24, s42, v30
L_fgate:
  global_load_dwordx4 v[32:35], v24, s[26:27] sc1
  s_waitcnt vmcnt(0)
""")
    check_regs("v14", [32, 34])
    poll_end("v14", "L_fgate", "L_fgate_ok")
NS = OPT['fsets']
def fbase(i): return 32 + 32*i
def fissue(i):
    for k in range(8):
        a(f"  global_load_dwordx4 v[{fbase(i)+4*k}:{fbase(i)+4*k+3}], v{16+k}, s[26:27] sc1")
for i in range(NS):
    fissue(i)
a("L_fpoll:")
for i in range(NS):
    a(f"  s_waitcnt vmcnt({8*(NS-1)})")
    check_regs("v14", [fbase(i)+4*k+q for k in range(8) for q in (0, 2)])
    a("  v_and_b32 v14, 0xff, v14")
    a("  v_cmp_ne_u32 vcc, 0, v14")
    a("  s_add_u32 s33, s33, 1")
    a(f"  s_cmp_gt_u32 s33, {OPT['spin']}")
    a(f"  s_cbranch_scc1 L_fok{i}")
    a(f"  s_cbranch_vccz L_fok{i}")
    if OPT['fsleep']:
        a(f"  s_sleep {OPT['fsleep']}")
    fissue(i)
a("  s_branch L_fpoll")
TB = 144
for i in range(NS):
    a(f"L_fok{i}:")
    for k in range(4):
        for h in range(2):
            x = fbase(i) + 8*k + 2*h
            a(f"  v_pk_add_f32 v[{TB+4*k+2*h}:{TB+4*k+2*h+1}], v[{x}:{x+1}], v[{x+4}:{x+5}]")
    if i < NS-1:
        a("  s_branch L_fsum")
a("L_fsum:")
stamp(9)
rec(12, "s33")
for h in range(2):
    a(f"  v_pk_add_f32 v[{TB+2*h}:{TB+2*h+1}], v[{TB+2*h}:{TB+2*h+1}], v[{TB+4+2*h}:{TB+5+2*h}]")
    a(f"  v_pk_add_f32 v[{TB+8+2*h}:{TB+9+2*h}], v[{TB+8+2*h}:{TB+9+2*h}], v[{TB+12+2*h}:{TB+13+2*h}]")
for h in range(2):
    a(f"  v_pk_add_f32 v[{160+2*h}:{161+2*h}], v[{TB+2*h}:{TB+2*h+1}], v[{TB+8+2*h}:{TB+9+2*h}]")
a(f"""  s_nop 1
  v_permlane16_swap_b32 v160, v161
  v_permlane16_swap_b32 v162, v163
  v_add_f32 v160, v160, v161
  v_add_f32 v162, v162, v163
  s_nop 1
  v_permlane32_swap_b32 v160, v162
  v_add_f32 v160, v160, v162
  s_nop 1
  v_add_f32_dpp v160, v160, v160 row_shr:4 row_mask:0xf bank_mask:0xf
  s_nop 1
  v_add_f32_dpp v160, v160, v160 row_shr:8 row_mask:0xf bank_mask:0xf
  s_mov_b64 exec, s[56:57]
  v_cvt_pk_bf16_f32 v160, v160, v160
  global_store_short v28, v160, s[22:23]{' ' + OPT['outflag'].replace('_', ' ') if OPT['outflag'] != 'none' else ''}
  s_cmp_lg_u32 s37, 0
  s_cbranch_scc1 L_noE
  s_mov_b64 exec, 1
  global_store_dword v29, {VTAU}, s[26:27]{' ' + OPT['outflag'].replace('_', ' ') if OPT['outflag'] != 'none' else ''}
L_noE:
  s_mov_b64 exec, -1
""")
if OPT['deadline']:
    a(f"""L_dl:
  s_memrealtime s[56:57]
  s_waitcnt lgkmcnt(0)
  s_sub_u32 s33, s56, s96
  s_cmp_lt_u32 s33, {OPT['deadline']}
  s_cbranch_scc1 L_dl""")
stamp(10, final=True)
if OPT['dbgts']:
    a("  s_waitcnt lgkmcnt(0)")
    a("  s_cmp_lg_u32 s37, 0")
    a("  s_cbranch_scc1 L_nodbg")
    a("  s_mov_b64 exec, 1")
    a("  v_mov_b32 v8, 0")
    for q in range(4):
        for r in range(4):
            k = 4*q + r
            a(f"  s_sub_u32 s33, s{64+2*k}, s64")
            a(f"  v_mov_b32 v{12+r}, s33")
        a(f"  global_store_dwordx4 v8, v[12:15], s[24:25] offset:{16*q}")
        a("  s_nop 1")
    a("L_nodbg:")
else:
    dump_stamps()
a("  s_endpgm")

a("L_aux_w:")
a(f"""  ; h gather set-up: lanes (kp = l>>3 (0..6), b = (l>>2)&1, q4 = l&3) ; HP + (kp*2+b)*7168 + (16u + 4*q4)*4
  s_lshl_b32 s38, s28, 4
  s_add_u32 s38, s38, s29          ; u = g*16 + j
  v_lshrrev_b32 v85, 3, {VL}
  v_bfe_u32 v86, {VL}, 2, 1
  v_lshl_add_u32 v85, v85, 1, v86
  v_mul_u32_u24 v85, 7168, v85
  v_and_b32 v87, 3, {VL}
  v_lshl_add_u32 v85, v87, 4, v85
  s_lshl_b32 s42, s38, 6
  s_add_u32 s42, s42, {WS_HP}
  v_add_u32 v85, s42, v85
  v_readlane_b32 s42, v82, 0
  v_readlane_b32 s43, v82, 1
  v_cmp_eq_u32 vcc, 0, v86
  s_nop 0
  v_mov_b32 v36, s43
  v_mov_b32 v37, s42
  v_cndmask_b32 v83, v36, v37, vcc
  v_lshlrev_b32 v84, 5, v86
  v_lshl_add_u32 v84, v87, 3, v84
  v_add_u32 v84, {HV}, v84          ; HV + b*32 + q4*8
""")
a(f"""  v_mov_b32 v32, 0
  v_mov_b32 v33, 0
  v_mov_b32 v34, 0
  v_mov_b32 v35, 0
  s_mov_b32 s56, -1
  s_mov_b32 s57, 0x00ffffff
  s_mov_b32 s33, 0
  s_setprio 3
""")
if OPT['a2'] and OPT['wpos'] == 'q':
    a("  s_barrier                        ; barrier A2")
a(f"""  s_cmp_ge_u32 s38, 112
  s_cbranch_scc1 L_hskip
  s_mov_b64 exec, s[56:57]
  global_load_dwordx4 v[32:35], v85, s[26:27] sc1
  s_mov_b64 exec, -1
L_hskip:
""")
if OPT['prio']: a("  s_setprio 0")
a("""  s_barrier                        ; barrier B
""")
stamp(6)
a(f"""  s_cmp_ge_u32 s38, 112
  s_cbranch_scc1 L_hdone
  s_mov_b64 exec, s[56:57]
  s_waitcnt vmcnt(0)
  s_branch L_hchk
L_hpoll:
  global_load_dwordx4 v[32:35], v85, s[26:27] sc1
  s_waitcnt vmcnt(0)
L_hchk:
""")
check_regs("v40", range(32, 36))
poll_end("v40", "L_hpoll", "L_hok")
a("  s_mov_b64 exec, -1")
a("  s_nop 1")
for r in range(4):
    a(f"  v_add_f32_dpp v{32+r}, v{32+r}, v{32+r} row_ror:8 row_mask:0xf bank_mask:0xf")
for r in range(4):
    a(f"  v_mov_b32 v{36+r}, v{32+r}")
a("  s_nop 1")
for r in range(4):
    a(f"  v_permlane16_swap_b32 v{32+r}, v{36+r}")
for r in range(4):
    a(f"  v_add_f32 v{32+r}, v{32+r}, v{36+r}")
for r in range(4):
    a(f"  v_mov_b32 v{36+r}, v{32+r}")
a("  s_nop 1")
for r in range(4):
    a(f"  v_permlane32_swap_b32 v{32+r}, v{36+r}")
for r in range(4):
    a(f"  v_add_f32 v{32+r}, v{32+r}, v{36+r}")
a("L_hdone:")
for r in range(4):
    a(f"  v_max_f32 v{32+r}, 0, v{32+r}")
    a(f"  v_mul_f32 v{32+r}, v{32+r}, v83")
a(f"""  v_cvt_pk_bf16_f32 v32, v32, v33
  v_cvt_pk_bf16_f32 v33, v34, v35
  s_mov_b64 exec, 0xff
  ds_write_b64 v84, v[32:33]
  s_mov_b64 exec, -1
  s_waitcnt lgkmcnt(0)
""")
stamp(7)
a("  s_barrier                        ; barrier D1")
dump_stamps()
a("L_end:")
a("  s_endpgm")
a("L_code_end:")
a(footer(vgpr=232, sgpr=100))
open(sys.argv[1], "w").write(a.text())
```

```python
import sys
from asmlib import *

OPT = dict(stamp=0, spin=400000, nt=1, qwait=3, sleep=0, fsleep=0, fast=1, tlb=0, prefetch=1,
           ops=2176, aps=3712, deadline=0, dbgts=0, wpos='q', a2=1, opre=2, fsets=1, outflag='sc1', apack=0, fdelay=0, appad=1, early=0, probe1=0, amp=-1, ampa=0, ampf=10, ampwg=37, ampwave=1, fgate=2, ffn_early=1, oflag='sc1', opos=1, wb=0, prio=0, kvfar=1)
for a_ in sys.argv[2:]:
    k, v = a_.split('=')
    assert k in OPT, k
    OPT[k] = int(v) if v.lstrip('-').isdigit() else v
STAMP = OPT['stamp']
OPS = OPT['ops']; APS = 7296 if OPT['appad'] else OPT['aps']

WS_E = 0
WS_XID = 0x400
WS_QP = 0x1000
WS_HP = 0x21000
WS_OP = 0x40000
WS_AP = 0x180000
WS_TS = 0x300000
assert WS_HP + 7*2*7168 <= WS_OP and WS_OP + 512*OPS <= WS_AP and WS_AP + 128*APS <= WS_TS

KBUF = 0
VBUF = 32768
RA = 65536
RB = 94208
RC = 108544
XB = 116736
QB = 118784
OV = 119936
HV = 120064
GT = 120128
MX = 120192
PB = 120224
LDS_BYTES = 120576

C_LOG2E_16 = 0x3DB8AA3B
NT = " nt" if OPT['nt'] else ""
VTAU = "v4"
VL = "v5"

a = Asm()
def stamp(k, final=False):
    if STAMP == 1 or (STAMP == 2 and (k == 0 or final)) or (STAMP == 3 and k in (0, OPT['amp'], OPT['ampa'])):
        a(f"  s_memrealtime s[{64+2*k}:{65+2*k}]")
def rec(k, sreg):
    if STAMP == 1:
        a(f"  s_mov_b32 s{64+2*k}, {sreg}")

def srd(dst, ptr, size):
    a(f"  s_mov_b32 s{dst}, s{ptr}")
    a(f"  s_mov_b32 s{dst+1}, s{ptr+1}")
    a(f"  s_mov_b32 s{dst+2}, {size}")
    a(f"  s_mov_b32 s{dst+3}, 0x20000")

def dma(voff, srdreg, soff):
    a(f"  buffer_load_dwordx4 {voff}, s[{srdreg}:{srdreg+3}], {soff} offen{NT} lds")

def tagit(dst, src):
    a(f"  v_bfi_b32 {dst}, s32, {VTAU}, {src}")

def check_regs(acc, regs, first=True):
    regs = list(regs)
    for r in regs:
        a(f"  v_xor_b32 v{r}, s31, v{r}")
    if first:
        if len(regs) >= 3:
            a(f"  v_or3_b32 {acc}, v{regs[0]}, v{regs[1]}, v{regs[2]}"); regs = regs[3:]
        else:
            a(f"  v_or_b32 {acc}, v{regs[0]}, v{regs[1]}"); regs = regs[2:]
    while len(regs) >= 2:
        a(f"  v_or3_b32 {acc}, {acc}, v{regs[0]}, v{regs[1]}"); regs = regs[2:]
    if regs:
        a(f"  v_or_b32 {acc}, {acc}, v{regs[0]}")

def poll_end(acc, lab_retry, lab_ok, cnt="s33", sleep=None, masked=False):
    sleep = OPT['sleep'] if sleep is None else sleep
    if not masked:
        a(f"  v_and_b32 {acc}, 0xff, {acc}")
    a(f"  v_cmp_ne_u32 vcc, 0, {acc}")
    a(f"  s_add_u32 {cnt}, {cnt}, 1")
    a(f"  s_cmp_gt_u32 {cnt}, {OPT['spin']}")
    a(f"  s_cbranch_scc1 {lab_ok}")
    if sleep:
        a(f"  s_cbranch_vccz {lab_ok}")
        a(f"  s_sleep {sleep}")
        a(f"  s_branch {lab_retry}")
    else:
        a(f"  s_cbranch_vccnz {lab_retry}")
    a(f"{lab_ok}:")

def dump_stamps():
    if STAMP == 3:
        lab = a.label("L_amp")
        k = OPT['amp']
        a(f"""  s_cmp_lg_u32 s2, {OPT['ampwg']}
  s_cbranch_scc1 {lab}_x
  s_cmp_lg_u32 s30, {OPT['ampwave']}
  s_cbranch_scc1 {lab}_x
  s_waitcnt lgkmcnt(0)
  s_sub_u32 s33, s{64+2*k}, s{64+2*OPT['ampa']}
  s_mul_i32 s33, s33, {OPT['ampf']}
  s_add_u32 s33, s33, 1200
{lab}:
  s_memrealtime s[56:57]
  s_waitcnt lgkmcnt(0)
  s_sub_u32 s56, s56, s64
  s_cmp_lt_u32 s56, s33
  s_cbranch_scc1 {lab}
{lab}_x:""")
        return
    if not STAMP or OPT['dbgts']:
        return
    a("  s_waitcnt lgkmcnt(0)")
    a("  s_mul_i32 s33, s2, 5")
    a("  s_add_u32 s33, s33, s30")
    a("  s_lshl_b32 s33, s33, 6")
    a(f"  s_add_u32 s33, s33, {WS_TS}")
    a("  v_mov_b32 v8, s33")
    a("  s_mov_b64 exec, 1")
    for q in range(4):
        for r in range(4):
            a(f"  v_mov_b32 v{12+r}, s{64+2*(4*q+r)}")
        a(f"  global_store_dwordx4 v8, v[12:15], s[26:27] offset:{16*q}")
        a("  s_nop 1")

def tau_setup():
    a("  s_and_b32 s31, s31, 0xff")
    a("  s_mul_i32 s31, s31, 5")
    a("  s_add_u32 s31, s31, 59")
    a("  s_and_b32 s31, s31, 0xff")
    a(f"  v_mov_b32 {VTAU}, s31")

def xid_value(dst):
    a(f"  s_getreg_b32 {dst}, hwreg(HW_REG_XCC_ID, 0, 4)")
    a(f"  s_lshl_b32 {dst}, {dst}, 24")
    a(f"  s_mul_i32 s33, s31, 0x010101")
    a(f"  s_or_b32 {dst}, {dst}, s33")

def tr_lane_setup():
    a(f"""  v_bfe_u32 v14, {VL}, 2, 2        ; r4
  v_lshl_add_u32 v15, v13, 2, v14  ; row = 4*g4+r4
  v_bfe_u32 v16, v15, 1, 2         ; f
  v_and_b32 v17, 3, {VL}           ; c
  v_lshlrev_b32 v15, 7, v15
  v_lshl_add_u32 v15, v17, 3, v15  ; row*128 + c*8""")

def h_unit_index(dst):
    a(f"""  s_lshl_b32 {dst}, s28, 4
  s_add_u32 {dst}, {dst}, s29
  s_sub_u32 {dst}, {dst}, 16       ; P: g*16 + p
  s_lshl_b32 s33, s29, 3
  s_add_u32 s33, s33, s28
  s_add_u32 s33, s33, 128          ; W: 128 + i*8 + g
  s_cmp_lt_u32 s29, 16
  s_cselect_b32 {dst}, s33, {dst}""")

a(header(256, 320, LDS_BYTES))
stamp(0)
if OPT['deadline'] or OPT['probe1']:
    a("  s_memrealtime s[96:97]")
a(f"""  s_load_dwordx16 s[4:19], s[0:1], 0
  s_load_dwordx8 s[20:27], s[0:1], 64
  s_getpc_b64 s[34:35]
L_pc:
  v_lshlrev_b32 v1, {5 if OPT['prefetch'] else 0}, v0
  v_min_u32 v1, {"L_code_end - L_pc - 4" if OPT['prefetch'] else 0}, v1
  s_cmpk_ge_u32 s2, 0x100
  s_cbranch_scc1 L_end
  global_load_dword v3, v1, s[34:35]
  v_lshrrev_b32 v2, 6, v0
  v_and_b32 {VL}, 63, v0
  v_readfirstlane_b32 s30, v2
  v_lshrrev_b32 v8, 3, {VL}
  v_bfe_u32 v9, {VL}, 4, 2         ; (row>>1)&3
  v_and_b32 v10, 7, {VL}
  v_lshlrev_b32 v11, 1, v9
  v_xor_b32 v11, v11, v10
  v_lshlrev_b32 v11, 4, v11        ; *16 bytes
  v_lshl_add_u32 v18, v8, 13, v11
  s_and_b32 s28, s2, 7             ; g
  s_cmp_eq_u32 s30, 0
  s_cbranch_scc1 L_aux0
  s_lshr_b32 s42, s2, 6            ; kp
  s_mul_i32 s42, s42, {112*8192}
  s_lshl_b32 s43, s28, 10
  s_add_u32 s42, s42, s43
  s_bfe_u32 s43, s2, 0x30003       ; j&7
  s_lshl_b32 s43, s43, 7
  s_add_u32 s42, s42, s43
  s_sub_u32 s36, s30, 1            ; v
  s_lshl_b32 s43, s36, 16          ; v*8*8192
  s_add_u32 s42, s42, s43
  v_add_u32 v18, s42, v18
  s_lshl_b32 s43, s36, 10
  s_add_u32 m0, s43, {RA}
  s_lshl_b32 s44, 1, 18
  s_movk_i32 s45, 0x1000
  s_waitcnt lgkmcnt(0)
  global_load_lds_dwordx4 v18, s[10:11]{NT}
  s_add_u32 m0, m0, s45
  v_add_u32 v18, s44, v18
  global_load_lds_dwordx4 v18, s[10:11]{NT}
  s_add_u32 m0, m0, s45
  v_add_u32 v18, s44, v18
  global_load_lds_dwordx4 v18, s[10:11]{NT}
  s_cmp_ge_u32 s36, 2
  s_cbranch_scc1 L_wq_done
  s_add_u32 m0, m0, s45
  v_add_u32 v18, s44, v18
  global_load_lds_dwordx4 v18, s[10:11]{NT}
""")
a("L_wq_done:")
if OPT['probe1']:
    a(f"""L_pr1:
  s_memrealtime s[56:57]
  s_waitcnt lgkmcnt(0)
  s_sub_u32 s33, s56, s96
  s_cmp_lt_u32 s33, {OPT['probe1']}
  s_cbranch_scc1 L_pr1""")
if STAMP in (1, 2):
    for k in range(1, 16):
        a(f"  s_mov_b32 s{64+2*k}, 0")
if STAMP == 3: stamp(15)
a(f"""  s_load_dword s31, s[26:27], {WS_E}
  s_lshr_b32 s29, s2, 3            ; j
  s_mov_b32 s32, 0xff
  v_lshrrev_b32 v13, 4, {VL}       ; g4
  s_and_b32 s37, s36, 1            ; kh
  s_lshr_b32 s38, s36, 1           ; dh""")
stamp(1)
h_unit_index("s45")
a(f"""  s_mul_i32 s46, s45, 9363
  s_lshr_b32 s46, s46, 16          ; cbh = u1/7
  s_mul_i32 s47, s46, 7
  s_sub_u32 s47, s45, s47          ; kp = u1%7
  s_min_u32 s46, s46, 27
  s_lshl_b32 s46, s46, 7
  s_mul_i32 s47, s47, {64*3584}
  s_add_u32 s46, s46, s47
  s_mul_i32 s47, s36, {8*3584}
  s_add_u32 s46, s46, s47
  s_cmp_lt_u32 s45, 196
  s_cselect_b32 s45, 0, 0x40000000
  v_mul_u32_u24 v18, 3584, v8
  v_add3_u32 v18, v18, v11, s45
  s_lshl_b32 s47, s36, 10
  s_add_u32 s47, s47, {RC}
""")
srd(52, 16, SZ['w1'])
for k in range(2):
    a(f"  s_add_u32 m0, s47, {k*4096}")
    a(f"  s_add_u32 s45, s46, {k*4*8*3584}")
    dma("v18", 52, "s45")
a(f"""  v_xor_b32 v12, v9, v10
  v_lshlrev_b32 v12, 4, v12
  s_and_b32 s39, s29, 1            ; b
  s_lshr_b32 s40, s29, 1           ; s (0..15)
  s_lshl_b32 s41, s39, 3
  s_add_u32 s41, s41, s28          ; b*8+g
  s_lshl_b32 s41, s41, 21          ; *4096*512
  s_lshl_b32 s42, s40, 15          ; s*64*512
  s_add_u32 s41, s41, s42
  s_add_u32 s41, s41, {3072*512}   ; first key row of this workgroup (LDS row 8j+r holds key j+8r)
  s_lshl_b32 s43, s36, 10
  s_add_u32 s57, s41, s43          ;    source + 2v*512
  s_lshl_b32 s43, s36, 11          ;    LDS + 16v*128
  s_lshl_b32 s56, s36, 7
  s_add_u32 s41, s41, s56
  s_lshl_b32 s56, s36, 13          ;    ... LDS + v*8192
  v_lshlrev_b32 v18, 12, v8
  v_add_u32 v19, v18, v12
  v_xor_b32 v20, 64, v19
  v_add_u32 v21, v18, v11          ; V voffset
""")
srd(44, 6, SZ['k'])
srd(48, 8, SZ['v'])
for cb in range(4):
    for jj in range(2):
        a(f"  s_add_u32 m0, s43, {KBUF + cb*8192 + jj*1024}")
        a(f"  s_add_u32 s42, s57, {cb*128 + jj*512}")
        dma("v20" if jj & 1 else "v19", 44, "s42")
tr_lane_setup()
a(f"""  ; q projection tile nb = v : addresses
  v_xor_b32 v24, s36, v16
  v_lshl_add_u32 v24, v24, 5, v15
  v_add_u32 v24, {RA}, v24
  v_and_b32 v25, 1, {VL}
  v_mul_u32_u24 v25, 896, v25
  v_lshl_add_u32 v25, v13, 3, v25
  s_lshr_b32 s42, s29, 3           ; kp
  s_mul_i32 s45, s42, 224
  s_add_u32 s45, s45, {XB}
  v_add_u32 v25, s45, v25
  s_lshl_b32 s45, s28, 14
  s_lshl_b32 s42, s42, 12
  s_add_u32 s45, s45, s42
  s_and_b32 s42, s29, 7
  s_lshl_b32 s42, s42, 8
  s_add_u32 s45, s45, s42
  s_lshl_b32 s42, s36, 6
  s_add_u32 s45, s45, s42
  s_add_u32 s45, s45, {WS_QP}
  v_lshlrev_b32 v26, 2, {VL}
  v_add_u32 v26, s45, v26
""")
a("  s_waitcnt lgkmcnt(0)")
tau_setup()
a("  s_waitcnt vmcnt(10)")
a("  s_barrier")
for st in range(3):
    a(f"  ds_read2_b64 v[{32+4*st}:{35+4*st}], v25 offset0:{8*st} offset1:{8*st+4}")
    a(f"  ds_read_b64_tr_b16 v[{48+4*st}:{49+4*st}], v24 offset:{st*4096}")
    a(f"  ds_read_b64_tr_b16 v[{50+4*st}:{51+4*st}], v24 offset:{st*4096+2048}")
a(f"  ds_read_b64 v[44:45], v25 offset:192")
a(f"  ds_read_b64_tr_b16 v[60:61], v24 offset:{3*4096}")
for st in range(3):
    a(f"  s_waitcnt lgkmcnt({8 - 3*st})")
    c = "0" if st == 0 else "v[64:67]"
    a(f"  v_mfma_f32_16x16x32_bf16 v[64:67], v[{32+4*st}:{35+4*st}], v[{48+4*st}:{51+4*st}], {c}")
a("  s_waitcnt lgkmcnt(0)")
a("  v_mfma_f32_16x16x16_bf16 v[68:71], v[44:45], v[60:61], 0")
a("  s_mov_b64 exec, 0xffff")
a("  s_nop 6")
a("  v_add_f32 v64, v64, v68")
a("  v_add_f32 v65, v65, v69")
tagit("v64", "v64")
tagit("v65", "v65")
a(f"""  global_store_dword v26, v64, s[26:27] sc1
  global_store_dword v26, v65, s[26:27] offset:2048 sc1
  s_mov_b64 exec, -1
""")
stamp(14)
a("  s_waitcnt vmcnt(10)")
a("  s_barrier")
for j8 in range(8):
    a(f"  s_add_u32 m0, s56, {VBUF + j8*1024}")
    a(f"  s_add_u32 s42, s41, {j8*512}")
    dma("v21", 48, "s42")
stamp(2)
a(f"""  ; K operand address: (16v + key)*128 + (g4 ^ ((key>>1)&7))*16
  v_and_b32 v22, 15, {VL}
  v_bfe_u32 v23, {VL}, 1, 3
  v_xor_b32 v23, v23, v13
  v_lshlrev_b32 v23, 4, v23
  v_lshl_add_u32 v22, v22, 7, v23
  v_add_u32 v22, s43, v22
  v_xor_b32 v23, 64, v22
  s_add_u32 s42, s56, {VBUF}
""")
for nb in range(4):
    a(f"  v_xor_b32 v{24+nb}, {nb}, v16")
    a(f"  v_lshl_add_u32 v{24+nb}, v{24+nb}, 5, v15")
    a(f"  v_add_u32 v{24+nb}, s42, v{24+nb}")
a(f"""  ; q operand address: QB + (l&1)*576 + g4*16
  v_and_b32 v28, 1, {VL}
  v_mul_u32_u24 v28, 576, v28
  v_lshl_add_u32 v28, v13, 4, v28
  v_add_u32 v28, {QB}, v28
  s_lshl_b32 s42, s28, 14
  s_lshl_b32 s45, s39, 11
  s_add_u32 s42, s42, s45
  s_lshl_b32 s45, s37, 10
  s_add_u32 s42, s42, s45
  s_lshl_b32 s45, s38, 9
  s_add_u32 s42, s42, s45
  s_add_u32 s42, s42, {WS_QP}
  v_lshrrev_b32 v29, 5, {VL}       ; kpl
  v_and_b32 v30, 31, {VL}          ; c
  v_lshlrev_b32 v31, 12, v29
  v_lshl_add_u32 v31, v30, 4, v31
  v_add_u32 v51, s42, v31
  v_add_u32 v52, 8192, v51
  s_lshl_b32 s42, s28, 7
  s_add_u32 s42, s42, {WS_XID}
  v_lshl_add_u32 v50, v30, 2, s42
  s_mul_i32 s42, s37, 576
  s_lshl_b32 s45, s38, 8
  s_add_u32 s42, s42, s45
  s_add_u32 s42, s42, {QB}
  v_lshlrev_b32 v30, 3, v30
  v_lshl_add_u32 v30, v29, 2, v30
  v_add_u32 v53, s42, v30
  s_lshl_b32 s42, s28, 1
  s_add_u32 s42, s42, s39
  s_lshl_b32 s42, s42, 4
  s_add_u32 s42, s42, s40
  s_mul_i32 s42, s42, {OPS}
  s_lshl_b32 s45, s36, 9
  s_add_u32 s42, s42, s45
  s_add_u32 s42, s42, {WS_OP}
  v_lshlrev_b32 v54, 3, {VL}
  v_add_u32 v54, s42, v54
  v_and_b32 v228, 3, {VL}
  v_lshlrev_b32 v228, 7, v228
  v_add_u32 v228, s42, v228
  v_and_b32 v229, 1, {VL}
  v_lshlrev_b32 v230, 4, v229
  v_add_u32 v230, {MX}, v230
  s_lshl_b32 s45, s36, 2
  v_add_u32 v229, s45, v230
  v_and_b32 v231, 1, {VL}
  v_mul_u32_u24 v231, 144, v231
  v_lshl_add_u32 v231, v13, 3, v231
  v_add_u32 v231, {PB}, v231
  s_lshl_b32 s45, s36, 5
  v_add_u32 v232, s45, v231
  s_lshl_b32 s42, s28, 1
  s_add_u32 s42, s42, s38
  s_mul_i32 s33, s42, {16*OPS}
  s_lshl_b32 s56, s29, 7
  s_add_u32 s33, s33, s56
  s_lshl_b32 s56, s37, 6
  s_add_u32 s33, s33, s56
  s_add_u32 s33, s33, {WS_OP}
  v_lshrrev_b32 v6, 2, {VL}        ; s16
  v_mul_u32_u24 v7, {OPS}, v6
  v_and_b32 v62, 3, {VL}
  v_lshl_add_u32 v7, v62, 4, v7
  v_add_u32 v62, s33, v7
  v_mov_b32 v46, 0x3f803f80
  v_mov_b32 v47, 0x3f803f80
  v_mov_b32 v48, 0x3f803f80
  v_mov_b32 v49, 0x3f803f80
  v_and_b32 v55, 1, {VL}
  v_cmp_eq_u32 s[58:59], 1, v55
""")
xid_value("s34")
a("  s_mov_b32 s35, 0xffffff")
if OPT['prio']: a("  s_setprio 2")
a("  s_waitcnt vmcnt(8)")
stamp(3)
a("  s_barrier")
if OPT['opre'] == 2 and OPT['opos'] == 2:
    a("  s_mov_b64 exec, 0xff")
    a("  global_load_dword v2, v228, s[26:27] sc1")
    a("  s_mov_b64 exec, -1")
for t in range(8):
    a(f"  ds_read_b128 v[{64+4*t}:{67+4*t}], v{23 if t & 1 else 22} offset:{KBUF + (t>>1)*8192}")

def w_weight_setup():
    srd(44, 12, SZ['wo'])
    srd(52, 18, SZ['w2'])
    a(f"""  s_lshl_b32 s42, s28, 9
  s_lshl_b32 s61, s29, 4
  s_add_u32 s42, s42, s61          ; g*512 + 16j
  s_lshl_b32 s61, s38, 8
  s_add_u32 s42, s42, s61          ; + h*256
  s_lshl_b32 s61, s37, 3
  s_add_u32 s42, s42, s61          ; + half*8
  s_mul_i32 s61, s42, 896
  s_lshl_b32 s60, s36, 10
  s_add_u32 s60, s60, {RA}
  v_mul_u32_u24 v19, 896, v8
  v_add_u32 v19, v19, v11
  s_lshl_b32 s33, s28, 4
  s_add_u32 s33, s33, s29          ; u
  s_min_u32 s42, s33, 111
  s_lshl_b32 s42, s42, 4
  s_lshl_b32 s62, s37, 3
  s_add_u32 s42, s42, s62          ; 16u + q*8   (q = v&1)
  s_mul_i32 s42, s42, 896
  s_lshl_b32 s62, s38, 7
  s_add_u32 s62, s42, s62          ; + (v>>1)*128
  s_cmp_lt_u32 s33, 112
  s_cselect_b32 s33, 0, 0x40000000
  v_add_u32 v20, s33, v19
  s_lshl_b32 s63, s38, 11
  s_lshl_b32 s33, s37, 10
  s_add_u32 s63, s63, s33
  s_add_u32 s63, s63, {RB}         ; RB + (v>>1)*2048 + q*1024
""")

def w_weight_loads(tagname):
    for cb in range(7):
        a(f"  s_add_u32 m0, s60, {cb*4096}")
        a(f"  s_add_u32 s33, s61, {cb*128}")
        dma("v19", 44, "s33")
    for k in range(4):
        if k == 3:
            a("  s_cmp_lg_u32 s38, 0")
            a(f"  s_cbranch_scc1 L_w2_done{tagname}")
        a(f"  s_add_u32 m0, s63, {k*4096}")
        a(f"  s_add_u32 s33, s62, {k*256}")
        dma("v20", 52, "s33")
    a(f"L_w2_done{tagname}:")

def own_pretouch():
    fl = OPT['oflag'].replace('_', ' ') if OPT['oflag'] != 'none' else ''
    a("  s_mov_b64 exec, 0xf")
    a(f"  global_load_dword v2, v228, s[26:27] {fl}")
    a("  s_mov_b64 exec, -1")

def q_loads():
    a("  global_load_dwordx4 v[32:35], v51, s[26:27] sc1")
    a("  global_load_dwordx4 v[36:39], v52, s[26:27] sc1")
    a("  global_load_dword v41, v50, s[26:27] sc1")

a("  s_cmp_lt_u32 s29, 16")
a("  s_cbranch_scc0 L_q_p")
w_weight_setup()
if OPT['wpos'] == 'first':
    pass
if OPT['wpos'] == 'q':
    a(f"  s_waitcnt vmcnt({OPT['qwait'] + (1 if OPT['opre'] == 2 and OPT['opos'] == 2 else 0)})")
    stamp(4)
    q_loads()
    if OPT['opre'] == 2 and OPT['opos'] == 1:
        own_pretouch()
    if OPT['a2']:
        a("  s_barrier")
    w_weight_loads("a")
    if OPT['opre'] == 1:
        fl = OPT['oflag'].replace('_', ' ') if OPT['oflag'] != 'none' else ''
        a(f"  global_load_dword v2, v62, s[26:27] {fl}")
        a(f"  global_load_dword v3, v63, s[26:27] {fl}")
    if OPT['opre'] == 2 and OPT['opos'] == 0:
        own_pretouch()
    a("  s_mov_b32 s33, 0")
    NY = {0: 10, 1: 12, 2: 11}[OPT['opre']]
    if OPT['opre'] == 2 and OPT['opos'] == 2: NY = 10
    a("  s_cmp_lg_u32 s38, 0")
    a("  s_cbranch_scc1 L_qw10")
    a(f"  s_waitcnt vmcnt({NY+1})")
    a("  s_branch L_qchk")
    a("L_qw10:")
    a(f"  s_waitcnt vmcnt({NY})")
    a("  s_branch L_qchk")
a(f"""L_q_p:
  s_mov_b32 s33, 0
  s_waitcnt vmcnt({OPT['qwait'] + (1 if OPT['opre'] == 2 and OPT['opos'] == 2 else 0)})
""")
stamp(4)
if OPT['opre'] == 2 and OPT['opos'] != 2:
    q_loads()
    own_pretouch()
    a("  s_waitcnt vmcnt(1)")
    a("  s_branch L_qchk")
a("L_qpoll:")
q_loads()
a("  s_waitcnt vmcnt(0)")
a("L_qchk:")
check_regs("v40", range(32, 40))
a("  v_xor_b32 v41, s34, v41")
a("  v_and_b32 v40, 0xff, v40")
a("  v_and_or_b32 v40, v41, s35, v40")
poll_end("v40", "L_qpoll", "L_qok", masked=True)
stamp(5)
rec(13, "s33")
if OPT['wpos'] == 'mid':
    a("  s_cmp_lt_u32 s29, 16")
    a("  s_cbranch_scc0 L_nomid")
    w_weight_loads("m")
    a("L_nomid:")
a(f"""  v_add_f32 v32, v32, v36
  v_add_f32 v33, v33, v37
  v_add_f32 v34, v34, v38
  v_add_f32 v35, v35, v39
  v_cmp_ne_u32 vcc, 0, v41
  s_nop 0
  v_permlane32_swap_b32 v32, v34
  v_permlane32_swap_b32 v33, v35
  v_add_f32 v32, v32, v34
  v_add_f32 v33, v33, v35
  v_cvt_pk_bf16_f32 v32, v32, v33
  ds_write_b32 v53, v32
  s_cmp_eq_u64 vcc, 0
  s_cselect_b32 s35, {1 if OPT['fast'] else 0}, 0
  s_waitcnt lgkmcnt(0)
  s_barrier
""")
stamp(6)
for t in range(8):
    a(f"  ds_read_b128 v[{128+4*t}:{131+4*t}], v28 offset:{64*t}")
a(f"  s_mov_b32 s42, {C_LOG2E_16:#x}")
def v_read(i):
    st, nb, hf = i >> 3, (i >> 1) & 3, i & 1
    r = 160 + (st*4 + nb)*4 + 2*hf
    a(f"  ds_read_b64_tr_b16 v[{r}:{r+1}], v{24+nb} offset:{st*4096 + hf*2048}")
for t in range(8):
    a(f"  s_waitcnt lgkmcnt({7 if t == 0 else 7 - t + t})")
    c = "0" if t == 0 else "v[32:35]"
    a(f"  v_mfma_f32_16x16x32_bf16 v[32:35], v[{64+4*t}:{67+4*t}], v[{128+4*t}:{131+4*t}], {c}")
    v_read(t)
a(f"""  s_nop 6
  v_max3_f32 v44, v32, v33, v34
  v_max_f32 v44, v44, v35
  v_mov_b32 v45, v44
  s_nop 1
  v_permlane16_swap_b32 v44, v45
  v_max_f32 v44, v44, v45
  v_mov_b32 v45, v44
  s_nop 1
  v_permlane32_swap_b32 v44, v45
  v_max_f32 v44, v44, v45
  s_mov_b64 exec, 3
  ds_write_b32 v229, v44
  s_mov_b64 exec, -1
  s_waitcnt lgkmcnt(0)
  s_barrier
  ds_read_b128 v[36:39], v230
""")
for i in range(8, 16):
    v_read(i)
a(f"""  s_mov_b32 s56, 0x00030003
  s_mov_b32 s57, 0x00030003
  s_waitcnt lgkmcnt(8)
  v_max3_f32 v44, v36, v37, v38
  v_max_f32 v44, v44, v39
  v_mul_f32 v44, s42, v44
""")
for r in range(4):
    a(f"  v_fma_f32 v{32+r}, v{32+r}, s42, -v44")
for r in range(4):
    a(f"  v_exp_f32 v{32+r}, v{32+r}")
a(f"""  s_nop 0
  v_cvt_pk_bf16_f32 v40, v32, v33
  v_cvt_pk_bf16_f32 v41, v34, v35
  s_mov_b64 exec, s[56:57]
  ds_write_b64 v232, v[40:41]
  s_mov_b64 exec, -1
  s_waitcnt lgkmcnt(0)
  s_barrier
  ds_read2_b64 v[32:35], v231 offset0:0 offset1:4
  ds_read2_b64 v[36:39], v231 offset0:8 offset1:12
  s_waitcnt lgkmcnt(1)
  v_mfma_f32_16x16x32_bf16 v[224:227], v[32:35], v[46:49], 0
""")
for nb in range(4):
    a(f"  v_mfma_f32_16x16x32_bf16 v[{192+4*nb}:{195+4*nb}], v[32:35], v[{160+4*nb}:{163+4*nb}], 0")
a("  s_waitcnt lgkmcnt(0)")
a("  v_mfma_f32_16x16x32_bf16 v[224:227], v[36:39], v[46:49], v[224:227]")
for nb in range(4):
    a(f"  v_mfma_f32_16x16x32_bf16 v[{192+4*nb}:{195+4*nb}], v[36:39], v[{176+4*nb}:{179+4*nb}], v[{192+4*nb}:{195+4*nb}]")
a(f"""  s_cmp_eq_u32 s35, 1
  s_nop 2
  v_cndmask_b32 v45, v224, v225, s[58:59]
  v_rcp_f32 v56, v224
  v_rcp_f32 v57, v225
  v_log_f32 v45, v45
  s_nop 0
  v_add_f32 v45, v45, v44
""")
tagit("v59", "v45")
for h in range(2):
    for k in range(4):
        a(f"  v_mul_f32_dpp v{32+h}, v{192+4*k+h}, v{56+h} quad_perm:[0,1,2,3] row_mask:{1<<k:#x} bank_mask:0xf")
a("  v_cvt_pk_bf16_f32 v58, v32, v33")
a(f"""  s_cbranch_scc1 L_pub_local
  global_store_dwordx2 v54, v[58:59], s[26:27] sc1
  s_branch L_pub_done
L_pub_local:                       ; every reader shares this die's L2
  global_store_dwordx2 v54, v[58:59], s[26:27]
L_pub_done:
""")
stamp(7)
a("  s_cmp_lt_u32 s29, 16")
a("  s_cbranch_scc1 L_wstage")
a("  s_barrier")
dump_stamps()
a("  s_endpgm")

a("L_wstage:")
if OPT['wpos'] == 'late':
    w_weight_loads("l")
a(f"""  v_xor_b32 v24, s36, v16
  v_lshl_add_u32 v24, v24, 5, v15
  v_add_u32 v25, {RB}, v24
  v_add_u32 v24, {RA}, v24
  v_and_b32 v26, 1, {VL}
  v_lshlrev_b32 v27, 5, v26
  v_lshl_add_u32 v27, v13, 3, v27
  v_add_u32 v27, {HV}, v27
  v_lshlrev_b32 v28, 6, v26
  v_lshl_add_u32 v28, v13, 3, v28
  v_add_u32 v28, {OV}, v28
  v_and_b32 v54, 3, {VL}
  v_lshlrev_b32 v54, 2, v54
  v_and_b32 v55, 1, v13
  v_lshl_add_u32 v54, v55, 5, v54
  v_lshrrev_b32 v55, 1, v13
  v_lshl_add_u32 v54, v55, 1, v54
  s_lshl_b32 s42, s38, 6
  s_lshl_b32 s45, s37, 4
  s_add_u32 s42, s42, s45
  s_add_u32 s42, s42, {OV}
  v_add_u32 v54, s42, v54
  s_lshl_b32 s42, s28, 4
  s_add_u32 s42, s42, s29
  s_mul_i32 s42, s42, {APS}
  s_lshl_b32 s45, s36, {8 if OPT['appad'] else 7}
  s_add_u32 s42, s42, s45
  s_add_u32 s42, s42, {WS_AP}
  v_lshlrev_b32 v55, 3, {VL}
  v_add_u32 v55, s42, v55
  v_and_b32 v56, 7, {VL}
  v_lshlrev_b32 v56, 3, v56
  v_bfe_u32 v57, {VL}, 3, 1
  v_lshl_add_u32 v56, v57, 7, v56
  v_lshl_add_u32 v56, v13, 10, v56
  v_add_u32 v56, s42, v56
  v_add_u32 v57, 4096, v56
  s_lshl_b32 s42, s38, 2
  s_add_u32 s42, s42, {GT}
  v_mov_b32 v29, s42
  ds_read_b32 v50, v29
  s_mov_b32 s56, 0xf000f000
  s_mov_b32 s57, 0xf000f000
  s_mov_b32 s33, 0
  s_waitcnt vmcnt(0) lgkmcnt(0)
""")
if OPT['early']:
    a("  global_load_dwordx4 v[32:35], v62, s[26:27] sc1")
a("  s_barrier")
stamp(8)
if not OPT['early']:
    a("  global_load_dwordx4 v[32:35], v62, s[26:27] sc1")
if OPT['ffn_early']:
    a("  ds_read_b64 v[106:107], v27")
    for cb in range(7):
        a(f"  ds_read_b64_tr_b16 v[{92+2*cb}:{93+2*cb}], v25 offset:{cb*2048}")
    a("  s_waitcnt lgkmcnt(0)")
    for cb in range(7):
        a(f"  v_mfma_f32_16x16x16_bf16 v[{110+4*cb}:{113+4*cb}], v[106:107], v[{92+2*cb}:{93+2*cb}], 0")
a("  s_waitcnt vmcnt(0)")
a("  s_branch L_ochk")
a(f"""L_opoll:
  global_load_dwordx4 v[32:35], v62, s[26:27] sc1
  s_waitcnt vmcnt(0)
L_ochk:
""")
check_regs("v48", [33, 35])
poll_end("v48", "L_opoll", "L_ook")
stamp(9)
rec(12, "s33")
CHAIN = """  v_mov_b32 v52, v33
  v_mov_b32 v53, v35
  v_lshlrev_b32 v40, 16, v32       ; d0h0
  v_and_b32 v41, 0xffff0000, v32   ; d0h1
  v_permlane16_swap_b32 v52, v53
  v_lshlrev_b32 v42, 16, v34       ; d1h0
  v_and_b32 v43, 0xffff0000, v34   ; d1h1
  v_max_f32 v52, v52, v53          ; rows: h0(01) h1(01) h0(23) h1(23)
  v_mov_b32 v53, v52
  SLOT
  SLOT
  v_permlane32_swap_b32 v52, v53
  v_max_f32 v52, v52, v53
  SLOT
  SLOT
  v_max_f32_dpp v52, v52, v52 row_shr:4 row_mask:0xf bank_mask:0xf
  SLOT
  SLOT
  v_max_f32_dpp v52, v52, v52 row_shr:8 row_mask:0xf bank_mask:0xf
  SLOT
  v_readlane_b32 s42, v52, 15
  v_readlane_b32 s45, v52, 31
  SLOT
  SLOT
  v_subrev_f32 v33, s42, v33
  v_subrev_f32 v35, s45, v35
  v_exp_f32 v52, v33               ; weight h0
  v_exp_f32 v53, v35               ; weight h1
  SLOT
  v_mul_f32 v40, v40, v52
  v_mul_f32 v41, v41, v53
  v_mul_f32 v42, v42, v52
  v_mul_f32 v43, v43, v53
  SLOT
  v_permlane16_swap_b32 v40, v41
  v_permlane16_swap_b32 v42, v43
  v_permlane16_swap_b32 v52, v53
  v_add_f32 v40, v40, v41
  v_add_f32 v42, v42, v43
  v_add_f32 v52, v52, v53
  v_mov_b32 v53, v52
  SLOT
  SLOT
  v_permlane32_swap_b32 v40, v42
  v_permlane32_swap_b32 v52, v53
  v_add_f32 v40, v40, v42
  v_add_f32 v52, v52, v53          ; rows h0 h1 h0 h1
  SLOT
  v_add_f32_dpp v40, v40, v40 row_shr:4 row_mask:0xf bank_mask:0xf
  v_add_f32_dpp v52, v52, v52 row_shr:4 row_mask:0xf bank_mask:0xf
  SLOT
  v_add_f32_dpp v40, v40, v40 row_shr:8 row_mask:0xf bank_mask:0xf
  v_add_f32_dpp v52, v52, v52 row_shr:8 row_mask:0xf bank_mask:0xf
  v_mul_f32 v40, v40, v50          ; * gate
  v_rcp_f32 v52, v52"""
W2R = ["  ds_read_b64 v[106:107], v27"] + [f"  ds_read_b64_tr_b16 v[{92+2*cb}:{93+2*cb}], v25 offset:{cb*2048}" for cb in range(7)]
WOR = []
for cb in range(7):
    WOR.append(f"  ds_read_b64_tr_b16 v[{64+4*cb}:{65+4*cb}], v24 offset:{cb*4096}")
    WOR.append(f"  ds_read_b64_tr_b16 v[{66+4*cb}:{67+4*cb}], v24 offset:{cb*4096+2048}")
assert OPT['ffn_early']
queue = WOR[:]
for ln in CHAIN.split("\n"):
    if ln.strip() == "SLOT":
        a(queue.pop(0) if queue else "  s_nop 0")
    else:
        a(ln)
if STAMP == 3: stamp(11)
a(f"""  s_mov_b64 exec, s[56:57]
  v_mul_f32 v40, v40, v52
  v_cvt_pk_bf16_f32 v40, v40, v40
  ds_write_b16 v54, v40
  s_mov_b64 exec, -1
  s_waitcnt lgkmcnt(0)""")
a(f"""  s_barrier
""")
if STAMP == 3: stamp(12)
a(f"""  ds_read2_b64 v[40:43], v28 offset0:0 offset1:4
  s_waitcnt lgkmcnt(0)
""")
if STAMP == 3: stamp(13)
for cb in range(7):
    a(f"  v_mfma_f32_16x16x32_bf16 v[{110+4*cb}:{113+4*cb}], v[40:43], v[{64+4*cb}:{67+4*cb}], v[{110+4*cb}:{113+4*cb}]")
assert OPT['appad'] == 1
a("  s_mov_b32 s56, -1")
a("  s_mov_b32 s57, 0xffff")
a("  s_nop 0")
for k in (1, 2, 3):
    for h in range(2):
        a(f"  v_mov_b32_dpp v{110+h}, v{110+4*k+h} quad_perm:[0,1,2,3] row_mask:{1<<k:#x} bank_mask:0xf")
tagit("v110", "v110")
a("  global_store_dwordx2 v56, v[110:111], s[26:27] sc1")
for k in (1, 2):
    for h in range(2):
        a(f"  v_mov_b32_dpp v{126+h}, v{126+4*k+h} quad_perm:[0,1,2,3] row_mask:{1<<k:#x} bank_mask:0xf")
tagit("v126", "v126")
a("  s_mov_b64 exec, s[56:57]")
a("  global_store_dwordx2 v57, v[126:127], s[26:27] sc1")
stamp(10)
if OPT['apack']:
    a("  s_waitcnt vmcnt(0)")
    stamp(11)
a("  s_mov_b64 exec, -1")
dump_stamps()
a("  s_endpgm")

a("L_aux0:")
if STAMP in (1, 2):
    for k in range(1, 16):
        a(f"  s_mov_b32 s{64+2*k}, 0")
a(f"""  s_lshr_b32 s29, s2, 3            ; j
  s_mov_b32 s32, 0xff
  v_lshrrev_b32 v13, 4, {VL}       ; g4
  v_lshlrev_b32 v18, 4, {VL}
  v_add_u32 v21, 1024, v18
  s_waitcnt lgkmcnt(0)
  s_load_dword s31, s[26:27], {WS_E}
""")
stamp(1)
srd(52, 4, SZ['x'])
a(f"""  s_mov_b32 m0, {XB}
  s_cmp_ge_u32 s29, 16
  buffer_load_dwordx4 v18, s[52:55], 0 offen lds
  s_mov_b32 m0, {XB+1024}
  s_nop 0
  buffer_load_dwordx4 v21, s[52:55], 0 offen lds
  s_cbranch_scc1 L_aux
  s_mov_b32 s56, -1
  s_mov_b32 s57, 0x00ffffff
  s_mov_b64 exec, s[56:57]
  global_load_dwordx4 v[70:73], v18, s[4:5]
  global_load_dwordx4 v[74:77], v18, s[4:5] offset:896
  global_load_dwordx4 v[78:81], v18, s[20:21]
  s_mov_b64 exec, -1
""")
a("L_aux:")
tr_lane_setup()
for nb in range(4):
    a(f"  v_xor_b32 v{24+nb}, {nb}, v16")
    a(f"  v_lshl_add_u32 v{24+nb}, v{24+nb}, 5, v15")
    a(f"  v_add_u32 v{24+nb}, {RC}, v{24+nb}")
h_unit_index("s39")
a(f"""  s_mul_i32 s40, s39, 9363
  s_lshr_b32 s40, s40, 16          ; cbh
  s_mul_i32 s41, s40, 7
  s_sub_u32 s41, s39, s41          ; kp
  v_and_b32 v28, 1, {VL}
  v_mul_u32_u24 v28, 896, v28
  v_lshl_add_u32 v28, v13, 3, v28
  s_lshl_b32 s42, s41, 7
  s_add_u32 s42, s42, {XB}
  v_add_u32 v28, s42, v28
  s_mul_i32 s42, s41, {2*7168}
  s_lshl_b32 s43, s40, 8
  s_add_u32 s42, s42, s43
  s_add_u32 s42, s42, {WS_HP}
  v_lshlrev_b32 v31, 2, {VL}
  v_add_u32 v31, s42, v31
  v_add_u32 v30, 7168, v31
  s_waitcnt lgkmcnt(0)
""")
tau_setup()
xid_value("s34")
a(f"""  s_lshl_b32 s42, s28, 7
  s_lshl_b32 s43, s29, 2
  s_add_u32 s42, s42, s43
  s_add_u32 s42, s42, {WS_XID}
  v_mov_b32 v6, s42
  v_mov_b32 v7, s34
  s_waitcnt vmcnt(0)
  s_mov_b64 exec, 1
  global_store_dword v6, v7, s[26:27] sc1
  s_mov_b64 exec, -1
  s_barrier                        ; barrier Q
  s_barrier                        ; barrier Q2
""")
stamp(2)
if OPT['tlb']:
    a(f"""  s_lshl_b32 s42, s28, 9
  s_lshl_b32 s43, s29, 4
  s_add_u32 s42, s42, s43
  s_mul_i32 s42, s42, 896
  v_mov_b32 v6, s42
  v_mov_b32 v7, 0
  s_mov_b64 exec, 1
  global_load_dword v2, v6, s[12:13] nt
  global_load_dword v2, v7, s[18:19] offset:64 nt
  global_load_dword v2, v7, s[22:23] nt
  s_mov_b64 exec, -1
""")
a("  s_cmp_ge_u32 s39, 196")
a("  s_cbranch_scc1 L_nohpub")
for st in range(2):
    a(f"  ds_read2_b64 v[{48+4*st}:{51+4*st}], v28 offset0:{8*st} offset1:{8*st+4}")
    for nb in range(4):
        r = 96 + 16*st + 4*nb
        a(f"  ds_read_b64_tr_b16 v[{r}:{r+1}], v{24+nb} offset:{st*4096}")
        a(f"  ds_read_b64_tr_b16 v[{r+2}:{r+3}], v{24+nb} offset:{st*4096+2048}")
for st in range(2):
    a(f"  s_waitcnt lgkmcnt({9 - 9*st})")
    for nb in range(4):
        r = 96 + 16*st + 4*nb
        c = "0" if st == 0 else f"v[{32+4*nb}:{35+4*nb}]"
        a(f"  v_mfma_f32_16x16x32_bf16 v[{32+4*nb}:{35+4*nb}], v[{48+4*st}:{51+4*st}], v[{r}:{r+3}], {c}")
a("  s_nop 7")
for r in range(2):
    a(f"  v_permlane16_swap_b32 v{32+r}, v{36+r}")
    a(f"  v_permlane16_swap_b32 v{40+r}, v{44+r}")
a("  s_nop 1")
for r in range(2):
    a(f"  v_permlane32_swap_b32 v{32+r}, v{40+r}")
a("  s_nop 1")
tagit("v32", "v32")
tagit("v33", "v33")
a("""  global_store_dword v31, v32, s[26:27] sc1
  global_store_dword v30, v33, s[26:27] sc1
L_nohpub:""")
stamp(5)
a("  s_cmp_ge_u32 s29, 16")
a("  s_cbranch_scc1 L_aux_a")
a("  v_mov_b32 v44, 0")
a("  v_mov_b32 v45, 0")
for r in range(4):
    a(f"  v_lshlrev_b32 v46, 16, v{78+r}")
    a(f"  v_and_b32 v47, 0xffff0000, v{78+r}")
    for b in range(2):
        a(f"  v_lshlrev_b32 v48, 16, v{70+4*b+r}")
        a(f"  v_and_b32 v49, 0xffff0000, v{70+4*b+r}")
        a(f"  v_mul_f32 v48, v48, v46")
        a(f"  v_mul_f32 v49, v49, v47")
        a(f"  v_cvt_pk_bf16_f32 v48, v48, v49")
        a(f"  v_lshlrev_b32 v49, 16, v48")
        a(f"  v_and_b32 v48, 0xffff0000, v48")
        a(f"  v_add_f32 v{44+b}, v{44+b}, v49")
        a(f"  v_add_f32 v{44+b}, v{44+b}, v48")
a(f"""  v_cmp_gt_u32 vcc, 56, {VL}
  s_nop 1
  v_cndmask_b32 v44, 0, v44, vcc
  v_cndmask_b32 v45, 0, v45, vcc
  s_nop 1
""")
for sh in (1, 2, 4, 8):
    a(f"  v_add_f32_dpp v44, v44, v44 row_shr:{sh} row_mask:0xf bank_mask:0xf")
    a(f"  v_add_f32_dpp v45, v45, v45 row_shr:{sh} row_mask:0xf bank_mask:0xf")
    a("  s_nop 0")
a(f"""  v_add_f32_dpp v44, v44, v44 row_bcast:15 row_mask:0xa bank_mask:0xf
  v_add_f32_dpp v45, v45, v45 row_bcast:15 row_mask:0xa bank_mask:0xf
  s_nop 0
  v_add_f32_dpp v44, v44, v44 row_bcast:31 row_mask:0xc bank_mask:0xf
  v_add_f32_dpp v45, v45, v45 row_bcast:31 row_mask:0xc bank_mask:0xf
  s_nop 0
  v_readlane_b32 s42, v44, 63
  v_readlane_b32 s43, v45, 63
  s_nop 1
  v_and_b32 v46, 1, {VL}
  v_cmp_eq_u32 vcc, 0, v46
  v_mov_b32 v47, s43
  v_mov_b32 v48, s42
  v_cndmask_b32 v47, v47, v48, vcc
  v_mul_f32 v47, 0xbfb8aa3b, v47   ; -log2e * z
  v_exp_f32 v47, v47
  s_nop 0
  v_add_f32 v47, 1.0, v47
  v_rcp_f32 v47, v47               ; g[b = lane&1]
  s_nop 0
  v_sub_f32 v82, 1.0, v47          ; 1-g
  v_lshlrev_b32 v46, 2, v46
  v_add_u32 v46, {GT}, v46
  s_mov_b64 exec, 3
  ds_write_b32 v46, v47
  s_mov_b64 exec, -1
  s_waitcnt lgkmcnt(0)
""")
stamp(3)
a("L_aux_a:")
a("  s_barrier")
a("  s_cmp_lt_u32 s29, 16")
a("  s_cbranch_scc1 L_aux_w")
a("  s_cmp_lt_u32 s29, 23")
a("  s_cbranch_scc1 L_final")
if OPT['wb']:
    a(f"""  s_cmp_lg_u32 s29, 31
  s_cbranch_scc1 L_nowb
  s_mul_i32 s42, s28, {64*OPS}
  s_add_u32 s42, s42, {WS_OP}
  v_mul_u32_u24 v24, {OPS}, {VL}
  v_add_u32 v24, s42, v24
  s_barrier                        ; barrier B
  s_barrier                        ; barrier C
  s_mov_b32 s33, 0
L_wbgate:
  global_load_dwordx4 v[32:35], v24, s[26:27] sc1
  s_waitcnt vmcnt(0)
""")
    check_regs("v14", [33, 35])
    poll_end("v14", "L_wbgate", "L_wbgate_ok")
    a("  buffer_wbl2 sc1")
    a("L_nowb:")
dump_stamps()
a("  s_endpgm")

a(f"""L_final:
  s_sub_u32 s36, s29, 16           ; p
  s_lshl_b32 s37, s36, 3
  s_add_u32 s37, s37, s28          ; c
  v_lshrrev_b32 v29, 2, {VL}       ; u16
  v_mul_u32_u24 v30, {APS}, v29
  v_and_b32 v31, 3, {VL}
  v_lshl_add_u32 v30, v31, 4, v30
  s_lshl_b32 s42, s37, {7 if OPT['appad'] else 6}
  s_add_u32 s42, s42, {WS_AP}
  v_add_u32 v30, s42, v30
""")
for k in range(8):
    a(f"  v_add_u32 v{16+k}, {k*16*APS}, v30")
a(f"""  ; out + b*896 + (8c + 2*c4 + (r>>1))*2
  v_and_b32 v28, 1, v13
  v_mul_u32_u24 v28, 896, v28
  v_lshl_add_u32 v28, v31, 2, v28
  v_lshrrev_b32 v29, 1, v13
  v_lshl_add_u32 v28, v29, 1, v28
  s_lshl_b32 s42, s37, 4
  v_add_u32 v28, s42, v28
  s_mov_b32 s56, 0xf000f000
  s_mov_b32 s57, 0xf000f000
  v_mov_b32 v29, {WS_E}
  s_barrier                        ; barrier B
  s_barrier                        ; barrier X1
  s_barrier                        ; barrier X2
  s_barrier                        ; barrier C
  s_mov_b32 s33, 0
""")
if OPT['fdelay']:
    a(f"""L_fd:
  s_memrealtime s[60:61]
  s_waitcnt lgkmcnt(0)
  s_sub_u32 s62, s60, s64
  s_cmp_lt_u32 s62, {OPT['fdelay']}
  s_cbranch_scc1 L_fd""")
stamp(8)
if OPT['fgate'] == 2:
    a(f"""  s_mul_i32 s42, s28, {32*OPS}
  s_add_u32 s42, s42, {WS_OP}
  v_and_b32 v24, 31, {VL}
  v_mul_u32_u24 v24, {OPS}, v24
  v_add_u32 v24, s42, v24
L_fgate:
  global_load_dwordx4 v[32:35], v24, s[26:27] sc1
  s_waitcnt vmcnt(0)
""")
    check_regs("v14", [33, 35])
    poll_end("v14", "L_fgate", "L_fgate_ok")
if OPT['fgate'] == 1:
    a(f"""  s_mul_i32 s42, s28, {16*APS}
  v_add_u32 v24, s42, v30
L_fgate:
  global_load_dwordx4 v[32:35], v24, s[26:27] sc1
  s_waitcnt vmcnt(0)
""")
    check_regs("v14", [32, 34])
    poll_end("v14", "L_fgate", "L_fgate_ok")
NS = OPT['fsets']
def fbase(i): return 32 + 32*i
def fissue(i):
    for k in range(8):
        a(f"  global_load_dwordx4 v[{fbase(i)+4*k}:{fbase(i)+4*k+3}], v{16+k}, s[26:27] sc1")
for i in range(NS):
    fissue(i)
a("L_fpoll:")
for i in range(NS):
    a(f"  s_waitcnt vmcnt({8*(NS-1)})")
    check_regs("v14", [fbase(i)+4*k+q for k in range(8) for q in (0, 2)])
    a("  v_and_b32 v14, 0xff, v14")
    a("  v_cmp_ne_u32 vcc, 0, v14")
    a("  s_add_u32 s33, s33, 1")
    a(f"  s_cmp_gt_u32 s33, {OPT['spin']}")
    a(f"  s_cbranch_scc1 L_fok{i}")
    a(f"  s_cbranch_vccz L_fok{i}")
    if OPT['fsleep']:
        a(f"  s_sleep {OPT['fsleep']}")
    fissue(i)
a("  s_branch L_fpoll")
TB = 144
for i in range(NS):
    a(f"L_fok{i}:")
    for k in range(4):
        for h in range(2):
            x = fbase(i) + 8*k + 2*h
            a(f"  v_pk_add_f32 v[{TB+4*k+2*h}:{TB+4*k+2*h+1}], v[{x}:{x+1}], v[{x+4}:{x+5}]")
    if i < NS-1:
        a("  s_branch L_fsum")
a("L_fsum:")
stamp(9)
rec(12, "s33")
for h in range(2):
    a(f"  v_pk_add_f32 v[{TB+2*h}:{TB+2*h+1}], v[{TB+2*h}:{TB+2*h+1}], v[{TB+4+2*h}:{TB+5+2*h}]")
    a(f"  v_pk_add_f32 v[{TB+8+2*h}:{TB+9+2*h}], v[{TB+8+2*h}:{TB+9+2*h}], v[{TB+12+2*h}:{TB+13+2*h}]")
for h in range(2):
    a(f"  v_pk_add_f32 v[{160+2*h}:{161+2*h}], v[{TB+2*h}:{TB+2*h+1}], v[{TB+8+2*h}:{TB+9+2*h}]")
a(f"""  s_nop 1
  v_permlane16_swap_b32 v160, v161
  v_permlane16_swap_b32 v162, v163
  v_add_f32 v160, v160, v161
  v_add_f32 v162, v162, v163
  s_nop 1
  v_permlane32_swap_b32 v160, v162
  v_add_f32 v160, v160, v162
  s_nop 1
  v_add_f32_dpp v160, v160, v160 row_shr:4 row_mask:0xf bank_mask:0xf
  s_nop 1
  v_add_f32_dpp v160, v160, v160 row_shr:8 row_mask:0xf bank_mask:0xf
  s_mov_b64 exec, s[56:57]
  v_cvt_pk_bf16_f32 v160, v160, v160
  global_store_short v28, v160, s[22:23]{' ' + OPT['outflag'].replace('_', ' ') if OPT['outflag'] != 'none' else ''}
  s_cmp_lg_u32 s37, 0
  s_cbranch_scc1 L_noE
  s_mov_b64 exec, 1
  global_store_dword v29, {VTAU}, s[26:27]{' ' + OPT['outflag'].replace('_', ' ') if OPT['outflag'] != 'none' else ''}
L_noE:
  s_mov_b64 exec, -1
""")
if OPT['deadline']:
    a(f"""L_dl:
  s_memrealtime s[56:57]
  s_waitcnt lgkmcnt(0)
  s_sub_u32 s33, s56, s96
  s_cmp_lt_u32 s33, {OPT['deadline']}
  s_cbranch_scc1 L_dl""")
stamp(10, final=True)
if OPT['dbgts']:
    a("  s_waitcnt lgkmcnt(0)")
    a("  s_cmp_lg_u32 s37, 0")
    a("  s_cbranch_scc1 L_nodbg")
    a("  s_mov_b64 exec, 1")
    a("  v_mov_b32 v8, 0")
    for q in range(4):
        for r in range(4):
            k = 4*q + r
            a(f"  s_sub_u32 s33, s{64+2*k}, s64")
            a(f"  v_mov_b32 v{12+r}, s33")
        a(f"  global_store_dwordx4 v8, v[12:15], s[24:25] offset:{16*q}")
        a("  s_nop 1")
    a("L_nodbg:")
else:
    dump_stamps()
a("  s_endpgm")

a("L_aux_w:")
a(f"""  ; h gather set-up: lanes (kp = l>>3 (0..6), b = (l>>2)&1, q4 = l&3) ; HP + (kp*2+b)*7168 + (16u + 4*q4)*4
  s_lshl_b32 s38, s28, 4
  s_add_u32 s38, s38, s29          ; u = g*16 + j
  v_lshrrev_b32 v85, 3, {VL}
  v_bfe_u32 v86, {VL}, 2, 1
  v_lshl_add_u32 v85, v85, 1, v86
  v_mul_u32_u24 v85, 7168, v85
  v_and_b32 v87, 3, {VL}
  v_lshl_add_u32 v85, v87, 4, v85
  s_lshl_b32 s42, s38, 6
  s_add_u32 s42, s42, {WS_HP}
  v_add_u32 v85, s42, v85
  v_readlane_b32 s42, v82, 0
  v_readlane_b32 s43, v82, 1
  v_cmp_eq_u32 vcc, 0, v86
  s_nop 0
  v_mov_b32 v36, s43
  v_mov_b32 v37, s42
  v_cndmask_b32 v83, v36, v37, vcc
  v_lshlrev_b32 v84, 5, v86
  v_lshl_add_u32 v84, v87, 3, v84
  v_add_u32 v84, {HV}, v84          ; HV + b*32 + q4*8
""")
a(f"""  v_mov_b32 v32, 0
  v_mov_b32 v33, 0
  v_mov_b32 v34, 0
  v_mov_b32 v35, 0
  s_mov_b32 s56, -1
  s_mov_b32 s57, 0x00ffffff
  s_mov_b32 s33, 0
  s_setprio 3
""")
if OPT['a2'] and OPT['wpos'] == 'q':
    a("  s_barrier                        ; barrier A2")
a(f"""  s_cmp_ge_u32 s38, 112
  s_cbranch_scc1 L_hskip
  s_mov_b64 exec, s[56:57]
  global_load_dwordx4 v[32:35], v85, s[26:27] sc1
  s_mov_b64 exec, -1
L_hskip:
""")
if OPT['prio']: a("  s_setprio 0")
a("""  s_barrier                        ; barrier B
  s_barrier                        ; barrier X1
  s_barrier                        ; barrier X2
""")
stamp(6)
a(f"""  s_cmp_ge_u32 s38, 112
  s_cbranch_scc1 L_hdone
  s_mov_b64 exec, s[56:57]
  s_waitcnt vmcnt(0)
  s_branch L_hchk
L_hpoll:
  global_load_dwordx4 v[32:35], v85, s[26:27] sc1
  s_waitcnt vmcnt(0)
L_hchk:
""")
check_regs("v40", range(32, 36))
poll_end("v40", "L_hpoll", "L_hok")
a("  s_mov_b64 exec, -1")
a("  s_nop 1")
for r in range(4):
    a(f"  v_add_f32_dpp v{32+r}, v{32+r}, v{32+r} row_ror:8 row_mask:0xf bank_mask:0xf")
for r in range(4):
    a(f"  v_mov_b32 v{36+r}, v{32+r}")
a("  s_nop 1")
for r in range(4):
    a(f"  v_permlane16_swap_b32 v{32+r}, v{36+r}")
for r in range(4):
    a(f"  v_add_f32 v{32+r}, v{32+r}, v{36+r}")
for r in range(4):
    a(f"  v_mov_b32 v{36+r}, v{32+r}")
a("  s_nop 1")
for r in range(4):
    a(f"  v_permlane32_swap_b32 v{32+r}, v{36+r}")
for r in range(4):
    a(f"  v_add_f32 v{32+r}, v{32+r}, v{36+r}")
a("L_hdone:")
for r in range(4):
    a(f"  v_max_f32 v{32+r}, 0, v{32+r}")
    a(f"  v_mul_f32 v{32+r}, v{32+r}, v83")
a(f"""  v_cvt_pk_bf16_f32 v32, v32, v33
  v_cvt_pk_bf16_f32 v33, v34, v35
  s_mov_b64 exec, 0xff
  ds_write_b64 v84, v[32:33]
  s_mov_b64 exec, -1
  s_waitcnt lgkmcnt(0)
""")
stamp(7)
a("  s_barrier                        ; barrier D1")
dump_stamps()
a("L_end:")
a("  s_endpgm")
a("L_code_end:")
a(footer(vgpr=240, sgpr=100))
open(sys.argv[1], "w").write(a.text())
```

```python
import sys
from asmlib import *

OPT = dict(stamp=0, spin=400000, nt=1, qwait=3, sleep=0, fsleep=0, fast=1, tlb=0, prefetch=1,
           ops=2176, aps=3712, deadline=0, dbgts=0, wpos='q', a2=1, opre=2, fsets=1, outflag='sc1', apack=0, fdelay=0, appad=1, early=0, probe1=0, amp=-1, ampa=0, ampf=10, ampwg=37, ampwave=1, fgate=2, ffn_early=1, oflag='sc1', opos=1, wb=0, prio=0, kvfar=1, dsmax=1)
for a_ in sys.argv[2:]:
    k, v = a_.split('=')
    assert k in OPT, k
    OPT[k] = int(v) if v.lstrip('-').isdigit() else v
STAMP = OPT['stamp']
OPS = OPT['ops']; APS = 7296 if OPT['appad'] else OPT['aps']

WS_E = 0
WS_XID = 0x400
WS_QP = 0x1000
WS_HP = 0x21000
WS_OP = 0x40000
WS_AP = 0x180000
WS_TS = 0x300000
assert WS_HP + 7*2*7168 <= WS_OP and WS_OP + 512*OPS <= WS_AP and WS_AP + 128*APS <= WS_TS

KBUF = 0
VBUF = 32768
RA = 65536
RB = 94208
RC = 108544
XB = 116736
QB = 118784
OV = 119936
HV = 120064
GT = 120128
MX = 120192
PB = 120224
LDS_BYTES = 120576

C_LOG2E_16 = 0x3DB8AA3B
NT = " nt" if OPT['nt'] else ""
VTAU = "v4"
VL = "v5"

a = Asm()
def stamp(k, final=False):
    if STAMP == 1 or (STAMP == 2 and (k == 0 or final)) or (STAMP == 3 and k in (0, OPT['amp'], OPT['ampa'])):
        a(f"  s_memrealtime s[{64+2*k}:{65+2*k}]")
def rec(k, sreg):
    if STAMP == 1:
        a(f"  s_mov_b32 s{64+2*k}, {sreg}")

def srd(dst, ptr, size):
    a(f"  s_mov_b32 s{dst}, s{ptr}")
    a(f"  s_mov_b32 s{dst+1}, s{ptr+1}")
    a(f"  s_mov_b32 s{dst+2}, {size}")
    a(f"  s_mov_b32 s{dst+3}, 0x20000")

def dma(voff, srdreg, soff):
    a(f"  buffer_load_dwordx4 {voff}, s[{srdreg}:{srdreg+3}], {soff} offen{NT} lds")

def tagit(dst, src):
    a(f"  v_bfi_b32 {dst}, s32, {VTAU}, {src}")

def check_regs(acc, regs, first=True):
    regs = list(regs)
    for r in regs:
        a(f"  v_xor_b32 v{r}, s31, v{r}")
    if first:
        if len(regs) >= 3:
            a(f"  v_or3_b32 {acc}, v{regs[0]}, v{regs[1]}, v{regs[2]}"); regs = regs[3:]
        else:
            a(f"  v_or_b32 {acc}, v{regs[0]}, v{regs[1]}"); regs = regs[2:]
    while len(regs) >= 2:
        a(f"  v_or3_b32 {acc}, {acc}, v{regs[0]}, v{regs[1]}"); regs = regs[2:]
    if regs:
        a(f"  v_or_b32 {acc}, {acc}, v{regs[0]}")

def poll_end(acc, lab_retry, lab_ok, cnt="s33", sleep=None, masked=False):
    sleep = OPT['sleep'] if sleep is None else sleep
    if not masked:
        a(f"  v_and_b32 {acc}, 0xff, {acc}")
    a(f"  v_cmp_ne_u32 vcc, 0, {acc}")
    a(f"  s_add_u32 {cnt}, {cnt}, 1")
    a(f"  s_cmp_gt_u32 {cnt}, {OPT['spin']}")
    a(f"  s_cbranch_scc1 {lab_ok}")
    if sleep:
        a(f"  s_cbranch_vccz {lab_ok}")
        a(f"  s_sleep {sleep}")
        a(f"  s_branch {lab_retry}")
    else:
        a(f"  s_cbranch_vccnz {lab_retry}")
    a(f"{lab_ok}:")

def dump_stamps():
    if STAMP == 3:
        lab = a.label("L_amp")
        k = OPT['amp']
        a(f"""  s_cmp_lg_u32 s2, {OPT['ampwg']}
  s_cbranch_scc1 {lab}_x
  s_cmp_lg_u32 s30, {OPT['ampwave']}
  s_cbranch_scc1 {lab}_x
  s_waitcnt lgkmcnt(0)
  s_sub_u32 s33, s{64+2*k}, s{64+2*OPT['ampa']}
  s_mul_i32 s33, s33, {OPT['ampf']}
  s_add_u32 s33, s33, 1200
{lab}:
  s_memrealtime s[56:57]
  s_waitcnt lgkmcnt(0)
  s_sub_u32 s56, s56, s64
  s_cmp_lt_u32 s56, s33
  s_cbranch_scc1 {lab}
{lab}_x:""")
        return
    if not STAMP or OPT['dbgts']:
        return
    a("  s_waitcnt lgkmcnt(0)")
    a("  s_mul_i32 s33, s2, 5")
    a("  s_add_u32 s33, s33, s30")
    a("  s_lshl_b32 s33, s33, 6")
    a(f"  s_add_u32 s33, s33, {WS_TS}")
    a("  v_mov_b32 v8, s33")
    a("  s_mov_b64 exec, 1")
    for q in range(4):
        for r in range(4):
            a(f"  v_mov_b32 v{12+r}, s{64+2*(4*q+r)}")
        a(f"  global_store_dwordx4 v8, v[12:15], s[26:27] offset:{16*q}")
        a("  s_nop 1")

def tau_setup():
    a("  s_and_b32 s31, s31, 0xff")
    a("  s_mul_i32 s31, s31, 5")
    a("  s_add_u32 s31, s31, 59")
    a("  s_and_b32 s31, s31, 0xff")
    a(f"  v_mov_b32 {VTAU}, s31")

def xid_value(dst):
    a(f"  s_getreg_b32 {dst}, hwreg(HW_REG_XCC_ID, 0, 4)")
    a(f"  s_lshl_b32 {dst}, {dst}, 24")
    a(f"  s_mul_i32 s33, s31, 0x010101")
    a(f"  s_or_b32 {dst}, {dst}, s33")

def tr_lane_setup():
    a(f"""  v_bfe_u32 v14, {VL}, 2, 2        ; r4
  v_lshl_add_u32 v15, v13, 2, v14  ; row = 4*g4+r4
  v_bfe_u32 v16, v15, 1, 2         ; f
  v_and_b32 v17, 3, {VL}           ; c
  v_lshlrev_b32 v15, 7, v15
  v_lshl_add_u32 v15, v17, 3, v15  ; row*128 + c*8""")

def h_unit_index(dst):
    a(f"""  s_lshl_b32 {dst}, s28, 4
  s_add_u32 {dst}, {dst}, s29
  s_sub_u32 {dst}, {dst}, 16       ; P: g*16 + p
  s_lshl_b32 s33, s29, 3
  s_add_u32 s33, s33, s28
  s_add_u32 s33, s33, 128          ; W: 128 + i*8 + g
  s_cmp_lt_u32 s29, 16
  s_cselect_b32 {dst}, s33, {dst}""")

DOC = """; Fused decode step: gated mix of (sliding-window GQA attention + output projection) and a ReLU FFN.
; launch are never taken.  Stores are write-through (sc1) unless the reading workgroups were seen (XCC id words) on the same die."""
a(header(256, 320, LDS_BYTES, DOC))
stamp(0)
if OPT['deadline'] or OPT['probe1']:
    a("  s_memrealtime s[96:97]")
a(f"""  s_load_dwordx16 s[4:19], s[0:1], 0
  s_load_dwordx8 s[20:27], s[0:1], 64
  s_getpc_b64 s[34:35]
L_pc:
  v_lshlrev_b32 v1, {5 if OPT['prefetch'] else 0}, v0
  v_min_u32 v1, {"L_code_end - L_pc - 4" if OPT['prefetch'] else 0}, v1
  s_cmpk_ge_u32 s2, 0x100
  s_cbranch_scc1 L_end
  global_load_dword v3, v1, s[34:35]
  v_lshrrev_b32 v2, 6, v0
  v_and_b32 {VL}, 63, v0
  v_readfirstlane_b32 s30, v2
  v_lshrrev_b32 v8, 3, {VL}
  v_bfe_u32 v9, {VL}, 4, 2         ; (row>>1)&3
  v_and_b32 v10, 7, {VL}
  v_lshlrev_b32 v11, 1, v9
  v_xor_b32 v11, v11, v10
  v_lshlrev_b32 v11, 4, v11        ; *16 bytes
  v_lshl_add_u32 v18, v8, 13, v11
  s_and_b32 s28, s2, 7             ; g
  s_cmp_eq_u32 s30, 0
  s_cbranch_scc1 L_aux0
  s_lshr_b32 s42, s2, 6            ; kp
  s_mul_i32 s42, s42, {112*8192}
  s_lshl_b32 s43, s28, 10
  s_add_u32 s42, s42, s43
  s_bfe_u32 s43, s2, 0x30003       ; j&7
  s_lshl_b32 s43, s43, 7
  s_add_u32 s42, s42, s43
  s_sub_u32 s36, s30, 1            ; v
  s_lshl_b32 s43, s36, 16          ; v*8*8192
  s_add_u32 s42, s42, s43
  v_add_u32 v18, s42, v18
  s_lshl_b32 s43, s36, 10
  s_add_u32 m0, s43, {RA}
  s_lshl_b32 s44, 1, 18
  s_movk_i32 s45, 0x1000
  s_waitcnt lgkmcnt(0)
  global_load_lds_dwordx4 v18, s[10:11]{NT}
  s_add_u32 m0, m0, s45
  v_add_u32 v18, s44, v18
  global_load_lds_dwordx4 v18, s[10:11]{NT}
  s_add_u32 m0, m0, s45
  v_add_u32 v18, s44, v18
  global_load_lds_dwordx4 v18, s[10:11]{NT}
  s_cmp_ge_u32 s36, 2
  s_cbranch_scc1 L_wq_done
  s_add_u32 m0, m0, s45
  v_add_u32 v18, s44, v18
  global_load_lds_dwordx4 v18, s[10:11]{NT}
""")
a("L_wq_done:")
if OPT['probe1']:
    a(f"""L_pr1:
  s_memrealtime s[56:57]
  s_waitcnt lgkmcnt(0)
  s_sub_u32 s33, s56, s96
  s_cmp_lt_u32 s33, {OPT['probe1']}
  s_cbranch_scc1 L_pr1""")
if STAMP in (1, 2):
    for k in range(1, 16):
        a(f"  s_mov_b32 s{64+2*k}, 0")
if STAMP == 3: stamp(15)
a(f"""  s_load_dword s31, s[26:27], {WS_E}
  s_lshr_b32 s29, s2, 3            ; j
  s_mov_b32 s32, 0xff
  v_lshrrev_b32 v13, 4, {VL}       ; g4
  s_and_b32 s37, s36, 1            ; kh
  s_lshr_b32 s38, s36, 1           ; dh""")
stamp(1)
h_unit_index("s45")
a(f"""  s_mul_i32 s46, s45, 9363
  s_lshr_b32 s46, s46, 16          ; cbh = u1/7
  s_mul_i32 s47, s46, 7
  s_sub_u32 s47, s45, s47          ; kp = u1%7
  s_min_u32 s46, s46, 27
  s_lshl_b32 s46, s46, 7
  s_mul_i32 s47, s47, {64*3584}
  s_add_u32 s46, s46, s47
  s_mul_i32 s47, s36, {8*3584}
  s_add_u32 s46, s46, s47
  s_cmp_lt_u32 s45, 196
  s_cselect_b32 s45, 0, 0x40000000
  v_mul_u32_u24 v18, 3584, v8
  v_add3_u32 v18, v18, v11, s45
  s_lshl_b32 s47, s36, 10
  s_add_u32 s47, s47, {RC}
""")
srd(52, 16, SZ['w1'])
for k in range(2):
    a(f"  s_add_u32 m0, s47, {k*4096}")
    a(f"  s_add_u32 s45, s46, {k*4*8*3584}")
    dma("v18", 52, "s45")
a(f"""  v_xor_b32 v12, v9, v10
  v_lshlrev_b32 v12, 4, v12
  s_and_b32 s39, s29, 1            ; b
  s_lshr_b32 s40, s29, 1           ; s (0..15)
  s_lshl_b32 s41, s39, 3
  s_add_u32 s41, s41, s28          ; b*8+g
  s_lshl_b32 s41, s41, 21          ; *4096*512
  s_lshl_b32 s42, s40, 15          ; s*64*512
  s_add_u32 s41, s41, s42
  s_add_u32 s41, s41, {3072*512}   ; first key row of this workgroup (LDS row 8j+r holds key j+8r)
  s_lshl_b32 s43, s36, 10
  s_add_u32 s57, s41, s43          ;    source + 2v*512
  s_lshl_b32 s43, s36, 11          ;    LDS + 16v*128
  s_lshl_b32 s56, s36, 7
  s_add_u32 s41, s41, s56
  s_lshl_b32 s56, s36, 13          ;    ... LDS + v*8192
  v_lshlrev_b32 v18, 12, v8
  v_add_u32 v19, v18, v12
  v_xor_b32 v20, 64, v19
  v_add_u32 v21, v18, v11          ; V voffset
""")
srd(44, 6, SZ['k'])
srd(48, 8, SZ['v'])
for cb in range(4):
    for jj in range(2):
        a(f"  s_add_u32 m0, s43, {KBUF + cb*8192 + jj*1024}")
        a(f"  s_add_u32 s42, s57, {cb*128 + jj*512}")
        dma("v20" if jj & 1 else "v19", 44, "s42")
tr_lane_setup()
a(f"""  ; q projection tile nb = v : addresses
  v_xor_b32 v24, s36, v16
  v_lshl_add_u32 v24, v24, 5, v15
  v_add_u32 v24, {RA}, v24
  v_and_b32 v25, 1, {VL}
  v_mul_u32_u24 v25, 896, v25
  v_lshl_add_u32 v25, v13, 3, v25
  s_lshr_b32 s42, s29, 3           ; kp
  s_mul_i32 s45, s42, 224
  s_add_u32 s45, s45, {XB}
  v_add_u32 v25, s45, v25
  s_lshl_b32 s45, s28, 14
  s_lshl_b32 s42, s42, 12
  s_add_u32 s45, s45, s42
  s_and_b32 s42, s29, 7
  s_lshl_b32 s42, s42, 8
  s_add_u32 s45, s45, s42
  s_lshl_b32 s42, s36, 6
  s_add_u32 s45, s45, s42
  s_add_u32 s45, s45, {WS_QP}
  v_lshlrev_b32 v26, 2, {VL}
  v_add_u32 v26, s45, v26
""")
a("  s_waitcnt lgkmcnt(0)")
tau_setup()
a("  s_waitcnt vmcnt(10)")
a("  s_barrier")
for st in range(3):
    a(f"  ds_read2_b64 v[{32+4*st}:{35+4*st}], v25 offset0:{8*st} offset1:{8*st+4}")
    a(f"  ds_read_b64_tr_b16 v[{48+4*st}:{49+4*st}], v24 offset:{st*4096}")
    a(f"  ds_read_b64_tr_b16 v[{50+4*st}:{51+4*st}], v24 offset:{st*4096+2048}")
a(f"  ds_read_b64 v[44:45], v25 offset:192")
a(f"  ds_read_b64_tr_b16 v[60:61], v24 offset:{3*4096}")
for st in range(3):
    a(f"  s_waitcnt lgkmcnt({8 - 3*st})")
    c = "0" if st == 0 else "v[64:67]"
    a(f"  v_mfma_f32_16x16x32_bf16 v[64:67], v[{32+4*st}:{35+4*st}], v[{48+4*st}:{51+4*st}], {c}")
a("  s_waitcnt lgkmcnt(0)")
a("  v_mfma_f32_16x16x16_bf16 v[68:71], v[44:45], v[60:61], 0")
a("  s_mov_b64 exec, 0xffff")
a("  s_nop 6")
a("  v_add_f32 v64, v64, v68")
a("  v_add_f32 v65, v65, v69")
tagit("v64", "v64")
tagit("v65", "v65")
a(f"""  global_store_dword v26, v64, s[26:27] sc1
  global_store_dword v26, v65, s[26:27] offset:2048 sc1
  s_mov_b64 exec, -1
""")
stamp(14)
a("  s_waitcnt vmcnt(10)")
a("  s_barrier")
for j8 in range(8):
    a(f"  s_add_u32 m0, s56, {VBUF + j8*1024}")
    a(f"  s_add_u32 s42, s41, {j8*512}")
    dma("v21", 48, "s42")
stamp(2)
a(f"""  ; K operand address: (16v + key)*128 + (g4 ^ ((key>>1)&7))*16
  v_and_b32 v22, 15, {VL}
  v_bfe_u32 v23, {VL}, 1, 3
  v_xor_b32 v23, v23, v13
  v_lshlrev_b32 v23, 4, v23
  v_lshl_add_u32 v22, v22, 7, v23
  v_add_u32 v22, s43, v22
  v_xor_b32 v23, 64, v22
  s_add_u32 s42, s56, {VBUF}
""")
for nb in range(4):
    a(f"  v_xor_b32 v{24+nb}, {nb}, v16")
    a(f"  v_lshl_add_u32 v{24+nb}, v{24+nb}, 5, v15")
    a(f"  v_add_u32 v{24+nb}, s42, v{24+nb}")
a(f"""  ; q operand address: QB + (l&1)*576 + g4*16
  v_and_b32 v28, 1, {VL}
  v_mul_u32_u24 v28, 576, v28
  v_lshl_add_u32 v28, v13, 4, v28
  v_add_u32 v28, {QB}, v28
  s_lshl_b32 s42, s28, 14
  s_lshl_b32 s45, s39, 11
  s_add_u32 s42, s42, s45
  s_lshl_b32 s45, s37, 10
  s_add_u32 s42, s42, s45
  s_lshl_b32 s45, s38, 9
  s_add_u32 s42, s42, s45
  s_add_u32 s42, s42, {WS_QP}
  v_lshrrev_b32 v29, 5, {VL}       ; kpl
  v_and_b32 v30, 31, {VL}          ; c
  v_lshlrev_b32 v31, 12, v29
  v_lshl_add_u32 v31, v30, 4, v31
  v_add_u32 v51, s42, v31
  v_add_u32 v52, 8192, v51
  s_lshl_b32 s42, s28, 7
  s_add_u32 s42, s42, {WS_XID}
  v_lshl_add_u32 v50, v30, 2, s42
  s_mul_i32 s42, s37, 576
  s_lshl_b32 s45, s38, 8
  s_add_u32 s42, s42, s45
  s_add_u32 s42, s42, {QB}
  v_lshlrev_b32 v30, 3, v30
  v_lshl_add_u32 v30, v29, 2, v30
  v_add_u32 v53, s42, v30
  s_lshl_b32 s42, s28, 1
  s_add_u32 s42, s42, s39
  s_lshl_b32 s42, s42, 4
  s_add_u32 s42, s42, s40
  s_mul_i32 s42, s42, {OPS}
  s_lshl_b32 s45, s36, 9
  s_add_u32 s42, s42, s45
  s_add_u32 s42, s42, {WS_OP}
  v_lshlrev_b32 v54, 3, {VL}
  v_add_u32 v54, s42, v54
  v_and_b32 v228, 3, {VL}
  v_lshlrev_b32 v228, 7, v228
  v_add_u32 v228, s42, v228
  v_and_b32 v229, 1, {VL}
  v_lshlrev_b32 v230, 2, v229
  v_add_u32 v230, {MX}, v230
  v_mov_b32 v229, 0xff800000
  s_mov_b64 exec, 3
  ds_write_b32 v230, v229
  s_mov_b64 exec, -1
  v_and_b32 v231, 1, {VL}
  v_mul_u32_u24 v231, 144, v231
  v_lshl_add_u32 v231, v13, 3, v231
  v_add_u32 v231, {PB}, v231
  s_lshl_b32 s45, s36, 5
  v_add_u32 v232, s45, v231
  s_lshl_b32 s42, s28, 1
  s_add_u32 s42, s42, s38
  s_mul_i32 s33, s42, {16*OPS}
  s_lshl_b32 s56, s29, 7
  s_add_u32 s33, s33, s56
  s_lshl_b32 s56, s37, 6
  s_add_u32 s33, s33, s56
  s_add_u32 s33, s33, {WS_OP}
  v_lshrrev_b32 v6, 2, {VL}        ; s16
  v_mul_u32_u24 v7, {OPS}, v6
  v_and_b32 v62, 3, {VL}
  v_lshl_add_u32 v7, v62, 4, v7
  v_add_u32 v62, s33, v7
  v_mov_b32 v46, 0x3f803f80
  v_mov_b32 v47, 0x3f803f80
  v_mov_b32 v48, 0x3f803f80
  v_mov_b32 v49, 0x3f803f80
  v_and_b32 v55, 1, {VL}
  v_cmp_eq_u32 s[58:59], 1, v55
""")
xid_value("s34")
a("  s_mov_b32 s35, 0xffffff")
if OPT['prio']: a("  s_setprio 2")
a("  s_waitcnt vmcnt(8) lgkmcnt(0)")
stamp(3)
a("  s_barrier")
if OPT['opre'] == 2 and OPT['opos'] == 2:
    a("  s_mov_b64 exec, 0xff")
    a("  global_load_dword v2, v228, s[26:27] sc1")
    a("  s_mov_b64 exec, -1")
for t in range(8):
    a(f"  ds_read_b128 v[{64+4*t}:{67+4*t}], v{23 if t & 1 else 22} offset:{KBUF + (t>>1)*8192}")

def w_weight_setup():
    srd(44, 12, SZ['wo'])
    srd(52, 18, SZ['w2'])
    a(f"""  s_lshl_b32 s42, s28, 9
  s_lshl_b32 s61, s29, 4
  s_add_u32 s42, s42, s61          ; g*512 + 16j
  s_lshl_b32 s61, s38, 8
  s_add_u32 s42, s42, s61          ; + h*256
  s_lshl_b32 s61, s37, 3
  s_add_u32 s42, s42, s61          ; + half*8
  s_mul_i32 s61, s42, 896
  s_lshl_b32 s60, s36, 10
  s_add_u32 s60, s60, {RA}
  v_mul_u32_u24 v19, 896, v8
  v_add_u32 v19, v19, v11
  s_lshl_b32 s33, s28, 4
  s_add_u32 s33, s33, s29          ; u
  s_min_u32 s42, s33, 111
  s_lshl_b32 s42, s42, 4
  s_lshl_b32 s62, s37, 3
  s_add_u32 s42, s42, s62          ; 16u + q*8   (q = v&1)
  s_mul_i32 s42, s42, 896
  s_lshl_b32 s62, s38, 7
  s_add_u32 s62, s42, s62          ; + (v>>1)*128
  s_cmp_lt_u32 s33, 112
  s_cselect_b32 s33, 0, 0x40000000
  v_add_u32 v20, s33, v19
  s_lshl_b32 s63, s38, 11
  s_lshl_b32 s33, s37, 10
  s_add_u32 s63, s63, s33
  s_add_u32 s63, s63, {RB}         ; RB + (v>>1)*2048 + q*1024
""")

def w_weight_loads(tagname):
    for cb in range(7):
        a(f"  s_add_u32 m0, s60, {cb*4096}")
        a(f"  s_add_u32 s33, s61, {cb*128}")
        dma("v19", 44, "s33")
    for k in range(4):
        if k == 3:
            a("  s_cmp_lg_u32 s38, 0")
            a(f"  s_cbranch_scc1 L_w2_done{tagname}")
        a(f"  s_add_u32 m0, s63, {k*4096}")
        a(f"  s_add_u32 s33, s62, {k*256}")
        dma("v20", 52, "s33")
    a(f"L_w2_done{tagname}:")

def own_pretouch():
    fl = OPT['oflag'].replace('_', ' ') if OPT['oflag'] != 'none' else ''
    a("  s_mov_b64 exec, 0xf")
    a(f"  global_load_dword v2, v228, s[26:27] {fl}")
    a("  s_mov_b64 exec, -1")

def q_loads():
    a("  global_load_dwordx4 v[32:35], v51, s[26:27] sc1")
    a("  global_load_dwordx4 v[36:39], v52, s[26:27] sc1")
    a("  global_load_dword v41, v50, s[26:27] sc1")

a("  s_cmp_lt_u32 s29, 16")
a("  s_cbranch_scc0 L_q_p")
w_weight_setup()
if OPT['wpos'] == 'first':
    pass
if OPT['wpos'] == 'q':
    a(f"  s_waitcnt vmcnt({OPT['qwait'] + (1 if OPT['opre'] == 2 and OPT['opos'] == 2 else 0)})")
    stamp(4)
    q_loads()
    if OPT['opre'] == 2 and OPT['opos'] == 1:
        own_pretouch()
    if OPT['a2']:
        a("  s_barrier")
    w_weight_loads("a")
    if OPT['opre'] == 1:
        fl = OPT['oflag'].replace('_', ' ') if OPT['oflag'] != 'none' else ''
        a(f"  global_load_dword v2, v62, s[26:27] {fl}")
        a(f"  global_load_dword v3, v63, s[26:27] {fl}")
    if OPT['opre'] == 2 and OPT['opos'] == 0:
        own_pretouch()
    a("  s_mov_b32 s33, 0")
    NY = {0: 10, 1: 12, 2: 11}[OPT['opre']]
    if OPT['opre'] == 2 and OPT['opos'] == 2: NY = 10
    a("  s_cmp_lg_u32 s38, 0")
    a("  s_cbranch_scc1 L_qw10")
    a(f"  s_waitcnt vmcnt({NY+1})")
    a("  s_branch L_qchk")
    a("L_qw10:")
    a(f"  s_waitcnt vmcnt({NY})")
    a("  s_branch L_qchk")
a(f"""L_q_p:
  s_mov_b32 s33, 0
  s_waitcnt vmcnt({OPT['qwait'] + (1 if OPT['opre'] == 2 and OPT['opos'] == 2 else 0)})
""")
stamp(4)
if OPT['opre'] == 2 and OPT['opos'] != 2:
    q_loads()
    own_pretouch()
    a("  s_waitcnt vmcnt(1)")
    a("  s_branch L_qchk")
a("L_qpoll:")
q_loads()
a("  s_waitcnt vmcnt(0)")
a("L_qchk:")
check_regs("v40", range(32, 40))
a("  v_xor_b32 v41, s34, v41")
a("  v_and_b32 v40, 0xff, v40")
a("  v_and_or_b32 v40, v41, s35, v40")
poll_end("v40", "L_qpoll", "L_qok", masked=True)
stamp(5)
rec(13, "s33")
if OPT['wpos'] == 'mid':
    a("  s_cmp_lt_u32 s29, 16")
    a("  s_cbranch_scc0 L_nomid")
    w_weight_loads("m")
    a("L_nomid:")
a(f"""  v_add_f32 v32, v32, v36
  v_add_f32 v33, v33, v37
  v_add_f32 v34, v34, v38
  v_add_f32 v35, v35, v39
  v_cmp_ne_u32 vcc, 0, v41
  s_nop 0
  v_permlane32_swap_b32 v32, v34
  v_permlane32_swap_b32 v33, v35
  v_add_f32 v32, v32, v34
  v_add_f32 v33, v33, v35
  v_cvt_pk_bf16_f32 v32, v32, v33
  ds_write_b32 v53, v32
  s_cmp_eq_u64 vcc, 0
  s_cselect_b32 s35, {1 if OPT['fast'] else 0}, 0
  s_waitcnt lgkmcnt(0)
  s_barrier
""")
stamp(6)
for t in range(8):
    a(f"  ds_read_b128 v[{128+4*t}:{131+4*t}], v28 offset:{64*t}")
a(f"  s_mov_b32 s42, {C_LOG2E_16:#x}")
def v_read(i):
    st, nb, hf = i >> 3, (i >> 1) & 3, i & 1
    r = 160 + (st*4 + nb)*4 + 2*hf
    a(f"  ds_read_b64_tr_b16 v[{r}:{r+1}], v{24+nb} offset:{st*4096 + hf*2048}")
for t in range(8):
    a(f"  s_waitcnt lgkmcnt({7 if t == 0 else 7 - t + t})")
    c = "0" if t == 0 else "v[32:35]"
    a(f"  v_mfma_f32_16x16x32_bf16 v[32:35], v[{64+4*t}:{67+4*t}], v[{128+4*t}:{131+4*t}], {c}")
    v_read(t)
a(f"""  s_mov_b32 s56, 0x00030003
  s_mov_b32 s57, 0x00030003
  s_nop 4
  v_max3_f32 v44, v32, v33, v34
  v_max_f32 v44, v44, v35
  s_mov_b64 exec, s[56:57]
  ds_max_f32 v230, v44
  s_mov_b64 exec, -1
  s_waitcnt lgkmcnt(0)
  s_barrier
  ds_read_b32 v44, v230
""")
for i in range(8, 16):
    v_read(i)
a(f"""  s_waitcnt lgkmcnt(8)
  v_mul_f32 v44, s42, v44
""")
for r in range(4):
    a(f"  v_fma_f32 v{32+r}, v{32+r}, s42, -v44")
for r in range(4):
    a(f"  v_exp_f32 v{32+r}, v{32+r}")
a(f"""  s_nop 0
  v_cvt_pk_bf16_f32 v40, v32, v33
  v_cvt_pk_bf16_f32 v41, v34, v35
  s_mov_b64 exec, s[56:57]
  ds_write_b64 v232, v[40:41]
  s_mov_b64 exec, -1
  s_waitcnt lgkmcnt(0)
  s_barrier
  ds_read2_b64 v[32:35], v231 offset0:0 offset1:4
  ds_read2_b64 v[36:39], v231 offset0:8 offset1:12
  s_waitcnt lgkmcnt(1)
  v_mfma_f32_16x16x32_bf16 v[224:227], v[32:35], v[46:49], 0
""")
for nb in range(4):
    a(f"  v_mfma_f32_16x16x32_bf16 v[{192+4*nb}:{195+4*nb}], v[32:35], v[{160+4*nb}:{163+4*nb}], 0")
a("  s_waitcnt lgkmcnt(0)")
a("  v_mfma_f32_16x16x32_bf16 v[224:227], v[36:39], v[46:49], v[224:227]")
for nb in range(4):
    a(f"  v_mfma_f32_16x16x32_bf16 v[{192+4*nb}:{195+4*nb}], v[36:39], v[{176+4*nb}:{179+4*nb}], v[{192+4*nb}:{195+4*nb}]")
a(f"""  s_cmp_eq_u32 s35, 1
  s_nop 2
  v_cndmask_b32 v45, v224, v225, s[58:59]
  v_rcp_f32 v56, v224
  v_rcp_f32 v57, v225
  v_log_f32 v45, v45
  s_nop 0
  v_add_f32 v45, v45, v44
""")
tagit("v59", "v45")
for h in range(2):
    for k in range(4):
        a(f"  v_mul_f32_dpp v{32+h}, v{192+4*k+h}, v{56+h} quad_perm:[0,1,2,3] row_mask:{1<<k:#x} bank_mask:0xf")
a("  v_cvt_pk_bf16_f32 v58, v32, v33")
a(f"""  s_cbranch_scc1 L_pub_local
  global_store_dwordx2 v54, v[58:59], s[26:27] sc1
  s_branch L_pub_done
L_pub_local:                       ; every reader shares this die's L2
  global_store_dwordx2 v54, v[58:59], s[26:27]
L_pub_done:
""")
stamp(7)
a("  s_cmp_lt_u32 s29, 16")
a("  s_cbranch_scc1 L_wstage")
a("  s_barrier")
dump_stamps()
a("  s_endpgm")

a("L_wstage:")
if OPT['wpos'] == 'late':
    w_weight_loads("l")
a(f"""  v_xor_b32 v24, s36, v16
  v_lshl_add_u32 v24, v24, 5, v15
  v_add_u32 v25, {RB}, v24
  v_add_u32 v24, {RA}, v24
  v_and_b32 v26, 1, {VL}
  v_lshlrev_b32 v27, 5, v26
  v_lshl_add_u32 v27, v13, 3, v27
  v_add_u32 v27, {HV}, v27
  v_lshlrev_b32 v28, 6, v26
  v_lshl_add_u32 v28, v13, 3, v28
  v_add_u32 v28, {OV}, v28
  v_and_b32 v54, 3, {VL}
  v_lshlrev_b32 v54, 2, v54
  v_and_b32 v55, 1, v13
  v_lshl_add_u32 v54, v55, 5, v54
  v_lshrrev_b32 v55, 1, v13
  v_lshl_add_u32 v54, v55, 1, v54
  s_lshl_b32 s42, s38, 6
  s_lshl_b32 s45, s37, 4
  s_add_u32 s42, s42, s45
  s_add_u32 s42, s42, {OV}
  v_add_u32 v54, s42, v54
  s_lshl_b32 s42, s28, 4
  s_add_u32 s42, s42, s29
  s_mul_i32 s42, s42, {APS}
  s_lshl_b32 s45, s36, {8 if OPT['appad'] else 7}
  s_add_u32 s42, s42, s45
  s_add_u32 s42, s42, {WS_AP}
  v_lshlrev_b32 v55, 3, {VL}
  v_add_u32 v55, s42, v55
  v_and_b32 v56, 7, {VL}
  v_lshlrev_b32 v56, 3, v56
  v_bfe_u32 v57, {VL}, 3, 1
  v_lshl_add_u32 v56, v57, 7, v56
  v_lshl_add_u32 v56, v13, 10, v56
  v_add_u32 v56, s42, v56
  v_add_u32 v57, 4096, v56
  s_lshl_b32 s42, s38, 2
  s_add_u32 s42, s42, {GT}
  v_mov_b32 v29, s42
  ds_read_b32 v50, v29
  s_mov_b32 s56, 0xf000f000
  s_mov_b32 s57, 0xf000f000
  s_mov_b32 s33, 0
  s_waitcnt vmcnt(0) lgkmcnt(0)
""")
if OPT['early']:
    a("  global_load_dwordx4 v[32:35], v62, s[26:27] sc1")
a("  s_barrier")
stamp(8)
if not OPT['early']:
    a("  global_load_dwordx4 v[32:35], v62, s[26:27] sc1")
if OPT['ffn_early']:
    a("  ds_read_b64 v[106:107], v27")
    for cb in range(7):
        a(f"  ds_read_b64_tr_b16 v[{92+2*cb}:{93+2*cb}], v25 offset:{cb*2048}")
    a("  s_waitcnt lgkmcnt(0)")
    for cb in range(7):
        a(f"  v_mfma_f32_16x16x16_bf16 v[{110+4*cb}:{113+4*cb}], v[106:107], v[{92+2*cb}:{93+2*cb}], 0")
a("  s_waitcnt vmcnt(0)")
a("  s_branch L_ochk")
a(f"""L_opoll:
  global_load_dwordx4 v[32:35], v62, s[26:27] sc1
  s_waitcnt vmcnt(0)
L_ochk:
""")
check_regs("v48", [33, 35])
poll_end("v48", "L_opoll", "L_ook")
stamp(9)
rec(12, "s33")
CHAIN = """  v_mov_b32 v52, v33
  v_mov_b32 v53, v35
  v_lshlrev_b32 v40, 16, v32       ; d0h0
  v_and_b32 v41, 0xffff0000, v32   ; d0h1
  v_permlane16_swap_b32 v52, v53
  v_lshlrev_b32 v42, 16, v34       ; d1h0
  v_and_b32 v43, 0xffff0000, v34   ; d1h1
  v_max_f32 v52, v52, v53          ; rows: h0(01) h1(01) h0(23) h1(23)
  v_mov_b32 v53, v52
  SLOT
  SLOT
  v_permlane32_swap_b32 v52, v53
  v_max_f32 v52, v52, v53
  SLOT
  SLOT
  v_max_f32_dpp v52, v52, v52 row_shr:4 row_mask:0xf bank_mask:0xf
  SLOT
  SLOT
  v_max_f32_dpp v52, v52, v52 row_shr:8 row_mask:0xf bank_mask:0xf
  SLOT
  v_readlane_b32 s42, v52, 15
  v_readlane_b32 s45, v52, 31
  SLOT
  SLOT
  v_subrev_f32 v33, s42, v33
  v_subrev_f32 v35, s45, v35
  v_exp_f32 v52, v33               ; weight h0
  v_exp_f32 v53, v35               ; weight h1
  SLOT
  v_mul_f32 v40, v40, v52
  v_mul_f32 v41, v41, v53
  v_mul_f32 v42, v42, v52
  v_mul_f32 v43, v43, v53
  SLOT
  v_permlane16_swap_b32 v40, v41
  v_permlane16_swap_b32 v42, v43
  v_permlane16_swap_b32 v52, v53
  v_add_f32 v40, v40, v41
  v_add_f32 v42, v42, v43
  v_add_f32 v52, v52, v53
  v_mov_b32 v53, v52
  SLOT
  SLOT
  v_permlane32_swap_b32 v40, v42
  v_permlane32_swap_b32 v52, v53
  v_add_f32 v40, v40, v42
  v_add_f32 v52, v52, v53          ; rows h0 h1 h0 h1
  SLOT
  v_add_f32_dpp v40, v40, v40 row_shr:4 row_mask:0xf bank_mask:0xf
  v_add_f32_dpp v52, v52, v52 row_shr:4 row_mask:0xf bank_mask:0xf
  SLOT
  v_add_f32_dpp v40, v40, v40 row_shr:8 row_mask:0xf bank_mask:0xf
  v_add_f32_dpp v52, v52, v52 row_shr:8 row_mask:0xf bank_mask:0xf
  v_mul_f32 v40, v40, v50          ; * gate
  v_rcp_f32 v52, v52"""
W2R = ["  ds_read_b64 v[106:107], v27"] + [f"  ds_read_b64_tr_b16 v[{92+2*cb}:{93+2*cb}], v25 offset:{cb*2048}" for cb in range(7)]
WOR = []
for cb in range(7):
    WOR.append(f"  ds_read_b64_tr_b16 v[{64+4*cb}:{65+4*cb}], v24 offset:{cb*4096}")
    WOR.append(f"  ds_read_b64_tr_b16 v[{66+4*cb}:{67+4*cb}], v24 offset:{cb*4096+2048}")
assert OPT['ffn_early']
queue = WOR[:]
for ln in CHAIN.split("\n"):
    if ln.strip() == "SLOT":
        a(queue.pop(0) if queue else "  s_nop 0")
    else:
        a(ln)
if STAMP == 3: stamp(11)
a(f"""  s_mov_b64 exec, s[56:57]
  v_mul_f32 v40, v40, v52
  v_cvt_pk_bf16_f32 v40, v40, v40
  ds_write_b16 v54, v40
  s_mov_b64 exec, -1
  s_waitcnt lgkmcnt(0)""")
a(f"""  s_barrier
""")
if STAMP == 3: stamp(12)
a(f"""  ds_read2_b64 v[40:43], v28 offset0:0 offset1:4
  s_waitcnt lgkmcnt(0)
""")
if STAMP == 3: stamp(13)
for cb in range(7):
    a(f"  v_mfma_f32_16x16x32_bf16 v[{110+4*cb}:{113+4*cb}], v[40:43], v[{64+4*cb}:{67+4*cb}], v[{110+4*cb}:{113+4*cb}]")
assert OPT['appad'] == 1
a("  s_mov_b32 s56, -1")
a("  s_mov_b32 s57, 0xffff")
a("  s_nop 0")
for k in (1, 2, 3):
    for h in range(2):
        a(f"  v_mov_b32_dpp v{110+h}, v{110+4*k+h} quad_perm:[0,1,2,3] row_mask:{1<<k:#x} bank_mask:0xf")
tagit("v110", "v110")
a("  global_store_dwordx2 v56, v[110:111], s[26:27] sc1")
for k in (1, 2):
    for h in range(2):
        a(f"  v_mov_b32_dpp v{126+h}, v{126+4*k+h} quad_perm:[0,1,2,3] row_mask:{1<<k:#x} bank_mask:0xf")
tagit("v126", "v126")
a("  s_mov_b64 exec, s[56:57]")
a("  global_store_dwordx2 v57, v[126:127], s[26:27] sc1")
stamp(10)
if OPT['apack']:
    a("  s_waitcnt vmcnt(0)")
    stamp(11)
a("  s_mov_b64 exec, -1")
dump_stamps()
a("  s_endpgm")

a("L_aux0:")
if STAMP in (1, 2):
    for k in range(1, 16):
        a(f"  s_mov_b32 s{64+2*k}, 0")
a(f"""  s_lshr_b32 s29, s2, 3            ; j
  s_mov_b32 s32, 0xff
  v_lshrrev_b32 v13, 4, {VL}       ; g4
  v_lshlrev_b32 v18, 4, {VL}
  v_add_u32 v21, 1024, v18
  s_waitcnt lgkmcnt(0)
  s_load_dword s31, s[26:27], {WS_E}
""")
stamp(1)
srd(52, 4, SZ['x'])
a(f"""  s_mov_b32 m0, {XB}
  s_cmp_ge_u32 s29, 16
  buffer_load_dwordx4 v18, s[52:55], 0 offen lds
  s_mov_b32 m0, {XB+1024}
  s_nop 0
  buffer_load_dwordx4 v21, s[52:55], 0 offen lds
  s_cbranch_scc1 L_aux
  s_mov_b32 s56, -1
  s_mov_b32 s57, 0x00ffffff
  s_mov_b64 exec, s[56:57]
  global_load_dwordx4 v[70:73], v18, s[4:5]
  global_load_dwordx4 v[74:77], v18, s[4:5] offset:896
  global_load_dwordx4 v[78:81], v18, s[20:21]
  s_mov_b64 exec, -1
""")
a("L_aux:")
tr_lane_setup()
for nb in range(4):
    a(f"  v_xor_b32 v{24+nb}, {nb}, v16")
    a(f"  v_lshl_add_u32 v{24+nb}, v{24+nb}, 5, v15")
    a(f"  v_add_u32 v{24+nb}, {RC}, v{24+nb}")
h_unit_index("s39")
a(f"""  s_mul_i32 s40, s39, 9363
  s_lshr_b32 s40, s40, 16          ; cbh
  s_mul_i32 s41, s40, 7
  s_sub_u32 s41, s39, s41          ; kp
  v_and_b32 v28, 1, {VL}
  v_mul_u32_u24 v28, 896, v28
  v_lshl_add_u32 v28, v13, 3, v28
  s_lshl_b32 s42, s41, 7
  s_add_u32 s42, s42, {XB}
  v_add_u32 v28, s42, v28
  s_mul_i32 s42, s41, {2*7168}
  s_lshl_b32 s43, s40, 8
  s_add_u32 s42, s42, s43
  s_add_u32 s42, s42, {WS_HP}
  v_lshlrev_b32 v31, 2, {VL}
  v_add_u32 v31, s42, v31
  v_add_u32 v30, 7168, v31
  s_waitcnt lgkmcnt(0)
""")
tau_setup()
xid_value("s34")
a(f"""  s_lshl_b32 s42, s28, 7
  s_lshl_b32 s43, s29, 2
  s_add_u32 s42, s42, s43
  s_add_u32 s42, s42, {WS_XID}
  v_mov_b32 v6, s42
  v_mov_b32 v7, s34
  s_waitcnt vmcnt(0)
  s_mov_b64 exec, 1
  global_store_dword v6, v7, s[26:27] sc1
  s_mov_b64 exec, -1
  s_barrier                        ; barrier Q
  s_barrier                        ; barrier Q2
""")
stamp(2)
if OPT['tlb']:
    a(f"""  s_lshl_b32 s42, s28, 9
  s_lshl_b32 s43, s29, 4
  s_add_u32 s42, s42, s43
  s_mul_i32 s42, s42, 896
  v_mov_b32 v6, s42
  v_mov_b32 v7, 0
  s_mov_b64 exec, 1
  global_load_dword v2, v6, s[12:13] nt
  global_load_dword v2, v7, s[18:19] offset:64 nt
  global_load_dword v2, v7, s[22:23] nt
  s_mov_b64 exec, -1
""")
a("  s_cmp_ge_u32 s39, 196")
a("  s_cbranch_scc1 L_nohpub")
for st in range(2):
    a(f"  ds_read2_b64 v[{48+4*st}:{51+4*st}], v28 offset0:{8*st} offset1:{8*st+4}")
    for nb in range(4):
        r = 96 + 16*st + 4*nb
        a(f"  ds_read_b64_tr_b16 v[{r}:{r+1}], v{24+nb} offset:{st*4096}")
        a(f"  ds_read_b64_tr_b16 v[{r+2}:{r+3}], v{24+nb} offset:{st*4096+2048}")
for st in range(2):
    a(f"  s_waitcnt lgkmcnt({9 - 9*st})")
    for nb in range(4):
        r = 96 + 16*st + 4*nb
        c = "0" if st == 0 else f"v[{32+4*nb}:{35+4*nb}]"
        a(f"  v_mfma_f32_16x16x32_bf16 v[{32+4*nb}:{35+4*nb}], v[{48+4*st}:{51+4*st}], v[{r}:{r+3}], {c}")
a("  s_nop 7")
for r in range(2):
    a(f"  v_permlane16_swap_b32 v{32+r}, v{36+r}")
    a(f"  v_permlane16_swap_b32 v{40+r}, v{44+r}")
a("  s_nop 1")
for r in range(2):
    a(f"  v_permlane32_swap_b32 v{32+r}, v{40+r}")
a("  s_nop 1")
tagit("v32", "v32")
tagit("v33", "v33")
a("""  global_store_dword v31, v32, s[26:27] sc1
  global_store_dword v30, v33, s[26:27] sc1
L_nohpub:""")
stamp(5)
a("  s_cmp_ge_u32 s29, 16")
a("  s_cbranch_scc1 L_aux_a")
a("  v_mov_b32 v44, 0")
a("  v_mov_b32 v45, 0")
for r in range(4):
    a(f"  v_lshlrev_b32 v46, 16, v{78+r}")
    a(f"  v_and_b32 v47, 0xffff0000, v{78+r}")
    for b in range(2):
        a(f"  v_lshlrev_b32 v48, 16, v{70+4*b+r}")
        a(f"  v_and_b32 v49, 0xffff0000, v{70+4*b+r}")
        a(f"  v_mul_f32 v48, v48, v46")
        a(f"  v_mul_f32 v49, v49, v47")
        a(f"  v_cvt_pk_bf16_f32 v48, v48, v49")
        a(f"  v_lshlrev_b32 v49, 16, v48")
        a(f"  v_and_b32 v48, 0xffff0000, v48")
        a(f"  v_add_f32 v{44+b}, v{44+b}, v49")
        a(f"  v_add_f32 v{44+b}, v{44+b}, v48")
a(f"""  v_cmp_gt_u32 vcc, 56, {VL}
  s_nop 1
  v_cndmask_b32 v44, 0, v44, vcc
  v_cndmask_b32 v45, 0, v45, vcc
  s_nop 1
""")
for sh in (1, 2, 4, 8):
    a(f"  v_add_f32_dpp v44, v44, v44 row_shr:{sh} row_mask:0xf bank_mask:0xf")
    a(f"  v_add_f32_dpp v45, v45, v45 row_shr:{sh} row_mask:0xf bank_mask:0xf")
    a("  s_nop 0")
a(f"""  v_add_f32_dpp v44, v44, v44 row_bcast:15 row_mask:0xa bank_mask:0xf
  v_add_f32_dpp v45, v45, v45 row_bcast:15 row_mask:0xa bank_mask:0xf
  s_nop 0
  v_add_f32_dpp v44, v44, v44 row_bcast:31 row_mask:0xc bank_mask:0xf
  v_add_f32_dpp v45, v45, v45 row_bcast:31 row_mask:0xc bank_mask:0xf
  s_nop 0
  v_readlane_b32 s42, v44, 63
  v_readlane_b32 s43, v45, 63
  s_nop 1
  v_and_b32 v46, 1, {VL}
  v_cmp_eq_u32 vcc, 0, v46
  v_mov_b32 v47, s43
  v_mov_b32 v48, s42
  v_cndmask_b32 v47, v47, v48, vcc
  v_mul_f32 v47, 0xbfb8aa3b, v47   ; -log2e * z
  v_exp_f32 v47, v47
  s_nop 0
  v_add_f32 v47, 1.0, v47
  v_rcp_f32 v47, v47               ; g[b = lane&1]
  s_nop 0
  v_sub_f32 v82, 1.0, v47          ; 1-g
  v_lshlrev_b32 v46, 2, v46
  v_add_u32 v46, {GT}, v46
  s_mov_b64 exec, 3
  ds_write_b32 v46, v47
  s_mov_b64 exec, -1
  s_waitcnt lgkmcnt(0)
""")
stamp(3)
a("L_aux_a:")
a("  s_barrier")
a("  s_cmp_lt_u32 s29, 16")
a("  s_cbranch_scc1 L_aux_w")
a("  s_cmp_lt_u32 s29, 23")
a("  s_cbranch_scc1 L_final")
if OPT['wb']:
    a(f"""  s_cmp_lg_u32 s29, 31
  s_cbranch_scc1 L_nowb
  s_mul_i32 s42, s28, {64*OPS}
  s_add_u32 s42, s42, {WS_OP}
  v_mul_u32_u24 v24, {OPS}, {VL}
  v_add_u32 v24, s42, v24
  s_barrier                        ; barrier B
  s_barrier                        ; barrier C
  s_mov_b32 s33, 0
L_wbgate:
  global_load_dwordx4 v[32:35], v24, s[26:27] sc1
  s_waitcnt vmcnt(0)
""")
    check_regs("v14", [33, 35])
    poll_end("v14", "L_wbgate", "L_wbgate_ok")
    a("  buffer_wbl2 sc1")
    a("L_nowb:")
dump_stamps()
a("  s_endpgm")

a(f"""L_final:
  s_sub_u32 s36, s29, 16           ; p
  s_lshl_b32 s37, s36, 3
  s_add_u32 s37, s37, s28          ; c
  v_lshrrev_b32 v29, 2, {VL}       ; u16
  v_mul_u32_u24 v30, {APS}, v29
  v_and_b32 v31, 3, {VL}
  v_lshl_add_u32 v30, v31, 4, v30
  s_lshl_b32 s42, s37, {7 if OPT['appad'] else 6}
  s_add_u32 s42, s42, {WS_AP}
  v_add_u32 v30, s42, v30
""")
for k in range(8):
    a(f"  v_add_u32 v{16+k}, {k*16*APS}, v30")
a(f"""  ; out + b*896 + (8c + 2*c4 + (r>>1))*2
  v_and_b32 v28, 1, v13
  v_mul_u32_u24 v28, 896, v28
  v_lshl_add_u32 v28, v31, 2, v28
  v_lshrrev_b32 v29, 1, v13
  v_lshl_add_u32 v28, v29, 1, v28
  s_lshl_b32 s42, s37, 4
  v_add_u32 v28, s42, v28
  s_mov_b32 s56, 0xf000f000
  s_mov_b32 s57, 0xf000f000
  v_mov_b32 v29, {WS_E}
  s_barrier                        ; barrier B
  s_barrier                        ; barrier X1
  s_barrier                        ; barrier X2
  s_barrier                        ; barrier C
  s_mov_b32 s33, 0
""")
if OPT['fdelay']:
    a(f"""L_fd:
  s_memrealtime s[60:61]
  s_waitcnt lgkmcnt(0)
  s_sub_u32 s62, s60, s64
  s_cmp_lt_u32 s62, {OPT['fdelay']}
  s_cbranch_scc1 L_fd""")
stamp(8)
if OPT['fgate'] == 2:
    a(f"""  s_mul_i32 s42, s28, {32*OPS}
  s_add_u32 s42, s42, {WS_OP}
  v_and_b32 v24, 31, {VL}
  v_mul_u32_u24 v24, {OPS}, v24
  v_add_u32 v24, s42, v24
L_fgate:
  global_load_dwordx4 v[32:35], v24, s[26:27] sc1
  s_waitcnt vmcnt(0)
""")
    check_regs("v14", [33, 35])
    poll_end("v14", "L_fgate", "L_fgate_ok")
if OPT['fgate'] == 1:
    a(f"""  s_mul_i32 s42, s28, {16*APS}
  v_add_u32 v24, s42, v30
L_fgate:
  global_load_dwordx4 v[32:35], v24, s[26:27] sc1
  s_waitcnt vmcnt(0)
""")
    check_regs("v14", [32, 34])
    poll_end("v14", "L_fgate", "L_fgate_ok")
NS = OPT['fsets']
def fbase(i): return 32 + 32*i
def fissue(i):
    for k in range(8):
        a(f"  global_load_dwordx4 v[{fbase(i)+4*k}:{fbase(i)+4*k+3}], v{16+k}, s[26:27] sc1")
for i in range(NS):
    fissue(i)
a("L_fpoll:")
for i in range(NS):
    a(f"  s_waitcnt vmcnt({8*(NS-1)})")
    check_regs("v14", [fbase(i)+4*k+q for k in range(8) for q in (0, 2)])
    a("  v_and_b32 v14, 0xff, v14")
    a("  v_cmp_ne_u32 vcc, 0, v14")
    a("  s_add_u32 s33, s33, 1")
    a(f"  s_cmp_gt_u32 s33, {OPT['spin']}")
    a(f"  s_cbranch_scc1 L_fok{i}")
    a(f"  s_cbranch_vccz L_fok{i}")
    if OPT['fsleep']:
        a(f"  s_sleep {OPT['fsleep']}")
    fissue(i)
a("  s_branch L_fpoll")
TB = 144
for i in range(NS):
    a(f"L_fok{i}:")
    for k in range(4):
        for h in range(2):
            x = fbase(i) + 8*k + 2*h
            a(f"  v_pk_add_f32 v[{TB+4*k+2*h}:{TB+4*k+2*h+1}], v[{x}:{x+1}], v[{x+4}:{x+5}]")
    if i < NS-1:
        a("  s_branch L_fsum")
a("L_fsum:")
stamp(9)
rec(12, "s33")
for h in range(2):
    a(f"  v_pk_add_f32 v[{TB+2*h}:{TB+2*h+1}], v[{TB+2*h}:{TB+2*h+1}], v[{TB+4+2*h}:{TB+5+2*h}]")
    a(f"  v_pk_add_f32 v[{TB+8+2*h}:{TB+9+2*h}], v[{TB+8+2*h}:{TB+9+2*h}], v[{TB+12+2*h}:{TB+13+2*h}]")
for h in range(2):
    a(f"  v_pk_add_f32 v[{160+2*h}:{161+2*h}], v[{TB+2*h}:{TB+2*h+1}], v[{TB+8+2*h}:{TB+9+2*h}]")
a(f"""  s_nop 1
  v_permlane16_swap_b32 v160, v161
  v_permlane16_swap_b32 v162, v163
  v_add_f32 v160, v160, v161
  v_add_f32 v162, v162, v163
  s_nop 1
  v_permlane32_swap_b32 v160, v162
  v_add_f32 v160, v160, v162
  s_nop 1
  v_add_f32_dpp v160, v160, v160 row_shr:4 row_mask:0xf bank_mask:0xf
  s_nop 1
  v_add_f32_dpp v160, v160, v160 row_shr:8 row_mask:0xf bank_mask:0xf
  s_mov_b64 exec, s[56:57]
  v_cvt_pk_bf16_f32 v160, v160, v160
  global_store_short v28, v160, s[22:23]{' ' + OPT['outflag'].replace('_', ' ') if OPT['outflag'] != 'none' else ''}
  s_cmp_lg_u32 s37, 0
  s_cbranch_scc1 L_noE
  s_mov_b64 exec, 1
  global_store_dword v29, {VTAU}, s[26:27]{' ' + OPT['outflag'].replace('_', ' ') if OPT['outflag'] != 'none' else ''}
L_noE:
  s_mov_b64 exec, -1
""")
if OPT['deadline']:
    a(f"""L_dl:
  s_memrealtime s[56:57]
  s_waitcnt lgkmcnt(0)
  s_sub_u32 s33, s56, s96
  s_cmp_lt_u32 s33, {OPT['deadline']}
  s_cbranch_scc1 L_dl""")
stamp(10, final=True)
if OPT['dbgts']:
    a("  s_waitcnt lgkmcnt(0)")
    a("  s_cmp_lg_u32 s37, 0")
    a("  s_cbranch_scc1 L_nodbg")
    a("  s_mov_b64 exec, 1")
    a("  v_mov_b32 v8, 0")
    for q in range(4):
        for r in range(4):
            k = 4*q + r
            a(f"  s_sub_u32 s33, s{64+2*k}, s64")
            a(f"  v_mov_b32 v{12+r}, s33")
        a(f"  global_store_dwordx4 v8, v[12:15], s[24:25] offset:{16*q}")
        a("  s_nop 1")
    a("L_nodbg:")
else:
    dump_stamps()
a("  s_endpgm")

a("L_aux_w:")
a(f"""  ; h gather set-up: lanes (kp = l>>3 (0..6), b = (l>>2)&1, q4 = l&3) ; HP + (kp*2+b)*7168 + (16u + 4*q4)*4
  s_lshl_b32 s38, s28, 4
  s_add_u32 s38, s38, s29          ; u = g*16 + j
  v_lshrrev_b32 v85, 3, {VL}
  v_bfe_u32 v86, {VL}, 2, 1
  v_lshl_add_u32 v85, v85, 1, v86
  v_mul_u32_u24 v85, 7168, v85
  v_and_b32 v87, 3, {VL}
  v_lshl_add_u32 v85, v87, 4, v85
  s_lshl_b32 s42, s38, 6
  s_add_u32 s42, s42, {WS_HP}
  v_add_u32 v85, s42, v85
  v_readlane_b32 s42, v82, 0
  v_readlane_b32 s43, v82, 1
  v_cmp_eq_u32 vcc, 0, v86
  s_nop 0
  v_mov_b32 v36, s43
  v_mov_b32 v37, s42
  v_cndmask_b32 v83, v36, v37, vcc
  v_lshlrev_b32 v84, 5, v86
  v_lshl_add_u32 v84, v87, 3, v84
  v_add_u32 v84, {HV}, v84          ; HV + b*32 + q4*8
""")
a(f"""  v_mov_b32 v32, 0
  v_mov_b32 v33, 0
  v_mov_b32 v34, 0
  v_mov_b32 v35, 0
  s_mov_b32 s56, -1
  s_mov_b32 s57, 0x00ffffff
  s_mov_b32 s33, 0
  s_setprio 3
""")
if OPT['a2'] and OPT['wpos'] == 'q':
    a("  s_barrier                        ; barrier A2")
a(f"""  s_cmp_ge_u32 s38, 112
  s_cbranch_scc1 L_hskip
  s_mov_b64 exec, s[56:57]
  global_load_dwordx4 v[32:35], v85, s[26:27] sc1
  s_mov_b64 exec, -1
L_hskip:
""")
if OPT['prio']: a("  s_setprio 0")
a("""  s_barrier                        ; barrier B
  s_barrier                        ; barrier X1
  s_barrier                        ; barrier X2
""")
stamp(6)
a(f"""  s_cmp_ge_u32 s38, 112
  s_cbranch_scc1 L_hdone
  s_mov_b64 exec, s[56:57]
  s_waitcnt vmcnt(0)
  s_branch L_hchk
L_hpoll:
  global_load_dwordx4 v[32:35], v85, s[26:27] sc1
  s_waitcnt vmcnt(0)
L_hchk:
""")
check_regs("v40", range(32, 36))
poll_end("v40", "L_hpoll", "L_hok")
a("  s_mov_b64 exec, -1")
a("  s_nop 1")
for r in range(4):
    a(f"  v_add_f32_dpp v{32+r}, v{32+r}, v{32+r} row_ror:8 row_mask:0xf bank_mask:0xf")
for r in range(4):
    a(f"  v_mov_b32 v{36+r}, v{32+r}")
a("  s_nop 1")
for r in range(4):
    a(f"  v_permlane16_swap_b32 v{32+r}, v{36+r}")
for r in range(4):
    a(f"  v_add_f32 v{32+r}, v{32+r}, v{36+r}")
for r in range(4):
    a(f"  v_mov_b32 v{36+r}, v{32+r}")
a("  s_nop 1")
for r in range(4):
    a(f"  v_permlane32_swap_b32 v{32+r}, v{36+r}")
for r in range(4):
    a(f"  v_add_f32 v{32+r}, v{32+r}, v{36+r}")
a("L_hdone:")
for r in range(4):
    a(f"  v_max_f32 v{32+r}, 0, v{32+r}")
    a(f"  v_mul_f32 v{32+r}, v{32+r}, v83")
a(f"""  v_cvt_pk_bf16_f32 v32, v32, v33
  v_cvt_pk_bf16_f32 v33, v34, v35
  s_mov_b64 exec, 0xff
  ds_write_b64 v84, v[32:33]
  s_mov_b64 exec, -1
  s_waitcnt lgkmcnt(0)
""")
stamp(7)
a("  s_barrier                        ; barrier D1")
dump_stamps()
a("L_end:")
a("  s_endpgm")
a("L_code_end:")
a(footer(vgpr=240, sgpr=100))
open(sys.argv[1], "w").write(a.text())
```

```python
import sys
from asmlib import *

OPT = dict(stamp=0, spin=400000, nt=1, qwait=3, sleep=0, fsleep=0, fast=1, tlb=0, prefetch=1,
           ops=2176, aps=3712, deadline=0, dbgts=0, wpos='q', a2=1, opre=2, fsets=1, outflag='sc1', apack=0, fdelay=0, appad=1, early=0, probe1=0, amp=-1, ampa=0, ampf=10, ampwg=37, ampwave=1, fgate=2, ffn_early=1, oflag='sc1', opos=1, wb=0, prio=0, kvfar=1, dsmax=1)
for a_ in sys.argv[2:]:
    k, v = a_.split('=')
    assert k in OPT, k
    OPT[k] = int(v) if v.lstrip('-').isdigit() else v
STAMP = OPT['stamp']
OPS = OPT['ops']; APS = 7296 if OPT['appad'] else OPT['aps']

WS_E = 0
WS_XID = 0x400
WS_QP = 0x1000
WS_HP = 0x21000
WS_OP = 0x40000
WS_AP = 0x180000
WS_TS = 0x300000
assert WS_HP + 7*2*7168 <= WS_OP and WS_OP + 512*OPS <= WS_AP and WS_AP + 128*APS <= WS_TS

KBUF = 0
VBUF = 32768
RA = 65536
RB = 94208
RC = 108544
XB = 116736
QB = 118784
OV = 119936
HV = 120064
GT = 120128
MX = 120192
PB = 120224
LDS_BYTES = 120576

C_LOG2E_16 = 0x3DB8AA3B
NT = " nt" if OPT['nt'] else ""
VTAU = "v4"
VL = "v5"

a = Asm()
def stamp(k, final=False):
    if STAMP == 1 or (STAMP == 2 and (k == 0 or final)) or (STAMP == 3 and k in (0, OPT['amp'], OPT['ampa'])):
        a(f"  s_memrealtime s[{64+2*k}:{65+2*k}]")
def rec(k, sreg):
    if STAMP == 1:
        a(f"  s_mov_b32 s{64+2*k}, {sreg}")

def srd(dst, ptr, size):
    a(f"  s_mov_b32 s{dst}, s{ptr}")
    a(f"  s_mov_b32 s{dst+1}, s{ptr+1}")
    a(f"  s_mov_b32 s{dst+2}, {size}")
    a(f"  s_mov_b32 s{dst+3}, 0x20000")

def dma(voff, srdreg, soff):
    a(f"  buffer_load_dwordx4 {voff}, s[{srdreg}:{srdreg+3}], {soff} offen{NT} lds")

def tagit(dst, src):
    a(f"  v_bfi_b32 {dst}, s32, {VTAU}, {src}")

def check_regs(acc, regs, first=True):
    regs = list(regs)
    for r in regs:
        a(f"  v_xor_b32 v{r}, s31, v{r}")
    if first:
        if len(regs) >= 3:
            a(f"  v_or3_b32 {acc}, v{regs[0]}, v{regs[1]}, v{regs[2]}"); regs = regs[3:]
        else:
            a(f"  v_or_b32 {acc}, v{regs[0]}, v{regs[1]}"); regs = regs[2:]
    while len(regs) >= 2:
        a(f"  v_or3_b32 {acc}, {acc}, v{regs[0]}, v{regs[1]}"); regs = regs[2:]
    if regs:
        a(f"  v_or_b32 {acc}, {acc}, v{regs[0]}")

def poll_end(acc, lab_retry, lab_ok, cnt="s33", sleep=None, masked=False):
    sleep = OPT['sleep'] if sleep is None else sleep
    if not masked:
        a(f"  v_and_b32 {acc}, 0xff, {acc}")
    a(f"  v_cmp_ne_u32 vcc, 0, {acc}")
    a(f"  s_add_u32 {cnt}, {cnt}, 1")
    a(f"  s_cmp_gt_u32 {cnt}, {OPT['spin']}")
    a(f"  s_cbranch_scc1 {lab_ok}")
    if sleep:
        a(f"  s_cbranch_vccz {lab_ok}")
        a(f"  s_sleep {sleep}")
        a(f"  s_branch {lab_retry}")
    else:
        a(f"  s_cbranch_vccnz {lab_retry}")
    a(f"{lab_ok}:")

def dump_stamps():
    if STAMP == 3:
        lab = a.label("L_amp")
        k = OPT['amp']
        a(f"""  s_cmp_lg_u32 s2, {OPT['ampwg']}
  s_cbranch_scc1 {lab}_x
  s_cmp_lg_u32 s30, {OPT['ampwave']}
  s_cbranch_scc1 {lab}_x
  s_waitcnt lgkmcnt(0)
  s_sub_u32 s33, s{64+2*k}, s{64+2*OPT['ampa']}
  s_mul_i32 s33, s33, {OPT['ampf']}
  s_add_u32 s33, s33, 1200
{lab}:
  s_memrealtime s[56:57]
  s_waitcnt lgkmcnt(0)
  s_sub_u32 s56, s56, s64
  s_cmp_lt_u32 s56, s33
  s_cbranch_scc1 {lab}
{lab}_x:""")
        return
    if not STAMP or OPT['dbgts']:
        return
    a("  s_waitcnt lgkmcnt(0)")
    a("  s_mul_i32 s33, s2, 5")
    a("  s_add_u32 s33, s33, s30")
    a("  s_lshl_b32 s33, s33, 6")
    a(f"  s_add_u32 s33, s33, {WS_TS}")
    a("  v_mov_b32 v8, s33")
    a("  s_mov_b64 exec, 1")
    for q in range(4):
        for r in range(4):
            a(f"  v_mov_b32 v{12+r}, s{64+2*(4*q+r)}")
        a(f"  global_store_dwordx4 v8, v[12:15], s[26:27] offset:{16*q}")
        a("  s_nop 1")

def tau_setup():
    a("  s_and_b32 s31, s31, 0xff")
    a("  s_mul_i32 s31, s31, 5")
    a("  s_add_u32 s31, s31, 59")
    a("  s_and_b32 s31, s31, 0xff")
    a(f"  v_mov_b32 {VTAU}, s31")

def xid_value(dst):
    a(f"  s_getreg_b32 {dst}, hwreg(HW_REG_XCC_ID, 0, 4)")
    a(f"  s_lshl_b32 {dst}, {dst}, 24")
    a(f"  s_mul_i32 s33, s31, 0x010101")
    a(f"  s_or_b32 {dst}, {dst}, s33")

def tr_lane_setup():
    a(f"""  v_bfe_u32 v14, {VL}, 2, 2        ; r4
  v_lshl_add_u32 v15, v13, 2, v14  ; row = 4*g4+r4
  v_bfe_u32 v16, v15, 1, 2         ; f
  v_and_b32 v17, 3, {VL}           ; c
  v_lshlrev_b32 v15, 7, v15
  v_lshl_add_u32 v15, v17, 3, v15  ; row*128 + c*8""")

def h_unit_index(kp, cbh, bad):
    a(f"""  s_xor_b32 {cbh}, s2, 0x80
  s_lshr_b32 {kp}, {cbh}, 5
  s_and_b32 {cbh}, {cbh}, 31
  s_cmp_lt_u32 {cbh}, 28
  s_cselect_b32 {bad}, 0, 0x40000000
  s_cmp_lt_u32 {kp}, 7
  s_cselect_b32 {bad}, {bad}, 0x40000000""")

DOC = """; Fused decode step: gated mix of (sliding-window GQA attention + output projection) and a ReLU FFN.
; launch are never taken.  Stores are write-through (sc1) unless the reading workgroups were seen (XCC id words) on the same die."""
a(header(256, 320, LDS_BYTES, DOC))
stamp(0)
if OPT['deadline'] or OPT['probe1']:
    a("  s_memrealtime s[96:97]")
a(f"""  s_load_dwordx16 s[4:19], s[0:1], 0
  s_load_dwordx8 s[20:27], s[0:1], 64
  s_getpc_b64 s[34:35]
L_pc:
  v_lshlrev_b32 v1, {5 if OPT['prefetch'] else 0}, v0
  v_min_u32 v1, {"L_code_end - L_pc - 4" if OPT['prefetch'] else 0}, v1
  s_cmpk_ge_u32 s2, 0x100
  s_cbranch_scc1 L_end
  global_load_dword v3, v1, s[34:35]
  v_lshrrev_b32 v2, 6, v0
  v_and_b32 {VL}, 63, v0
  v_readfirstlane_b32 s30, v2
  v_lshrrev_b32 v8, 3, {VL}
  v_bfe_u32 v9, {VL}, 4, 2         ; (row>>1)&3
  v_and_b32 v10, 7, {VL}
  v_lshlrev_b32 v11, 1, v9
  v_xor_b32 v11, v11, v10
  v_lshlrev_b32 v11, 4, v11        ; *16 bytes
  v_lshl_add_u32 v18, v8, 13, v11
  s_and_b32 s28, s2, 7             ; g
  s_cmp_eq_u32 s30, 0
  s_cbranch_scc1 L_aux0
  s_lshr_b32 s42, s2, 6            ; kp
  s_mul_i32 s42, s42, {112*8192}
  s_lshl_b32 s43, s28, 10
  s_add_u32 s42, s42, s43
  s_bfe_u32 s43, s2, 0x30003       ; j&7
  s_lshl_b32 s43, s43, 7
  s_add_u32 s42, s42, s43
  s_sub_u32 s36, s30, 1            ; v
  s_lshl_b32 s43, s36, 16          ; v*8*8192
  s_add_u32 s42, s42, s43
  v_add_u32 v18, s42, v18
  s_lshl_b32 s43, s36, 10
  s_add_u32 m0, s43, {RA}
  s_lshl_b32 s44, 1, 18
  s_movk_i32 s45, 0x1000
  s_waitcnt lgkmcnt(0)
  global_load_lds_dwordx4 v18, s[10:11]{NT}
  s_add_u32 m0, m0, s45
  v_add_u32 v18, s44, v18
  global_load_lds_dwordx4 v18, s[10:11]{NT}
  s_add_u32 m0, m0, s45
  v_add_u32 v18, s44, v18
  global_load_lds_dwordx4 v18, s[10:11]{NT}
  s_cmp_ge_u32 s36, 2
  s_cbranch_scc1 L_wq_done
  s_add_u32 m0, m0, s45
  v_add_u32 v18, s44, v18
  global_load_lds_dwordx4 v18, s[10:11]{NT}
""")
a("L_wq_done:")
if OPT['probe1']:
    a(f"""L_pr1:
  s_memrealtime s[56:57]
  s_waitcnt lgkmcnt(0)
  s_sub_u32 s33, s56, s96
  s_cmp_lt_u32 s33, {OPT['probe1']}
  s_cbranch_scc1 L_pr1""")
if STAMP in (1, 2):
    for k in range(1, 16):
        a(f"  s_mov_b32 s{64+2*k}, 0")
if STAMP == 3: stamp(15)
a(f"""  s_load_dword s31, s[26:27], {WS_E}
  s_lshr_b32 s29, s2, 3            ; j
  s_mov_b32 s32, 0xff
  v_lshrrev_b32 v13, 4, {VL}       ; g4
  s_and_b32 s37, s36, 1            ; kh
  s_lshr_b32 s38, s36, 1           ; dh""")
stamp(1)
h_unit_index("s46", "s47", "s45")
a(f"""  s_mul_i32 s46, s46, {64*3584}
  s_lshl_b32 s47, s47, 7
  s_add_u32 s46, s46, s47
  s_mul_i32 s47, s36, {8*3584}
  s_add_u32 s46, s46, s47
  v_mul_u32_u24 v18, 3584, v8
  v_add3_u32 v18, v18, v11, s45
  s_lshl_b32 s47, s36, 10
  s_add_u32 s47, s47, {RC}
""")
srd(52, 16, SZ['w1'])
for k in range(2):
    a(f"  s_add_u32 m0, s47, {k*4096}")
    a(f"  s_add_u32 s45, s46, {k*4*8*3584}")
    dma("v18", 52, "s45")
a(f"""  v_xor_b32 v12, v9, v10
  v_lshlrev_b32 v12, 4, v12
  s_and_b32 s41, s2, 15            ; b*8+g  (b = j&1)
  s_lshl_b32 s41, s41, 21          ; *4096*512
  s_lshr_b32 s40, s2, 4            ; s (0..15)
  s_lshl_b32 s42, s40, 15          ; s*64*512
  s_add_u32 s41, s41, s42
  s_add_u32 s41, s41, {3072*512}   ; first key row of this workgroup
  s_lshl_b32 s43, s36, 10
  s_add_u32 s42, s41, s43
  v_lshlrev_b32 v18, 12, v8
  v_add3_u32 v19, v18, v12, s42
  v_xor_b32 v20, 64, v19
  s_lshl_b32 s43, s36, 11          ;    LDS + 16v*128
""")
FILL = [f"  s_lshl_b32 s56, s36, 7", "  s_add_u32 s41, s41, s56", "  v_add3_u32 v21, v18, v11, s41    ; V offset",
        "  s_lshl_b32 s56, s36, 13          ;    LDS + v*8192", "  s_and_b32 s39, s29, 1            ; b",
        f"  v_bfe_u32 v14, {VL}, 2, 2        ; r4", "  v_lshl_add_u32 v15, v13, 2, v14  ; row = 4*g4+r4", "  v_bfe_u32 v16, v15, 1, 2         ; f"]
for cb in range(4):
    for jj in range(2):
        o = cb*128 + jj*512
        a(f"  s_add_u32 m0, s43, {KBUF + cb*8192 + jj*1024 - o}")
        a(FILL.pop(0))
        a(f"  global_load_lds_dwordx4 {'v20' if jj & 1 else 'v19'}, s[6:7] offset:{o}{NT}")
a(f"""  v_and_b32 v17, 3, {VL}           ; c
  v_lshlrev_b32 v15, 7, v15
  v_lshl_add_u32 v15, v17, 3, v15  ; row*128 + c*8""")
a(f"""  ; q projection tile nb = v : addresses
  v_xor_b32 v24, s36, v16
  v_lshl_add_u32 v24, v24, 5, v15
  v_add_u32 v24, {RA}, v24
  v_and_b32 v25, 1, {VL}
  v_mul_u32_u24 v25, 896, v25
  v_lshl_add_u32 v25, v13, 3, v25
  s_lshr_b32 s42, s29, 3           ; kp
  s_mul_i32 s45, s42, 224
  s_add_u32 s45, s45, {XB}
  v_add_u32 v25, s45, v25
  s_lshl_b32 s45, s28, 14
  s_lshl_b32 s42, s42, 12
  s_add_u32 s45, s45, s42
  s_and_b32 s42, s29, 7
  s_lshl_b32 s42, s42, 8
  s_add_u32 s45, s45, s42
  s_lshl_b32 s42, s36, 6
  s_add_u32 s45, s45, s42
  s_add_u32 s45, s45, {WS_QP}
  v_lshlrev_b32 v26, 2, {VL}
  v_add_u32 v26, s45, v26
""")
a("  s_waitcnt lgkmcnt(0)")
tau_setup()
a("  s_waitcnt vmcnt(10)")
a("  s_barrier")
for st in range(3):
    a(f"  ds_read2_b64 v[{32+4*st}:{35+4*st}], v25 offset0:{8*st} offset1:{8*st+4}")
    a(f"  ds_read_b64_tr_b16 v[{48+4*st}:{49+4*st}], v24 offset:{st*4096}")
    a(f"  ds_read_b64_tr_b16 v[{50+4*st}:{51+4*st}], v24 offset:{st*4096+2048}")
a(f"  ds_read_b64 v[44:45], v25 offset:192")
a(f"  ds_read_b64_tr_b16 v[60:61], v24 offset:{3*4096}")
for st in range(3):
    a(f"  s_waitcnt lgkmcnt({8 - 3*st})")
    c = "0" if st == 0 else "v[64:67]"
    a(f"  v_mfma_f32_16x16x32_bf16 v[64:67], v[{32+4*st}:{35+4*st}], v[{48+4*st}:{51+4*st}], {c}")
a("  s_waitcnt lgkmcnt(0)")
a("  v_mfma_f32_16x16x16_bf16 v[68:71], v[44:45], v[60:61], 0")
a("  s_mov_b64 exec, 0xffff")
a("  s_nop 6")
a("  v_add_f32 v64, v64, v68")
a("  v_add_f32 v65, v65, v69")
tagit("v64", "v64")
tagit("v65", "v65")
a(f"""  global_store_dword v26, v64, s[26:27] sc1
  global_store_dword v26, v65, s[26:27] offset:2048 sc1
  s_mov_b64 exec, -1
""")
stamp(14)
a("  s_waitcnt vmcnt(10)")
a("  s_barrier")
FILL = [f"  v_and_b32 v22, 15, {VL}", f"  v_bfe_u32 v23, {VL}, 1, 3", "  v_xor_b32 v23, v23, v13", "  v_lshlrev_b32 v23, 4, v23",
        "  v_lshl_add_u32 v22, v22, 7, v23", "  v_add_u32 v22, s43, v22", "  v_xor_b32 v23, 64, v22", "  s_nop 0"]
for j8 in range(8):
    a(f"  s_add_u32 m0, s56, {VBUF + j8*1024 - j8*512}")
    a(FILL.pop(0))
    a(f"  global_load_lds_dwordx4 v21, s[8:9] offset:{j8*512}{NT}")
stamp(2)
a(f"""  s_add_u32 s42, s56, {VBUF}
""")
for nb in range(4):
    a(f"  v_xor_b32 v{24+nb}, {nb}, v16")
    a(f"  v_lshl_add_u32 v{24+nb}, v{24+nb}, 5, v15")
    a(f"  v_add_u32 v{24+nb}, s42, v{24+nb}")
a(f"""  ; q operand address: QB + (l&1)*576 + g4*16
  v_and_b32 v28, 1, {VL}
  v_mul_u32_u24 v28, 576, v28
  v_lshl_add_u32 v28, v13, 4, v28
  v_add_u32 v28, {QB}, v28
  s_lshl_b32 s42, s28, 14
  s_lshl_b32 s45, s39, 11
  s_add_u32 s42, s42, s45
  s_lshl_b32 s45, s37, 10
  s_add_u32 s42, s42, s45
  s_lshl_b32 s45, s38, 9
  s_add_u32 s42, s42, s45
  s_add_u32 s42, s42, {WS_QP}
  v_lshrrev_b32 v29, 5, {VL}       ; kpl
  v_and_b32 v30, 31, {VL}          ; c
  v_lshlrev_b32 v31, 12, v29
  v_lshl_add_u32 v31, v30, 4, v31
  v_add_u32 v51, s42, v31
  v_add_u32 v52, 8192, v51
  s_lshl_b32 s42, s28, 7
  s_add_u32 s42, s42, {WS_XID}
  v_lshl_add_u32 v50, v30, 2, s42
  s_mul_i32 s42, s37, 576
  s_lshl_b32 s45, s38, 8
  s_add_u32 s42, s42, s45
  s_add_u32 s42, s42, {QB}
  v_lshlrev_b32 v30, 3, v30
  v_lshl_add_u32 v30, v29, 2, v30
  v_add_u32 v53, s42, v30
  s_lshl_b32 s42, s28, 1
  s_add_u32 s42, s42, s39
  s_lshl_b32 s42, s42, 4
  s_add_u32 s42, s42, s40
  s_mul_i32 s42, s42, {OPS}
  s_lshl_b32 s45, s36, 9
  s_add_u32 s42, s42, s45
  s_add_u32 s42, s42, {WS_OP}
  v_lshlrev_b32 v54, 3, {VL}
  v_add_u32 v54, s42, v54
  v_and_b32 v228, 3, {VL}
  v_lshlrev_b32 v228, 7, v228
  v_add_u32 v228, s42, v228
  v_and_b32 v229, 1, {VL}
  v_lshlrev_b32 v230, 2, v229
  v_add_u32 v230, {MX}, v230
  v_mov_b32 v229, 0xff800000
  s_mov_b64 exec, 3
  ds_write_b32 v230, v229
  s_mov_b64 exec, -1
  v_and_b32 v231, 1, {VL}
  v_mul_u32_u24 v231, 144, v231
  v_lshl_add_u32 v231, v13, 3, v231
  v_add_u32 v231, {PB}, v231
  s_lshl_b32 s45, s36, 5
  v_add_u32 v232, s45, v231
  s_lshl_b32 s42, s28, 1
  s_add_u32 s42, s42, s38
  s_mul_i32 s33, s42, {16*OPS}
  s_lshl_b32 s56, s29, 7
  s_add_u32 s33, s33, s56
  s_lshl_b32 s56, s37, 6
  s_add_u32 s33, s33, s56
  s_add_u32 s33, s33, {WS_OP}
  v_lshrrev_b32 v6, 2, {VL}        ; s16
  v_mul_u32_u24 v7, {OPS}, v6
  v_and_b32 v62, 3, {VL}
  v_lshl_add_u32 v7, v62, 4, v7
  v_add_u32 v62, s33, v7
  v_mov_b32 v46, 0x3f803f80
  v_mov_b32 v47, 0x3f803f80
  v_mov_b32 v48, 0x3f803f80
  v_mov_b32 v49, 0x3f803f80
  v_and_b32 v55, 1, {VL}
  v_cmp_eq_u32 s[58:59], 1, v55
""")
xid_value("s34")
a("  s_mov_b32 s35, 0xffffff")
if OPT['prio']: a("  s_setprio 2")
a("  s_waitcnt vmcnt(8) lgkmcnt(0)")
stamp(3)
a("  s_barrier")
if OPT['opre'] == 2 and OPT['opos'] == 2:
    a("  s_mov_b64 exec, 0xff")
    a("  global_load_dword v2, v228, s[26:27] sc1")
    a("  s_mov_b64 exec, -1")
for t in range(8):
    a(f"  ds_read_b128 v[{64+4*t}:{67+4*t}], v{23 if t & 1 else 22} offset:{KBUF + (t>>1)*8192}")

def w_weight_setup():
    srd(44, 12, SZ['wo'])
    srd(52, 18, SZ['w2'])
    a(f"""  s_lshl_b32 s42, s28, 9
  s_lshl_b32 s61, s29, 4
  s_add_u32 s42, s42, s61          ; g*512 + 16j
  s_lshl_b32 s61, s38, 8
  s_add_u32 s42, s42, s61          ; + h*256
  s_lshl_b32 s61, s37, 3
  s_add_u32 s42, s42, s61          ; + half*8
  s_mul_i32 s61, s42, 896
  s_lshl_b32 s60, s36, 10
  s_add_u32 s60, s60, {RA}
  v_mul_u32_u24 v19, 896, v8
  v_add_u32 v19, v19, v11
  s_lshl_b32 s33, s28, 4
  s_add_u32 s33, s33, s29          ; u
  s_min_u32 s42, s33, 111
  s_lshl_b32 s42, s42, 4
  s_lshl_b32 s62, s37, 3
  s_add_u32 s42, s42, s62          ; 16u + q*8   (q = v&1)
  s_mul_i32 s42, s42, 896
  s_lshl_b32 s62, s38, 7
  s_add_u32 s62, s42, s62          ; + (v>>1)*128
  s_cmp_lt_u32 s33, 112
  s_cselect_b32 s33, 0, 0x40000000
  v_add_u32 v20, s33, v19
  s_lshl_b32 s63, s38, 11
  s_lshl_b32 s33, s37, 10
  s_add_u32 s63, s63, s33
  s_add_u32 s63, s63, {RB}         ; RB + (v>>1)*2048 + q*1024
""")

def w_weight_loads(tagname):
    for cb in range(7):
        a(f"  s_add_u32 m0, s60, {cb*4096}")
        a(f"  s_add_u32 s33, s61, {cb*128}")
        dma("v19", 44, "s33")
    for k in range(4):
        if k == 3:
            a("  s_cmp_lg_u32 s38, 0")
            a(f"  s_cbranch_scc1 L_w2_done{tagname}")
        a(f"  s_add_u32 m0, s63, {k*4096}")
        a(f"  s_add_u32 s33, s62, {k*256}")
        dma("v20", 52, "s33")
    a(f"L_w2_done{tagname}:")

def own_pretouch():
    fl = OPT['oflag'].replace('_', ' ') if OPT['oflag'] != 'none' else ''
    a("  s_mov_b64 exec, 0xf")
    a(f"  global_load_dword v2, v228, s[26:27] {fl}")
    a("  s_mov_b64 exec, -1")

def q_loads():
    a("  global_load_dwordx4 v[32:35], v51, s[26:27] sc1")
    a("  global_load_dwordx4 v[36:39], v52, s[26:27] sc1")
    a("  global_load_dword v41, v50, s[26:27] sc1")

a("  s_cmp_lt_u32 s29, 16")
a("  s_cbranch_scc0 L_q_p")
w_weight_setup()
if OPT['wpos'] == 'first':
    pass
if OPT['wpos'] == 'q':
    a(f"  s_waitcnt vmcnt({OPT['qwait'] + (1 if OPT['opre'] == 2 and OPT['opos'] == 2 else 0)})")
    stamp(4)
    q_loads()
    if OPT['opre'] == 2 and OPT['opos'] == 1:
        own_pretouch()
    if OPT['a2']:
        a("  s_barrier")
    w_weight_loads("a")
    if OPT['opre'] == 1:
        fl = OPT['oflag'].replace('_', ' ') if OPT['oflag'] != 'none' else ''
        a(f"  global_load_dword v2, v62, s[26:27] {fl}")
        a(f"  global_load_dword v3, v63, s[26:27] {fl}")
    if OPT['opre'] == 2 and OPT['opos'] == 0:
        own_pretouch()
    a("  s_mov_b32 s33, 0")
    NY = {0: 10, 1: 12, 2: 11}[OPT['opre']]
    if OPT['opre'] == 2 and OPT['opos'] == 2: NY = 10
    a("  s_cmp_lg_u32 s38, 0")
    a("  s_cbranch_scc1 L_qw10")
    a(f"  s_waitcnt vmcnt({NY+1})")
    a("  s_branch L_qchk")
    a("L_qw10:")
    a(f"  s_waitcnt vmcnt({NY})")
    a("  s_branch L_qchk")
a(f"""L_q_p:
  s_mov_b32 s33, 0
  s_waitcnt vmcnt({OPT['qwait'] + (1 if OPT['opre'] == 2 and OPT['opos'] == 2 else 0)})
""")
stamp(4)
if OPT['opre'] == 2 and OPT['opos'] != 2:
    q_loads()
    own_pretouch()
    a("  s_waitcnt vmcnt(1)")
    a("  s_branch L_qchk")
a("L_qpoll:")
q_loads()
a("  s_waitcnt vmcnt(0)")
a("L_qchk:")
check_regs("v40", range(32, 40))
a("  v_xor_b32 v41, s34, v41")
a("  v_and_b32 v40, 0xff, v40")
a("  v_and_or_b32 v40, v41, s35, v40")
poll_end("v40", "L_qpoll", "L_qok", masked=True)
stamp(5)
rec(13, "s33")
if OPT['wpos'] == 'mid':
    a("  s_cmp_lt_u32 s29, 16")
    a("  s_cbranch_scc0 L_nomid")
    w_weight_loads("m")
    a("L_nomid:")
a(f"""  v_add_f32 v32, v32, v36
  v_add_f32 v33, v33, v37
  v_add_f32 v34, v34, v38
  v_add_f32 v35, v35, v39
  v_cmp_ne_u32 vcc, 0, v41
  s_nop 0
  v_permlane32_swap_b32 v32, v34
  v_permlane32_swap_b32 v33, v35
  v_add_f32 v32, v32, v34
  v_add_f32 v33, v33, v35
  v_cvt_pk_bf16_f32 v32, v32, v33
  ds_write_b32 v53, v32
  s_cmp_eq_u64 vcc, 0
  s_cselect_b32 s35, {1 if OPT['fast'] else 0}, 0
  s_waitcnt lgkmcnt(0)
  s_barrier
""")
stamp(6)
for t in range(8):
    a(f"  ds_read_b128 v[{128+4*t}:{131+4*t}], v28 offset:{64*t}")
a(f"  s_mov_b32 s42, {C_LOG2E_16:#x}")
def v_read(i):
    st, nb, hf = i >> 3, (i >> 1) & 3, i & 1
    r = 160 + (st*4 + nb)*4 + 2*hf
    a(f"  ds_read_b64_tr_b16 v[{r}:{r+1}], v{24+nb} offset:{st*4096 + hf*2048}")
for t in range(8):
    a(f"  s_waitcnt lgkmcnt({7 if t == 0 else 7 - t + t})")
    c = "0" if t == 0 else "v[32:35]"
    a(f"  v_mfma_f32_16x16x32_bf16 v[32:35], v[{64+4*t}:{67+4*t}], v[{128+4*t}:{131+4*t}], {c}")
    v_read(t)
a(f"""  s_mov_b32 s56, 0x00030003
  s_mov_b32 s57, 0x00030003
  s_nop 4
  v_max3_f32 v44, v32, v33, v34
  v_max_f32 v44, v44, v35
  s_mov_b64 exec, s[56:57]
  ds_max_f32 v230, v44
  s_mov_b64 exec, -1
  s_waitcnt lgkmcnt(0)
  s_barrier
  ds_read_b32 v44, v230
""")
for i in range(8, 16):
    v_read(i)
a(f"""  s_waitcnt lgkmcnt(8)
  v_mul_f32 v44, s42, v44
""")
for r in range(4):
    a(f"  v_fma_f32 v{32+r}, v{32+r}, s42, -v44")
for r in range(4):
    a(f"  v_exp_f32 v{32+r}, v{32+r}")
a(f"""  s_nop 0
  v_cvt_pk_bf16_f32 v40, v32, v33
  v_cvt_pk_bf16_f32 v41, v34, v35
  s_mov_b64 exec, s[56:57]
  ds_write_b64 v232, v[40:41]
  s_mov_b64 exec, -1
  s_waitcnt lgkmcnt(0)
  s_barrier
  ds_read2_b64 v[32:35], v231 offset0:0 offset1:4
  ds_read2_b64 v[36:39], v231 offset0:8 offset1:12
  s_waitcnt lgkmcnt(1)
  v_mfma_f32_16x16x32_bf16 v[224:227], v[32:35], v[46:49], 0
""")
for nb in range(4):
    a(f"  v_mfma_f32_16x16x32_bf16 v[{192+4*nb}:{195+4*nb}], v[32:35], v[{160+4*nb}:{163+4*nb}], 0")
a("  s_waitcnt lgkmcnt(0)")
a("  v_mfma_f32_16x16x32_bf16 v[224:227], v[36:39], v[46:49], v[224:227]")
for nb in range(4):
    a(f"  v_mfma_f32_16x16x32_bf16 v[{192+4*nb}:{195+4*nb}], v[36:39], v[{176+4*nb}:{179+4*nb}], v[{192+4*nb}:{195+4*nb}]")
a(f"""  s_cmp_eq_u32 s35, 1
  s_nop 2
  v_cndmask_b32 v45, v224, v225, s[58:59]
  v_rcp_f32 v56, v224
  v_rcp_f32 v57, v225
  v_log_f32 v45, v45
  s_nop 0
  v_add_f32 v45, v45, v44
""")
tagit("v59", "v45")
for h in range(2):
    for k in range(4):
        a(f"  v_mul_f32_dpp v{32+h}, v{192+4*k+h}, v{56+h} quad_perm:[0,1,2,3] row_mask:{1<<k:#x} bank_mask:0xf")
a("  v_cvt_pk_bf16_f32 v58, v32, v33")
a(f"""  s_cbranch_scc1 L_pub_local
  global_store_dwordx2 v54, v[58:59], s[26:27] sc1
  s_branch L_pub_done
L_pub_local:                       ; every reader shares this die's L2
  global_store_dwordx2 v54, v[58:59], s[26:27]
L_pub_done:
""")
stamp(7)
a("  s_cmp_lt_u32 s29, 16")
a("  s_cbranch_scc1 L_wstage")
a("  s_barrier")
dump_stamps()
a("  s_endpgm")

a("L_wstage:")
if OPT['wpos'] == 'late':
    w_weight_loads("l")
a(f"""  v_xor_b32 v24, s36, v16
  v_lshl_add_u32 v24, v24, 5, v15
  v_add_u32 v25, {RB}, v24
  v_add_u32 v24, {RA}, v24
  v_and_b32 v26, 1, {VL}
  v_lshlrev_b32 v27, 5, v26
  v_lshl_add_u32 v27, v13, 3, v27
  v_add_u32 v27, {HV}, v27
  v_lshlrev_b32 v28, 6, v26
  v_lshl_add_u32 v28, v13, 3, v28
  v_add_u32 v28, {OV}, v28
  v_and_b32 v54, 3, {VL}
  v_lshlrev_b32 v54, 2, v54
  v_and_b32 v55, 1, v13
  v_lshl_add_u32 v54, v55, 5, v54
  v_lshrrev_b32 v55, 1, v13
  v_lshl_add_u32 v54, v55, 1, v54
  s_lshl_b32 s42, s38, 6
  s_lshl_b32 s45, s37, 4
  s_add_u32 s42, s42, s45
  s_add_u32 s42, s42, {OV}
  v_add_u32 v54, s42, v54
  s_lshl_b32 s42, s28, 4
  s_add_u32 s42, s42, s29
  s_mul_i32 s42, s42, {APS}
  s_lshl_b32 s45, s36, {8 if OPT['appad'] else 7}
  s_add_u32 s42, s42, s45
  s_add_u32 s42, s42, {WS_AP}
  v_lshlrev_b32 v55, 3, {VL}
  v_add_u32 v55, s42, v55
  v_and_b32 v56, 7, {VL}
  v_lshlrev_b32 v56, 3, v56
  v_bfe_u32 v57, {VL}, 3, 1
  v_lshl_add_u32 v56, v57, 7, v56
  v_lshl_add_u32 v56, v13, 10, v56
  v_add_u32 v56, s42, v56
  v_add_u32 v57, 4096, v56
  s_lshl_b32 s42, s38, 2
  s_add_u32 s42, s42, {GT}
  v_mov_b32 v29, s42
  ds_read_b32 v50, v29
  s_mov_b32 s56, 0xf000f000
  s_mov_b32 s57, 0xf000f000
  s_mov_b32 s33, 0
  s_waitcnt vmcnt(0) lgkmcnt(0)
""")
if OPT['early']:
    a("  global_load_dwordx4 v[32:35], v62, s[26:27] sc1")
a("  s_barrier")
stamp(8)
if not OPT['early']:
    a("  global_load_dwordx4 v[32:35], v62, s[26:27] sc1")
if OPT['ffn_early']:
    a("  ds_read_b64 v[106:107], v27")
    for cb in range(7):
        a(f"  ds_read_b64_tr_b16 v[{92+2*cb}:{93+2*cb}], v25 offset:{cb*2048}")
    a("  s_waitcnt lgkmcnt(0)")
    for cb in range(7):
        a(f"  v_mfma_f32_16x16x16_bf16 v[{110+4*cb}:{113+4*cb}], v[106:107], v[{92+2*cb}:{93+2*cb}], 0")
a("  s_waitcnt vmcnt(0)")
a("  s_branch L_ochk")
a(f"""L_opoll:
  global_load_dwordx4 v[32:35], v62, s[26:27] sc1
  s_waitcnt vmcnt(0)
L_ochk:
""")
check_regs("v48", [33, 35])
poll_end("v48", "L_opoll", "L_ook")
stamp(9)
rec(12, "s33")
CHAIN = """  v_mov_b32 v52, v33
  v_mov_b32 v53, v35
  v_lshlrev_b32 v40, 16, v32       ; d0h0
  v_and_b32 v41, 0xffff0000, v32   ; d0h1
  v_permlane16_swap_b32 v52, v53
  v_lshlrev_b32 v42, 16, v34       ; d1h0
  v_and_b32 v43, 0xffff0000, v34   ; d1h1
  v_max_f32 v52, v52, v53          ; rows: h0(01) h1(01) h0(23) h1(23)
  v_mov_b32 v53, v52
  SLOT
  SLOT
  v_permlane32_swap_b32 v52, v53
  v_max_f32 v52, v52, v53
  SLOT
  SLOT
  v_max_f32_dpp v52, v52, v52 row_shr:4 row_mask:0xf bank_mask:0xf
  SLOT
  SLOT
  v_max_f32_dpp v52, v52, v52 row_shr:8 row_mask:0xf bank_mask:0xf
  SLOT
  v_readlane_b32 s42, v52, 15
  v_readlane_b32 s45, v52, 31
  SLOT
  SLOT
  v_subrev_f32 v33, s42, v33
  v_subrev_f32 v35, s45, v35
  v_exp_f32 v52, v33               ; weight h0
  v_exp_f32 v53, v35               ; weight h1
  SLOT
  v_mul_f32 v40, v40, v52
  v_mul_f32 v41, v41, v53
  v_mul_f32 v42, v42, v52
  v_mul_f32 v43, v43, v53
  SLOT
  v_permlane16_swap_b32 v40, v41
  v_permlane16_swap_b32 v42, v43
  v_permlane16_swap_b32 v52, v53
  v_add_f32 v40, v40, v41
  v_add_f32 v42, v42, v43
  v_add_f32 v52, v52, v53
  v_mov_b32 v53, v52
  SLOT
  SLOT
  v_permlane32_swap_b32 v40, v42
  v_permlane32_swap_b32 v52, v53
  v_add_f32 v40, v40, v42
  v_add_f32 v52, v52, v53          ; rows h0 h1 h0 h1
  SLOT
  v_add_f32_dpp v40, v40, v40 row_shr:4 row_mask:0xf bank_mask:0xf
  v_add_f32_dpp v52, v52, v52 row_shr:4 row_mask:0xf bank_mask:0xf
  SLOT
  v_add_f32_dpp v40, v40, v40 row_shr:8 row_mask:0xf bank_mask:0xf
  v_add_f32_dpp v52, v52, v52 row_shr:8 row_mask:0xf bank_mask:0xf
  v_mul_f32 v40, v40, v50          ; * gate
  v_rcp_f32 v52, v52"""
W2R = ["  ds_read_b64 v[106:107], v27"] + [f"  ds_read_b64_tr_b16 v[{92+2*cb}:{93+2*cb}], v25 offset:{cb*2048}" for cb in range(7)]
WOR = []
for cb in range(7):
    WOR.append(f"  ds_read_b64_tr_b16 v[{64+4*cb}:{65+4*cb}], v24 offset:{cb*4096}")
    WOR.append(f"  ds_read_b64_tr_b16 v[{66+4*cb}:{67+4*cb}], v24 offset:{cb*4096+2048}")
assert OPT['ffn_early']
queue = WOR[:]
for ln in CHAIN.split("\n"):
    if ln.strip() == "SLOT":
        a(queue.pop(0) if queue else "  s_nop 0")
    else:
        a(ln)
if STAMP == 3: stamp(11)
a(f"""  s_mov_b64 exec, s[56:57]
  v_mul_f32 v40, v40, v52
  v_cvt_pk_bf16_f32 v40, v40, v40
  ds_write_b16 v54, v40
  s_mov_b64 exec, -1
  s_waitcnt lgkmcnt(0)""")
a(f"""  s_barrier
""")
if STAMP == 3: stamp(12)
a(f"""  ds_read2_b64 v[40:43], v28 offset0:0 offset1:4
  s_waitcnt lgkmcnt(0)
""")
if STAMP == 3: stamp(13)
for cb in range(7):
    a(f"  v_mfma_f32_16x16x32_bf16 v[{110+4*cb}:{113+4*cb}], v[40:43], v[{64+4*cb}:{67+4*cb}], v[{110+4*cb}:{113+4*cb}]")
assert OPT['appad'] == 1
a("  s_mov_b32 s56, -1")
a("  s_mov_b32 s57, 0xffff")
a("  s_nop 0")
for k in (1, 2, 3):
    for h in range(2):
        a(f"  v_mov_b32_dpp v{110+h}, v{110+4*k+h} quad_perm:[0,1,2,3] row_mask:{1<<k:#x} bank_mask:0xf")
tagit("v110", "v110")
a("  global_store_dwordx2 v56, v[110:111], s[26:27] sc1")
for k in (1, 2):
    for h in range(2):
        a(f"  v_mov_b32_dpp v{126+h}, v{126+4*k+h} quad_perm:[0,1,2,3] row_mask:{1<<k:#x} bank_mask:0xf")
tagit("v126", "v126")
a("  s_mov_b64 exec, s[56:57]")
a("  global_store_dwordx2 v57, v[126:127], s[26:27] sc1")
stamp(10)
if OPT['apack']:
    a("  s_waitcnt vmcnt(0)")
    stamp(11)
a("  s_mov_b64 exec, -1")
dump_stamps()
a("  s_endpgm")

a("L_aux0:")
if STAMP in (1, 2):
    for k in range(1, 16):
        a(f"  s_mov_b32 s{64+2*k}, 0")
a(f"""  s_lshr_b32 s29, s2, 3            ; j
  s_mov_b32 s32, 0xff
  v_lshrrev_b32 v13, 4, {VL}       ; g4
  v_lshlrev_b32 v18, 4, {VL}
  v_add_u32 v21, 1024, v18
  s_waitcnt lgkmcnt(0)
  s_load_dword s31, s[26:27], {WS_E}
""")
stamp(1)
srd(52, 4, SZ['x'])
a(f"""  s_mov_b32 m0, {XB}
  s_cmp_ge_u32 s29, 16
  buffer_load_dwordx4 v18, s[52:55], 0 offen lds
  s_mov_b32 m0, {XB+1024}
  s_nop 0
  buffer_load_dwordx4 v21, s[52:55], 0 offen lds
  s_cbranch_scc1 L_aux
  s_mov_b32 s56, -1
  s_mov_b32 s57, 0x00ffffff
  s_mov_b64 exec, s[56:57]
  global_load_dwordx4 v[70:73], v18, s[4:5]
  global_load_dwordx4 v[74:77], v18, s[4:5] offset:896
  global_load_dwordx4 v[78:81], v18, s[20:21]
  s_mov_b64 exec, -1
""")
a("L_aux:")
tr_lane_setup()
for nb in range(4):
    a(f"  v_xor_b32 v{24+nb}, {nb}, v16")
    a(f"  v_lshl_add_u32 v{24+nb}, v{24+nb}, 5, v15")
    a(f"  v_add_u32 v{24+nb}, {RC}, v{24+nb}")
h_unit_index("s41", "s40", "s39")
a(f"""  v_and_b32 v28, 1, {VL}
  v_mul_u32_u24 v28, 896, v28
  v_lshl_add_u32 v28, v13, 3, v28
  s_lshl_b32 s42, s41, 7
  s_add_u32 s42, s42, {XB}
  v_add_u32 v28, s42, v28
  s_mul_i32 s42, s41, {2*7168}
  s_lshl_b32 s43, s40, 8
  s_add_u32 s42, s42, s43
  s_add_u32 s42, s42, {WS_HP}
  v_lshlrev_b32 v31, 2, {VL}
  v_add_u32 v31, s42, v31
  v_add_u32 v30, 7168, v31
  s_waitcnt lgkmcnt(0)
""")
tau_setup()
xid_value("s34")
a(f"""  s_lshl_b32 s42, s28, 7
  s_lshl_b32 s43, s29, 2
  s_add_u32 s42, s42, s43
  s_add_u32 s42, s42, {WS_XID}
  v_mov_b32 v6, s42
  v_mov_b32 v7, s34
  s_waitcnt vmcnt(0)
  s_mov_b64 exec, 1
  global_store_dword v6, v7, s[26:27] sc1
  s_mov_b64 exec, -1
  s_barrier                        ; barrier Q
  s_barrier                        ; barrier Q2
""")
stamp(2)
if OPT['tlb']:
    a(f"""  s_lshl_b32 s42, s28, 9
  s_lshl_b32 s43, s29, 4
  s_add_u32 s42, s42, s43
  s_mul_i32 s42, s42, 896
  v_mov_b32 v6, s42
  v_mov_b32 v7, 0
  s_mov_b64 exec, 1
  global_load_dword v2, v6, s[12:13] nt
  global_load_dword v2, v7, s[18:19] offset:64 nt
  global_load_dword v2, v7, s[22:23] nt
  s_mov_b64 exec, -1
""")
a("  s_cmp_lg_u32 s39, 0")
a("  s_cbranch_scc1 L_nohpub")
for st in range(2):
    a(f"  ds_read2_b64 v[{48+4*st}:{51+4*st}], v28 offset0:{8*st} offset1:{8*st+4}")
    for nb in range(4):
        r = 96 + 16*st + 4*nb
        a(f"  ds_read_b64_tr_b16 v[{r}:{r+1}], v{24+nb} offset:{st*4096}")
        a(f"  ds_read_b64_tr_b16 v[{r+2}:{r+3}], v{24+nb} offset:{st*4096+2048}")
for st in range(2):
    a(f"  s_waitcnt lgkmcnt({9 - 9*st})")
    for nb in range(4):
        r = 96 + 16*st + 4*nb
        c = "0" if st == 0 else f"v[{32+4*nb}:{35+4*nb}]"
        a(f"  v_mfma_f32_16x16x32_bf16 v[{32+4*nb}:{35+4*nb}], v[{48+4*st}:{51+4*st}], v[{r}:{r+3}], {c}")
a("  s_nop 7")
for r in range(2):
    a(f"  v_permlane16_swap_b32 v{32+r}, v{36+r}")
    a(f"  v_permlane16_swap_b32 v{40+r}, v{44+r}")
a("  s_nop 1")
for r in range(2):
    a(f"  v_permlane32_swap_b32 v{32+r}, v{40+r}")
a("  s_nop 1")
tagit("v32", "v32")
tagit("v33", "v33")
a("""  global_store_dword v31, v32, s[26:27] sc1
  global_store_dword v30, v33, s[26:27] sc1
L_nohpub:""")
stamp(5)
a("  s_cmp_ge_u32 s29, 16")
a("  s_cbranch_scc1 L_aux_a")
a("  v_mov_b32 v44, 0")
a("  v_mov_b32 v45, 0")
for r in range(4):
    a(f"  v_lshlrev_b32 v46, 16, v{78+r}")
    a(f"  v_and_b32 v47, 0xffff0000, v{78+r}")
    for b in range(2):
        a(f"  v_lshlrev_b32 v48, 16, v{70+4*b+r}")
        a(f"  v_and_b32 v49, 0xffff0000, v{70+4*b+r}")
        a(f"  v_mul_f32 v48, v48, v46")
        a(f"  v_mul_f32 v49, v49, v47")
        a(f"  v_cvt_pk_bf16_f32 v48, v48, v49")
        a(f"  v_lshlrev_b32 v49, 16, v48")
        a(f"  v_and_b32 v48, 0xffff0000, v48")
        a(f"  v_add_f32 v{44+b}, v{44+b}, v49")
        a(f"  v_add_f32 v{44+b}, v{44+b}, v48")
a(f"""  v_cmp_gt_u32 vcc, 56, {VL}
  s_nop 1
  v_cndmask_b32 v44, 0, v44, vcc
  v_cndmask_b32 v45, 0, v45, vcc
  s_nop 1
""")
for sh in (1, 2, 4, 8):
    a(f"  v_add_f32_dpp v44, v44, v44 row_shr:{sh} row_mask:0xf bank_mask:0xf")
    a(f"  v_add_f32_dpp v45, v45, v45 row_shr:{sh} row_mask:0xf bank_mask:0xf")
    a("  s_nop 0")
a(f"""  v_add_f32_dpp v44, v44, v44 row_bcast:15 row_mask:0xa bank_mask:0xf
  v_add_f32_dpp v45, v45, v45 row_bcast:15 row_mask:0xa bank_mask:0xf
  s_nop 0
  v_add_f32_dpp v44, v44, v44 row_bcast:31 row_mask:0xc bank_mask:0xf
  v_add_f32_dpp v45, v45, v45 row_bcast:31 row_mask:0xc bank_mask:0xf
  s_nop 0
  v_readlane_b32 s42, v44, 63
  v_readlane_b32 s43, v45, 63
  s_nop 1
  v_and_b32 v46, 1, {VL}
  v_cmp_eq_u32 vcc, 0, v46
  v_mov_b32 v47, s43
  v_mov_b32 v48, s42
  v_cndmask_b32 v47, v47, v48, vcc
  v_mul_f32 v47, 0xbfb8aa3b, v47   ; -log2e * z
  v_exp_f32 v47, v47
  s_nop 0
  v_add_f32 v47, 1.0, v47
  v_rcp_f32 v47, v47               ; g[b = lane&1]
  s_nop 0
  v_sub_f32 v82, 1.0, v47          ; 1-g
  v_lshlrev_b32 v46, 2, v46
  v_add_u32 v46, {GT}, v46
  s_mov_b64 exec, 3
  ds_write_b32 v46, v47
  s_mov_b64 exec, -1
  s_waitcnt lgkmcnt(0)
""")
stamp(3)
a("L_aux_a:")
a("  s_barrier")
a("  s_cmp_lt_u32 s29, 16")
a("  s_cbranch_scc1 L_aux_w")
a("  s_cmp_lt_u32 s29, 23")
a("  s_cbranch_scc1 L_final")
if OPT['wb']:
    a(f"""  s_cmp_lg_u32 s29, 31
  s_cbranch_scc1 L_nowb
  s_mul_i32 s42, s28, {64*OPS}
  s_add_u32 s42, s42, {WS_OP}
  v_mul_u32_u24 v24, {OPS}, {VL}
  v_add_u32 v24, s42, v24
  s_barrier                        ; barrier B
  s_barrier                        ; barrier C
  s_mov_b32 s33, 0
L_wbgate:
  global_load_dwordx4 v[32:35], v24, s[26:27] sc1
  s_waitcnt vmcnt(0)
""")
    check_regs("v14", [33, 35])
    poll_end("v14", "L_wbgate", "L_wbgate_ok")
    a("  buffer_wbl2 sc1")
    a("L_nowb:")
dump_stamps()
a("  s_endpgm")

a(f"""L_final:
  s_sub_u32 s36, s29, 16           ; p
  s_lshl_b32 s37, s36, 3
  s_add_u32 s37, s37, s28          ; c
  v_lshrrev_b32 v29, 2, {VL}       ; u16
  v_mul_u32_u24 v30, {APS}, v29
  v_and_b32 v31, 3, {VL}
  v_lshl_add_u32 v30, v31, 4, v30
  s_lshl_b32 s42, s37, {7 if OPT['appad'] else 6}
  s_add_u32 s42, s42, {WS_AP}
  v_add_u32 v30, s42, v30
""")
for k in range(8):
    a(f"  v_add_u32 v{16+k}, {k*16*APS}, v30")
a(f"""  ; out + b*896 + (8c + 2*c4 + (r>>1))*2
  v_and_b32 v28, 1, v13
  v_mul_u32_u24 v28, 896, v28
  v_lshl_add_u32 v28, v31, 2, v28
  v_lshrrev_b32 v29, 1, v13
  v_lshl_add_u32 v28, v29, 1, v28
  s_lshl_b32 s42, s37, 4
  v_add_u32 v28, s42, v28
  s_mov_b32 s56, 0xf000f000
  s_mov_b32 s57, 0xf000f000
  v_mov_b32 v29, {WS_E}
  s_barrier                        ; barrier B
  s_barrier                        ; barrier X1
  s_barrier                        ; barrier X2
  s_barrier                        ; barrier C
  s_mov_b32 s33, 0
""")
if OPT['fdelay']:
    a(f"""L_fd:
  s_memrealtime s[60:61]
  s_waitcnt lgkmcnt(0)
  s_sub_u32 s62, s60, s64
  s_cmp_lt_u32 s62, {OPT['fdelay']}
  s_cbranch_scc1 L_fd""")
stamp(8)
if OPT['fgate'] == 2:
    a(f"""  s_mul_i32 s42, s28, {32*OPS}
  s_add_u32 s42, s42, {WS_OP}
  v_and_b32 v24, 31, {VL}
  v_mul_u32_u24 v24, {OPS}, v24
  v_add_u32 v24, s42, v24
L_fgate:
  global_load_dwordx4 v[32:35], v24, s[26:27] sc1
  s_waitcnt vmcnt(0)
""")
    check_regs("v14", [33, 35])
    poll_end("v14", "L_fgate", "L_fgate_ok")
if OPT['fgate'] == 1:
    a(f"""  s_mul_i32 s42, s28, {16*APS}
  v_add_u32 v24, s42, v30
L_fgate:
  global_load_dwordx4 v[32:35], v24, s[26:27] sc1
  s_waitcnt vmcnt(0)
""")
    check_regs("v14", [32, 34])
    poll_end("v14", "L_fgate", "L_fgate_ok")
NS = OPT['fsets']
def fbase(i): return 32 + 32*i
def fissue(i):
    for k in range(8):
        a(f"  global_load_dwordx4 v[{fbase(i)+4*k}:{fbase(i)+4*k+3}], v{16+k}, s[26:27] sc1")
for i in range(NS):
    fissue(i)
a("L_fpoll:")
for i in range(NS):
    a(f"  s_waitcnt vmcnt({8*(NS-1)})")
    check_regs("v14", [fbase(i)+4*k+q for k in range(8) for q in (0, 2)])
    a("  v_and_b32 v14, 0xff, v14")
    a("  v_cmp_ne_u32 vcc, 0, v14")
    a("  s_add_u32 s33, s33, 1")
    a(f"  s_cmp_gt_u32 s33, {OPT['spin']}")
    a(f"  s_cbranch_scc1 L_fok{i}")
    a(f"  s_cbranch_vccz L_fok{i}")
    if OPT['fsleep']:
        a(f"  s_sleep {OPT['fsleep']}")
    fissue(i)
a("  s_branch L_fpoll")
TB = 144
for i in range(NS):
    a(f"L_fok{i}:")
    for k in range(4):
        for h in range(2):
            x = fbase(i) + 8*k + 2*h
            a(f"  v_pk_add_f32 v[{TB+4*k+2*h}:{TB+4*k+2*h+1}], v[{x}:{x+1}], v[{x+4}:{x+5}]")
    if i < NS-1:
        a("  s_branch L_fsum")
a("L_fsum:")
stamp(9)
rec(12, "s33")
for h in range(2):
    a(f"  v_pk_add_f32 v[{TB+2*h}:{TB+2*h+1}], v[{TB+2*h}:{TB+2*h+1}], v[{TB+4+2*h}:{TB+5+2*h}]")
    a(f"  v_pk_add_f32 v[{TB+8+2*h}:{TB+9+2*h}], v[{TB+8+2*h}:{TB+9+2*h}], v[{TB+12+2*h}:{TB+13+2*h}]")
for h in range(2):
    a(f"  v_pk_add_f32 v[{160+2*h}:{161+2*h}], v[{TB+2*h}:{TB+2*h+1}], v[{TB+8+2*h}:{TB+9+2*h}]")
a(f"""  s_nop 1
  v_permlane16_swap_b32 v160, v161
  v_permlane16_swap_b32 v162, v163
  v_add_f32 v160, v160, v161
  v_add_f32 v162, v162, v163
  s_nop 1
  v_permlane32_swap_b32 v160, v162
  v_add_f32 v160, v160, v162
  s_nop 1
  v_add_f32_dpp v160, v160, v160 row_shr:4 row_mask:0xf bank_mask:0xf
  s_nop 1
  v_add_f32_dpp v160, v160, v160 row_shr:8 row_mask:0xf bank_mask:0xf
  s_mov_b64 exec, s[56:57]
  v_cvt_pk_bf16_f32 v160, v160, v160
  global_store_short v28, v160, s[22:23]{' ' + OPT['outflag'].replace('_', ' ') if OPT['outflag'] != 'none' else ''}
  s_cmp_lg_u32 s37, 0
  s_cbranch_scc1 L_noE
  s_mov_b64 exec, 1
  global_store_dword v29, {VTAU}, s[26:27]{' ' + OPT['outflag'].replace('_', ' ') if OPT['outflag'] != 'none' else ''}
L_noE:
  s_mov_b64 exec, -1
""")
if OPT['deadline']:
    a(f"""L_dl:
  s_memrealtime s[56:57]
  s_waitcnt lgkmcnt(0)
  s_sub_u32 s33, s56, s96
  s_cmp_lt_u32 s33, {OPT['deadline']}
  s_cbranch_scc1 L_dl""")
stamp(10, final=True)
if OPT['dbgts']:
    a("  s_waitcnt lgkmcnt(0)")
    a("  s_cmp_lg_u32 s37, 0")
    a("  s_cbranch_scc1 L_nodbg")
    a("  s_mov_b64 exec, 1")
    a("  v_mov_b32 v8, 0")
    for q in range(4):
        for r in range(4):
            k = 4*q + r
            a(f"  s_sub_u32 s33, s{64+2*k}, s64")
            a(f"  v_mov_b32 v{12+r}, s33")
        a(f"  global_store_dwordx4 v8, v[12:15], s[24:25] offset:{16*q}")
        a("  s_nop 1")
    a("L_nodbg:")
else:
    dump_stamps()
a("  s_endpgm")

a("L_aux_w:")
a(f"""  ; h gather set-up: lanes (kp = l>>3 (0..6), b = (l>>2)&1, q4 = l&3) ; HP + (kp*2+b)*7168 + (16u + 4*q4)*4
  s_lshl_b32 s38, s28, 4
  s_add_u32 s38, s38, s29          ; u = g*16 + j
  v_lshrrev_b32 v85, 3, {VL}
  v_bfe_u32 v86, {VL}, 2, 1
  v_lshl_add_u32 v85, v85, 1, v86
  v_mul_u32_u24 v85, 7168, v85
  v_and_b32 v87, 3, {VL}
  v_lshl_add_u32 v85, v87, 4, v85
  s_lshl_b32 s42, s38, 6
  s_add_u32 s42, s42, {WS_HP}
  v_add_u32 v85, s42, v85
  v_readlane_b32 s42, v82, 0
  v_readlane_b32 s43, v82, 1
  v_cmp_eq_u32 vcc, 0, v86
  s_nop 0
  v_mov_b32 v36, s43
  v_mov_b32 v37, s42
  v_cndmask_b32 v83, v36, v37, vcc
  v_lshlrev_b32 v84, 5, v86
  v_lshl_add_u32 v84, v87, 3, v84
  v_add_u32 v84, {HV}, v84          ; HV + b*32 + q4*8
""")
a(f"""  v_mov_b32 v32, 0
  v_mov_b32 v33, 0
  v_mov_b32 v34, 0
  v_mov_b32 v35, 0
  s_mov_b32 s56, -1
  s_mov_b32 s57, 0x00ffffff
  s_mov_b32 s33, 0
  s_setprio 3
""")
if OPT['a2'] and OPT['wpos'] == 'q':
    a("  s_barrier                        ; barrier A2")
a(f"""  s_cmp_ge_u32 s38, 112
  s_cbranch_scc1 L_hskip
  s_mov_b64 exec, s[56:57]
  global_load_dwordx4 v[32:35], v85, s[26:27] sc1
  s_mov_b64 exec, -1
L_hskip:
""")
if OPT['prio']: a("  s_setprio 0")
a("""  s_barrier                        ; barrier B
  s_barrier                        ; barrier X1
  s_barrier                        ; barrier X2
""")
stamp(6)
a(f"""  s_cmp_ge_u32 s38, 112
  s_cbranch_scc1 L_hdone
  s_mov_b64 exec, s[56:57]
  s_waitcnt vmcnt(0)
  s_branch L_hchk
L_hpoll:
  global_load_dwordx4 v[32:35], v85, s[26:27] sc1
  s_waitcnt vmcnt(0)
L_hchk:
""")
check_regs("v40", range(32, 36))
poll_end("v40", "L_hpoll", "L_hok")
a("  s_mov_b64 exec, -1")
a("  s_nop 1")
for r in range(4):
    a(f"  v_add_f32_dpp v{32+r}, v{32+r}, v{32+r} row_ror:8 row_mask:0xf bank_mask:0xf")
for r in range(4):
    a(f"  v_mov_b32 v{36+r}, v{32+r}")
a("  s_nop 1")
for r in range(4):
    a(f"  v_permlane16_swap_b32 v{32+r}, v{36+r}")
for r in range(4):
    a(f"  v_add_f32 v{32+r}, v{32+r}, v{36+r}")
for r in range(4):
    a(f"  v_mov_b32 v{36+r}, v{32+r}")
a("  s_nop 1")
for r in range(4):
    a(f"  v_permlane32_swap_b32 v{32+r}, v{36+r}")
for r in range(4):
    a(f"  v_add_f32 v{32+r}, v{32+r}, v{36+r}")
a("L_hdone:")
for r in range(4):
    a(f"  v_max_f32 v{32+r}, 0, v{32+r}")
    a(f"  v_mul_f32 v{32+r}, v{32+r}, v83")
a(f"""  v_cvt_pk_bf16_f32 v32, v32, v33
  v_cvt_pk_bf16_f32 v33, v34, v35
  s_mov_b64 exec, 0xff
  ds_write_b64 v84, v[32:33]
  s_mov_b64 exec, -1
  s_waitcnt lgkmcnt(0)
""")
stamp(7)
a("  s_barrier                        ; barrier D1")
dump_stamps()
a("L_end:")
a("  s_endpgm")
a("L_code_end:")
a(footer(vgpr=240, sgpr=100))
open(sys.argv[1], "w").write(a.text())
```
